```python
import torch

def _softmax(x, axis=-1):
    return torch.softmax(x, dim=axis)

def _gelu(x):
    return torch.nn.functional.gelu(x, approximate='tanh')

def _silu(x):
    return torch.nn.functional.silu(x)

def _sigmoid(x):
    return torch.sigmoid(x)

def _layernorm(x, axis=-1, eps=1e-05):
    m = x.mean(dim=axis, keepdim=True)
    v = x.var(dim=axis, keepdim=True, unbiased=False)
    return (x - m) / torch.sqrt(v + eps)

def _scatter_add(tgt, idx, src, axis=0):
    return tgt.clone().index_add_(axis, idx, src)

def _segment_sum(src, seg, n):
    out = torch.zeros((n,) + src.shape[1:], dtype=src.dtype)
    return out.index_add_(0, seg, src)

def _pad(x, pw):
    flat = tuple((v for pair in reversed(pw) for v in pair))
    return torch.nn.functional.pad(x, flat)
kernel_name = 'adaLN_cond__memory_aug_recurrent_mem_tr__moe_arch_mod__prompt'

def setup_inputs():

    _w = lambda a: (lambda t: t.to(torch.bfloat16) if t.is_floating_point() else t)(torch.as_tensor(a))

    def _A_setup():
        B, S, Dm = (1, 2048, 448)
        H, Dh = (16, 256)
        M, seg = (8, 32)
        seg = min(seg, S)
        S = S // seg * seg
        return {'x': _w((lambda *s: torch.randn(*s, dtype=torch.bfloat16) * 0.05)(B, S, Dm)), 'mem0': _w((lambda *s: torch.randn(*s, dtype=torch.bfloat16) * 0.4)(B, M, Dm)), 'Wq': _w((lambda *s: torch.randn(*s, dtype=torch.bfloat16) * 3.2)(Dm, H, Dh) * Dm ** (-0.5)), 'Wk': _w((lambda *s: torch.randn(*s, dtype=torch.bfloat16) * 3.2)(Dm, H, Dh) * Dm ** (-0.5)), 'Wv': _w((lambda *s: torch.randn(*s, dtype=torch.bfloat16) * 0.4)(Dm, H, Dh) * Dm ** (-0.5)), 'Wo': _w((lambda *s: torch.randn(*s, dtype=torch.bfloat16) * 0.4)(H, Dh, Dm) * (H * Dh) ** (-0.5)), 'seg_len': seg}
    _A_in = _A_setup()

    def _B_setup():
        B, S, D, F, C = (1, 2048, 448, 1792, 2)
        return {'x': _w((lambda *s: torch.randn(*s, dtype=torch.bfloat16) * 0.05)(B, S, D)), 'w_r': _w((lambda *s: torch.randn(*s, dtype=torch.bfloat16) * 3.2)(D)), 'w_gate': _w((lambda *s: torch.randn(*s, dtype=torch.bfloat16) * 0.1)(D, F)), 'w_up': _w((lambda *s: torch.randn(*s, dtype=torch.bfloat16) * 0.1)(D, F)), 'w_down': _w((lambda *s: torch.randn(*s, dtype=torch.bfloat16) * 0.1)(F, D))}
    _B_in = _B_setup()
    return {'A_x': _A_in['x'], 'A_mem0': _A_in['mem0'], 'A_Wq': _A_in['Wq'], 'A_Wk': _A_in['Wk'], 'A_Wv': _A_in['Wv'], 'A_Wo': _A_in['Wo'], 'A_seg_len': _A_in['seg_len'], 'B_x': _B_in['x'], 'B_w_r': _B_in['w_r'], 'B_w_gate': _B_in['w_gate'], 'B_w_up': _B_in['w_up'], 'B_w_down': _B_in['w_down'], 'c': _w((lambda *s: torch.randn(*s, dtype=torch.bfloat16) * 0.1)(1, 448) * 8.0), 'w_mod': _w((lambda *s: torch.randn(*s, dtype=torch.bfloat16) * 0.1)(448, 6 * 448) * 448 ** (-0.5) * 8.0)}

def reference(A_x, A_mem0, A_Wq, A_Wk, A_Wv, A_Wo, A_seg_len, B_x, B_w_r, B_w_gate, B_w_up, B_w_down, c, w_mod):

    def _A_ref(x, mem0, Wq, Wk, Wv, Wo, seg_len):
        B, S, Dm = x.shape
        H, Dh = (Wq.shape[1], Wq.shape[2])
        M = mem0.shape[1]
        scale = Dh ** (-0.5)
        n_seg = S // seg_len
        L = M + seg_len
        idx = torch.arange(L)
        mask = (idx[:, None] < M) | (idx[:, None] >= idx[None, :])
        mem = mem0
        outs = []
        for s in range(n_seg):
            xs = x[:, s * seg_len:(s + 1) * seg_len, :].clone()
            h = torch.concatenate([mem, xs], axis=1)
            q = torch.einsum('btd,dhe->bhte', h, Wq)
            k = torch.einsum('btd,dhe->bhte', h, Wk)
            v = torch.einsum('btd,dhe->bhte', h, Wv)
            scores = torch.einsum('bhqe,bhke->bhqk', q, k) * scale
            scores = torch.where(mask[None, None], scores, -1000000000.0)
            p = _softmax(scores, axis=-1)
            o = torch.einsum('bhqk,bhke->bhqe', p, v)
            o = torch.einsum('bhte,hed->btd', o, Wo)
            mem = o[:, :M, :].clone()
            outs.append(o[:, M:, :])
        return torch.concatenate(outs, axis=1)

    def _B_ref(x, w_r, w_gate, w_up, w_down):
        B, S, D = x.shape
        C = 2
        r = x @ w_r
        idx = torch.argsort(-r, axis=-1)[:, :C]
        idx_e = (lambda x, n, axis: torch.repeat_interleave(x, n, dim=axis))(idx.reshape(B, C, 1), D, axis=2)
        x_sel = (lambda x, i, axis: torch.take_along_dim(x, i, dim=axis))(x, idx_e, axis=1)
        g = _silu(x_sel @ w_gate)
        u = x_sel @ w_up
        y = g * u @ w_down
        r_sel = _sigmoid((lambda x, i, axis: torch.take_along_dim(x, i, dim=axis))(r, idx, axis=1))
        y = y * r_sel.reshape(B, C, 1)
        b_off = (torch.arange(B) * S).reshape(B, 1)
        flat_idx = (idx + b_off).reshape(B * C)
        zero = (x * 0.0).reshape(B * S, D)
        upd = _scatter_add(zero, flat_idx, y.reshape(B * C, D), axis=0)
        return x + upd.reshape(B, S, D)
    x = A_x
    mod = (_silu(c) @ w_mod).reshape(c.shape[0], 6, 1, -1)
    sa, ca, ga, sb, cb, gb = (mod[:, 0].clone(), mod[:, 1].clone(), mod[:, 2].clone(), mod[:, 3].clone(), mod[:, 4].clone(), mod[:, 5].clone())
    h = _layernorm(x, axis=-1) * (1 + ca) + sa
    x = x + ga * _A_ref(h, A_mem0, A_Wq, A_Wk, A_Wv, A_Wo, A_seg_len)
    h = _layernorm(x, axis=-1) * (1 + cb) + sb
    x = x + gb * _B_ref(h, B_w_r, B_w_gate, B_w_up, B_w_down)
    return x
```

```python
class Asm:
    def __init__(self):
        self.L=[]
        self.uid=0
    def __call__(self, s):
        for line in s.split("\n"):
            line=line.strip()
            if line: self.L.append("    "+line)
    def label(self, n): self.L.append(f"{n}:")
    def newlabel(self, base):
        self.uid+=1; return f"{base}_{self.uid}"
    def nop(self, n):
        while n>0:
            k=min(n,16); self(f"s_nop {k-1}"); n-=k
    def text(self): return "\n".join(self.L)+"\n"

def vr(b,n): return f"v[{b}:{b+n-1}]" if n>1 else f"v{b}"
def ar(b,n): return f"a[{b}:{b+n-1}]" if n>1 else f"a{b}"
def sr(b,n): return f"s[{b}:{b+n-1}]" if n>1 else f"s{b}"

def interleave(a, mains, fillers, per_gap=3):
    q=list(fillers); qi=0
    for i,m in enumerate(mains):
        a(m)
        n=0
        while qi<len(q) and n<per_gap and q[qi][0]<=i:
            a(q[qi][1]); qi+=1
            n+=1
    rest=q[qi:]
    return rest

KD = """
.section .rodata,"a"
.p2align 6
.amdhsa_kernel {name}
  .amdhsa_next_free_vgpr {vgpr}
  .amdhsa_next_free_sgpr {sgpr}
  .amdhsa_accum_offset {accum}
  .amdhsa_group_segment_fixed_size 0
  .amdhsa_kernarg_size 136
  .amdhsa_user_sgpr_count 2
  .amdhsa_user_sgpr_kernarg_segment_ptr 1
  .amdhsa_system_sgpr_workgroup_id_x 1
.end_amdhsa_kernel
"""
def kernel_text(name, body, vgpr=512, sgpr=102, accum=256):
    t=f".text\n.globl {name}\n.p2align 8\n.type {name},@function\n{name}:\n"+body+"    s_endpgm\n"
    return t, KD.format(name=name,vgpr=vgpr,sgpr=sgpr,accum=accum)
def file_text(header_lines, kernels):
    t="".join("; "+h+"\n" for h in header_lines)
    t+='.amdgcn_target "amdgcn-amd-amdhsa--gfx950"\n'
    kds=""
    for (n,b,v,s,ac) in kernels:
        k,kd=kernel_text(n,b,v,s,ac); t+=k; kds+=kd
    return t+kds
```

```python
from asmlib import *
import layout as LY
WS_BYTES = 268435456
KA = dict(x=0, mem0=8, Wq=16, Wk=24, Wv=32, Wo=40, seg=48, Bx=56, wr=64, wg=72, wu=80, wd=88, c=96, wmod=104, out=112, dbg=120, ws=128)
SZ = dict(x=1835008, mem0=7168, Wq=3670016, Wk=3670016, Wv=3670016, Wo=3670016, wr=896, wg=1605632, wu=1605632, wd=1605632, c=896, wmod=2408448, out=1835008, dbg=256, ws=WS_BYTES)
def load_srd(a, d, name, tmp):
    a(f"s_load_dwordx2 s[{tmp}:{tmp+1}], s[0:1], {KA[name]}")
def mk_srd(a, d, name, tmp):
    a(f"s_mov_b32 s{d}, s{tmp}"); a(f"s_and_b32 s{d+1}, s{tmp+1}, 0xffff"); a(f"s_mov_b32 s{d+2}, {SZ[name]}"); a(f"s_mov_b32 s{d+3}, 0x20000")
def srds(a, spec, tmp0=60):
    for i,(d,n) in enumerate(spec): load_srd(a,d,n,tmp0+2*i)
    a("s_waitcnt lgkmcnt(0)")
    for i,(d,n) in enumerate(spec): mk_srd(a,d,n,tmp0+2*i)
def S4(d): return f"s[{d}:{d+3}]"
def xred(a, op, r, t):
    a("s_nop 1"); a(f"{op}_dpp v{r}, v{r}, v{r} row_ror:8 row_mask:0xf bank_mask:0xf")
    a(f"v_mov_b32 v{t}, v{r}"); a("s_nop 1"); a(f"v_permlane16_swap_b32 v{r}, v{t}"); a(f"{op} v{r}, v{r}, v{t}")
    a(f"v_mov_b32 v{t}, v{r}"); a("s_nop 1"); a(f"v_permlane32_swap_b32 v{r}, v{t}"); a(f"{op} v{r}, v{r}, v{t}")
def xred_g(a, op, r, t):
    a(f"v_mov_b32 v{t}, v{r}"); a("s_nop 1"); a(f"v_permlane16_swap_b32 v{r}, v{t}"); a(f"{op} v{r}, v{r}, v{t}")
    a(f"v_mov_b32 v{t}, v{r}"); a("s_nop 1"); a(f"v_permlane32_swap_b32 v{r}, v{t}"); a(f"{op} v{r}, v{r}, v{t}")
def unpack_lo(a, dst, src): a(f"v_lshlrev_b32 v{dst}, 16, v{src}")
def unpack_hi(a, dst, src): a(f"v_and_b32 v{dst}, 0xffff0000, v{src}")
```

```python
from common_k import *
import math
SC = math.log2(math.e)/16.0
import struct
def f2u(x): return struct.unpack('<I',struct.pack('<f',x))[0]

def gemm_job(a):
    a("s_mul_i32 s20, s2, 9363"); a("s_lshr_b32 s20, s20, 16")
    a("s_mul_i32 s21, s20, 7"); a("s_sub_u32 s21, s2, s21")
    a("s_and_b32 s23, s20, 15")
    a("s_and_b32 s24, s22, 1"); a("s_lshl_b32 s25, s21, 1"); a("s_add_u32 s24, s24, s25")
    a("s_lshr_b32 s26, s22, 1")
    a("v_and_b32 v2, 31, v1"); a("v_lshrrev_b32 v3, 5, v1")
    a("v_lshrrev_b32 v4, 4, v2"); a("v_lshlrev_b32 v4, 5, v4")
    a("v_bfe_u32 v5, v2, 1, 1"); a("v_lshlrev_b32 v5, 3, v5"); a("v_add_u32 v4, v4, v5")
    a("v_and_b32 v5, 4, v2"); a("v_add_u32 v4, v4, v5")
    a("v_bfe_u32 v5, v2, 3, 1"); a("v_lshlrev_b32 v5, 1, v5"); a("v_add_u32 v4, v4, v5")
    a("v_and_b32 v5, 1, v2"); a("v_add_u32 v4, v4, v5")
    a("v_lshlrev_b32 v4, 13, v4"); a("v_lshlrev_b32 v5, 4, v3"); a("v_add_u32 v4, v4, v5")
    a("v_mul_u32_u24 v6, 896, v2"); a("v_lshlrev_b32 v5, 5, v3"); a("v_add_u32 v6, v6, v5")
    ACC=32
    for r in range(ACC,ACC+112): a(f"v_mov_b32 v{r}, 0")
    for i in range(7):
        a(f"s_mul_i32 s27, s26, 7"); a(f"s_add_u32 s27, s27, {i}")
        a("s_lshr_b32 s28, s27, 1"); a("s_lshl_b32 s28, s28, 6"); a("s_and_b32 s29, s27, 1"); a("s_lshl_b32 s29, s29, 4"); a("s_add_u32 s28, s28, s29")
        a(f"s_lshl_b32 s28, s28, 13"); a("s_lshl_b32 s29, s23, 9"); a(f"s_add_u32 s{30+i}, s28, s29")
    AB=144
    BB=200
    a("s_cmp_ge_u32 s20, 16"); a("s_cbranch_scc1 L_gU")
    a("v_lshlrev_b32 v7, 13, v2"); a("v_lshlrev_b32 v5, 4, v3"); a("v_add_u32 v7, v7, v5")
    a("s_lshl_b32 s37, s24, 18"); a("s_lshl_b32 s29, s23, 9"); a("s_add_u32 s37, s37, s29")
    def loadsA(buf,kk):
        for i in range(7): a(f"buffer_load_dwordx4 {vr(AB+28*buf+4*i,4)}, v4, {S4(8)}, s{30+i} offen offset:{kk*32}")
    def loadB(buf,kk): a(f"buffer_load_dwordx4 {vr(BB+4*buf,4)}, v7, {S4(12)}, s37 offen offset:{kk*32}")
    loadsA(0,0); loadB(0,0)
    for kk in range(16):
        b=kk&1
        if kk<15: loadsA(b^1,kk+1); loadB(b^1,kk+1); a("s_waitcnt vmcnt(8)")
        else: a("s_waitcnt vmcnt(0)")
        for i in range(7): a(f"v_mfma_f32_32x32x16_bf16 {vr(ACC+16*i,16)}, {vr(AB+28*b+4*i,4)}, {vr(BB+4*b,4)}, {vr(ACC+16*i,16)}")
    a(f"s_mov_b32 s38, {f2u(SC):#x}")
    a("s_mul_i32 s39, s23, 448")
    a("s_branch L_gEp")
    a.label("L_gU")
    PITCH=80
    a("v_lshrrev_b32 v8, 2, v1"); a("v_and_b32 v9, 3, v1")
    a("v_mul_u32_u24 v10, 896, v8"); a("v_lshlrev_b32 v11, 4, v9"); a("v_add_u32 v10, v10, v11")
    a(f"v_mul_u32_u24 v12, {PITCH}, v8"); a("v_add_u32 v12, v12, v11")
    a(f"s_mul_i32 s40, s22, {256*PITCH}"); a("v_add_u32 v12, s40, v12")
    a(f"s_mul_i32 s37, s23, {256*896}"); a("s_lshl_b32 s29, s24, 6"); a("s_add_u32 s37, s37, s29")
    loadsA(0,0)
    T=208
    for half in range(2):
        for i in range(8):
            a(f"buffer_load_dwordx4 {vr(T+4*i,4)}, v10, {S4(12)}, s37 offen"); a(f"s_add_u32 s37, s37, {16*896}")
        for i in range(8):
            a(f"s_waitcnt vmcnt({7-i})")
            a(f"ds_write_b128 v12, {vr(T+4*i,4)} offset:{(half*8+i)*16*PITCH}")
    a("v_and_b32 v8, 15, v1"); a("v_lshrrev_b32 v9, 2, v8"); a("v_lshlrev_b32 v11, 3, v3"); a("v_add_u32 v9, v9, v11")
    a(f"v_mul_u32_u24 v13, {PITCH}, v9"); a("v_and_b32 v9, 3, v8"); a("v_lshlrev_b32 v9, 3, v9"); a("v_add_u32 v13, v13, v9")
    a("v_bfe_u32 v9, v1, 4, 1"); a("v_lshlrev_b32 v9, 5, v9"); a("v_add_u32 v13, v13, v9"); a("v_add_u32 v13, s40, v13")
    a("s_waitcnt lgkmcnt(0)")
    def trB(buf,kk):
        a(f"ds_read_b64_tr_b16 {vr(BB+4*buf,2)}, v13 offset:{16*kk*PITCH}")
        a(f"ds_read_b64_tr_b16 {vr(BB+4*buf+2,2)}, v13 offset:{(16*kk+4)*PITCH}")
    trB(0,0)
    for kk in range(16):
        b=kk&1
        if kk<15: loadsA(b^1,kk+1); trB(b^1,kk+1); a("s_waitcnt vmcnt(7) lgkmcnt(2)")
        else: a("s_waitcnt vmcnt(0) lgkmcnt(0)")
        for i in range(7): a(f"v_mfma_f32_32x32x16_bf16 {vr(ACC+16*i,16)}, {vr(AB+28*b+4*i,4)}, {vr(BB+4*b,4)}, {vr(ACC+16*i,16)}")
    a(f"s_mov_b32 s38, 1.0")
    a("s_mul_i32 s39, s23, 448"); a("s_add_u32 s39, s39, 7168")
    a.label("L_gEp")
    a.nop(16)
    a("s_lshl_b32 s29, s24, 5"); a("s_add_u32 s39, s39, s29"); a("s_mul_i32 s39, s39, 896"); a(f"s_add_u32 s39, s39, {LY.WP}")
    for i in range(7):
        a(f"s_mul_i32 s27, s26, 7"); a(f"s_add_u32 s27, s27, {i}")
        a("s_lshr_b32 s28, s27, 1"); a("s_lshl_b32 s28, s28, 7"); a("s_and_b32 s29, s27, 1"); a("s_lshl_b32 s29, s29, 6"); a("s_add_u32 s28, s28, s29"); a("s_add_u32 s28, s28, s39")
        for r in range(16): a(f"v_mul_f32 v{ACC+16*i+r}, s38, v{ACC+16*i+r}")
        for r in range(8): a(f"v_cvt_pk_bf16_f32 v{T+r}, v{ACC+16*i+2*r}, v{ACC+16*i+2*r+1}")
        a(f"buffer_store_dwordx4 {vr(T,4)}, v6, {S4(16)}, s28 offen"); a(f"buffer_store_dwordx4 {vr(T+4,4)}, v6, {S4(16)}, s28 offen offset:16")
        a("s_nop 1")

def mod_job(a):
    a("s_sub_u32 s20, s2, 224")
    a("v_and_b32 v2, 15, v0"); a("v_lshrrev_b32 v3, 4, v0")
    a("v_mul_u32_u24 v4, 56, v3")
    for j in range(28): a(f"buffer_load_ushort v{32+j}, v4, {S4(12)}, 0 offen offset:{2*j}")
    a("v_mul_u32_u24 v5, 28, v3"); a("s_movk_i32 s21, 5376"); a("v_mul_lo_u32 v5, v5, s21"); a("v_lshlrev_b32 v6, 4, v2"); a("v_add_u32 v5, v5, v6")
    a("s_lshl_b32 s22, s20, 8")
    for j in range(28):
        a(f"buffer_load_dwordx4 {vr(64+4*j,4)}, v5, {S4(8)}, s22 offen"); a("s_add_u32 s22, s22, 5376")
    a("s_waitcnt vmcnt(28)")
    for j in range(28):
        r=32+j
        a(f"v_lshlrev_b32 v{r}, 16, v{r}")
        a(f"v_mul_f32 v7, 0xbfb8aa3b, v{r}"); a("v_exp_f32 v7, v7"); a("s_nop 0"); a("v_add_f32 v7, 1.0, v7"); a("v_rcp_f32 v7, v7"); a("s_nop 0")
        a(f"v_mul_f32 v{r}, v{r}, v7"); a(f"v_cvt_pk_bf16_f32 v{r}, v{r}, v{r}"); a(f"v_lshlrev_b32 v{r}, 16, v{r}")
    for r in range(8,16): a(f"v_mov_b32 v{r}, 0")
    for j in range(28):
        a(f"s_waitcnt vmcnt({27-j})")
        for q in range(4):
            a(f"v_lshlrev_b32 v16, 16, v{64+4*j+q}"); a(f"v_and_b32 v17, 0xffff0000, v{64+4*j+q}")
            a(f"v_fmac_f32 v{8+2*q}, v16, v{32+j}"); a(f"v_fmac_f32 v{9+2*q}, v17, v{32+j}")
    a("v_lshlrev_b32 v18, 9, v3"); a("v_lshlrev_b32 v19, 5, v2"); a("v_add_u32 v18, v18, v19")
    a("ds_write_b128 v18, v[8:11]"); a("ds_write_b128 v18, v[12:15] offset:16")
    a("s_waitcnt lgkmcnt(0)"); a("s_barrier")
    a("v_cmp_gt_u32 vcc, 128, v0"); a("s_and_saveexec_b64 s[24:25], vcc"); a("s_cbranch_execz L_modend")
    a("v_lshlrev_b32 v18, 2, v0")
    for g in range(16): a(f"ds_read_b32 v{32+g}, v18 offset:{g*512}")
    a("s_waitcnt lgkmcnt(0)")
    for g in range(1,16): a(f"v_add_f32 v32, v32, v{32+g}")
    a("v_cvt_pk_bf16_f32 v32, v32, v32"); a("v_lshlrev_b32 v32, 16, v32")
    a("s_lshl_b32 s22, s20, 9"); a(f"s_add_u32 s22, s22, {LY.MOD}")
    a(f"buffer_store_dword v32, v18, {S4(16)}, s22 offen")
    a.label("L_modend")
    a("s_mov_b64 exec, s[24:25]")

def poison_job(a):
    a("s_sub_u32 s20, s2, 245")
    for r in range(8,12): a(f"v_mov_b32 v{r}, -1")
    a("v_lshlrev_b32 v2, 4, v0")
    regions=[(LY.MEM+7168,64*7168),(LY.PX,64*16*512),(LY.PM,64*4*512)]
    for (o,n) in regions:
        assert n%4096==0
        lab=a.newlabel("L_pz")
        a(f"s_lshl_b32 s21, s20, 12"); a(f"s_add_u32 s21, s21, {o}")
        a.label(lab)
        a(f"s_cmp_lt_u32 s21, {o+n}"); a(f"s_cbranch_scc0 {lab}_e")
        a(f"buffer_store_dwordx4 v[8:11], v2, {S4(16)}, s21 offen")
        a(f"s_add_u32 s21, s21, {11*4096}"); a(f"s_branch {lab}")
        a.label(lab+"_e")
    a("s_cmp_eq_u32 s20, 0"); a("s_cbranch_scc0 L_pzend")
    for half in range(2):
        a(f"v_add_u32 v3, {256*half}, v0")
        a("v_cmp_gt_u32 vcc, 448, v3"); a("s_and_saveexec_b64 s[24:25], vcc")
        a("v_and_b32 v4, 7, v3"); a("v_mul_u32_u24 v4, 896, v4"); a("v_lshrrev_b32 v5, 3, v3"); a("v_lshlrev_b32 v5, 4, v5"); a("v_add_u32 v4, v4, v5")
        a(f"buffer_load_dwordx4 v[12:15], v4, {S4(8)}, 0 offen"); a("s_waitcnt vmcnt(0)")
        a("v_lshlrev_b32 v5, 4, v3"); a(f"s_mov_b32 s21, {LY.MEM}")
        a(f"buffer_store_dwordx4 v[12:15], v5, {S4(16)}, s21 offen")
        a("s_mov_b64 exec, s[24:25]")
    a.label("L_pzend")

def gen_k0a():
    a=Asm()
    a("s_cmp_lt_u32 s2, 256"); a("s_cbranch_scc0 L_end")
    a("v_and_b32 v1, 63, v0"); a("v_lshrrev_b32 v2, 6, v0"); a("s_nop 0"); a("v_readfirstlane_b32 s22, v2")
    for n,t in (('Wq',60),('Wk',62),('Wv',64),('Wo',66),('ws',68),('wmod',70),('c',72),('mem0',74)): a(f"s_load_dwordx2 s[{t}:{t+1}], s[0:1], {KA[n]}")
    a("s_waitcnt lgkmcnt(0)")
    mk_srd(a,16,'ws',68)
    a("s_cmp_lt_u32 s2, 224"); a("s_cbranch_scc0 L_notg")
    a("s_cmp_lt_u32 s2, 112"); a("s_cbranch_scc0 L_isU")
    mk_srd(a,8,'Wq',60); mk_srd(a,12,'Wk',62); a("s_branch L_gj")
    a.label("L_isU"); mk_srd(a,8,'Wv',64); mk_srd(a,12,'Wo',66)
    a.label("L_gj"); gemm_job(a); a("s_branch L_end")
    a.label("L_notg")
    a("s_cmp_lt_u32 s2, 245"); a("s_cbranch_scc0 L_pz")
    mk_srd(a,8,'wmod',70); mk_srd(a,12,'c',72); mod_job(a); a("s_branch L_end")
    a.label("L_pz"); mk_srd(a,8,'mem0',74); poison_job(a)
    a.label("L_end"); a("s_waitcnt vmcnt(0)")
    return a.text()
K0A_LDS=4*256*80

def ln_stats(a, X, n, s, t, t2):
    a(f"v_add_f32 v{s}, v{X}, v{X+1}")
    for i in range(2,n): a(f"v_add_f32 v{s}, v{s}, v{X+i}")
    xred(a,"v_add_f32",s,t)
    a(f"v_mul_f32 v{s}, {f2u(1/448):#x}, v{s}")
    for i in range(n): a(f"v_sub_f32 v{X+i}, v{X+i}, v{s}")
    a(f"v_mul_f32 v{s+1}, v{X}, v{X}")
    for i in range(1,n): a(f"v_fmac_f32 v{s+1}, v{X+i}, v{X+i}")
    xred(a,"v_add_f32",s+1,t)
    a(f"v_mov_b32 v{t}, {f2u(1e-5):#x}"); a(f"v_fmac_f32 v{t}, {f2u(1/448):#x}, v{s+1}")
    a(f"v_rsq_f32 v{s+1}, v{t}"); a("s_nop 0")

def gen_k0b():
    a=Asm()
    a("s_cmp_lt_u32 s2, 64"); a("s_cbranch_scc0 L_end")
    a("v_and_b32 v1, 63, v0"); a("v_lshrrev_b32 v2, 6, v0")
    srds(a,[(8,'x'),(16,'ws')])
    a("v_and_b32 v3, 7, v1"); a("v_lshrrev_b32 v4, 3, v1")
    a("v_lshlrev_b32 v5, 3, v2"); a("v_add_u32 v5, v5, v3")
    a("v_mul_u32_u24 v6, 896, v5"); a("v_lshlrev_b32 v7, 4, v4"); a("v_add_u32 v6, v6, v7")
    a("s_mul_i32 s20, s2, 28672")
    for i in range(7): a(f"buffer_load_dwordx4 {vr(32+4*i,4)}, v6, {S4(8)}, s20 offen offset:{128*i}")
    a("v_lshlrev_b32 v8, 5, v4"); a(f"s_mov_b32 s21, {LY.MOD}"); a(f"s_mov_b32 s22, {LY.MOD+448*4}")
    for i in range(7):
        a(f"buffer_load_dwordx4 {vr(128+8*i,4)}, v8, {S4(16)}, s21 offen offset:{256*i}"); a(f"buffer_load_dwordx4 {vr(128+8*i+4,4)}, v8, {S4(16)}, s21 offen offset:{256*i+16}")
        a(f"buffer_load_dwordx4 {vr(192+8*i,4)}, v8, {S4(16)}, s22 offen offset:{256*i}"); a(f"buffer_load_dwordx4 {vr(192+8*i+4,4)}, v8, {S4(16)}, s22 offen offset:{256*i+16}")
    a("s_waitcnt vmcnt(28)")
    X=64
    for i in range(7):
        for q in range(4): unpack_lo(a,X+8*i+2*q,32+4*i+q); unpack_hi(a,X+8*i+2*q+1,32+4*i+q)
    ln_stats(a,X,56,10,12,13)
    a("s_waitcnt vmcnt(0)")
    for k in range(56):
        a(f"v_mul_f32 v{X+k}, v{X+k}, v11"); a(f"v_add_f32 v{192+k}, 1.0, v{192+k}"); a(f"v_fma_f32 v{X+k}, v{X+k}, v{192+k}, v{128+k}")
    for i in range(7):
        for q in range(4): a(f"v_cvt_pk_bf16_f32 v{32+4*i+q}, v{X+8*i+2*q}, v{X+8*i+2*q+1}")
    a("v_lshlrev_b32 v14, 9, v4"); a("v_lshlrev_b32 v15, 4, v5"); a("v_add_u32 v14, v14, v15")
    a(f"s_add_u32 s23, s20, {LY.HFRAG}")
    for i in range(7): a(f"buffer_store_dwordx4 {vr(32+4*i,4)}, v14, {S4(16)}, s23 offen" + (f" offset:0" if False else "")); a("s_add_u32 s23, s23, 4096")
    a("v_lshrrev_b32 v16, 2, v4"); a("v_lshlrev_b32 v16, 9, v16")
    a("v_bfe_u32 v17, v4, 1, 1"); a("v_lshlrev_b32 v17, 11, v17"); a("v_add_u32 v16, v16, v17")
    a("v_and_b32 v17, 1, v4"); a("v_lshlrev_b32 v17, 2, v17"); a("v_add_u32 v16, v16, v17"); a("v_add_u32 v16, v16, v15")
    a(f"s_add_u32 s23, s20, {LY.HPERM}")
    for i in range(7):
        for d in range(4):
            a(f"buffer_store_dword v{32+4*i+d}, v16, {S4(16)}, s23 offen offset:{(d>>1)*1024+(d&1)*8}")
        a("s_add_u32 s23, s23, 4096")
    a.label("L_end"); a("s_waitcnt vmcnt(0)")
    return a.text()
if __name__=="__main__":
    print(len(gen_k0a().splitlines()), len(gen_k0b().splitlines()))
```

```python
from common_k import *
L_H0=0; L_H1=28672
K1_LDS=2*28672
def producer(a, WS, st="", nseg=32, after_seg=None):
    W=S4(WS)
    a("s_and_b32 s21, s20, 1")
    a("s_lshr_b32 s23, s20, 1"); a("s_lshl_b32 s23, s23, 2"); a("s_add_u32 s23, s23, s22")
    a("v_and_b32 v2, 31, v1"); a("v_lshrrev_b32 v3, 5, v1")
    a("v_and_b32 v4, 0x13, v2"); a("v_bfe_u32 v5, v2, 2, 1"); a("v_lshlrev_b32 v5, 3, v5"); a("v_or_b32 v4, v4, v5")
    a("v_bfe_u32 v5, v2, 3, 1"); a("v_lshlrev_b32 v5, 2, v5"); a("v_or_b32 v4, v4, v5")
    a("s_cmp_lt_u32 s23, 224"); a("s_cselect_b64 vcc, -1, 0"); a("s_cselect_b32 s24, 1, 0")
    a("s_nop 1")
    a("v_cndmask_b32 v6, v2, v4, vcc")
    a("v_cndmask_b32 v7, v4, v2, vcc")
    a("v_mul_u32_u24 v6, 896, v6"); a("v_lshlrev_b32 v5, 4, v3"); a("v_add_u32 v6, v6, v5")
    a(f"s_mul_i32 s25, s23, {32*896}"); a(f"s_add_u32 s25, s25, {LY.WP}")
    WR=32
    for kk in range(28): a(f"buffer_load_dwordx4 {vr(WR+4*kk,4)}, v6, {W}, s25 offen offset:{kk*32}")
    a("v_lshlrev_b32 v8, 9, v3"); a("v_lshlrev_b32 v5, 4, v7"); a("v_add_u32 v8, v8, v5")
    a("v_lshrrev_b32 v10, 4, v2"); a("v_and_b32 v11, 15, v2"); a("v_lshlrev_b32 v12, 4, v3"); a("v_add_u32 v11, v11, v12"); a("v_lshlrev_b32 v11, 4, v11")
    a("v_lshlrev_b32 v12, 10, v10"); a("v_lshlrev_b32 v13, 14, v10"); a("v_cndmask_b32 v12, v13, v12, vcc"); a("v_add_u32 v9, v11, v12")
    a("s_cmp_lt_u32 s23, 224"); a("s_cselect_b32 s28, 0, 224"); a("s_sub_u32 s28, s23, s28")
    a("s_mul_i32 s29, s28, 4682"); a("s_lshr_b32 s29, s29, 16")
    a("s_mul_i32 s30, s29, 14"); a("s_sub_u32 s30, s28, s30")
    lT=a.newlabel("L_pT"); lJ=a.newlabel("L_pJ")
    a(f"s_cmp_eq_u32 s24, 1"); a(f"s_cbranch_scc1 {lT}")
    a("s_lshl_b32 s26, s30, 15"); a("s_lshl_b32 s31, s29, 10"); a("s_add_u32 s26, s26, s31"); a(f"s_add_u32 s26, s26, {LY.BFRAG}"); a(f"s_mov_b32 s27, {28*16384}")
    a(f"s_branch {lJ}")
    a.label(lT)
    a("s_mul_i32 s26, s29, 28672"); a("s_lshl_b32 s31, s30, 11"); a("s_add_u32 s26, s26, s31"); a(f"s_add_u32 s26, s26, {LY.TFRAG}"); a(f"s_mov_b32 s27, {16*28672}")
    a.label(lJ)
    a("s_mul_i32 s31, s21, s27"); a("s_add_u32 s26, s26, s31"); a("s_lshl_b32 s27, s27, 1")
    a("v_lshlrev_b32 v14, 4, v1")
    a(f"s_mul_i32 s32, s21, 28672"); a(f"s_mul_i32 s31, s22, 7168"); a("s_add_u32 s32, s32, s31"); a(f"s_add_u32 s32, s32, {LY.HPERM}")
    a("s_mov_b32 s33, s31")
    a("s_mov_b32 s34, 0")
    def dma():
        a("s_add_u32 s35, s33, s34"); a("s_mov_b32 m0, s35"); a("s_nop 0")
        for i in range(4): a(f"buffer_load_dwordx4 v14, {W}, s32 offen offset:{i*1024} lds")
        a("s_add_u32 s35, s35, 4096"); a("s_add_u32 s36, s32, 4096"); a("s_mov_b32 m0, s35"); a("s_nop 0")
        for i in range(3): a(f"buffer_load_dwordx4 v14, {W}, s36 offen offset:{i*1024} lds")
        a(f"s_add_u32 s32, s32, {2*28672}")
    dma()
    a("s_mov_b32 s37, 0")
    ACC=144; TB=160; OUT=176
    lab=a.newlabel("L_pl")
    a("s_waitcnt vmcnt(0)")
    a.label(lab)
    a("s_waitcnt vmcnt(2)")
    a("s_barrier")
    a(f"v_add_u32 v15, s34, v8")
    a("s_xor_b32 s34, s34, 28672")
    l2=a.newlabel("L_pn")
    a(f"s_cmp_lt_u32 s37, {nseg-1}"); a(f"s_cbranch_scc0 {l2}")
    dma()
    a.label(l2)
    for r in range(ACC,ACC+16): a(f"v_mov_b32 v{r}, 0")
    for variant in (1,0):
        lv=a.newlabel("L_pv")
        if variant==1: a(f"s_cmp_eq_u32 s24, 1"); a(f"s_cbranch_scc0 {lv}_b")
        else: a.label(f"{prev}_b")
        for k in range(2): a(f"ds_read_b128 {vr(TB+4*k,4)}, v15 offset:{k*1024}")
        for kk in range(28):
            if kk+2<28: a(f"ds_read_b128 {vr(TB+4*((kk+2)%3),4)}, v15 offset:{(kk+2)*1024}")
            a(f"s_waitcnt lgkmcnt({min(2,27-kk)})")
            t=vr(TB+4*(kk%3),4); w=vr(WR+4*kk,4)
            x,y=(w,t) if variant==1 else (t,w)
            a(f"v_mfma_f32_32x32x16_bf16 {vr(ACC,16)}, {x}, {y}, {vr(ACC,16)}")
        if variant==1: a(f"s_branch {lv}_j"); prev=lv; jl=lv
    a.label(f"{jl}_j")
    a.nop(16)
    for r in range(8): a(f"v_cvt_pk_bf16_f32 v{OUT+r}, v{ACC+2*r}, v{ACC+2*r+1}")
    a(f"buffer_store_dwordx4 {vr(OUT,4)}, v9, {W}, s26 offen {st}"); a(f"buffer_store_dwordx4 {vr(OUT+4,4)}, v9, {W}, s26 offen offset:512 {st}")
    if after_seg: after_seg()
    a("s_add_u32 s26, s26, s27")
    a("s_add_u32 s37, s37, 1"); a(f"s_cmp_lt_u32 s37, {nseg}"); a(f"s_cbranch_scc1 {lab}")
def gen_k1():
    a=Asm()
    a("s_cmp_lt_u32 s2, 224"); a("s_cbranch_scc0 L_end")
    a("v_and_b32 v1, 63, v0"); a("v_lshrrev_b32 v2, 6, v0"); a("s_nop 0"); a("v_readfirstlane_b32 s22, v2")
    srds(a,[(16,'ws')])
    a("s_mov_b32 s20, s2")
    producer(a,16)
    a.label("L_end"); a("s_waitcnt vmcnt(0)")
    return a.text()
```

```python
S=2048; D=448; H=16; DH=256; NSEG=64; SEG=32; M=8; F=1792
def al(x,a=4096): return (x+a-1)//a*a
off=0
def alloc(n):
    global off
    o=off; off=al(off+n); return o
WP    = alloc(14336*896)
HFRAG = alloc(64*28672)
HPERM = alloc(64*28672)
MOD   = alloc(2688*4)
MEM   = alloc(65*7168)
PX    = alloc(64*16*512)
PM    = alloc(64*4*512)
TFRAG = alloc(64*16*28672)
BFRAG = alloc(64*28*16*1024)
MFRAG = alloc(64*28*4*1024)
PFX   = alloc(64*2*16*1024)
PFM   = alloc(64*2*4*1024)
X1    = alloc(2048*448*4)
H2    = alloc(2048*896)
R     = alloc(2048*4)
ACT   = alloc(2*1792*4)
MISC  = alloc(65536)
TOTAL = off
if __name__=="__main__":
    for k,v in list(globals().items()):
        if k.isupper(): print(k,v)
```

```python
from asmlib import *
import layout as LY

WS_BYTES = 268435456
OOB = 0x20000000
S_WS=4; S_DBG=8; S_WAVE=12; S_RANK=13; S_STEP=14; S_MEMOFF=15
S_XCC=20; S_CNT=21; S_FAIL=22; S_EX=24
S_PX=26; S_PM=27; S_XS=28; S_BF=29; S_MF=30; S_MST=31
S_T0=32; S_T1=33; S_T2=34; S_T3=35
POLL_MAX=400000
L_MEM=0; L_STAG=8192; L_SB=15360; L_XS=20480
L_RED=8192; L_U=16384
L_RANK=150000
LDS_BYTES=150016+64

STAMP=False
EXP={}
LANEREG={}
def stamp(a,k):
    if STAMP=='lane':
        if k in LANEREG:
            a("s_memrealtime s[50:51]"); a("s_waitcnt lgkmcnt(0)"); a(f"s_mov_b32 m0, s{S_STEP}"); a("s_nop 0"); a(f"v_writelane_b32 v{LANEREG[k]}, s50, m0")
        return
    if STAMP=='abs':
        lab=a.newlabel("L_as")
        a(f"s_cmp_eq_u32 s{S_STEP}, 30"); a(f"s_cbranch_scc0 {lab}")
        a("s_memrealtime s[50:51]"); a("s_waitcnt lgkmcnt(0)"); a(f"s_mov_b32 s{60+k}, s50")
        a.label(lab); return
    if not STAMP: return
    a("s_memtime s[50:51]"); a("s_waitcnt lgkmcnt(0)")
    a("s_sub_u32 s52, s50, s53"); a(f"s_add_u32 s{60+k}, s{60+k}, s52"); a("s_mov_b32 s53, s50")
def stamp_init(a):
    if STAMP=='lane': return
    if not STAMP: return
    for k in range(16): a(f"s_mov_b32 s{60+k}, 0")
    a("s_memtime s[50:51]"); a("s_waitcnt lgkmcnt(0)"); a("s_mov_b32 s53, s50")
def stamp_out(a):
    if STAMP=='lane':
        a(f"s_lshl_b32 s52, s{S_RANK}, 2"); a(f"s_add_u32 s52, s52, s{S_WAVE}"); a("s_lshl_b32 s52, s52, 10"); a(f"s_add_u32 s52, s52, {LY.X1}")
        a("v_lshrrev_b32 v99, 2, v6")
        lab=a.newlabel("L_so")
        a(f"s_cmp_ge_u32 s{S_RANK}, 16"); a(f"s_cbranch_scc1 {lab}")
        for i,r in enumerate((2,1,0,0)): a(f"buffer_store_dword v{r}, v99, s[{S_WS}:{S_WS+3}], s52 offen offset:{256*i}")
        a(f"s_branch {lab}_e")
        a.label(lab)
        for i,r in enumerate((12,13,14,15)): a(f"buffer_store_dword v{r}, v99, s[{S_WS}:{S_WS+3}], s52 offen offset:{256*i}")
        a.label(lab+"_e")
        return
    if not STAMP: return
    a(f"s_lshl_b32 s52, s{S_RANK}, 2"); a(f"s_add_u32 s52, s52, s{S_WAVE}"); a("s_lshl_b32 s52, s52, 6"); a(f"s_add_u32 s52, s52, {LY.MISC}")
    for k in range(16): a(f"v_mov_b32 v{100+k}, s{60+k}")
    a("v_mov_b32 v99, 0")
    a("v_cmp_eq_u32 vcc, 0, v1"); a(f"s_and_saveexec_b64 s[{S_EX}:{S_EX+1}], vcc")
    for k in range(4): a(f"buffer_store_dwordx4 v[{100+4*k}:{103+4*k}], v99, s[{S_WS}:{S_WS+3}], s52 offen offset:{16*k}")
    a(f"s_mov_b64 exec, s[{S_EX}:{S_EX+1}]")

def srd(a, d, b, n):
    a(f"s_mov_b32 s{d}, s{b}"); a(f"s_and_b32 s{d+1}, s{b+1}, 0xffff"); a(f"s_mov_b32 s{d+2}, {n}"); a(f"s_mov_b32 s{d+3}, 0x20000")

def chk_poison(a, regs, t0, t1):
    regs=list(regs)
    a(f"v_max3_u32 v{t0}, v{regs[0]}, v{regs[1]}, v{regs[2]}")
    rest=regs[3:]
    use=[t1,t0]; first=True
    if len(rest)>=3:
        a(f"v_max3_u32 v{t1}, v{rest[0]}, v{rest[1]}, v{rest[2]}"); rest=rest[3:]
        cur=[t0,t1]; k=0
        while len(rest)>=2:
            a(f"v_max3_u32 v{cur[k]}, v{cur[k]}, v{rest[0]}, v{rest[1]}"); rest=rest[2:]; k^=1
        if rest: a(f"v_max3_u32 v{t0}, v{t0}, v{t1}, v{rest[0]}")
        else: a(f"v_max_u32 v{t0}, v{t0}, v{t1}")
    else:
        for r in rest: a(f"v_max_u32 v{t0}, v{t0}, v{r}")
    a(f"v_cmp_eq_u32 vcc, -1, v{t0}")

def poll_loop(a, loads, regs, t0, t1, sleep=0):
    lab=a.newlabel("L_poll"); ok=lab+"_ok"
    a(f"s_mov_b32 s{S_CNT}, 0")
    a.label(lab)
    for l in loads: a(l)
    a("s_waitcnt vmcnt(0)")
    chk_poison(a, regs, t0, t1)
    a(f"s_cbranch_vccz {ok}")
    if sleep: a(f"s_sleep {sleep}")
    a(f"s_add_u32 s{S_CNT}, s{S_CNT}, 1")
    a(f"s_cmp_lt_u32 s{S_CNT}, {POLL_MAX}")
    a(f"s_cbranch_scc1 {lab}")
    a(f"s_mov_b32 s{S_FAIL}, 1")
    a.label(ok)
    if STAMP is True: a(f"s_add_u32 s{72 if len(loads)==2 else 73}, s{72 if len(loads)==2 else 73}, s{S_CNT}")

def poll2(a, mkloads, sets, nregs, t0, t1, cont, gap):
    lab=a.newlabel("L_p2"); done=lab+"_done"
    n=len(mkloads(sets[0]))
    a(f"s_mov_b32 s{S_CNT}, 0")
    for l in mkloads(sets[0]): a(l)
    if gap: a(f"s_sleep {gap}")
    for l in mkloads(sets[1]): a(l)
    a.label(lab)
    for i in range(2):
        a(f"s_waitcnt vmcnt({n})")
        chk_poison(a, range(sets[i],sets[i]+nregs), t0, t1)
        a(f"s_cbranch_vccz {lab}_ok{i}")
        for l in mkloads(sets[i]): a(l)
    a(f"s_add_u32 s{S_CNT}, s{S_CNT}, 1")
    a(f"s_cmp_lt_u32 s{S_CNT}, {POLL_MAX}")
    a(f"s_cbranch_scc1 {lab}")
    a(f"s_mov_b32 s{S_FAIL}, 1")
    a.label(f"{lab}_ok0"); cont(sets[0]); a(f"s_branch {done}")
    a.label(f"{lab}_ok1"); cont(sets[1])
    a.label(done)

def mem_share2(a, PA, PB, t0, t1, gap):
    W=f"s[{S_WS}:{S_WS+3}]"
    def mk(b): return [f"buffer_load_dwordx4 {vr(b,4)}, v4, {W}, s{S_MEMOFF} offen sc1", f"buffer_load_dwordx4 {vr(b+4,4)}, v5, {W}, s{S_MEMOFF} offen sc1"]
    def cont(b):
        stamp(a,0)
        a(f"ds_write_b128 v4, {vr(b,4)} offset:{L_MEM}")
        a(f"ds_write_b128 v4, {vr(b+4,4)} offset:{L_MEM+4096}")
    poll2(a, mk, [PA,PB], 8, t0, t1, cont, gap)
    a("s_waitcnt lgkmcnt(0)")
    a("s_barrier")
    stamp(a,1)

def mem_share(a, P0, t0, t1, sleep=0):
    poll_loop(a, [f"buffer_load_dwordx4 {vr(P0,4)}, v4, s[{S_WS}:{S_WS+3}], s{S_MEMOFF} offen sc1",
                  f"buffer_load_dwordx4 {vr(P0+4,4)}, v5, s[{S_WS}:{S_WS+3}], s{S_MEMOFF} offen sc1"],
              range(P0,P0+8), t0, t1, sleep)
    stamp(a,0)
    a(f"ds_write_b128 v4, {vr(P0,4)} offset:{L_MEM}")
    a(f"ds_write_b128 v4, {vr(P0+4,4)} offset:{L_MEM+4096}")
    a("s_waitcnt lgkmcnt(0)")
    a("s_barrier")
    stamp(a,1)

def common_prologue(a, target_xcc=0, nteam=30):
    a("s_load_dwordx2 s[16:17], s[0:1], 128")
    a("s_load_dwordx2 s[18:19], s[0:1], 120")
    a(f"s_getreg_b32 s{S_XCC}, hwreg(HW_REG_XCC_ID)")
    a(f"s_and_b32 s{S_XCC}, s{S_XCC}, 15")
    a("v_lshrrev_b32 v2, 6, v0")
    a("v_and_b32 v1, 63, v0")
    a("s_waitcnt lgkmcnt(0)")
    srd(a, S_WS, 16, WS_BYTES)
    srd(a, S_DBG, 18, 256)
    a(f"v_readfirstlane_b32 s{S_WAVE}, v2")
    a(f"s_cmp_lt_u32 s2, 256"); a("s_cbranch_scc0 L_exit")
    a(f"s_cmp_eq_u32 s{S_XCC}, {target_xcc}"); a("s_cbranch_scc0 L_exit")
    a(f"s_cmp_eq_u32 s{S_WAVE}, 0"); a("s_cbranch_scc0 L_norank")
    a("v_cmp_eq_u32 vcc, 0, v0"); a(f"s_and_saveexec_b64 s[{S_EX}:{S_EX+1}], vcc")
    a("v_mov_b32 v4, 0"); a("v_mov_b32 v5, 1")
    a(f"buffer_atomic_add v5, v4, s[{S_DBG}:{S_DBG+3}], 0 offen sc0")
    a("s_waitcnt vmcnt(0)")
    a(f"v_mov_b32 v6, {L_RANK}"); a("ds_write_b32 v6, v5"); a("s_waitcnt lgkmcnt(0)")
    a(f"s_mov_b64 exec, s[{S_EX}:{S_EX+1}]")
    a.label("L_norank")
    a("s_barrier")
    a(f"v_mov_b32 v6, {L_RANK}"); a("ds_read_b32 v5, v6"); a("s_waitcnt lgkmcnt(0)")
    a("s_nop 0")
    a(f"v_readfirstlane_b32 s{S_RANK}, v5")
    a(f"s_cmp_lt_u32 s{S_RANK}, {nteam}"); a("s_cbranch_scc0 L_exit")
    a(f"s_mov_b32 s{S_FAIL}, 0")
    a("v_lshlrev_b32 v4, 4, v0")
    a("v_add_u32 v5, 4096, v4")
    a(f"v_mov_b32 v2, {OOB}")
    a("v_cmp_gt_u32 vcc, 192, v0")
    a("s_nop 1")
    a("v_cndmask_b32 v5, v2, v5, vcc")
    a("v_lshlrev_b32 v6, 4, v1")
    a("v_and_b32 v2, 8, v1"); a("v_cmp_eq_u32 vcc, 0, v2")
    a("v_mov_b32 v3, 0xeeee"); a("v_mov_b32 v2, 0x4444"); a("s_nop 0")
    a("v_cndmask_b32 v3, v3, v2, vcc")

def gfrag(fi):
    return ar(8*fi,8) if fi<32 else vr(120+8*(fi-32),8)
def gfrag_half(fi,hh):
    return ar(8*fi+4*hh,4) if fi<32 else vr(120+8*(fi-32)+4*hh,4)

def score_role(a, timing=False, sleep=0, nsteps=63):
    MS=16; ACC=44; BJ=72
    W=f"s[{S_WS}:{S_WS+3}]"
    a("v_and_b32 v16, 15, v1")
    a("v_lshrrev_b32 v17, 4, v1")
    a("v_and_b32 v18, 12, v16"); a("v_and_b32 v19, 1, v16"); a("v_lshlrev_b32 v19, 1, v19")
    a("v_bfe_u32 v20, v16, 1, 1"); a("v_or_b32 v18, v18, v19"); a("v_or_b32 v18, v18, v20")
    a("v_mul_u32_u24 v21, 896, v18"); a("v_lshlrev_b32 v22, 5, v17"); a("v_add_u32 v21, v21, v22")
    a(f"s_mul_i32 s{S_T0}, s{S_RANK}, {448*896}")
    a(f"s_mul_i32 s{S_T1}, s{S_WAVE}, {7*16*896}")
    a(f"s_add_u32 s{S_T0}, s{S_T0}, s{S_T1}")
    a(f"s_add_u32 s{S_T0}, s{S_T0}, {LY.WP}")
    n=0
    for t in range(7):
        for ks in range(7):
            fi=t*7+ks
            for hh in range(2):
                a(f"buffer_load_dwordx4 {gfrag_half(fi,hh)}, v21, {W}, s{S_T0} offen offset:{ks*128+hh*16}")
                n+=1
                if n%32==0: a("s_waitcnt vmcnt(24)")
        a(f"s_add_u32 s{S_T0}, s{S_T0}, {16*896}")
    a("v_lshlrev_b32 v7, 4, v16")
    a("v_and_b32 v22, 1, v17"); a("v_lshlrev_b32 v22, 3, v22"); a("v_add_u32 v7, v7, v22")
    a(f"s_mul_i32 s{S_T1}, s{S_WAVE}, {7*256}"); a(f"s_add_u32 s{S_T1}, s{S_T1}, {L_STAG}")
    a(f"v_add_u32 v8, s{S_T1}, v7")
    a("v_lshrrev_b32 v22, 5, v1"); a("v_lshlrev_b32 v22, 8, v22"); a("v_add_u32 v7, v8, v22")
    a("v_lshlrev_b32 v9, 8, v17"); a("v_lshlrev_b32 v22, 3, v16"); a("v_add_u32 v9, v9, v22"); a(f"v_add_u32 v9, {L_STAG}, v9")
    a("v_lshlrev_b32 v10, 9, v17"); a("v_lshlrev_b32 v22, 4, v16"); a("v_add_u32 v10, v10, v22")
    a(f"s_lshl_b32 s{S_T1}, s{S_WAVE}, 8"); a(f"s_add_u32 s{S_T1}, s{S_T1}, {L_XS}"); a(f"v_add_u32 v10, s{S_T1}, v10")
    a("v_lshlrev_b32 v23, 7, v17"); a("v_and_b32 v22, 7, v16"); a("v_lshlrev_b32 v22, 4, v22"); a("v_add_u32 v23, v23, v22")
    if L_MEM: a(f"v_add_u32 v23, {L_MEM}, v23")
    a(f"s_cmp_eq_u32 s{S_WAVE}, 2"); a("s_cselect_b64 vcc, -1, 0"); a("s_nop 1"); a("v_cndmask_b32 v10, v10, v23, vcc")
    a("v_and_b32 v22, 1, v17"); a("v_lshlrev_b32 v22, 2, v22"); a("v_lshrrev_b32 v23, 5, v1"); a("v_add_u32 v22, v22, v23")
    a("v_mul_u32_u24 v11, 192, v22"); a("v_lshlrev_b32 v22, 2, v16"); a("v_add_u32 v11, v11, v22")
    a(f"s_lshl_b32 s{S_T1}, s{S_WAVE}, 6"); a(f"s_add_u32 s{S_T1}, s{S_T1}, {L_SB}"); a(f"v_add_u32 v11, s{S_T1}, v11")
    a("v_lshrrev_b32 v22, 3, v1"); a("v_and_b32 v23, 7, v1")
    a("v_mul_u32_u24 v12, 192, v23"); a(f"v_add_u32 v12, {L_SB}, v12")
    a("v_lshlrev_b32 v24, 2, v22"); a("v_add_u32 v13, v12, v24"); a("v_add_u32 v13, 128, v13")
    a("v_lshlrev_b32 v24, 4, v22"); a("v_add_u32 v12, v12, v24")
    a("v_lshrrev_b32 v24, 1, v22"); a("v_lshlrev_b32 v24, 3, v24"); a("v_add_u32 v24, v24, v23"); a("v_lshlrev_b32 v14, 4, v24")
    a("v_and_b32 v24, 1, v22"); a("v_lshlrev_b32 v24, 3, v24"); a("v_add_u32 v14, v14, v24")
    a(f"s_and_b32 s{S_T1}, s{S_RANK}, 1"); a(f"s_lshl_b32 s{S_T1}, s{S_T1}, 1")
    a("v_lshrrev_b32 v24, 2, v22"); a(f"v_add_u32 v24, s{S_T1}, v24"); a("v_lshlrev_b32 v24, 3, v24"); a("v_add_u32 v24, v24, v23"); a("v_lshlrev_b32 v15, 4, v24")
    a(f"s_bfe_u32 s{S_T1}, s{S_RANK}, 0x10001"); a(f"s_lshl_b32 s{S_T1}, s{S_T1}, 2")
    a("v_and_b32 v24, 3, v22"); a(f"v_add_u32 v24, s{S_T1}, v24"); a("v_lshlrev_b32 v24, 1, v24"); a("v_add_u32 v15, v15, v24")
    a(f"s_mov_b32 s{S_STEP}, 0")
    a(f"s_mov_b32 s{S_MEMOFF}, {LY.MEM}")
    a(f"s_lshl_b32 s{S_PX}, s{S_RANK}, 9"); a(f"s_add_u32 s{S_PX}, s{S_PX}, {LY.PX}")
    a(f"s_lshr_b32 s{S_PM}, s{S_RANK}, 2"); a(f"s_lshl_b32 s{S_PM}, s{S_PM}, 9"); a(f"s_add_u32 s{S_PM}, s{S_PM}, {LY.PM}")
    a(f"s_mov_b32 s{S_XS}, {LY.HFRAG}")
    def xs_dma(nw):
        a(f"s_mul_i32 s{S_T0}, s{S_WAVE}, {7*1024}")
        a(f"s_add_u32 s{S_T1}, s{S_T0}, s{S_XS}")
        a(f"s_add_u32 s{S_T0}, s{S_T0}, {L_XS}")
        a(f"s_mov_b32 m0, s{S_T0}"); a("s_nop 0")
        for i in range(4): a(f"buffer_load_dwordx4 v6, {W}, s{S_T1} offen offset:{i*1024} lds")
        a(f"s_add_u32 s{S_T0}, s{S_T0}, 4096"); a(f"s_add_u32 s{S_T1}, s{S_T1}, 4096")
        a(f"s_mov_b32 m0, s{S_T0}"); a("s_nop 0")
        for i in range(3): a(f"buffer_load_dwordx4 v6, {W}, s{S_T1} offen offset:{i*1024} lds")
    xs_dma(4)
    a("s_waitcnt vmcnt(0)")
    if timing: a("s_memtime s[40:41]")
    stamp_init(a)
    a.label("L_sstep")
    for r in range(ACC,ACC+28): a(f"v_mov_b32 v{r}, 0")
    if EXP.get('preA'): a(f"s_sleep {EXP['preA']}")
    if EXP.get('p2A'): mem_share2(a, 72, 84, 80, 81, EXP.get('gapA',2))
    else: mem_share(a, 72, 80, 81, sleep)
    for ks in range(7): a(f"ds_read_b128 {vr(MS+4*ks,4)}, v6 offset:{L_MEM+ks*1024}")
    order=[(t,ks) for t in range(5) for ks in range(7)]
    for ks in range(7): order+= [(5,ks),(6,ks)]
    mains=[]
    for i,(t,ks) in enumerate(order):
        m=f"v_smfmac_f32_16x16x64_bf16 {vr(ACC+4*t,4)}, {vr(MS+4*ks,4)}, {gfrag(t*7+ks)}, v3"
        if i<7: m=f"s_waitcnt lgkmcnt({6-i})\n"+m
        mains.append(m)
    T0=112+0
    def post_pair(ta,tb,tmp):
        o=[]
        for i in range(4): o.append(f"v_permlane32_swap_b32 v{ACC+4*ta+i}, v{ACC+4*tb+i}")
        for i in range(4): o.append(f"v_add_f32 v{ACC+4*ta+i}, v{ACC+4*ta+i}, v{ACC+4*tb+i}")
        o.append(f"v_cvt_pk_bf16_f32 v{ACC+4*tb}, v{ACC+4*ta}, v{ACC+4*ta+1}")
        o.append(f"v_cvt_pk_bf16_f32 v{ACC+4*tb+1}, v{ACC+4*ta+2}, v{ACC+4*ta+3}")
        o.append(f"ds_write_b64 v7, {vr(ACC+4*tb,2)} offset:{ta*256}")
        return o
    def post_single(t, tmp):
        o=[]
        for i in range(4): o.append(f"v_mov_b32 v{tmp+i}, v{ACC+4*t+i}")
        o.append("s_nop 0")
        for i in range(4): o.append(f"v_permlane32_swap_b32 v{ACC+4*t+i}, v{tmp+i}")
        for i in range(4): o.append(f"v_add_f32 v{ACC+4*t+i}, v{ACC+4*t+i}, v{tmp+i}")
        o.append(f"v_cvt_pk_bf16_f32 v{tmp}, v{ACC+4*t}, v{ACC+4*t+1}")
        o.append(f"v_cvt_pk_bf16_f32 v{tmp+1}, v{ACC+4*t+2}, v{ACC+4*t+3}")
        o.append(f"ds_write_b64 v8, {vr(tmp,2)} offset:{t*256}")
        return o
    fill=[]
    for x in post_pair(0,1,None): fill.append((22,x))
    for x in post_pair(2,3,None): fill.append((36,x))
    for x in post_single(4, ACC+0): fill.append((43,x))
    return_fill=fill
    lab2=a.newlabel("L_t2"); labj=a.newlabel("L_tj")
    a(f"s_cmp_eq_u32 s{S_WAVE}, 2"); a(f"s_cbranch_scc1 {lab2}")
    for variant in (0,1):
        if variant==1: a.label(lab2)
        pre=[(7,"s_waitcnt vmcnt(0)")]
        for ks in range(6):
            if variant==0:
                pre.append((8+2*ks, f"ds_read_b128 {vr(BJ+8*ks,4)}, v10 offset:{ks*4096}"))
                pre.append((8+2*ks, f"ds_read_b128 {vr(BJ+8*ks+4,4)}, v10 offset:{ks*4096+2048}"))
            else:
                pre.append((8+2*ks, f"ds_read_b128 {vr(BJ+8*ks,4)}, v10 offset:{ks*1024}"))
                pre.append((8+2*ks, f"ds_read_b128 {vr(BJ+8*ks+4,4)}, v10 offset:{ks*1024+512}"))
        if EXP.get('nopre'): pre=[]
        if EXP.get('nofill'):
            rest=interleave(a, mains, pre);
            for _,x in fill: a(x)
        else:
            rest=interleave(a, mains, pre+fill, per_gap=EXP.get('per_gap',3))
            for _,x in rest: a(x)
        stamp(a,2)
        a.nop(8)
        for x in post_pair(5,6,None): a(x)
        for i in range(4): a(f"v_mov_b32 v{ACC+8+i}, 0")
        a("s_waitcnt lgkmcnt(0)")
        a("s_barrier")
        stamp(a,3)
        if variant==0:
            a(f"s_cmp_eq_u32 s{S_WAVE}, 3"); a(f"s_cbranch_scc1 L_s_w3")
            a(f"ds_read_b128 {vr(ACC,4)}, v10 offset:{6*4096}"); a(f"ds_read_b128 {vr(ACC+4,4)}, v10 offset:{6*4096+2048}")
        else:
            a(f"ds_read_b128 {vr(ACC,4)}, v10 offset:{6*1024}"); a(f"ds_read_b128 {vr(ACC+4,4)}, v10 offset:{6*1024+512}")
        if variant==0: a(f"s_branch {labj}")
    a.label(labj)
    for ks in range(7):
        a(f"ds_read_b64_tr_b16 {vr(MS+4*ks,2)}, v9 offset:{ks*1024}")
        a(f"ds_read_b64_tr_b16 {vr(MS+4*ks+2,2)}, v9 offset:{ks*1024+128}")
    for ks in range(7):
        a(f"s_waitcnt lgkmcnt({min(15,2*(6-ks))})")
        b = vr(BJ+8*ks,8) if ks<6 else vr(ACC,8)
        a(f"v_smfmac_f32_16x16x64_bf16 {vr(ACC+8,4)}, {vr(MS+4*ks,4)}, {b}, v3")
    a.nop(8)
    S=ACC+8
    a(f"v_permlane32_swap_b32 v{S}, v{S+1}"); a(f"v_permlane32_swap_b32 v{S+2}, v{S+3}")
    a(f"v_add_f32 v{S}, v{S}, v{S+1}"); a(f"v_add_f32 v{S+2}, v{S+2}, v{S+3}")
    a(f"ds_write_b32 v11, v{S}"); a(f"ds_write_b32 v11, v{S+2} offset:{2*192}")
    a("s_waitcnt lgkmcnt(0)")
    stamp(a,4)
    a("s_barrier")
    stamp(a,5)
    a("s_branch L_s_after")
    a.label("L_s_w3")
    a("s_barrier")
    stamp(a,5)
    X=72
    a(f"ds_read_b128 {vr(X,4)}, v12"); a(f"ds_read_b32 v{X+4}, v13")
    a("s_waitcnt lgkmcnt(0)")
    a(f"v_max3_f32 v{X+5}, v{X}, v{X+1}, v{X+2}"); a(f"v_max3_f32 v{X+5}, v{X+5}, v{X+3}, v{X+4}")
    def xred(op, r, t):
        a("s_nop 1"); a(f"{op}_dpp v{r}, v{r}, v{r} row_ror:8 row_mask:0xf bank_mask:0xf")
        a(f"v_mov_b32 v{t}, v{r}"); a("s_nop 1"); a(f"v_permlane16_swap_b32 v{r}, v{t}"); a(f"{op} v{r}, v{r}, v{t}")
        a(f"v_mov_b32 v{t}, v{r}"); a("s_nop 1"); a(f"v_permlane32_swap_b32 v{r}, v{t}"); a(f"{op} v{r}, v{r}, v{t}")
    xred("v_max_f32", X+5, X+6)
    for i in range(5): a(f"v_sub_f32 v{X+i}, v{X+i}, v{X+5}")
    for i in range(5): a(f"v_exp_f32 v{X+i}, v{X+i}")
    a("s_nop 0")
    a(f"v_add_f32 v{X+5}, v{X}, v{X+1}"); a(f"v_add_f32 v{X+6}, v{X+2}, v{X+3}"); a(f"v_add_f32 v{X+5}, v{X+5}, v{X+4}"); a(f"v_add_f32 v{X+5}, v{X+5}, v{X+6}")
    xred("v_add_f32", X+5, X+6)
    a(f"v_rcp_f32 v{X+5}, v{X+5}"); a("s_nop 0")
    for i in range(5): a(f"v_mul_f32 v{X+i}, v{X+i}, v{X+5}")
    a(f"v_cvt_pk_bf16_f32 v{X+8}, v{X}, v{X+1}"); a(f"v_cvt_pk_bf16_f32 v{X+9}, v{X+2}, v{X+3}")
    a(f"v_mov_b32_dpp v{X+6}, v{X+4} row_ror:8 row_mask:0xf bank_mask:0xf")
    a(f"buffer_store_dwordx2 {vr(X+8,2)}, v14, {W}, s{S_PX} offen")
    a(f"v_cvt_pk_bf16_f32 v{X+7}, v{X+4}, v{X+6}")
    a("s_mov_b32 exec_lo, 0x00ff00ff"); a("s_mov_b32 exec_hi, 0x00ff00ff")
    a(f"buffer_store_dword v{X+7}, v15, {W}, s{S_PM} offen")
    a("s_mov_b64 exec, -1")
    stamp(a,6)
    a.label("L_s_after")
    a("s_barrier")
    a(f"s_add_u32 s{S_STEP}, s{S_STEP}, 1")
    a(f"s_add_u32 s{S_MEMOFF}, s{S_MEMOFF}, 7168")
    a(f"s_add_u32 s{S_PX}, s{S_PX}, 8192"); a(f"s_add_u32 s{S_PM}, s{S_PM}, 2048"); a(f"s_add_u32 s{S_XS}, s{S_XS}, 28672")
    a(f"s_cmp_lt_u32 s{S_STEP}, {nsteps}"); a("s_cbranch_scc0 L_fin")
    xs_dma(4)
    stamp(a,7)
    a(f"s_cmp_eq_u32 s{S_FAIL}, 0"); a("s_cbranch_scc1 L_sstep")
    a("s_branch L_fin")

def ufrag(fi):
    if fi<32: return ar(8*fi,8)
    if fi<40: return vr(192+8*(fi-32),8)
    return None
def value_role(a, timing=False, sleep=0, nsteps=64):
    MS=16; ACC=44; UT=76; BF=100; PP=132; MF=152; OA=160; PR=168
    W=f"s[{S_WS}:{S_WS+3}]"
    S_J=36
    a(f"s_sub_u32 s{S_J}, s{S_RANK}, 16")
    a("v_and_b32 v16, 15, v1"); a("v_lshrrev_b32 v17, 4, v1")
    a("v_mul_u32_u24 v21, 896, v16"); a("v_lshlrev_b32 v22, 5, v17"); a("v_add_u32 v21, v21, v22")
    for a2 in range(4):
        for ct in range(2):
            a(f"s_lshl_b32 s{S_T0}, s{S_WAVE}, 2"); a(f"s_add_u32 s{S_T0}, s{S_T0}, {a2}")
            a(f"s_mul_i32 s{S_T0}, s{S_T0}, 448"); a(f"s_lshl_b32 s{S_T1}, s{S_J}, 5"); a(f"s_add_u32 s{S_T0}, s{S_T0}, s{S_T1}")
            a(f"s_add_u32 s{S_T0}, s{S_T0}, {7168+16*ct}"); a(f"s_mul_i32 s{S_T0}, s{S_T0}, 896"); a(f"s_add_u32 s{S_T0}, s{S_T0}, {LY.WP}")
            for ks in range(7):
                fi=(a2*2+ct)*7+ks
                if fi<40:
                    for hh in range(2):
                        dst = ar(8*fi+4*hh,4) if fi<32 else vr(192+8*(fi-32)+4*hh,4)
                        a(f"buffer_load_dwordx4 {dst}, v21, {W}, s{S_T0} offen offset:{ks*128+hh*16}")
                else:
                    for hh in range(2):
                        a(f"s_lshl_b32 s{S_T1}, s{S_WAVE}, 15"); a(f"s_add_u32 s{S_T1}, s{S_T1}, {L_U+(fi-40)*2048+hh*1024}")
                        a(f"s_mov_b32 m0, s{S_T1}"); a(f"s_add_u32 s{S_T2}, s{S_T0}, {ks*128+hh*16}")
                        a(f"buffer_load_dwordx4 v21, {W}, s{S_T2} offen lds")
            a("s_waitcnt vmcnt(30)")
    a(f"s_lshl_b32 s{S_T1}, s{S_WAVE}, 15"); a(f"s_add_u32 s{S_T1}, s{S_T1}, {L_U}"); a(f"v_add_u32 v7, s{S_T1}, v6")
    a("v_lshlrev_b32 v8, 3, v17"); a("v_and_b32 v22, 7, v16"); a("v_add_u32 v8, v8, v22"); a("v_lshlrev_b32 v8, 4, v8")
    a(f"s_lshl_b32 s{S_T1}, s{S_WAVE}, 11"); a(f"s_add_u32 s{S_T1}, s{S_T1}, {L_RED}"); a(f"v_add_u32 v9, s{S_T1}, v6")
    a(f"s_lshl_b32 s{S_T1}, s{S_WAVE}, 10"); a(f"s_add_u32 s{S_T1}, s{S_T1}, {L_RED}"); a(f"v_add_u32 v10, s{S_T1}, v6")
    a("v_lshrrev_b32 v22, 1, v17"); a("v_lshlrev_b32 v11, 7, v22"); a("v_and_b32 v22, 7, v16"); a("v_lshlrev_b32 v22, 4, v22"); a("v_add_u32 v11, v11, v22")
    a("v_and_b32 v22, 1, v17"); a("v_lshlrev_b32 v22, 3, v22"); a("v_add_u32 v11, v11, v22")
    a(f"s_mov_b32 s{S_STEP}, 0"); a(f"s_mov_b32 s{S_MEMOFF}, {LY.MEM}")
    a(f"s_lshl_b32 s{S_PX}, s{S_WAVE}, 11"); a(f"s_add_u32 s{S_PX}, s{S_PX}, {LY.PX}")
    a(f"s_lshl_b32 s{S_PM}, s{S_WAVE}, 9"); a(f"s_add_u32 s{S_PM}, s{S_PM}, {LY.PM}")
    a(f"s_lshl_b32 s{S_BF}, s{S_J}, 15"); a(f"s_lshl_b32 s{S_T1}, s{S_WAVE}, 12"); a(f"s_add_u32 s{S_BF}, s{S_BF}, s{S_T1}"); a(f"s_add_u32 s{S_BF}, s{S_BF}, {LY.BFRAG}")
    a(f"s_lshl_b32 s{S_MF}, s{S_J}, 13"); a(f"s_lshl_b32 s{S_T1}, s{S_WAVE}, 10"); a(f"s_add_u32 s{S_MF}, s{S_MF}, s{S_T1}"); a(f"s_add_u32 s{S_MF}, s{S_MF}, {LY.MFRAG}")
    a(f"s_lshl_b32 s{S_T0}, s{S_J}, 1"); a(f"s_add_u32 s{S_T0}, s{S_T0}, s{S_WAVE}")
    a(f"s_lshl_b32 s{S_MST}, s{S_T0}, 8"); a(f"s_add_u32 s{S_MST}, s{S_MST}, {LY.MEM+7168}")
    def b_prefetch():
        for ct in range(2):
            a(f"s_add_u32 s{S_T0}, s{S_BF}, {ct*16384}")
            for a2 in range(4):
                a(f"buffer_load_dwordx4 {vr(BF+4*(a2*2+ct),4)}, v6, {W}, s{S_T0} offen offset:{a2*1024}")
        if EXP.get('warmP'):
            for a2 in range(4): a(f"buffer_load_dwordx4 {vr(PP+4*a2,4)}, v8, {W}, s{S_PX} offen offset:{a2*512} sc1")
            a(f"buffer_load_dwordx4 {vr(PP+16,4)}, v8, {W}, s{S_PM} offen sc1")
    def mf_store(off):
        a(f"s_add_u32 s{S_T1}, s{S_MF}, {off}"); a(f"s_add_u32 s{S_T0}, s{S_MF}, {off+4096}")
        a(f"buffer_store_dwordx4 {vr(MF,4)}, v6, {W}, s{S_T1} offen")
        a(f"buffer_store_dwordx4 {vr(MF+4,4)}, v6, {W}, s{S_T0} offen")
    a("s_waitcnt vmcnt(0)")
    if timing: a("s_memtime s[40:41]")
    stamp_init(a)
    a.label("L_vstep")
    for r in range(ACC,ACC+32): a(f"v_mov_b32 v{r}, 0")
    for r in range(OA,OA+8): a(f"v_mov_b32 v{r}, 0")
    mem_share(a, PR, 176, 177, sleep)
    for ks in range(7): a(f"ds_read_b128 {vr(MS+4*ks,4)}, v6 offset:{L_MEM+ks*1024}")
    a(f"s_cmp_eq_u32 s{S_STEP}, 0"); a("s_cbranch_scc1 L_v_nomf")
    mf_store(-28*4096 & 0xffffffff)
    a.label("L_v_nomf")
    b_prefetch()
    tiles=[(a2,ct) for a2 in range(4) for ct in range(2)]
    seq=[]
    for (a2,ct) in tiles:
        for ks in range(7): seq.append(((a2*2+ct), ks))
    regseq=[x for x in seq if x[0]*7+x[1]<40]; ldsseq=[x for x in seq if x[0]*7+x[1]>=40]
    order=regseq[:7]; r=regseq[7:]; l=ldsseq[:]
    while r or l:
        for _ in range(2):
            if r: order.append(r.pop(0))
        if l: order.append(l.pop(0))
    mains=[]; fill=[]
    nl=0; ldsidx=[i for i,x in enumerate(order) if x[0]*7+x[1]>=40]
    lg_pending=[]
    for i,(t,ks) in enumerate(order):
        fi=t*7+ks
        if fi<40: b=ufrag(fi); pre=""
        else:
            k=ldsidx.index(i); b=vr(UT+8*(k%3),8); pre="LDSWAIT\n"
        m=f"v_smfmac_f32_16x16x64_bf16 {vr(ACC+4*t,4)}, {vr(MS+4*ks,4)}, {b}, v3"
        mains.append((m,fi,i))
    def ldsread(k):
        t,ks=order[ldsidx[k]]; fi=t*7+ks
        return [f"ds_read_b128 {vr(UT+8*(k%3),4)}, v7 offset:{(fi-40)*2048}", f"ds_read_b128 {vr(UT+8*(k%3)+4,4)}, v7 offset:{(fi-40)*2048+1024}"]
    issued=0
    for i,(m,fi,_) in enumerate(mains):
        if i<7: a(f"s_waitcnt lgkmcnt({6-i})")
        if i==6:
            pass
        if fi>=40:
            k=ldsidx.index(i)
            a(f"s_waitcnt lgkmcnt({2*(issued-1-k)})")
        a(m)
        if i==6:
            for k in range(3):
                for x in ldsread(k): a(x)
            issued=3
        if fi>=40:
            k=ldsidx.index(i)
            if issued<len(ldsidx) and issued==k+3:
                for x in ldsread(issued): a(x)
                issued+=1
    stamp(a,2)
    a.nop(8)
    for ct in range(2):
        for pr in range(2):
            ta=(2*pr)*2+ct; tb=(2*pr+1)*2+ct
            for i in range(4): a(f"v_permlane32_swap_b32 v{ACC+4*ta+i}, v{ACC+4*tb+i}")
            for i in range(4): a(f"v_add_f32 v{ACC+4*ta+i}, v{ACC+4*ta+i}, v{ACC+4*tb+i}")
            a(f"v_cvt_pk_bf16_f32 v{MF+4*ct+2*pr}, v{ACC+4*ta}, v{ACC+4*ta+1}")
            a(f"v_cvt_pk_bf16_f32 v{MF+4*ct+2*pr+1}, v{ACC+4*ta+2}, v{ACC+4*ta+3}")
    a(f"s_cmp_eq_u32 s{S_STEP}, {nsteps-1}"); a("s_cbranch_scc0 L_v_cont")
    mf_store(0); a("s_branch L_fin")
    a.label("L_v_cont")
    stamp(a,3)
    loads=[f"buffer_load_dwordx4 {vr(PP+4*a2,4)}, v8, {W}, s{S_PX} offen offset:{a2*512} sc1" for a2 in range(4)]
    loads.append(f"buffer_load_dwordx4 {vr(PP+16,4)}, v8, {W}, s{S_PM} offen sc1")
    if EXP.get('preB'): a(f"s_sleep {EXP['preB']}")
    if EXP.get('maskP'):
        a("s_mov_b32 exec_lo, 0x00ff00ff"); a("s_mov_b32 exec_hi, 0x00ff00ff")
    def pw(PPb):
        stamp(a,4)
        if EXP.get('maskP'): a("s_mov_b64 exec, -1")
        for ct in range(2): a(f"v_mfma_f32_16x16x32_bf16 {vr(OA+4*ct,4)}, {vr(MF+4*ct,4)}, {vr(PPb+16,4)}, {vr(OA+4*ct,4)}")
        for a2 in range(4):
            for ct in range(2):
                a(f"v_mfma_f32_16x16x32_bf16 {vr(OA+4*ct,4)}, {vr(BF+4*(a2*2+ct),4)}, {vr(PPb+4*a2,4)}, {vr(OA+4*ct,4)}")
    if EXP.get('p2B'):
        def mk(b):
            return [f"buffer_load_dwordx4 {vr(b+4*a2,4)}, v8, {W}, s{S_PX} offen offset:{a2*512} sc1" for a2 in range(4)]+[f"buffer_load_dwordx4 {vr(b+16,4)}, v8, {W}, s{S_PM} offen sc1"]
        poll2(a, mk, [PP, ACC], 20, 176, 177, pw, EXP.get('gapB',2))
    else:
        poll_loop(a, loads, range(PP,PP+20), 176, 177, sleep)
        pw(PP)
    a.nop(8)
    a(f"ds_write_b128 v9, {vr(OA,4)}"); a(f"ds_write_b128 v9, {vr(OA+4,4)} offset:1024")
    a("s_waitcnt lgkmcnt(0)")
    stamp(a,5)
    a("s_barrier")
    stamp(a,6)
    a(f"s_cmp_lt_u32 s{S_WAVE}, 2"); a("s_cbranch_scc0 L_v_nored")
    for w in range(4): a(f"ds_read_b128 {vr(176+4*w,4)}, v10 offset:{w*2048}")
    a("s_waitcnt lgkmcnt(2)")
    for i in range(4): a(f"v_add_f32 v{176+i}, v{176+i}, v{180+i}")
    a("s_waitcnt lgkmcnt(0)")
    for i in range(4): a(f"v_add_f32 v{184+i}, v{184+i}, v{188+i}")
    for i in range(4): a(f"v_add_f32 v{176+i}, v{176+i}, v{184+i}")
    a("v_cvt_pk_bf16_f32 v180, v176, v177"); a("v_cvt_pk_bf16_f32 v181, v178, v179")
    a("s_mov_b32 exec_lo, 0x00ff00ff"); a("s_mov_b32 exec_hi, 0x00ff00ff")
    a(f"buffer_store_dwordx2 v[180:181], v11, {W}, s{S_MST} offen")
    a("s_mov_b64 exec, -1")
    a.label("L_v_nored")
    stamp(a,7)
    if EXP.get('p2B'): a("s_waitcnt vmcnt(0)")
    a(f"s_add_u32 s{S_STEP}, s{S_STEP}, 1")
    a(f"s_add_u32 s{S_MEMOFF}, s{S_MEMOFF}, 7168"); a(f"s_add_u32 s{S_MST}, s{S_MST}, 7168")
    a(f"s_add_u32 s{S_PX}, s{S_PX}, 8192"); a(f"s_add_u32 s{S_PM}, s{S_PM}, 2048")
    a(f"s_add_u32 s{S_BF}, s{S_BF}, {28*16384}"); a(f"s_add_u32 s{S_MF}, s{S_MF}, {28*4096}")
    stamp(a,8)
    a(f"s_cmp_eq_u32 s{S_FAIL}, 0"); a("s_cbranch_scc1 L_vstep")
    a("s_branch L_fin")

def prefetch_role(a, nsteps=64, ahead=3):
    W=f"s[{S_WS}:{S_WS+3}]"
    a(f"s_sub_u32 s36, s{S_RANK}, 30")
    a("v_lshlrev_b32 v7, 7, v0")
    a(f"s_mul_i32 s{S_BF}, s36, {1792*128}"); a(f"s_add_u32 s{S_BF}, s{S_BF}, {LY.BFRAG}")
    a(f"s_mov_b32 s{S_XS}, {LY.HFRAG}"); a(f"s_mov_b32 s{S_PX}, {LY.PX}"); a(f"s_mov_b32 s{S_PM}, {LY.PM}")
    a(f"s_mov_b32 s{S_MEMOFF}, {LY.MEM}")
    a(f"s_mov_b32 s{S_STEP}, 0")
    a("v_mov_b32 v8, 7164")
    a.label("L_pf")
    a(f"s_cmp_lt_u32 s{S_STEP}, {ahead+1}"); a("s_cbranch_scc1 L_pf_go")
    a(f"s_add_u32 s{S_MEMOFF}, s{S_MEMOFF}, 7168")
    a(f"s_mov_b32 s{S_CNT}, 0")
    a.label("L_pf_w")
    a(f"buffer_load_dword v9, v8, {W}, s{S_MEMOFF} offen sc1"); a("s_waitcnt vmcnt(0)")
    a("v_cmp_eq_u32 vcc, -1, v9"); a("s_cbranch_vccz L_pf_go")
    a("s_sleep 4")
    a(f"s_add_u32 s{S_CNT}, s{S_CNT}, 1"); a(f"s_cmp_lt_u32 s{S_CNT}, {POLL_MAX}"); a("s_cbranch_scc1 L_pf_w")
    a("s_branch L_fin")
    a.label("L_pf_go")
    a(f"s_mov_b32 s{S_T0}, s{S_BF}")
    for i in range(7):
        a(f"buffer_load_dword v{10+i}, v7, {W}, s{S_T0} offen"); a(f"s_add_u32 s{S_T0}, s{S_T0}, {256*128}")
    a(f"s_cmp_eq_u32 s36, 0"); a("s_cbranch_scc0 L_pf_o")
    a(f"buffer_load_dword v17, v7, {W}, s{S_XS} offen")
    a("s_branch L_pf_n")
    a.label("L_pf_o")
    a(f"s_cmp_eq_u32 s{S_WAVE}, 0"); a("s_cbranch_scc0 L_pf_n")
    a(f"buffer_load_dword v17, v7, {W}, s{S_PX} offen sc1")
    a(f"buffer_load_dword v18, v7, {W}, s{S_PM} offen sc1")
    a.label("L_pf_n")
    a("s_waitcnt vmcnt(0)")
    a(f"s_add_u32 s{S_BF}, s{S_BF}, {28*16384}"); a(f"s_add_u32 s{S_XS}, s{S_XS}, 28672"); a(f"s_add_u32 s{S_PX}, s{S_PX}, 8192"); a(f"s_add_u32 s{S_PM}, s{S_PM}, 2048")
    a(f"s_add_u32 s{S_STEP}, s{S_STEP}, 1"); a(f"s_cmp_lt_u32 s{S_STEP}, {nsteps}"); a("s_cbranch_scc1 L_pf")
    a("s_branch L_fin")

def gen_rec(timing=True, sleep=0, target_xcc=0):
    a=Asm()
    common_prologue(a, target_xcc, 32 if EXP.get('pf') else 30)
    a(f"s_cmp_ge_u32 s{S_RANK}, 30"); a("s_cbranch_scc1 L_pref")
    a(f"s_cmp_ge_u32 s{S_RANK}, 16"); a("s_cbranch_scc1 L_value")
    global LANEREG
    LANEREG={0:2,1:1,6:0}
    score_role(a, timing, sleep)
    a.label("L_value")
    LANEREG={4:12,7:13,0:14,3:15}
    value_role(a, timing, sleep)
    a.label("L_pref")
    a("s_memtime s[40:41]")
    prefetch_role(a, ahead=EXP.get('ahead',3))
    a.label("L_fin")
    stamp_out(a)
    if timing:
        a("s_memtime s[42:43]"); a("s_waitcnt lgkmcnt(0)")
        a("s_sub_u32 s42, s42, s40")
        a("v_mov_b32 v20, s42"); a(f"v_mov_b32 v21, s{S_FAIL}")
        a(f"s_lshl_b32 s44, s{S_RANK}, 3"); a("s_add_u32 s44, s44, 8"); a("v_mov_b32 v22, s44")
        a("v_cmp_eq_u32 vcc, 0, v4"); a(f"s_and_saveexec_b64 s[{S_EX}:{S_EX+1}], vcc")
        a(f"buffer_store_dwordx2 v[20:21], v22, s[{S_DBG}:{S_DBG+3}], 0 offen")
        a(f"s_mov_b64 exec, s[{S_EX}:{S_EX+1}]")
    a("s_waitcnt vmcnt(0)")
    a.label("L_exit")
    return a.text()
if __name__=="__main__":
    t=gen_rec()
    open("rec_body.s","w").write(t); print(len(t.splitlines()))
```

```python
from common_k import *
from k0 import f2u
def wave_max_u32(a, r, t):
    for ror in (4,2,1):
        a("s_nop 1"); a(f"v_max_u32_dpp v{r}, v{r}, v{r} row_ror:{ror} row_mask:0xf bank_mask:0xf")
    xred(a,"v_max_u32",r,t)
def top2(a, WS, ld=""):
    W=S4(WS)
    a("v_lshlrev_b32 v2, 5, v0"); a(f"s_mov_b32 s23, {LY.R}")
    a(f"buffer_load_dwordx4 v[8:11], v2, {W}, s23 offen {ld}"); a(f"buffer_load_dwordx4 v[12:15], v2, {W}, s23 offen offset:16 {ld}")
    a("v_lshlrev_b32 v3, 3, v0"); a("v_sub_u32 v3, 2047, v3")
    a("s_waitcnt vmcnt(0)")
    for i in range(8):
        r=8+i
        a(f"v_ashrrev_i32 v4, 31, v{r}"); a("v_or_b32 v4, 0x80000000, v4"); a(f"v_xor_b32 v{r}, v{r}, v4")
        a(f"v_and_b32 v{r}, 0xfffff800, v{r}"); a(f"v_subrev_u32 v4, {i}, v3"); a(f"v_or_b32 v{r}, v{r}, v4")
    a("v_lshrrev_b32 v20, 6, v0"); a("v_lshlrev_b32 v20, 2, v20"); a("v_mov_b32 v21, 0")
    for rnd in range(2):
        a("v_max3_u32 v16, v8, v9, v10"); a("v_max3_u32 v16, v16, v11, v12"); a("v_max3_u32 v16, v16, v13, v14"); a("v_max_u32 v16, v16, v15")
        wave_max_u32(a,16,17)
        a(f"ds_write_b32 v20, v16 offset:{rnd*16}"); a("s_waitcnt lgkmcnt(0)"); a("s_barrier")
        a(f"ds_read_b128 v[24:27], v21 offset:{rnd*16}"); a("s_waitcnt lgkmcnt(0)")
        a("v_max3_u32 v16, v24, v25, v26"); a("v_max_u32 v16, v16, v27")
        a("v_and_b32 v18, 0x7ff, v16"); a("v_sub_u32 v18, 2047, v18"); a("s_nop 0"); a(f"v_readfirstlane_b32 s{40+rnd}, v18")
        if rnd==0:
            for i in range(8):
                a(f"v_cmp_ne_u32 vcc, v{8+i}, v16"); a("s_nop 1"); a(f"v_cndmask_b32 v{8+i}, 0, v{8+i}, vcc")
    a("s_nop 3")
K5_LDS=8192
def gen_k5():
    a=Asm()
    a("s_cmp_lt_u32 s2, 112"); a("s_cbranch_scc0 L_end")
    a("v_and_b32 v1, 63, v0"); a("v_lshrrev_b32 v2, 6, v0"); a("s_nop 0"); a("v_readfirstlane_b32 s22, v2")
    srds(a,[(16,'ws'),(8,'wg'),(12,'wu')])
    W=S4(16)
    a("v_and_b32 v30, 7, v0"); a("v_lshrrev_b32 v31, 3, v0")
    a("v_mul_u32_u24 v32, 14, v31"); a("s_movk_i32 s24, 3584"); a("v_mul_lo_u32 v33, v32, s24"); a("v_lshlrev_b32 v34, 2, v30"); a("v_add_u32 v33, v33, v34")
    a("s_lshl_b32 s25, s2, 5")
    for j in range(14):
        a(f"buffer_load_dword v{64+j}, v33, {S4(8)}, s25 offen"); a(f"buffer_load_dword v{80+j}, v33, {S4(12)}, s25 offen"); a("s_add_u32 s25, s25, 3584")
    top2(a,16)
    a("s_cmp_eq_u32 s2, 0"); a("s_cbranch_scc0 L_noidx")
    a("v_mov_b32 v4, s40"); a("v_mov_b32 v5, s41"); a("v_mov_b32 v6, 0"); a(f"s_mov_b32 s26, {LY.MISC}")
    a("s_mov_b64 exec, 1"); a(f"buffer_store_dwordx2 v[4:5], v6, {W}, s26 offen"); a("s_mov_b64 exec, -1")
    a.label("L_noidx")
    a("v_lshlrev_b32 v35, 1, v32")
    a("s_mul_i32 s26, s40, 896"); a(f"s_add_u32 s26, s26, {LY.H2}"); a("s_mul_i32 s27, s41, 896"); a(f"s_add_u32 s27, s27, {LY.H2}")
    for j in range(14):
        a(f"buffer_load_ushort v{96+j}, v35, {W}, s26 offen offset:{2*j}"); a(f"buffer_load_ushort v{112+j}, v35, {W}, s27 offen offset:{2*j}")
    for r in range(40,48): a(f"v_mov_b32 v{r}, 0")
    a("s_waitcnt vmcnt(0)")
    for j in range(14):
        a(f"v_lshlrev_b32 v{96+j}, 16, v{96+j}"); a(f"v_lshlrev_b32 v{112+j}, 16, v{112+j}")
        unpack_lo(a,48,64+j); unpack_hi(a,49,64+j); unpack_lo(a,50,80+j); unpack_hi(a,51,80+j)
        for t,hb in ((0,96),(1,112)):
            for q in range(4): a(f"v_fmac_f32 v{40+4*t+q}, v{48+q}, v{hb+j}")
    for r in range(40,48): xred(a,"v_add_f32",r,52)
    a("v_lshlrev_b32 v53, 5, v30"); a("s_lshl_b32 s28, s22, 8"); a("s_add_u32 s28, s28, 256"); a("v_add_u32 v53, s28, v53")
    a("s_mov_b64 exec, 0xff"); a("ds_write_b128 v53, v[40:43]"); a("ds_write_b128 v53, v[44:47] offset:16"); a("s_mov_b64 exec, -1")
    a("s_waitcnt lgkmcnt(0)"); a("s_barrier")
    a("v_cmp_gt_u32 vcc, 32, v0"); a("s_and_saveexec_b64 s[30:31], vcc"); a("s_cbranch_execz L_fin")
    a("v_lshrrev_b32 v54, 4, v0"); a("v_and_b32 v55, 15, v0"); a("v_lshrrev_b32 v56, 1, v55"); a("v_lshlrev_b32 v56, 3, v56"); a("v_lshlrev_b32 v57, 2, v54"); a("v_add_u32 v56, v56, v57")
    a("v_and_b32 v57, 1, v55"); a("v_add_u32 v56, v56, v57"); a("v_lshlrev_b32 v56, 2, v56"); a("v_add_u32 v56, 256, v56")
    for w in range(4): a(f"ds_read_b32 v{60+w}, v56 offset:{w*256}"); a(f"ds_read_b32 v{64+w}, v56 offset:{w*256+8}")
    a("s_waitcnt lgkmcnt(0)")
    a("v_add_f32 v60, v60, v61"); a("v_add_f32 v62, v62, v63"); a("v_add_f32 v60, v60, v62")
    a("v_add_f32 v64, v64, v65"); a("v_add_f32 v66, v66, v67"); a("v_add_f32 v64, v64, v66")
    def rb(r): a(f"v_cvt_pk_bf16_f32 v{r}, v{r}, v{r}"); a(f"v_lshlrev_b32 v{r}, 16, v{r}")
    rb(60); rb(64)
    a("v_mul_f32 v61, 0xbfb8aa3b, v60"); a("v_exp_f32 v61, v61"); a("s_nop 0"); a("v_add_f32 v61, 1.0, v61"); a("v_rcp_f32 v61, v61"); a("s_nop 0"); a("v_mul_f32 v60, v60, v61")
    rb(60); a("v_mul_f32 v60, v60, v64"); rb(60)
    a("v_mul_u32_u24 v58, 7168, v54"); a("v_lshlrev_b32 v59, 2, v55"); a("v_add_u32 v58, v58, v59"); a("s_lshl_b32 s28, s2, 6"); a(f"s_add_u32 s28, s28, {LY.ACT}")
    a(f"buffer_store_dword v60, v58, {W}, s28 offen")
    a.label("L_fin"); a("s_mov_b64 exec, s[30:31]")
    a.label("L_end"); a("s_waitcnt vmcnt(0)")
    return a.text()
K6_LDS=4096
def gen_k6():
    a=Asm()
    a("s_cmp_lt_u32 s2, 56"); a("s_cbranch_scc0 L_end")
    a("v_and_b32 v1, 63, v0"); a("v_lshrrev_b32 v2, 6, v0"); a("s_nop 0"); a("v_readfirstlane_b32 s22, v2")
    srds(a,[(16,'ws'),(8,'wd'),(12,'out')])
    W=S4(16)
    a("v_and_b32 v30, 3, v0"); a("v_lshrrev_b32 v31, 2, v0")
    a("v_mul_u32_u24 v32, 28, v31"); a("v_mul_u32_u24 v33, 896, v32"); a("v_lshlrev_b32 v34, 2, v30"); a("v_add_u32 v33, v33, v34"); a("s_lshl_b32 s26, s2, 4")
    for j in range(28):
        a(f"buffer_load_dword v{64+j}, v33, {S4(8)}, s26 offen"); a("s_add_u32 s26, s26, 896")
    a("v_lshlrev_b32 v35, 2, v32"); a(f"s_mov_b32 s27, {LY.ACT}"); a(f"s_mov_b32 s28, {LY.ACT+7168}")
    for j in range(7):
        a(f"buffer_load_dwordx4 {vr(96+4*j,4)}, v35, {W}, s27 offen offset:{16*j}"); a(f"buffer_load_dwordx4 {vr(128+4*j,4)}, v35, {W}, s28 offen offset:{16*j}")
    a("v_mov_b32 v6, 0"); a(f"s_mov_b32 s29, {LY.MISC}"); a(f"buffer_load_dwordx2 v[4:5], v6, {W}, s29 offen")
    for r in range(40,44): a(f"v_mov_b32 v{r}, 0")
    a("s_waitcnt vmcnt(0)")
    a("v_readfirstlane_b32 s40, v4"); a("v_readfirstlane_b32 s41, v5")
    for j in range(28):
        unpack_lo(a,48,64+j); unpack_hi(a,49,64+j)
        a(f"v_fmac_f32 v40, v48, v{96+j}"); a(f"v_fmac_f32 v41, v49, v{96+j}"); a(f"v_fmac_f32 v42, v48, v{128+j}"); a(f"v_fmac_f32 v43, v49, v{128+j}")
    for r in range(40,44):
        a("s_nop 1"); a(f"v_add_f32_dpp v{r}, v{r}, v{r} row_ror:4 row_mask:0xf bank_mask:0xf"); xred(a,"v_add_f32",r,52)
    a("v_lshlrev_b32 v53, 4, v30"); a("s_lshl_b32 s30, s22, 6"); a("v_add_u32 v53, s30, v53")
    a("s_mov_b64 exec, 0xf"); a("ds_write_b128 v53, v[40:43]"); a("s_mov_b64 exec, -1")
    a("s_waitcnt lgkmcnt(0)"); a("s_barrier")
    a("v_cmp_gt_u32 vcc, 16, v0"); a("s_and_saveexec_b64 s[32:33], vcc"); a("s_cbranch_execz L_fin")
    a("v_lshrrev_b32 v54, 3, v0"); a("v_and_b32 v55, 7, v0"); a("v_lshrrev_b32 v56, 1, v55"); a("v_lshlrev_b32 v56, 2, v56"); a("v_lshlrev_b32 v57, 1, v54"); a("v_add_u32 v56, v56, v57")
    a("v_and_b32 v57, 1, v55"); a("v_add_u32 v56, v56, v57"); a("v_lshlrev_b32 v56, 2, v56")
    for w in range(4): a(f"ds_read_b32 v{60+w}, v56 offset:{w*64}")
    a("v_mov_b32 v58, s40"); a("v_mov_b32 v59, s41"); a("v_cmp_eq_u32 vcc, 0, v54"); a("s_nop 1"); a("v_cndmask_b32 v58, v59, v58, vcc")
    a("s_lshl_b32 s34, s2, 3"); a("v_add_u32 v59, s34, v55")
    a("s_movk_i32 s35, 448"); a("v_mul_lo_u32 v64, v58, s35"); a("v_add_u32 v64, v64, v59")
    a("v_lshlrev_b32 v65, 2, v64"); a(f"s_mov_b32 s36, {LY.X1}"); a(f"buffer_load_dword v66, v65, {W}, s36 offen")
    a("v_lshlrev_b32 v67, 1, v64"); a(f"s_mov_b32 s37, {LY.H2}"); a(f"buffer_load_ushort v68, v67, {W}, s37 offen")
    a("v_lshlrev_b32 v69, 2, v59"); a(f"s_mov_b32 s38, {LY.MOD+5*448*4}"); a(f"buffer_load_dword v70, v69, {W}, s38 offen")
    a("v_lshlrev_b32 v71, 2, v58"); a(f"s_mov_b32 s39, {LY.R}"); a(f"buffer_load_dword v72, v71, {W}, s39 offen")
    a("s_waitcnt vmcnt(0) lgkmcnt(0)")
    a("v_add_f32 v60, v60, v61"); a("v_add_f32 v62, v62, v63"); a("v_add_f32 v60, v60, v62")
    def rb(r): a(f"v_cvt_pk_bf16_f32 v{r}, v{r}, v{r}"); a(f"v_lshlrev_b32 v{r}, 16, v{r}")
    rb(60)
    a("v_mul_f32 v72, 0xbfb8aa3b, v72"); a("v_exp_f32 v72, v72"); a("s_nop 0"); a("v_add_f32 v72, 1.0, v72"); a("v_rcp_f32 v72, v72"); a("s_nop 0")
    a("v_mul_f32 v60, v60, v72"); rb(60)
    a("v_lshlrev_b32 v68, 16, v68"); a("v_add_f32 v60, v60, v68"); a("v_fmac_f32 v66, v70, v60")
    a("v_cvt_pk_bf16_f32 v66, v66, v66")
    a(f"buffer_store_short v66, v67, {S4(12)}, 0 offen")
    a.label("L_fin"); a("s_mov_b64 exec, s[32:33]")
    a.label("L_end"); a("s_waitcnt vmcnt(0)")
    return a.text()
if __name__=="__main__": print(len(gen_k5().splitlines()),len(gen_k6().splitlines()))
```

```python
from common_k import *
from k0 import ln_stats, f2u
NEGINF=0xff800000
X1_LDS=28672
def x1_task(a, WS, ld="", st=""):
    W=S4(WS)
    a("v_and_b32 v2, 15, v1"); a("v_lshrrev_b32 v3, 4, v1")
    a("v_lshlrev_b32 v4, 4, v1")
    a("s_mul_i32 s23, s20, 28672"); a(f"s_add_u32 s23, s23, {LY.HFRAG}"); a("s_mul_i32 s24, s22, 7168"); a("s_add_u32 s23, s23, s24")
    a("s_mov_b32 m0, s24"); a("s_nop 0")
    for i in range(4): a(f"buffer_load_dwordx4 v4, {W}, s23 offen offset:{i*1024} lds")
    a("s_add_u32 s24, s24, 4096"); a("s_add_u32 s23, s23, 4096"); a("s_mov_b32 m0, s24"); a("s_nop 0")
    for i in range(3): a(f"buffer_load_dwordx4 v4, {W}, s23 offen offset:{i*1024} lds")
    a("s_lshl_b32 s25, s21, 2"); a("s_add_u32 s25, s25, s22")
    a("s_lshl_b32 s26, s20, 4"); a("s_add_u32 s26, s26, s25"); a("s_mul_i32 s26, s26, 28672"); a(f"s_add_u32 s26, s26, {LY.TFRAG}")
    TF=32
    for tt in range(2):
        a(f"s_add_u32 s27, s26, {tt*1024}")
        for ks in range(14):
            a(f"buffer_load_dwordx4 {vr(TF+56*tt+4*ks,4)}, v4, {W}, s27 offen offset:{(ks&1)*2048} {ld}")
            if ks&1: a("s_add_u32 s27, s27, 4096")
    MF=144
    a("v_lshlrev_b32 v5, 7, v3"); a("v_and_b32 v6, 7, v2"); a("v_lshlrev_b32 v6, 4, v6"); a("v_add_u32 v5, v5, v6")
    a("s_mul_i32 s28, s20, 7168"); a(f"s_add_u32 s28, s28, {LY.MEM}")
    return_mem=lambda: None
    def memloads():
        for ks in range(14):
            a(f"buffer_load_dwordx4 {vr(MF+4*ks,4)}, v5, {W}, s28 offen offset:{(ks*512)%4096} sc1") if ks<8 else a(f"buffer_load_dwordx4 {vr(MF+4*ks,4)}, v5, {W}, s29 offen offset:{(ks*512)%4096} sc1")
    a("s_add_u32 s29, s28, 4096")
    memloads()
    a("v_lshrrev_b32 v7, 2, v2"); a("v_lshlrev_b32 v7, 3, v7"); a("v_and_b32 v8, 3, v2"); a("v_add_u32 v7, v7, v8"); a("v_lshlrev_b32 v7, 4, v7")
    a("v_lshlrev_b32 v8, 9, v3"); a("v_add_u32 v7, v7, v8")
    a("v_lshlrev_b32 v9, 3, v3"); a("v_sub_u32 v9, v9, v2")
    ACC=200
    for r in range(ACC,ACC+24): a(f"v_mov_b32 v{r}, 0")
    a("s_waitcnt vmcnt(0)"); a("s_barrier")
    KB=224
    seq=[(T,ks) for ks in range(14) for T in range(2)]
    def kread(i):
        T,ks=seq[i]; a(f"ds_read_b128 {vr(KB+4*(i%3),4)}, v7 offset:{ks*2048+T*64}")
    kread(0); kread(1)
    for i,(T,ks) in enumerate(seq):
        if i+2<len(seq): kread(i+2)
        a(f"s_waitcnt lgkmcnt({min(2,len(seq)-1-i)})")
        for tt in range(2):
            a(f"v_mfma_f32_16x16x32_bf16 {vr(ACC+12*tt+4*T,4)}, {vr(KB+4*(i%3),4)}, {vr(TF+56*tt+4*ks,4)}, {vr(ACC+12*tt+4*T,4)}")
        if T==1:
            for tt in range(2):
                a(f"v_mfma_f32_16x16x32_bf16 {vr(ACC+12*tt+8,4)}, {vr(MF+4*ks,4)}, {vr(TF+56*tt+4*ks,4)}, {vr(ACC+12*tt+8,4)}")
    a.nop(10)
    a(f"v_mov_b32 v10, {NEGINF:#x}")
    a("s_lshl_b32 s30, s20, 1")
    for tt in range(2):
        S=ACC+12*tt
        for T in range(2):
            for i in range(4):
                a(f"v_cmp_lt_i32 vcc, {16*tt-4*T-i}, v9"); a("s_nop 1"); a(f"v_cndmask_b32 v{S+4*T+i}, v{S+4*T+i}, v10, vcc")
        a("v_cmp_lt_u32 vcc, 1, v3"); a("s_nop 1")
        for i in range(4): a(f"v_cndmask_b32 v{S+8+i}, v{S+8+i}, v10, vcc")
        m=236; t=237
        a(f"v_max3_f32 v{m}, v{S}, v{S+1}, v{S+2}")
        for k in range(3,11,2): a(f"v_max3_f32 v{m}, v{m}, v{S+k}, v{S+k+1}")
        a(f"v_max_f32 v{m}, v{m}, v{S+11}")
        xred_g(a,"v_max_f32",m,t)
        for k in range(12): a(f"v_sub_f32 v{S+k}, v{S+k}, v{m}")
        for k in range(12): a(f"v_exp_f32 v{S+k}, v{S+k}")
        a("s_nop 0")
        a(f"v_add_f32 v{m}, v{S}, v{S+1}")
        for k in range(2,12): a(f"v_add_f32 v{m}, v{m}, v{S+k}")
        xred_g(a,"v_add_f32",m,t)
        a(f"v_rcp_f32 v{m}, v{m}"); a("s_nop 0")
        for k in range(12): a(f"v_mul_f32 v{S+k}, v{S+k}, v{m}")
        O=240+ 0
        for z in range(6): a(f"v_cvt_pk_bf16_f32 v{O+z}, v{S+2*z}, v{S+2*z+1}")
        a(f"s_add_u32 s31, s30, {tt}"); a("s_lshl_b32 s32, s31, 4"); a("s_add_u32 s32, s32, s25"); a("s_lshl_b32 s32, s32, 10"); a(f"s_add_u32 s32, s32, {LY.PFX}")
        a(f"buffer_store_dwordx4 {vr(O,4)}, v4, {W}, s32 offen {st}")
        a("s_lshl_b32 s32, s31, 2"); a("s_add_u32 s32, s32, s21"); a("s_lshl_b32 s32, s32, 10"); a(f"s_add_u32 s32, s32, {LY.PFM}")
        a("s_and_b32 s33, s22, 1"); a("s_lshl_b32 s33, s33, 9"); a("s_add_u32 s32, s32, s33"); a("s_lshr_b32 s33, s22, 1"); a("s_lshl_b32 s33, s33, 3"); a("s_add_u32 s32, s32, s33")
        a("s_mov_b32 exec_hi, 0")
        a(f"buffer_store_dwordx2 {vr(O+4,2)}, v4, {W}, s32 offen {st}")
        a("s_mov_b32 exec_hi, -1")
        a("s_nop 1")
def gen_x1():
    a=Asm()
    a("s_cmp_lt_u32 s2, 256"); a("s_cbranch_scc0 L_end")
    a("v_and_b32 v1, 63, v0"); a("v_lshrrev_b32 v2, 6, v0"); a("s_nop 0"); a("v_readfirstlane_b32 s22, v2")
    srds(a,[(16,'ws')])
    a("s_lshr_b32 s20, s2, 2"); a("s_and_b32 s21, s2, 3")
    x1_task(a,16)
    a.label("L_end"); a("s_waitcnt vmcnt(0)")
    return a.text()

X2_LDS=40960
def x2_task(a, WS, XS, ld="", st=""):
    W=S4(WS)
    a("v_and_b32 v2, 15, v1"); a("v_lshrrev_b32 v3, 4, v1"); a("v_lshlrev_b32 v4, 4, v1")
    a("s_lshl_b32 s23, s20, 15"); a(f"s_add_u32 s23, s23, {LY.PFX}"); a("s_lshl_b32 s24, s22, 13"); a("s_add_u32 s23, s23, s24")
    for half in range(2):
        a("s_mov_b32 m0, s24"); a("s_nop 0")
        for i in range(4): a(f"buffer_load_dwordx4 v4, {W}, s23 offen offset:{i*1024} lds {ld}")
        a("s_add_u32 s24, s24, 4096"); a("s_add_u32 s23, s23, 4096")
    a("s_lshl_b32 s23, s20, 13"); a(f"s_add_u32 s23, s23, {LY.PFM}"); a("s_lshl_b32 s24, s22, 11"); a("s_add_u32 s23, s23, s24"); a("s_add_u32 s24, s24, 32768")
    a("s_mov_b32 m0, s24"); a("s_nop 0")
    for i in range(2): a(f"buffer_load_dwordx4 v4, {W}, s23 offen offset:{i*1024} lds {ld}")
    a("s_lshl_b32 s25, s21, 2"); a("s_add_u32 s25, s25, s22")
    a("s_mul_i32 s26, s20, 28"); a("s_add_u32 s26, s26, s25")
    a("s_lshl_b32 s27, s26, 14"); a(f"s_add_u32 s27, s27, {LY.BFRAG}")
    AF=32
    for h in range(16):
        a(f"buffer_load_dwordx4 {vr(AF+4*h,4)}, v4, {W}, s27 offen offset:{(h&3)*1024} {ld}")
        if (h&3)==3: a("s_add_u32 s27, s27, 4096")
    a("s_lshl_b32 s27, s26, 12"); a(f"s_add_u32 s27, s27, {LY.MFRAG}")
    for w in range(4): a(f"buffer_load_dwordx4 {vr(AF+64+4*w,4)}, v4, {W}, s27 offen offset:{w*1024} {ld}")
    a("v_mul_u32_u24 v5, 896, v2"); a("v_lshlrev_b32 v6, 3, v3"); a("v_add_u32 v5, v5, v6")
    a("s_mul_i32 s28, s20, 28672"); a("s_lshl_b32 s29, s25, 5"); a("s_add_u32 s28, s28, s29")
    a(f"buffer_load_dwordx2 v[120:121], v5, {S4(XS)}, s28 offen"); a(f"s_add_u32 s28, s28, {16*896}"); a(f"buffer_load_dwordx2 v[122:123], v5, {S4(XS)}, s28 offen")
    a("v_lshlrev_b32 v6, 4, v3"); a("s_lshl_b32 s29, s25, 6"); a(f"s_add_u32 s29, s29, {LY.MOD+2*448*4}")
    a(f"buffer_load_dwordx4 v[124:127], v6, {W}, s29 offen")
    ACC=112
    for r in range(ACC,ACC+8): a(f"v_mov_b32 v{r}, 0")
    a("s_waitcnt vmcnt(0)"); a("s_barrier")
    PB=128
    seq=[(tt,k) for k in range(20) for tt in range(2)]
    def pread(i):
        tt,k=seq[i]; off = tt*16384+k*1024 if k<16 else 32768+tt*4096+(k-16)*1024
        a(f"ds_read_b128 {vr(PB+4*(i%4),4)}, v4 offset:{off}")
    for i in range(3): pread(i)
    for i,(tt,k) in enumerate(seq):
        if i+3<len(seq): pread(i+3)
        a(f"s_waitcnt lgkmcnt({min(3,len(seq)-1-i)})")
        a(f"v_mfma_f32_16x16x32_bf16 {vr(ACC+4*tt,4)}, {vr(AF+4*k,4)}, {vr(PB+4*(i%4),4)}, {vr(ACC+4*tt,4)}")
    a.nop(10)
    a("v_mul_u32_u24 v7, 1792, v2"); a("v_lshlrev_b32 v8, 4, v3"); a("v_add_u32 v7, v7, v8")
    a(f"s_mul_i32 s30, s20, {32*1792}"); a("s_lshl_b32 s29, s25, 6"); a("s_add_u32 s30, s30, s29"); a(f"s_add_u32 s30, s30, {LY.X1}")
    for tt in range(2):
        xr=120+2*tt
        unpack_lo(a,144,xr); unpack_hi(a,145,xr); unpack_lo(a,146,xr+1); unpack_hi(a,147,xr+1)
        for i in range(4): a(f"v_fmac_f32 v{144+i}, v{124+i}, v{ACC+4*tt+i}")
        a(f"buffer_store_dwordx4 v[144:147], v7, {W}, s30 offen {st}")
        a(f"s_add_u32 s30, s30, {16*1792}"); a("s_nop 1")
def gen_x2():
    a=Asm()
    a("s_cmp_lt_u32 s2, 448"); a("s_cbranch_scc0 L_end")
    a("v_and_b32 v1, 63, v0"); a("v_lshrrev_b32 v2, 6, v0"); a("s_nop 0"); a("v_readfirstlane_b32 s22, v2")
    srds(a,[(16,'ws'),(12,'x')])
    a("s_mul_i32 s20, s2, 9363"); a("s_lshr_b32 s20, s20, 16"); a("s_mul_i32 s21, s20, 7"); a("s_sub_u32 s21, s2, s21")
    x2_task(a,16,12)
    a.label("L_end"); a("s_waitcnt vmcnt(0)")
    return a.text()

def x3_task(a, WS, OUT, WR, ld=""):
    W=S4(WS)
    a("v_and_b32 v3, 7, v1"); a("v_lshrrev_b32 v4, 3, v1")
    a("s_lshl_b32 s23, s22, 3"); a("v_add_u32 v5, s23, v3")
    a("v_mul_u32_u24 v6, 1792, v5"); a("v_lshlrev_b32 v7, 5, v4"); a("v_add_u32 v6, v6, v7")
    a(f"s_mul_i32 s24, s20, {32*1792}"); a(f"s_add_u32 s24, s24, {LY.X1}")
    X=64; X0=8
    for i in range(7):
        a(f"buffer_load_dwordx4 {vr(X+8*i,4)}, v6, {W}, s24 offen offset:{256*i} {ld}"); a(f"buffer_load_dwordx4 {vr(X+8*i+4,4)}, v6, {W}, s24 offen offset:{256*i+16} {ld}")
    a("v_lshlrev_b32 v8, 5, v4")
    SB=120; CB=176; GB=232
    a(f"s_mov_b32 s25, {LY.MOD+3*448*4}"); a(f"s_mov_b32 s26, {LY.MOD+4*448*4}"); a(f"s_mov_b32 s27, {LY.MOD+5*448*4}")
    for i in range(7):
        a(f"buffer_load_dwordx4 {vr(SB+8*i,4)}, v8, {W}, s25 offen offset:{256*i}"); a(f"buffer_load_dwordx4 {vr(SB+8*i+4,4)}, v8, {W}, s25 offen offset:{256*i+16}")
        a(f"buffer_load_dwordx4 {vr(CB+8*i,4)}, v8, {W}, s26 offen offset:{256*i}"); a(f"buffer_load_dwordx4 {vr(CB+8*i+4,4)}, v8, {W}, s26 offen offset:{256*i+16}")
    a("v_lshlrev_b32 v9, 4, v4")
    WRr=32
    for i in range(7): a(f"buffer_load_dwordx4 {vr(WRr+4*i,4)}, v9, {S4(WR)}, 0 offen offset:{128*i}")
    a("s_waitcnt vmcnt(35)")
    ln_stats(a,X,56,10,12,13)
    a("s_waitcnt vmcnt(0)")
    for k in range(56):
        a(f"v_add_f32 v{CB+k}, 1.0, v{CB+k}"); a(f"v_mul_f32 v{CB+k}, v{CB+k}, v11"); a(f"v_fmac_f32 v{SB+k}, v{X+k}, v{CB+k}")
    for i in range(7):
        a(f"buffer_load_dwordx4 {vr(CB+8*i,4)}, v8, {W}, s27 offen offset:{256*i}"); a(f"buffer_load_dwordx4 {vr(CB+8*i+4,4)}, v8, {W}, s27 offen offset:{256*i+16}")
    for k in range(0,56,2):
        a(f"v_cvt_pk_bf16_f32 v14, v{SB+k}, v{SB+k+1}"); unpack_lo(a,SB+k,14); unpack_hi(a,SB+k+1,14)
    a("v_mul_u32_u24 v17, 896, v5"); a("v_lshlrev_b32 v18, 4, v4"); a("v_add_u32 v17, v17, v18"); a("s_mul_i32 s29, s20, 28672"); a(f"s_add_u32 s29, s29, {LY.H2}")
    for i in range(7):
        for q in range(4): a(f"v_cvt_pk_bf16_f32 v{20+q}, v{SB+8*i+2*q}, v{SB+8*i+2*q+1}")
        a(f"buffer_store_dwordx4 v[20:23], v17, {W}, s29 offen offset:{128*i}"); a("s_nop 1")
    a("v_mov_b32 v15, 0")
    for i in range(7):
        for q in range(4):
            unpack_lo(a,14,WRr+4*i+q); a(f"v_fmac_f32 v15, v14, v{SB+8*i+2*q}"); unpack_hi(a,14,WRr+4*i+q); a(f"v_fmac_f32 v15, v14, v{SB+8*i+2*q+1}")
    xred(a,"v_add_f32",15,12)
    a("v_lshlrev_b32 v16, 2, v5"); a("s_lshl_b32 s28, s20, 7"); a(f"s_add_u32 s28, s28, {LY.R}")
    a("s_mov_b64 exec, 0xff"); a(f"buffer_store_dword v15, v16, {W}, s28 offen"); a("s_mov_b64 exec, -1")
    a("s_waitcnt vmcnt(8)")
    for k in range(56):
        a(f"v_add_f32 v{X+k}, v{X+k}, v10"); a(f"v_fmac_f32 v{X+k}, v{CB+k}, v{SB+k}")
    a("v_mul_u32_u24 v6, 896, v5"); a("v_lshlrev_b32 v7, 4, v4"); a("v_add_u32 v6, v6, v7"); a("s_mul_i32 s24, s20, 28672")
    for i in range(7):
        for q in range(4): a(f"v_cvt_pk_bf16_f32 v{32+4*i+q}, v{X+8*i+2*q}, v{X+8*i+2*q+1}")
        a(f"buffer_store_dwordx4 {vr(32+4*i,4)}, v6, {S4(OUT)}, s24 offen offset:{128*i}")
def gen_x3():
    a=Asm()
    a("s_cmp_lt_u32 s2, 64"); a("s_cbranch_scc0 L_end")
    a("v_and_b32 v1, 63, v0"); a("v_lshrrev_b32 v2, 6, v0"); a("s_nop 0"); a("v_readfirstlane_b32 s22, v2")
    srds(a,[(16,'ws'),(12,'out'),(8,'wr')])
    a("s_mov_b32 s20, s2")
    x3_task(a,16,12,8)
    a.label("L_end"); a("s_waitcnt vmcnt(0)")
    return a.text()
if __name__=="__main__":
    print(len(gen_x1().splitlines()),len(gen_x2().splitlines()),len(gen_x3().splitlines()))
```

```python
from tutil import *
import re, k0, k1, rec, xf, tail, layout as LY
def uniq(body,tag): return re.sub(r"\bL_(\w+)", lambda m: f"L{tag}_{m.group(1)}", body)
def kernels():
    rec.STAMP=False; rec.EXP={'warmP':1,'maskP':1,'p2B':1,'pf':1}
    return [("k0a_kernel",uniq(k0.gen_k0a(),"a"),256,k0.K0A_LDS,256,256),
            ("k0b_kernel",uniq(k0.gen_k0b(),"b"),64,0,256,256),
            ("k1_kernel",uniq(k1.gen_k1(),"c"),224,k1.K1_LDS,256,256),
            ("rec_kernel",uniq(rec.gen_rec(timing=False),"d"),256,rec.LDS_BYTES,512,256),
            ("x1_kernel",uniq(xf.gen_x1(),"e"),256,xf.X1_LDS,256,256),
            ("x2_kernel",uniq(xf.gen_x2(),"f"),448,xf.X2_LDS,256,256),
            ("x3_kernel",uniq(xf.gen_x3(),"g"),64,0,256,256),
            ("k5_kernel",uniq(tail.gen_k5(),"h"),112,tail.K5_LDS,256,256),
            ("k6_kernel",uniq(tail.gen_k6(),"i"),56,tail.K6_LDS,256,256)]
HDR=open("adaLN_cond__memory_aug_recurrent_mem_tr__moe_arch_mod__prompt.s.ref").read().split("; Override launch")[0] if os.path.exists("adaLN_cond__memory_aug_recurrent_mem_tr__moe_arch_mod__prompt.s.ref") else ""
def make():
    return HDR+mkfile(kernels())
if __name__=="__main__":
    asm=make()
    if not on_gpu():
        check_local(asm,[k[0] for k in kernels()])
        open("full.s","w").write(asm); print(len(asm))
```

```python
from asmlib import *
import layout as LY
WS_BYTES = 268435456
KA = dict(x=0, mem0=8, Wq=16, Wk=24, Wv=32, Wo=40, seg=48, Bx=56, wr=64, wg=72, wu=80, wd=88, c=96, wmod=104, out=112, dbg=120, ws=128)
SZ = dict(x=1835008, mem0=7168, Wq=3670016, Wk=3670016, Wv=3670016, Wo=3670016, wr=896, wg=1605632, wu=1605632, wd=1605632, c=896, wmod=2408448, out=1835008, dbg=256, ws=WS_BYTES)
def load_srd(a, d, name, tmp):
    a(f"s_load_dwordx2 s[{tmp}:{tmp+1}], s[0:1], {KA[name]}")
def mk_srd(a, d, name, tmp):
    a(f"s_mov_b32 s{d}, s{tmp}"); a(f"s_and_b32 s{d+1}, s{tmp+1}, 0xffff"); a(f"s_mov_b32 s{d+2}, {SZ[name]}"); a(f"s_mov_b32 s{d+3}, 0x20000")
def srds(a, spec, tmp0=60):
    for i,(d,n) in enumerate(spec): load_srd(a,d,n,tmp0+2*i)
    a("s_waitcnt lgkmcnt(0)")
    for i,(d,n) in enumerate(spec): mk_srd(a,d,n,tmp0+2*i)
def S4(d): return f"s[{d}:{d+3}]"
def xred(a, op, r, t):
    a("s_nop 1"); a(f"{op}_dpp v{r}, v{r}, v{r} row_ror:8 row_mask:0xf bank_mask:0xf")
    a(f"v_mov_b32 v{t}, v{r}"); a("s_nop 1"); a(f"v_permlane16_swap_b32 v{r}, v{t}"); a(f"{op} v{r}, v{r}, v{t}")
    a(f"v_mov_b32 v{t}, v{r}"); a("s_nop 1"); a(f"v_permlane32_swap_b32 v{r}, v{t}"); a(f"{op} v{r}, v{r}, v{t}")
def xred_g(a, op, r, t):
    a(f"v_mov_b32 v{t}, v{r}"); a("s_nop 1"); a(f"v_permlane16_swap_b32 v{r}, v{t}"); a(f"{op} v{r}, v{r}, v{t}")
    a(f"v_mov_b32 v{t}, v{r}"); a("s_nop 1"); a(f"v_permlane32_swap_b32 v{r}, v{t}"); a(f"{op} v{r}, v{r}, v{t}")
def unpack_lo(a, dst, src): a(f"v_lshlrev_b32 v{dst}, 16, v{src}")
def unpack_hi(a, dst, src): a(f"v_and_b32 v{dst}, 0xffff0000, v{src}")
POLL_MAX=400000
def wait_cnt(a, W, soff, target, v, vz, st, sc, sleep=8):
    lp=a.newlabel("L_wc")
    a(f"s_mov_b32 s{sc}, 0")
    a.label(lp)
    a(f"buffer_load_dword v{v}, v{vz}, {W}, s{soff} offen sc1"); a("s_waitcnt vmcnt(0)"); a(f"v_readfirstlane_b32 s{st}, v{v}"); a("s_nop 3")
    a(f"s_cmp_ge_u32 s{st}, {target}"); a(f"s_cbranch_scc1 {lp}_ok")
    a(f"s_sleep {sleep}"); a(f"s_add_u32 s{sc}, s{sc}, 1"); a(f"s_cmp_lt_u32 s{sc}, {POLL_MAX}"); a(f"s_cbranch_scc1 {lp}")
    a.label(lp+"_ok")
def chk_poison(a, regs, t0, t1):
    regs=list(regs)
    a(f"v_max3_u32 v{t0}, v{regs[0]}, v{regs[1]}, v{regs[2]}")
    rest=regs[3:]
    if len(rest)>=3:
        a(f"v_max3_u32 v{t1}, v{rest[0]}, v{rest[1]}, v{rest[2]}"); rest=rest[3:]
        cur=[t0,t1]; k=0
        while len(rest)>=2:
            a(f"v_max3_u32 v{cur[k]}, v{cur[k]}, v{rest[0]}, v{rest[1]}"); rest=rest[2:]; k^=1
        if rest: a(f"v_max3_u32 v{t0}, v{t0}, v{t1}, v{rest[0]}")
        else: a(f"v_max_u32 v{t0}, v{t0}, v{t1}")
    else:
        for r in rest: a(f"v_max_u32 v{t0}, v{t0}, v{r}")
    a(f"v_cmp_eq_u32 vcc, -1, v{t0}")
def poll_data(a, loads, regs, t0, t1, sc, sleep=8):
    lab=a.newlabel("L_pd")
    a(f"s_mov_b32 s{sc}, 0")
    a.label(lab)
    for l in loads: a(l)
    a("s_waitcnt vmcnt(0)")
    chk_poison(a, regs, t0, t1)
    a(f"s_cbranch_vccz {lab}_ok")
    a(f"s_sleep {sleep}"); a(f"s_add_u32 s{sc}, s{sc}, 1"); a(f"s_cmp_lt_u32 s{sc}, {POLL_MAX}"); a(f"s_cbranch_scc1 {lab}")
    a.label(lab+"_ok")
```

```python
from common_k import *
import math
SC = math.log2(math.e)/16.0
import struct
def f2u(x): return struct.unpack('<I',struct.pack('<f',x))[0]

def gemm_job(a):
    a("s_mul_i32 s20, s2, 9363"); a("s_lshr_b32 s20, s20, 16")
    a("s_mul_i32 s21, s20, 7"); a("s_sub_u32 s21, s2, s21")
    a("s_and_b32 s23, s20, 15")
    a("s_and_b32 s24, s22, 1"); a("s_lshl_b32 s25, s21, 1"); a("s_add_u32 s24, s24, s25")
    a("s_lshr_b32 s26, s22, 1")
    a("v_and_b32 v2, 31, v1"); a("v_lshrrev_b32 v3, 5, v1")
    a("v_lshrrev_b32 v4, 4, v2"); a("v_lshlrev_b32 v4, 5, v4")
    a("v_bfe_u32 v5, v2, 1, 1"); a("v_lshlrev_b32 v5, 3, v5"); a("v_add_u32 v4, v4, v5")
    a("v_and_b32 v5, 4, v2"); a("v_add_u32 v4, v4, v5")
    a("v_bfe_u32 v5, v2, 3, 1"); a("v_lshlrev_b32 v5, 1, v5"); a("v_add_u32 v4, v4, v5")
    a("v_and_b32 v5, 1, v2"); a("v_add_u32 v4, v4, v5")
    a("v_lshlrev_b32 v4, 13, v4"); a("v_lshlrev_b32 v5, 4, v3"); a("v_add_u32 v4, v4, v5")
    a("v_mul_u32_u24 v6, 896, v2"); a("v_lshlrev_b32 v5, 5, v3"); a("v_add_u32 v6, v6, v5")
    ACC=32
    for r in range(ACC,ACC+112): a(f"v_mov_b32 v{r}, 0")
    for i in range(7):
        a(f"s_mul_i32 s27, s26, 7"); a(f"s_add_u32 s27, s27, {i}")
        a("s_lshr_b32 s28, s27, 1"); a("s_lshl_b32 s28, s28, 6"); a("s_and_b32 s29, s27, 1"); a("s_lshl_b32 s29, s29, 4"); a("s_add_u32 s28, s28, s29")
        a(f"s_lshl_b32 s28, s28, 13"); a("s_lshl_b32 s29, s23, 9"); a(f"s_add_u32 s{30+i}, s28, s29")
    AB=144
    BB=200
    a("s_cmp_ge_u32 s20, 16"); a("s_cbranch_scc1 L_gU")
    a("v_lshlrev_b32 v7, 13, v2"); a("v_lshlrev_b32 v5, 4, v3"); a("v_add_u32 v7, v7, v5")
    a("s_lshl_b32 s37, s24, 18"); a("s_lshl_b32 s29, s23, 9"); a("s_add_u32 s37, s37, s29")
    def loadsA(buf,kk):
        for i in range(7): a(f"buffer_load_dwordx4 {vr(AB+28*buf+4*i,4)}, v4, {S4(8)}, s{30+i} offen offset:{kk*32}")
    def loadB(buf,kk): a(f"buffer_load_dwordx4 {vr(BB+4*buf,4)}, v7, {S4(12)}, s37 offen offset:{kk*32}")
    loadsA(0,0); loadB(0,0)
    for kk in range(16):
        b=kk&1
        if kk<15: loadsA(b^1,kk+1); loadB(b^1,kk+1); a("s_waitcnt vmcnt(8)")
        else: a("s_waitcnt vmcnt(0)")
        for i in range(7): a(f"v_mfma_f32_32x32x16_bf16 {vr(ACC+16*i,16)}, {vr(AB+28*b+4*i,4)}, {vr(BB+4*b,4)}, {vr(ACC+16*i,16)}")
    a(f"s_mov_b32 s38, {f2u(SC):#x}")
    a("s_mul_i32 s39, s23, 448")
    a("s_branch L_gEp")
    a.label("L_gU")
    PITCH=80
    a("v_lshrrev_b32 v8, 2, v1"); a("v_and_b32 v9, 3, v1")
    a("v_mul_u32_u24 v10, 896, v8"); a("v_lshlrev_b32 v11, 4, v9"); a("v_add_u32 v10, v10, v11")
    a(f"v_mul_u32_u24 v12, {PITCH}, v8"); a("v_add_u32 v12, v12, v11")
    a(f"s_mul_i32 s40, s22, {256*PITCH}"); a("v_add_u32 v12, s40, v12")
    a(f"s_mul_i32 s37, s23, {256*896}"); a("s_lshl_b32 s29, s24, 6"); a("s_add_u32 s37, s37, s29")
    loadsA(0,0)
    T=208
    for half in range(2):
        for i in range(8):
            a(f"buffer_load_dwordx4 {vr(T+4*i,4)}, v10, {S4(12)}, s37 offen"); a(f"s_add_u32 s37, s37, {16*896}")
        for i in range(8):
            a(f"s_waitcnt vmcnt({7-i})")
            a(f"ds_write_b128 v12, {vr(T+4*i,4)} offset:{(half*8+i)*16*PITCH}")
    a("v_and_b32 v8, 15, v1"); a("v_lshrrev_b32 v9, 2, v8"); a("v_lshlrev_b32 v11, 3, v3"); a("v_add_u32 v9, v9, v11")
    a(f"v_mul_u32_u24 v13, {PITCH}, v9"); a("v_and_b32 v9, 3, v8"); a("v_lshlrev_b32 v9, 3, v9"); a("v_add_u32 v13, v13, v9")
    a("v_bfe_u32 v9, v1, 4, 1"); a("v_lshlrev_b32 v9, 5, v9"); a("v_add_u32 v13, v13, v9"); a("v_add_u32 v13, s40, v13")
    a("s_waitcnt lgkmcnt(0)")
    def trB(buf,kk):
        a(f"ds_read_b64_tr_b16 {vr(BB+4*buf,2)}, v13 offset:{16*kk*PITCH}")
        a(f"ds_read_b64_tr_b16 {vr(BB+4*buf+2,2)}, v13 offset:{(16*kk+4)*PITCH}")
    trB(0,0)
    for kk in range(16):
        b=kk&1
        if kk<15: loadsA(b^1,kk+1); trB(b^1,kk+1); a("s_waitcnt vmcnt(7) lgkmcnt(2)")
        else: a("s_waitcnt vmcnt(0) lgkmcnt(0)")
        for i in range(7): a(f"v_mfma_f32_32x32x16_bf16 {vr(ACC+16*i,16)}, {vr(AB+28*b+4*i,4)}, {vr(BB+4*b,4)}, {vr(ACC+16*i,16)}")
    a(f"s_mov_b32 s38, 1.0")
    a("s_mul_i32 s39, s23, 448"); a("s_add_u32 s39, s39, 7168")
    a.label("L_gEp")
    a.nop(16)
    a("s_lshl_b32 s29, s24, 5"); a("s_add_u32 s39, s39, s29"); a("s_mul_i32 s39, s39, 896"); a(f"s_add_u32 s39, s39, {LY.WP}")
    for i in range(7):
        a(f"s_mul_i32 s27, s26, 7"); a(f"s_add_u32 s27, s27, {i}")
        a("s_lshr_b32 s28, s27, 1"); a("s_lshl_b32 s28, s28, 7"); a("s_and_b32 s29, s27, 1"); a("s_lshl_b32 s29, s29, 6"); a("s_add_u32 s28, s28, s29"); a("s_add_u32 s28, s28, s39")
        for r in range(16): a(f"v_mul_f32 v{ACC+16*i+r}, s38, v{ACC+16*i+r}")
        for r in range(8): a(f"v_cvt_pk_bf16_f32 v{T+r}, v{ACC+16*i+2*r}, v{ACC+16*i+2*r+1}")
        a(f"buffer_store_dwordx4 {vr(T,4)}, v6, {S4(16)}, s28 offen"); a(f"buffer_store_dwordx4 {vr(T+4,4)}, v6, {S4(16)}, s28 offen offset:16")
        a("s_nop 1")

def mod_job(a):
    a("s_sub_u32 s20, s2, 224")
    a("v_and_b32 v2, 15, v0"); a("v_lshrrev_b32 v3, 4, v0")
    a("v_mul_u32_u24 v4, 56, v3")
    for j in range(28): a(f"buffer_load_ushort v{32+j}, v4, {S4(12)}, 0 offen offset:{2*j}")
    a("v_mul_u32_u24 v5, 28, v3"); a("s_movk_i32 s21, 5376"); a("v_mul_lo_u32 v5, v5, s21"); a("v_lshlrev_b32 v6, 4, v2"); a("v_add_u32 v5, v5, v6")
    a("s_lshl_b32 s22, s20, 8")
    for j in range(28):
        a(f"buffer_load_dwordx4 {vr(64+4*j,4)}, v5, {S4(8)}, s22 offen"); a("s_add_u32 s22, s22, 5376")
    a("s_waitcnt vmcnt(28)")
    for j in range(28):
        r=32+j
        a(f"v_lshlrev_b32 v{r}, 16, v{r}")
        a(f"v_mul_f32 v7, 0xbfb8aa3b, v{r}"); a("v_exp_f32 v7, v7"); a("s_nop 0"); a("v_add_f32 v7, 1.0, v7"); a("v_rcp_f32 v7, v7"); a("s_nop 0")
        a(f"v_mul_f32 v{r}, v{r}, v7"); a(f"v_cvt_pk_bf16_f32 v{r}, v{r}, v{r}"); a(f"v_lshlrev_b32 v{r}, 16, v{r}")
    for r in range(8,16): a(f"v_mov_b32 v{r}, 0")
    for j in range(28):
        a(f"s_waitcnt vmcnt({27-j})")
        for q in range(4):
            a(f"v_lshlrev_b32 v16, 16, v{64+4*j+q}"); a(f"v_and_b32 v17, 0xffff0000, v{64+4*j+q}")
            a(f"v_fmac_f32 v{8+2*q}, v16, v{32+j}"); a(f"v_fmac_f32 v{9+2*q}, v17, v{32+j}")
    a("v_lshlrev_b32 v18, 9, v3"); a("v_lshlrev_b32 v19, 5, v2"); a("v_add_u32 v18, v18, v19")
    a("ds_write_b128 v18, v[8:11]"); a("ds_write_b128 v18, v[12:15] offset:16")
    a("s_waitcnt lgkmcnt(0)"); a("s_barrier")
    a("v_cmp_gt_u32 vcc, 128, v0"); a("s_and_saveexec_b64 s[24:25], vcc"); a("s_cbranch_execz L_modend")
    a("v_lshlrev_b32 v18, 2, v0")
    for g in range(16): a(f"ds_read_b32 v{32+g}, v18 offset:{g*512}")
    a("s_waitcnt lgkmcnt(0)")
    for g in range(1,16): a(f"v_add_f32 v32, v32, v{32+g}")
    a("v_cvt_pk_bf16_f32 v32, v32, v32"); a("v_lshlrev_b32 v32, 16, v32")
    a("s_lshl_b32 s22, s20, 9"); a(f"s_add_u32 s22, s22, {LY.MOD}")
    a(f"buffer_store_dword v32, v18, {S4(16)}, s22 offen")
    a.label("L_modend")
    a("s_mov_b64 exec, s[24:25]")

def poison_job(a):
    a("s_sub_u32 s20, s2, 245")
    for r in range(8,12): a(f"v_mov_b32 v{r}, -1")
    a("v_lshlrev_b32 v2, 4, v0")
    regions=[(LY.MEM+7168,64*7168,-1),(LY.PX,64*16*512,-1),(LY.PM,64*4*512,-1),(LY.MEMX+7168,63*7168,-1),(LY.PFX,64*2*16*1024,-1),(LY.PFM,64*2*4*1024,-1),(LY.CNT,LY.CNTB,0)]
    for (o,n,val) in regions:
        n=(n+4095)//4096*4096
        lab=a.newlabel("L_pz")
        for r in range(8,12): a(f"v_mov_b32 v{r}, {val}")
        a(f"s_lshl_b32 s21, s20, 12"); a(f"s_add_u32 s21, s21, {o}")
        a.label(lab)
        a(f"s_cmp_lt_u32 s21, {o+n}"); a(f"s_cbranch_scc0 {lab}_e")
        a(f"buffer_store_dwordx4 v[8:11], v2, {S4(16)}, s21 offen")
        a(f"s_add_u32 s21, s21, {11*4096}"); a(f"s_branch {lab}")
        a.label(lab+"_e")
    a("s_cmp_eq_u32 s20, 0"); a("s_cbranch_scc0 L_pzend")
    for half in range(2):
        a(f"v_add_u32 v3, {256*half}, v0")
        a("v_cmp_gt_u32 vcc, 448, v3"); a("s_and_saveexec_b64 s[24:25], vcc")
        a("v_and_b32 v4, 7, v3"); a("v_mul_u32_u24 v4, 896, v4"); a("v_lshrrev_b32 v5, 3, v3"); a("v_lshlrev_b32 v5, 4, v5"); a("v_add_u32 v4, v4, v5")
        a(f"buffer_load_dwordx4 v[12:15], v4, {S4(8)}, 0 offen"); a("s_waitcnt vmcnt(0)")
        a("v_lshlrev_b32 v5, 4, v3"); a(f"s_mov_b32 s21, {LY.MEM}")
        a(f"buffer_store_dwordx4 v[12:15], v5, {S4(16)}, s21 offen")
        a(f"s_mov_b32 s21, {LY.MEMX}")
        a(f"buffer_store_dwordx4 v[12:15], v5, {S4(16)}, s21 offen")
        a("s_mov_b64 exec, s[24:25]")
    a.label("L_pzend")

def gen_k0a():
    a=Asm()
    a("s_cmp_lt_u32 s2, 256"); a("s_cbranch_scc0 L_end")
    a("v_and_b32 v1, 63, v0"); a("v_lshrrev_b32 v2, 6, v0"); a("s_nop 0"); a("v_readfirstlane_b32 s22, v2")
    for n,t in (('Wq',60),('Wk',62),('Wv',64),('Wo',66),('ws',68),('wmod',70),('c',72),('mem0',74)): a(f"s_load_dwordx2 s[{t}:{t+1}], s[0:1], {KA[n]}")
    a("s_waitcnt lgkmcnt(0)")
    mk_srd(a,16,'ws',68)
    a("s_cmp_lt_u32 s2, 224"); a("s_cbranch_scc0 L_notg")
    a("s_cmp_lt_u32 s2, 112"); a("s_cbranch_scc0 L_isU")
    mk_srd(a,8,'Wq',60); mk_srd(a,12,'Wk',62); a("s_branch L_gj")
    a.label("L_isU"); mk_srd(a,8,'Wv',64); mk_srd(a,12,'Wo',66)
    a.label("L_gj"); gemm_job(a); a("s_branch L_end")
    a.label("L_notg")
    a("s_cmp_lt_u32 s2, 245"); a("s_cbranch_scc0 L_pz")
    mk_srd(a,8,'wmod',70); mk_srd(a,12,'c',72); mod_job(a); a("s_branch L_end")
    a.label("L_pz"); mk_srd(a,8,'mem0',74); poison_job(a)
    a.label("L_end"); a("s_waitcnt vmcnt(0)")
    return a.text()
K0A_LDS=4*256*80

def ln_stats(a, X, n, s, t, t2):
    a(f"v_add_f32 v{s}, v{X}, v{X+1}")
    for i in range(2,n): a(f"v_add_f32 v{s}, v{s}, v{X+i}")
    xred(a,"v_add_f32",s,t)
    a(f"v_mul_f32 v{s}, {f2u(1/448):#x}, v{s}")
    for i in range(n): a(f"v_sub_f32 v{X+i}, v{X+i}, v{s}")
    a(f"v_mul_f32 v{s+1}, v{X}, v{X}")
    for i in range(1,n): a(f"v_fmac_f32 v{s+1}, v{X+i}, v{X+i}")
    xred(a,"v_add_f32",s+1,t)
    a(f"v_mov_b32 v{t}, {f2u(1e-5):#x}"); a(f"v_fmac_f32 v{t}, {f2u(1/448):#x}, v{s+1}")
    a(f"v_rsq_f32 v{s+1}, v{t}"); a("s_nop 0")

def gen_k0b():
    a=Asm()
    a("s_cmp_lt_u32 s2, 64"); a("s_cbranch_scc0 L_end")
    a("v_and_b32 v1, 63, v0"); a("v_lshrrev_b32 v2, 6, v0")
    srds(a,[(8,'x'),(16,'ws')])
    a("v_and_b32 v3, 7, v1"); a("v_lshrrev_b32 v4, 3, v1")
    a("v_lshlrev_b32 v5, 3, v2"); a("v_add_u32 v5, v5, v3")
    a("v_mul_u32_u24 v6, 896, v5"); a("v_lshlrev_b32 v7, 4, v4"); a("v_add_u32 v6, v6, v7")
    a("s_mul_i32 s20, s2, 28672")
    for i in range(7): a(f"buffer_load_dwordx4 {vr(32+4*i,4)}, v6, {S4(8)}, s20 offen offset:{128*i}")
    a("v_lshlrev_b32 v8, 5, v4"); a(f"s_mov_b32 s21, {LY.MOD}"); a(f"s_mov_b32 s22, {LY.MOD+448*4}")
    for i in range(7):
        a(f"buffer_load_dwordx4 {vr(128+8*i,4)}, v8, {S4(16)}, s21 offen offset:{256*i}"); a(f"buffer_load_dwordx4 {vr(128+8*i+4,4)}, v8, {S4(16)}, s21 offen offset:{256*i+16}")
        a(f"buffer_load_dwordx4 {vr(192+8*i,4)}, v8, {S4(16)}, s22 offen offset:{256*i}"); a(f"buffer_load_dwordx4 {vr(192+8*i+4,4)}, v8, {S4(16)}, s22 offen offset:{256*i+16}")
    a("s_waitcnt vmcnt(28)")
    X=64
    for i in range(7):
        for q in range(4): unpack_lo(a,X+8*i+2*q,32+4*i+q); unpack_hi(a,X+8*i+2*q+1,32+4*i+q)
    ln_stats(a,X,56,10,12,13)
    a("s_waitcnt vmcnt(0)")
    for k in range(56):
        a(f"v_mul_f32 v{X+k}, v{X+k}, v11"); a(f"v_add_f32 v{192+k}, 1.0, v{192+k}"); a(f"v_fma_f32 v{X+k}, v{X+k}, v{192+k}, v{128+k}")
    for i in range(7):
        for q in range(4): a(f"v_cvt_pk_bf16_f32 v{32+4*i+q}, v{X+8*i+2*q}, v{X+8*i+2*q+1}")
    a("v_lshlrev_b32 v14, 9, v4"); a("v_lshlrev_b32 v15, 4, v5"); a("v_add_u32 v14, v14, v15")
    a(f"s_add_u32 s23, s20, {LY.HFRAG}")
    for i in range(7): a(f"buffer_store_dwordx4 {vr(32+4*i,4)}, v14, {S4(16)}, s23 offen" + (f" offset:0" if False else "")); a("s_add_u32 s23, s23, 4096")
    a("v_lshrrev_b32 v16, 2, v4"); a("v_lshlrev_b32 v16, 9, v16")
    a("v_bfe_u32 v17, v4, 1, 1"); a("v_lshlrev_b32 v17, 11, v17"); a("v_add_u32 v16, v16, v17")
    a("v_and_b32 v17, 1, v4"); a("v_lshlrev_b32 v17, 2, v17"); a("v_add_u32 v16, v16, v17"); a("v_add_u32 v16, v16, v15")
    a(f"s_add_u32 s23, s20, {LY.HPERM}")
    for i in range(7):
        for d in range(4):
            a(f"buffer_store_dword v{32+4*i+d}, v16, {S4(16)}, s23 offen offset:{(d>>1)*1024+(d&1)*8}")
        a("s_add_u32 s23, s23, 4096")
    a.label("L_end"); a("s_waitcnt vmcnt(0)")
    return a.text()
if __name__=="__main__":
    print(len(gen_k0a().splitlines()), len(gen_k0b().splitlines()))
```

```python
import os
from common_k import *
from k0 import f2u, SC, ln_stats
import layout as LY
LA=0; LW=114688
L_MODS=LW+4*10240
K0_LDS=L_MODS+8192
assert K0_LDS<=163840, K0_LDS
PITCH=80
def ln_job(a, W, XS, DBG, nmod, sseg, stok):
    a("v_and_b32 v3, 7, v1"); a("v_lshrrev_b32 v4, 3, v1")
    a(f"s_lshl_b32 s28, s{stok}, 3"); a("v_add_u32 v5, s28, v3")
    a("v_mul_u32_u24 v6, 896, v5"); a("v_lshlrev_b32 v7, 4, v4"); a("v_add_u32 v6, v6, v7")
    a(f"s_mul_i32 s29, s{sseg}, 28672")
    for i in range(7): a(f"buffer_load_dwordx4 {vr(32+4*i,4)}, v6, {S4(XS)}, s29 offen offset:{128*i}")
    X=64
    a("s_waitcnt vmcnt(0)")
    for i in range(7):
        for q in range(4): unpack_lo(a,X+8*i+2*q,32+4*i+q); unpack_hi(a,X+8*i+2*q+1,32+4*i+q)
    ln_stats(a,X,56,10,12,13)
    for k in range(56):
        a(f"v_mul_f32 v{X+k}, v{X+k}, v11"); a(f"v_fma_f32 v{X+k}, v{X+k}, v{192+k}, v{128+k}")
    for i in range(7):
        for q in range(4): a(f"v_cvt_pk_bf16_f32 v{32+4*i+q}, v{X+8*i+2*q}, v{X+8*i+2*q+1}")
    a("v_lshlrev_b32 v14, 9, v4"); a("v_lshlrev_b32 v15, 4, v5"); a("v_add_u32 v14, v14, v15")
    a(f"s_add_u32 s33, s29, {LY.HFRAG}")
    for i in range(7): a(f"buffer_store_dwordx4 {vr(32+4*i,4)}, v14, {W}, s33 offen"); a("s_add_u32 s33, s33, 4096")
    a("v_lshrrev_b32 v16, 2, v4"); a("v_lshlrev_b32 v16, 9, v16")
    a("v_bfe_u32 v17, v4, 1, 1"); a("v_lshlrev_b32 v17, 11, v17"); a("v_add_u32 v16, v16, v17")
    a("v_and_b32 v17, 1, v4"); a("v_lshlrev_b32 v17, 2, v17"); a("v_add_u32 v16, v16, v17"); a("v_add_u32 v16, v16, v15")
    a(f"s_add_u32 s33, s29, {LY.HPERM}")
    for i in range(7):
        for d in range(4): a(f"buffer_store_dword v{32+4*i+d}, v16, {W}, s33 offen offset:{(d>>1)*1024+(d&1)*8}")
        a("s_add_u32 s33, s33, 4096")
    a("s_nop 1")

def gen_k0(nmod=42):
    a=Asm()
    ST=bool(os.environ.get('STAMP0'))
    def stp(k):
        if ST: a(f's_memrealtime s[{80+2*k}:{81+2*k}]'); a('s_waitcnt lgkmcnt(0)')
    stp(0)
    a("s_cmp_lt_u32 s2, 256"); a("s_cbranch_scc0 L_end")
    a("v_and_b32 v1, 63, v0"); a("v_lshrrev_b32 v2, 6, v0"); a("s_nop 0"); a("v_readfirstlane_b32 s22, v2")
    for n,t in (('Wq',60),('Wk',62),('Wv',64),('Wo',66),('ws',68),('wmod',70),('c',72),('mem0',74),('x',76),('dbg',78)): a(f"s_load_dwordx2 s[{t}:{t+1}], s[0:1], {KA[n]}")
    a("s_waitcnt lgkmcnt(0)")
    mk_srd(a,16,'ws',68); mk_srd(a,44,'x',76); mk_srd(a,48,'dbg',78)
    W=S4(16)
    a("s_and_b32 s20, s2, 31"); a("s_lshr_b32 s21, s2, 5")
    a("s_and_b32 s23, s20, 15")
    a("s_and_b32 s26, s21, 1"); a("s_lshr_b32 s27, s21, 1")
    a("s_cmp_lt_u32 s20, 16"); a("s_cbranch_scc0 L_isU")
    mk_srd(a,8,'Wq',60); mk_srd(a,12,'Wk',62); a("s_branch L_srd")
    a.label("L_isU"); mk_srd(a,8,'Wv',64); mk_srd(a,12,'Wo',66)
    a.label("L_srd")
    BF=64; T=128
    a("s_lshl_b32 s24, s27, 2"); a("s_add_u32 s24, s24, s22")
    a("s_cmp_lt_u32 s24, 14"); a("s_cselect_b32 s25, 1, 0")
    a("v_and_b32 v20, 31, v1"); a("v_lshrrev_b32 v21, 5, v1")
    a("s_cmp_eq_u32 s25, 0"); a("s_cbranch_scc1 L_noB0")
    a("s_cmp_lt_u32 s20, 16"); a("s_cbranch_scc0 L_BU0")
    a("v_lshlrev_b32 v22, 13, v20"); a("v_lshlrev_b32 v23, 4, v21"); a("v_add_u32 v22, v22, v23")
    a("s_lshl_b32 s35, s24, 18"); a("s_lshl_b32 s33, s23, 9"); a("s_add_u32 s35, s35, s33")
    for kk in range(16): a(f"buffer_load_dwordx4 {vr(BF+4*kk,4)}, v22, {S4(12)}, s35 offen offset:{kk*32}")
    a("s_branch L_noB0")
    a.label("L_BU0")
    a("v_lshrrev_b32 v24, 2, v1"); a("v_and_b32 v25, 3, v1")
    a("v_mul_u32_u24 v26, 896, v24"); a("v_lshlrev_b32 v27, 4, v25"); a("v_add_u32 v26, v26, v27")
    a(f"v_mul_u32_u24 v28, {PITCH}, v24"); a("v_add_u32 v28, v28, v27"); a(f"s_mul_i32 s36, s22, 10240"); a(f"s_add_u32 s36, s36, {LW}"); a("v_add_u32 v28, s36, v28")
    a(f"s_mul_i32 s35, s23, {256*896}"); a("s_lshl_b32 s33, s24, 6"); a("s_add_u32 s35, s35, s33")
    for i in range(16):
        a(f"buffer_load_dwordx4 {vr(T+4*i,4)}, v26, {S4(12)}, s35 offen"); a(f"s_add_u32 s35, s35, {16*896}")
    a.label("L_noB0")
    a("v_lshrrev_b32 v3, 4, v1"); a("v_and_b32 v4, 15, v1")
    a("v_lshrrev_b32 v5, 1, v3"); a("v_lshlrev_b32 v5, 3, v5"); a("v_and_b32 v6, 1, v3"); a("v_add_u32 v5, v5, v6")
    a("s_and_b32 s28, s22, 1"); a("s_lshl_b32 s28, s28, 2"); a("s_lshr_b32 s29, s22, 1"); a("s_lshl_b32 s29, s29, 1"); a("s_add_u32 s28, s28, s29")
    a("v_add_u32 v5, s28, v5"); a("v_lshlrev_b32 v5, 13, v5")
    a("v_xor_b32 v6, v4, v3"); a("s_lshl_b32 s28, s22, 2"); a("v_xor_b32 v6, s28, v6"); a("v_lshlrev_b32 v6, 4, v6"); a("v_add_u32 v8, v5, v6")
    for i in range(7):
        a(f"s_mul_i32 s28, s26, 7"); a(f"s_add_u32 s28, s28, {i}")
        a("s_lshr_b32 s29, s28, 1"); a("s_lshl_b32 s29, s29, 6"); a("s_and_b32 s30, s28, 1"); a("s_lshl_b32 s30, s30, 4"); a("s_add_u32 s29, s29, s30")
        a("s_lshl_b32 s29, s29, 13"); a("s_lshl_b32 s30, s23, 9"); a(f"s_add_u32 s{52+i}, s29, s30")
    a("s_lshl_b32 s31, s22, 10")
    for half in range(2):
        for jj in range(14):
            a(f"s_add_u32 s32, s{52+(jj>>1)}, {(jj&1)*32*8192+half*256}")
            a(f"s_add_u32 s33, s31, {LA+half*57344+jj*4096}"); a("s_mov_b32 m0, s33"); a("s_nop 0")
            a(f"buffer_load_dwordx4 v8, {S4(8)}, s32 offen lds")
    stp(1)
    a("s_cmp_eq_u32 s25, 0"); a("s_cbranch_scc1 L_noB"); a("s_cmp_lt_u32 s20, 16"); a("s_cbranch_scc1 L_noB")
    a("v_and_b32 v24, 15, v1"); a("v_lshrrev_b32 v25, 2, v24"); a("v_lshlrev_b32 v27, 3, v21"); a("v_add_u32 v25, v25, v27")
    a(f"v_mul_u32_u24 v29, {PITCH}, v25"); a("v_and_b32 v25, 3, v24"); a("v_lshlrev_b32 v25, 3, v25"); a("v_add_u32 v29, v29, v25")
    a("v_bfe_u32 v25, v1, 4, 1"); a("v_lshlrev_b32 v25, 5, v25"); a("v_add_u32 v29, v29, v25"); a("v_add_u32 v29, s36, v29")
    for half in range(2):
        for i in range(8):
            a(f"s_waitcnt vmcnt({28+15-(half*8+i)})")
            a(f"ds_write_b128 v28, {vr(T+4*(half*8+i),4)} offset:{i*16*PITCH}")
        a("s_waitcnt lgkmcnt(0)")
        for k8 in range(8):
            kk=half*8+k8
            a(f"ds_read_b64_tr_b16 {vr(BF+4*kk,2)}, v29 offset:{16*k8*PITCH}"); a(f"ds_read_b64_tr_b16 {vr(BF+4*kk+2,2)}, v29 offset:{(16*k8+4)*PITCH}")
        a("s_waitcnt lgkmcnt(0)")
    a.label("L_noB")
    stp(2)
    a("s_cmp_ge_u32 s2, 192"); a("s_cbranch_scc0 L_nomod"); a(f"s_cmp_lt_u32 s2, {192+nmod}"); a("s_cbranch_scc0 L_nomod")
    mk_srd(a,56,'wmod',70); mk_srd(a,40,'c',72)
    a("s_sub_u32 s37, s2, 192")
    a("v_and_b32 v30, 7, v0"); a("v_lshrrev_b32 v31, 3, v0")
    a("v_mul_u32_u24 v32, 28, v31")
    M0=192
    for j in range(14): a(f"buffer_load_ushort v{M0+j}, v32, {S4(40)}, 0 offen offset:{2*j}")
    a("v_mul_u32_u24 v33, 14, v31"); a("s_movk_i32 s38, 5376"); a("v_mul_lo_u32 v33, v33, s38"); a("v_lshlrev_b32 v34, 4, v30"); a("v_add_u32 v33, v33, v34")
    a("s_lshl_b32 s39, s37, 7")
    MW=128
    for j in range(14):
        a(f"buffer_load_dwordx4 {vr(MW+4*j,4)}, v33, {S4(56)}, s39 offen"); a("s_add_u32 s39, s39, 5376")
    a("s_waitcnt vmcnt(14)")
    for j in range(14):
        r=M0+j
        a(f"v_lshlrev_b32 v{r}, 16, v{r}")
        a(f"v_mul_f32 v35, 0xbfb8aa3b, v{r}"); a("v_exp_f32 v35, v35"); a("s_nop 0"); a("v_add_f32 v35, 1.0, v35"); a("v_rcp_f32 v35, v35"); a("s_nop 0")
        a(f"v_mul_f32 v{r}, v{r}, v35"); a(f"v_cvt_pk_bf16_f32 v{r}, v{r}, v{r}"); a(f"v_lshlrev_b32 v{r}, 16, v{r}")
    for r in range(40,48): a(f"v_mov_b32 v{r}, 0")
    for j in range(14):
        a(f"s_waitcnt vmcnt({13-j})")
        for q in range(4):
            a(f"v_lshlrev_b32 v36, 16, v{MW+4*j+q}"); a(f"v_and_b32 v37, 0xffff0000, v{MW+4*j+q}")
            a(f"v_fmac_f32 v{40+2*q}, v36, v{M0+j}"); a(f"v_fmac_f32 v{41+2*q}, v37, v{M0+j}")
    for r in range(40,48): xred(a,"v_add_f32",r,48)
    a("v_lshlrev_b32 v49, 5, v30"); a("s_lshl_b32 s38, s22, 8"); a(f"s_add_u32 s38, s38, {L_MODS}"); a("v_add_u32 v49, s38, v49")
    a("s_mov_b64 exec, 0xff"); a("ds_write_b128 v49, v[40:43]"); a("ds_write_b128 v49, v[44:47] offset:16"); a("s_mov_b64 exec, -1")
    a("s_waitcnt lgkmcnt(0)"); a("s_barrier")
    a("s_cmp_eq_u32 s22, 3"); a("s_cbranch_scc0 L_modw")
    a("v_lshlrev_b32 v50, 2, v1"); a(f"v_add_u32 v51, {L_MODS}, v50")
    for w in range(4): a(f"ds_read_b32 v{52+w}, v51 offset:{w*256}")
    a("s_waitcnt lgkmcnt(0)"); a("v_add_f32 v52, v52, v53"); a("v_add_f32 v54, v54, v55"); a("v_add_f32 v52, v52, v54")
    a("v_cvt_pk_bf16_f32 v52, v52, v52"); a("v_lshlrev_b32 v52, 16, v52")
    a("s_lshl_b32 s38, s37, 8"); a(f"s_add_u32 s38, s38, {LY.MOD}")
    a(f"buffer_store_dword v52, v50, {W}, s38 offen sc1"); a("s_waitcnt vmcnt(0)")
    a("s_mov_b64 exec, 1"); a("v_mov_b32 v53, 1"); a("v_mov_b32 v54, 0"); a(f"buffer_atomic_add v53, v54, {S4(48)}, 0 offen sc1"); a("s_mov_b64 exec, -1")
    a.label("L_modw")
    a.label("L_nomod")
    stp(3)
    ACC=128
    a("s_cmp_eq_u32 s25, 0"); a("s_cbranch_scc1 L_idle")
    for r in range(ACC,ACC+112): a(f"v_mov_b32 v{r}, 0")
    a("v_and_b32 v22, 15, v20"); a("v_lshlrev_b32 v23, 8, v20")
    for k8 in range(8):
        a(f"v_add_u32 v24, {2*k8}, v21"); a("v_xor_b32 v24, v24, v22"); a("v_lshlrev_b32 v24, 4, v24"); a(f"v_add_u32 v{32+k8}, v23, v24")
    a("s_waitcnt vmcnt(14)"); a("s_barrier")
    stp(4)
    AB=40
    for half in range(2):
        seq=[(k8,i) for k8 in range(8) for i in range(7)]
        def rd(n):
            k8,i=seq[n]; a(f"ds_read_b128 {vr(AB+4*(n%4),4)}, v{32+k8} offset:{i*8192}")
        if half==1:
            for k in range(8): a(f"v_add_u32 v{32+k}, 57344, v{32+k}")
            a("s_waitcnt vmcnt(0)"); a("s_barrier")
        for n in range(3): rd(n)
        for n,(k8,i) in enumerate(seq):
            if n+3<len(seq): rd(n+3)
            a(f"s_waitcnt lgkmcnt({min(3,len(seq)-1-n)})")
            a(f"v_mfma_f32_32x32x16_bf16 {vr(ACC+16*i,16)}, {vr(AB+4*(n%4),4)}, {vr(BF+4*(half*8+k8),4)}, {vr(ACC+16*i,16)}")
    stp(5)
    OP=448
    a("s_cmp_lt_u32 s20, 16"); a(f"s_cselect_b32 s38, {f2u(SC):#x}, 1.0"); a("s_cselect_b32 s39, 0, 7168")
    a("s_mul_i32 s33, s23, 448"); a("s_add_u32 s39, s39, s33"); a("s_lshl_b32 s33, s24, 5"); a("s_add_u32 s39, s39, s33"); a("s_mul_i32 s39, s39, 896"); a(f"s_add_u32 s39, s39, {LY.WP}")
    a("s_mul_i32 s33, s26, 448"); a("s_add_u32 s39, s39, s33")
    a("s_mul_i32 s34, s22, 14336")
    a(f"v_mul_u32_u24 v22, {OP}, v20"); a("v_lshlrev_b32 v23, 5, v21"); a("v_add_u32 v22, v22, v23"); a("v_add_u32 v22, s34, v22")
    for i in range(7):
        for r in range(0,16,2): a(f"v_pk_mul_f32 {vr(ACC+16*i+r,2)}, {vr(ACC+16*i+r,2)}, s[38:39] op_sel_hi:[1,0]")
        tt=40+8*(i&1)
        for r in range(8): a(f"v_cvt_pk_bf16_f32 v{tt+r}, v{ACC+16*i+2*r}, v{ACC+16*i+2*r+1}")
        a(f"ds_write_b128 v22, {vr(tt,4)} offset:{i*64}"); a(f"ds_write_b128 v22, {vr(tt+4,4)} offset:{i*64+16}")
    a("s_waitcnt lgkmcnt(0)")
    for k in range(14):
        a(f"v_add_u32 v24, {64*k}, v1"); a("v_mul_u32_u24 v25, 2341, v24"); a("v_lshrrev_b32 v25, 16, v25")
        a("v_mul_u32_u24 v26, 28, v25"); a("v_sub_u32 v26, v24, v26"); a("v_lshlrev_b32 v26, 4, v26")
        a(f"v_mul_u32_u24 v27, {OP}, v25"); a("v_add_u32 v27, v27, v26"); a("v_add_u32 v27, s34, v27")
        a(f"ds_read_b128 {vr(64+4*k,4)}, v27")
        a("v_mul_u32_u24 v28, 896, v25"); a(f"v_add_u32 v{192+k}, v28, v26")
    for k in range(14):
        a(f"s_waitcnt lgkmcnt({13-k})")
        a(f"buffer_store_dwordx4 {vr(64+4*k,4)}, v{192+k}, {W}, s39 offen")
    stp(6)
    a("s_branch L_fill")
    a.label("L_idle")
    a("s_waitcnt vmcnt(14)"); a("s_barrier"); a("s_waitcnt vmcnt(0)"); a("s_barrier")
    a("v_mov_b32 v9, 0"); a("s_mov_b32 s30, 0")
    a.label("L_wm")
    a(f"buffer_load_dword v10, v9, {S4(48)}, 0 offen sc1"); a("s_waitcnt vmcnt(0)"); a("v_readfirstlane_b32 s31, v10"); a("s_nop 3")
    a(f"s_cmp_ge_u32 s31, {nmod}"); a("s_cbranch_scc1 L_wm_ok"); a("s_sleep 2"); a("s_add_u32 s30, s30, 1"); a(f"s_cmp_lt_u32 s30, {POLL_MAX}"); a("s_cbranch_scc1 L_wm")
    a.label("L_wm_ok")
    a("v_lshrrev_b32 v4, 3, v1"); a("v_lshlrev_b32 v8, 5, v4"); a(f"s_mov_b32 s31, {LY.MOD}"); a(f"s_mov_b32 s32, {LY.MOD+448*4}")
    for i in range(7):
        a(f"buffer_load_dwordx4 {vr(128+8*i,4)}, v8, {W}, s31 offen offset:{256*i} sc1"); a(f"buffer_load_dwordx4 {vr(128+8*i+4,4)}, v8, {W}, s31 offen offset:{256*i+16} sc1")
        a(f"buffer_load_dwordx4 {vr(192+8*i,4)}, v8, {W}, s32 offen offset:{256*i} sc1"); a(f"buffer_load_dwordx4 {vr(192+8*i+4,4)}, v8, {W}, s32 offen offset:{256*i+16} sc1")
    a("s_waitcnt vmcnt(0)")
    for k in range(56): a(f"v_add_f32 v{192+k}, 1.0, v{192+k}")
    a("s_sub_u32 s40, s2, 192"); a("s_lshl_b32 s40, s40, 1"); a("s_add_u32 s40, s40, s22"); a("s_sub_u32 s40, s40, 2"); a("s_lshl_b32 s40, s40, 1")
    for e in range(2):
        a(f"s_add_u32 s41, s40, {e}"); a("s_lshr_b32 s42, s41, 2"); a("s_and_b32 s43, s41, 3")
        ln_job(a, W, 44, 48, nmod, 42, 43)
    a.label("L_fill")
    regions=[(LY.MEM+7168,64*7168,-1),(LY.PX,64*16*512,-1),(LY.PM,64*4*512,-1),(LY.MEMX+7168,63*7168,-1),(LY.PFX,64*2*16*1024,-1),(LY.PFM,64*2*4*1024,-1),(LY.CNT,LY.CNTB,0)]
    a("v_lshlrev_b32 v12, 4, v0")
    for (o,n,val) in regions:
        n=(n+4095)//4096*4096
        lab=a.newlabel("L_pz")
        for r in range(16,20): a(f"v_mov_b32 v{r}, {val}")
        a(f"s_lshl_b32 s28, s2, 12"); a(f"s_add_u32 s28, s28, {o}")
        a.label(lab)
        a(f"s_cmp_lt_u32 s28, {o+n}"); a(f"s_cbranch_scc0 {lab}_e")
        a(f"buffer_store_dwordx4 v[16:19], v12, {W}, s28 offen")
        a(f"s_add_u32 s28, s28, {256*4096}"); a(f"s_branch {lab}")
        a.label(lab+"_e"); a("s_nop 1")
    a("s_cmp_eq_u32 s2, 100"); a("s_cbranch_scc0 L_nomem0")
    mk_srd(a,52,'mem0',74)
    for half in range(2):
        a(f"v_add_u32 v13, {256*half}, v0")
        a("v_cmp_gt_u32 vcc, 448, v13"); a("s_and_saveexec_b64 s[24:25], vcc")
        a("v_and_b32 v14, 7, v13"); a("v_mul_u32_u24 v14, 896, v14"); a("v_lshrrev_b32 v15, 3, v13"); a("v_lshlrev_b32 v15, 4, v15"); a("v_add_u32 v14, v14, v15")
        a(f"buffer_load_dwordx4 v[16:19], v14, {S4(52)}, 0 offen"); a("s_waitcnt vmcnt(0)")
        a("v_lshlrev_b32 v15, 4, v13"); a(f"s_mov_b32 s28, {LY.MEM}"); a(f"buffer_store_dwordx4 v[16:19], v15, {W}, s28 offen")
        a(f"s_mov_b32 s28, {LY.MEMX}"); a(f"buffer_store_dwordx4 v[16:19], v15, {W}, s28 offen"); a("s_nop 1")
        a("s_mov_b64 exec, s[24:25]")
    a.label("L_nomem0")
    a("s_waitcnt vmcnt(0)")
    stp(7)
    if ST:
        a("s_cmp_eq_u32 s22, 0"); a("s_cbranch_scc0 L_end")
        for k in range(8): a(f"v_mov_b32 v{20+k}, s{80+2*k}")
        a("s_lshl_b32 s28, s2, 5"); a(f"s_add_u32 s28, s28, {LY.DBGS+(1<<19)+16384}"); a("v_mov_b32 v30, 0"); a("s_mov_b64 exec, 1")
        a(f"buffer_store_dwordx4 v[20:23], v30, {W}, s28 offen"); a(f"buffer_store_dwordx4 v[24:27], v30, {W}, s28 offen offset:16"); a("s_mov_b64 exec, -1")
    a.label("L_end"); a("s_waitcnt vmcnt(0)")
    return a.text()
if __name__=="__main__": print(len(gen_k0().splitlines()), K0_LDS)
```

```python
from common_k import *
L_H0=0; L_H1=28672
K1_LDS=2*28672
def producer(a, WS, st="", nseg=32, flags=False):
    W=S4(WS)
    a("s_and_b32 s21, s20, 1")
    a("s_lshr_b32 s23, s20, 1"); a("s_lshl_b32 s23, s23, 2"); a("s_add_u32 s23, s23, s22")
    a("v_and_b32 v2, 31, v1"); a("v_lshrrev_b32 v3, 5, v1")
    a("v_and_b32 v4, 0x13, v2"); a("v_bfe_u32 v5, v2, 2, 1"); a("v_lshlrev_b32 v5, 3, v5"); a("v_or_b32 v4, v4, v5")
    a("v_bfe_u32 v5, v2, 3, 1"); a("v_lshlrev_b32 v5, 2, v5"); a("v_or_b32 v4, v4, v5")
    a("s_cmp_lt_u32 s23, 224"); a("s_cselect_b64 vcc, -1, 0"); a("s_cselect_b32 s24, 1, 0")
    a("s_nop 1")
    a("v_cndmask_b32 v6, v2, v4, vcc")
    a("v_cndmask_b32 v7, v4, v2, vcc")
    a("v_mul_u32_u24 v6, 896, v6"); a("v_lshlrev_b32 v5, 4, v3"); a("v_add_u32 v6, v6, v5")
    a(f"s_mul_i32 s25, s23, {32*896}"); a(f"s_add_u32 s25, s25, {LY.WP}")
    WR=32
    for kk in range(28): a(f"buffer_load_dwordx4 {vr(WR+4*kk,4)}, v6, {W}, s25 offen offset:{kk*32}")
    a("v_lshlrev_b32 v8, 9, v3"); a("v_lshlrev_b32 v5, 4, v7"); a("v_add_u32 v8, v8, v5")
    a("v_lshrrev_b32 v10, 4, v2"); a("v_and_b32 v11, 15, v2"); a("v_lshlrev_b32 v12, 4, v3"); a("v_add_u32 v11, v11, v12"); a("v_lshlrev_b32 v11, 4, v11")
    a("v_lshlrev_b32 v12, 10, v10"); a("v_lshlrev_b32 v13, 14, v10"); a("v_cndmask_b32 v12, v13, v12, vcc"); a("v_add_u32 v9, v11, v12")
    a("s_cmp_lt_u32 s23, 224"); a("s_cselect_b32 s28, 0, 224"); a("s_sub_u32 s28, s23, s28")
    a("s_mul_i32 s29, s28, 4682"); a("s_lshr_b32 s29, s29, 16")
    a("s_mul_i32 s30, s29, 14"); a("s_sub_u32 s30, s28, s30")
    lT=a.newlabel("L_pT"); lJ=a.newlabel("L_pJ")
    a(f"s_cmp_eq_u32 s24, 1"); a(f"s_cbranch_scc1 {lT}")
    a("s_lshl_b32 s26, s30, 15"); a("s_lshl_b32 s31, s29, 10"); a("s_add_u32 s26, s26, s31"); a(f"s_add_u32 s26, s26, {LY.BFRAG}"); a(f"s_mov_b32 s27, {28*16384}")
    a(f"s_branch {lJ}")
    a.label(lT)
    a("s_mul_i32 s26, s29, 28672"); a("s_lshl_b32 s31, s30, 11"); a("s_add_u32 s26, s26, s31"); a(f"s_add_u32 s26, s26, {LY.TFRAG}"); a(f"s_mov_b32 s27, {16*28672}")
    a.label(lJ)
    a("s_mul_i32 s31, s21, s27"); a("s_add_u32 s26, s26, s31"); a("s_lshl_b32 s27, s27, 1")
    a("v_lshlrev_b32 v14, 4, v1")
    a(f"s_mul_i32 s32, s21, 28672"); a(f"s_mul_i32 s31, s22, 7168"); a("s_add_u32 s32, s32, s31"); a(f"s_add_u32 s32, s32, {LY.HPERM}")
    a("s_mov_b32 s33, s31")
    a("s_mov_b32 s34, 0")
    def dma():
        a("s_add_u32 s35, s33, s34"); a("s_mov_b32 m0, s35"); a("s_nop 0")
        for i in range(4): a(f"buffer_load_dwordx4 v14, {W}, s32 offen offset:{i*1024} lds")
        a("s_add_u32 s35, s35, 4096"); a("s_add_u32 s36, s32, 4096"); a("s_mov_b32 m0, s35"); a("s_nop 0")
        for i in range(3): a(f"buffer_load_dwordx4 v14, {W}, s36 offen offset:{i*1024} lds")
        a(f"s_add_u32 s32, s32, {2*28672}")
    dma()
    if flags:
        a("v_mov_b32 v16, 1"); a("v_mov_b32 v17, 0"); a("s_lshl_b32 s38, s21, 7"); a(f"s_add_u32 s38, s38, {LY.PCNT}")
    a("s_mov_b32 s37, 0")
    ACC=144; TB=160; OUT=176
    lab=a.newlabel("L_pl")
    a("s_waitcnt vmcnt(0)")
    a.label(lab)
    a("s_waitcnt vmcnt(2)")
    a("s_barrier")
    if flags:
        lf=a.newlabel("L_pf")
        a("s_cmp_ge_u32 s37, 2"); a(f"s_cbranch_scc0 {lf}"); a("s_cmp_eq_u32 s22, 0"); a(f"s_cbranch_scc0 {lf}")
        a("s_mov_b64 exec, 1"); a(f"buffer_atomic_add v16, v17, {W}, s38 offen sc1"); a("s_mov_b64 exec, -1"); a("s_add_u32 s38, s38, 256")
        a.label(lf)
    a(f"v_add_u32 v15, s34, v8")
    a("s_xor_b32 s34, s34, 28672")
    l2=a.newlabel("L_pn")
    a(f"s_cmp_lt_u32 s37, {nseg-1}"); a(f"s_cbranch_scc0 {l2}")
    dma()
    a.label(l2)
    for r in range(ACC,ACC+16): a(f"v_mov_b32 v{r}, 0")
    for variant in (1,0):
        lv=a.newlabel("L_pv")
        if variant==1: a(f"s_cmp_eq_u32 s24, 1"); a(f"s_cbranch_scc0 {lv}_b")
        else: a.label(f"{prev}_b")
        for k in range(2): a(f"ds_read_b128 {vr(TB+4*k,4)}, v15 offset:{k*1024}")
        for kk in range(28):
            if kk+2<28: a(f"ds_read_b128 {vr(TB+4*((kk+2)%3),4)}, v15 offset:{(kk+2)*1024}")
            a(f"s_waitcnt lgkmcnt({min(2,27-kk)})")
            t=vr(TB+4*(kk%3),4); w=vr(WR+4*kk,4)
            x,y=(w,t) if variant==1 else (t,w)
            a(f"v_mfma_f32_32x32x16_bf16 {vr(ACC,16)}, {x}, {y}, {vr(ACC,16)}")
        if variant==1: a(f"s_branch {lv}_j"); prev=lv; jl=lv
    a.label(f"{jl}_j")
    a.nop(16)
    for r in range(8): a(f"v_cvt_pk_bf16_f32 v{OUT+r}, v{ACC+2*r}, v{ACC+2*r+1}")
    a(f"buffer_store_dwordx4 {vr(OUT,4)}, v9, {W}, s26 offen {st}"); a(f"buffer_store_dwordx4 {vr(OUT+4,4)}, v9, {W}, s26 offen offset:512 {st}")
    a("s_add_u32 s26, s26, s27")
    a("s_add_u32 s37, s37, 1"); a(f"s_cmp_lt_u32 s37, {nseg}"); a(f"s_cbranch_scc1 {lab}")
    if flags:
        a("s_waitcnt vmcnt(0)"); a("s_barrier")
        lf=a.newlabel("L_pe")
        a("s_cmp_eq_u32 s22, 0"); a(f"s_cbranch_scc0 {lf}")
        a("s_mov_b64 exec, 1"); a(f"buffer_atomic_add v16, v17, {W}, s38 offen sc1"); a("s_add_u32 s38, s38, 256"); a(f"buffer_atomic_add v16, v17, {W}, s38 offen sc1"); a("s_mov_b64 exec, -1")
        a.label(lf)
def gen_k1():
    a=Asm()
    a("s_cmp_lt_u32 s2, 224"); a("s_cbranch_scc0 L_end")
    a("v_and_b32 v1, 63, v0"); a("v_lshrrev_b32 v2, 6, v0"); a("s_nop 0"); a("v_readfirstlane_b32 s22, v2")
    srds(a,[(16,'ws')])
    a("s_mov_b32 s20, s2")
    producer(a,16)
    a.label("L_end"); a("s_waitcnt vmcnt(0)")
    return a.text()
```

```python
S=2048; D=448; H=16; DH=256; NSEG=64; SEG=32; M=8; F=1792
def al(x,a=4096): return (x+a-1)//a*a
off=0
def alloc(n):
    global off
    o=off; off=al(off+n); return o
WP    = alloc(14336*896)
HFRAG = alloc(64*28672)
HPERM = alloc(64*28672)
MOD   = alloc(2688*4)
MEM   = alloc(65*7168)
PX    = alloc(64*16*512)
PM    = alloc(64*4*512)
TFRAG = alloc(64*16*28672)
BFRAG = alloc(64*28*16*1024)
MFRAG = alloc(64*28*4*1024)
PFX   = alloc(64*2*16*1024)
PFM   = alloc(64*2*4*1024)
X1    = alloc(2048*448*4)
H2    = alloc(2048*896)
R     = alloc(2048*4)
ACT   = alloc(2*1792*4)
MISC  = alloc(65536)
MEMX  = alloc(64*7168+8192)
MFL   = alloc(64*28*4*1024)
CNT   = alloc(3*64*128+16*128+2*64*64)
DBGS  = alloc(1<<20)
PCNT=CNT; MCNT=CNT+64*128; XCNT=CNT+128*128; RCNT=CNT+192*128; LFLAG=CNT+208*128; BRDY=LFLAG+64*64; CNTB=3*64*128+16*128+2*64*64
TOTAL = off
if __name__=="__main__":
    for k,v in list(globals().items()):
        if k.isupper(): print(k,v)
```

```python
import os
from common_k import *
import rec, k1, xf
from rec import S_WS,S_DBG,S_WAVE,S_RANK,S_XCC,S_FAIL,S_EX,L_RANK
TEAM_XCC=0
S_MODE=42
def dispatch(a):
    a("s_cmp_lt_u32 s2, 256"); a("s_cbranch_scc0 L_exit")
    a("s_load_dwordx2 s[16:17], s[0:1], 128")
    a(f"s_getreg_b32 s{S_XCC}, hwreg(HW_REG_XCC_ID)"); a(f"s_and_b32 s{S_XCC}, s{S_XCC}, 7")
    a("v_lshrrev_b32 v2, 6, v0"); a("v_and_b32 v1, 63, v0")
    a("s_waitcnt lgkmcnt(0)")
    rec.srd(a, S_WS, 16, WS_BYTES)
    a(f"v_readfirstlane_b32 s{S_WAVE}, v2")
    D=f"s[{S_WS}:{S_WS+3}]"
    a(f"s_cmp_eq_u32 s{S_WAVE}, 0"); a("s_cbranch_scc0 L_norank")
    a(f"s_mov_b32 s23, {LY.RCNT}")
    a(f"s_lshl_b32 s24, s{S_XCC}, 7"); a("v_mov_b32 v4, s24"); a("v_mov_b32 v5, 1")
    a("s_mov_b64 exec, 1")
    a(f"buffer_atomic_add v5, v4, {D}, s23 offen sc0 sc1"); a("s_waitcnt vmcnt(0)")
    a("s_mov_b64 exec, -1")
    a("v_readfirstlane_b32 s24, v5")
    a("v_and_b32 v7, 7, v1"); a("v_lshlrev_b32 v7, 7, v7")
    a("s_mov_b32 s21, 0")
    a.label("L_dw")
    a(f"buffer_load_dword v9, v7, {D}, s23 offen sc1"); a("s_waitcnt vmcnt(0)")
    for x in range(8): a(f"v_readlane_b32 s{60+x}, v9, {x}")
    a("s_nop 3")
    a(f"s_cmp_eq_u32 s{S_XCC}, {TEAM_XCC}"); a("s_cbranch_scc0 L_dsum")
    a(f"s_cmp_ge_u32 s{60+TEAM_XCC}, 32"); a("s_cbranch_scc0 L_dsum")
    a("s_cmp_lt_u32 s24, 32"); a("s_cbranch_scc0 L_dsum")
    a("s_mov_b32 s28, 0"); a("s_mov_b32 s29, s24"); a("s_branch L_dteam")
    a.label("L_dsum")
    a("s_add_u32 s25, s60, s61")
    for x in range(2,8): a(f"s_add_u32 s25, s25, s{60+x}")
    a("s_cmp_ge_u32 s25, 256"); a("s_cbranch_scc1 L_dall")
    a("s_sleep 2"); a("s_add_u32 s21, s21, 1"); a(f"s_cmp_lt_u32 s21, {POLL_MAX}"); a("s_cbranch_scc1 L_dw")
    a.label("L_dall")
    a(f"s_cmp_ge_u32 s{60+TEAM_XCC}, 32"); a("s_cselect_b32 s28, 0, 1")
    order=[TEAM_XCC]+[x for x in range(8) if x!=TEAM_XCC]
    a("s_mov_b32 s26, 0"); a("s_mov_b32 s27, 0")
    for x in order:
        a(f"s_cmp_eq_u32 s{S_XCC}, {x}"); a("s_cselect_b32 s27, s26, s27"); a(f"s_add_u32 s26, s26, s{60+x}")
    a("s_add_u32 s27, s27, s24")
    a("s_mov_b32 s30, 32")
    a("s_cmp_lt_u32 s27, s30"); a("s_cbranch_scc0 L_dwork")
    a("s_mov_b32 s29, s27"); a("s_branch L_dteam")
    a.label("L_dwork")
    a("s_sub_u32 s29, s27, s30"); a("s_add_u32 s29, s29, 64")
    a.label("L_dteam")
    a("v_mov_b32 v12, s29"); a("v_mov_b32 v13, s28"); a(f"v_mov_b32 v6, {L_RANK}"); a("ds_write_b64 v6, v[12:13]"); a("s_waitcnt lgkmcnt(0)")
    a.label("L_norank")
    a("s_barrier")
    a(f"v_mov_b32 v6, {L_RANK}"); a("ds_read_b64 v[4:5], v6"); a("s_waitcnt lgkmcnt(0)"); a("s_nop 0")
    a(f"v_readfirstlane_b32 s{S_RANK}, v4"); a(f"v_readfirstlane_b32 s{S_MODE}, v5"); a("s_nop 3")
    a(f"s_mov_b32 s{S_FAIL}, 0")

def worker(a):
    a(f"s_sub_u32 s41, s{S_RANK}, 64"); a(f"s_mov_b32 s22, s{S_WAVE}")
    a("s_cmp_lt_u32 s41, 224"); a("s_cbranch_scc0 L_exit")
    srds(a,[(16,'ws'),(12,'x'),(44,'out'),(48,'wr')], tmp0=60)
    a("s_mov_b32 s20, s41")
    k1.producer(a,16,st="sc1",flags=True)
    if rec.STAMP=='lane': a("s_memrealtime s[74:75]"); a("s_waitcnt lgkmcnt(0)")
    a("s_mov_b32 s40, s41")
    a.label("L_task")
    a("s_cmp_lt_u32 s40, 704"); a("s_cbranch_scc0 L_wdone")
    a("s_barrier")
    a("s_mul_i32 s20, s40, 5958"); a("s_lshr_b32 s20, s20, 16"); a("s_mul_i32 s21, s20, 11"); a("s_sub_u32 s21, s40, s21")
    a("s_cmp_lt_u32 s21, 4"); a("s_cbranch_scc0 L_tx2")
    xf.x1_task(a,16,ld="sc1",st="sc1",fused=True)
    a("s_branch L_tnext")
    a.label("L_tx2")
    a("s_sub_u32 s21, s21, 4")
    xf.x2_task(a,16,12,ld="sc1",st="sc1",fused=True)
    W=S4(16)
    a("s_waitcnt vmcnt(0)"); a("s_barrier")
    a("s_cmp_eq_u32 s22, 0"); a("s_cbranch_scc0 L_nx3a")
    a("s_mov_b64 exec, 1"); a("v_mov_b32 v12, 1"); a("v_mov_b32 v11, 0"); a("s_lshl_b32 s34, s20, 7"); a(f"s_add_u32 s34, s34, {LY.XCNT}")
    a(f"buffer_atomic_add v12, v11, {W}, s34 offen sc0 sc1"); a("s_waitcnt vmcnt(0)"); a("v_mov_b32 v13, 45056"); a("ds_write_b32 v13, v12"); a("s_waitcnt lgkmcnt(0)"); a("s_mov_b64 exec, -1")
    a.label("L_nx3a")
    a("s_barrier"); a("v_mov_b32 v13, 45056"); a("ds_read_b32 v12, v13"); a("s_waitcnt lgkmcnt(0)"); a("s_nop 0"); a("v_readfirstlane_b32 s35, v12"); a("s_nop 3")
    a("s_cmp_eq_u32 s35, 6"); a("s_cbranch_scc0 L_tnext")
    xf.x3_task(a,16,44,48,ld="sc1")
    a.label("L_tnext")
    a("s_waitcnt vmcnt(0)")
    a("s_add_u32 s40, s40, 224"); a("s_branch L_task")
    a.label("L_wdone")

def gen_main(timing=False):
    a=Asm()
    rec.FUSED=True
    if rec.STAMP=='lane': a("s_memrealtime s[70:71]")
    dispatch(a)
    if rec.STAMP=='lane': a("s_memrealtime s[72:73]"); a("s_waitcnt lgkmcnt(0)")
    a(f"s_cmp_ge_u32 s{S_RANK}, 64"); a("s_cbranch_scc1 L_worker")
    rec.lane_consts(a)
    a(f"s_cmp_ge_u32 s{S_RANK}, 30"); a("s_cbranch_scc1 L_pref")
    a(f"s_cmp_eq_u32 s{S_MODE}, 0"); a("s_cbranch_scc0 L_slowteam")
    for slow in (False,True):
        rec.SLOW=slow; rec.TAG="_s" if slow else "_f"
        if slow: a.label("L_slowteam")
        a(f"s_cmp_ge_u32 s{S_RANK}, 16"); a(f"s_cbranch_scc1 L_value{rec.TAG}")
        rec.LANEREG={0:2,1:1,6:0}
        rec.score_role(a, timing, 0)
        a.label(f"L_value{rec.TAG}")
        rec.LANEREG={4:184,7:185,int(os.environ.get("VST","1")):186}; rec.VALREGS=(184,185,186,186)
        rec.value_role(a, timing, 0)
    rec.SLOW=False; rec.TAG=""
    a.label("L_pref")
    rec.prefetch_role(a, ahead=rec.EXP.get('ahead',3))
    a.label("L_worker")
    worker(a)
    if rec.STAMP=='lane': a("s_branch L_wfin")
    a.label("L_fin")
    if rec.STAMP=='lane':
        a(f"s_cmp_ge_u32 s{S_RANK}, 30"); a("s_cbranch_scc1 L_wfin")
        rec.stamp_out(a)
    a.label("L_wfin")
    if rec.STAMP=='lane':
        a("s_memrealtime s[76:77]"); a("s_waitcnt lgkmcnt(0)")
        a("v_mov_b32 v20, s70"); a("v_mov_b32 v21, s72"); a("v_mov_b32 v22, s74"); a("v_mov_b32 v23, s76"); a(f"v_mov_b32 v24, s{S_RANK}"); a(f"v_mov_b32 v25, s{S_XCC}")
        a("s_lshl_b32 s52, s2, 5"); a(f"s_add_u32 s52, s52, {LY.DBGS+(1<<19)}"); a("v_mov_b32 v26, 0")
        a("s_mov_b64 exec, 1")
        a(f"buffer_store_dwordx4 v[20:23], v26, s[{S_WS}:{S_WS+3}], s52 offen"); a(f"buffer_store_dwordx2 v[24:25], v26, s[{S_WS}:{S_WS+3}], s52 offen offset:16")
        a("s_mov_b64 exec, -1")
    a("s_waitcnt vmcnt(0)")
    a.label("L_exit")
    rec.FUSED=False
    return a.text()
if __name__=="__main__":
    rec.EXP={'warmP':1,'maskP':1,'p2B':1,'pf':1}
    print(len(gen_main().splitlines()))
```

```python
from asmlib import *
import layout as LY

WS_BYTES = 268435456
OOB = 0x20000000
S_WS=4; S_DBG=8; S_WAVE=12; S_RANK=13; S_STEP=14; S_MEMOFF=15
S_XCC=20; S_CNT=21; S_FAIL=22; S_EX=24
S_PX=26; S_PM=27; S_XS=28; S_BF=29; S_MF=30; S_MST=31
S_T0=32; S_T1=33; S_T2=34; S_T3=35
POLL_MAX=400000
L_MEM=0; L_STAG=8192; L_SB=15360; L_XS=20480
L_RED=8192; L_U=16384
L_RANK=150000
LDS_BYTES=150016+64

STAMP=False
EXP={}
FUSED=False
SLOW=False
TAG=''
def XST(): return 'sc1' if SLOW else ''
def LB(n): return n+TAG
S_PC=37; S_MC=38; S_MX=39
LANEREG={}
VALREGS=(12,13,14,15)
def stamp(a,k):
    if STAMP=='lane':
        if k in LANEREG:
            a("s_memrealtime s[50:51]"); a("s_waitcnt lgkmcnt(0)"); a(f"s_mov_b32 m0, s{S_STEP}"); a("s_nop 0"); a(f"v_writelane_b32 v{LANEREG[k]}, s50, m0")
        return
    if STAMP=='abs':
        lab=a.newlabel("L_as")
        a(f"s_cmp_eq_u32 s{S_STEP}, 30"); a(f"s_cbranch_scc0 {lab}")
        a("s_memrealtime s[50:51]"); a("s_waitcnt lgkmcnt(0)"); a(f"s_mov_b32 s{60+k}, s50")
        a.label(lab); return
    if not STAMP: return
    a("s_memtime s[50:51]"); a("s_waitcnt lgkmcnt(0)")
    a("s_sub_u32 s52, s50, s53"); a(f"s_add_u32 s{60+k}, s{60+k}, s52"); a("s_mov_b32 s53, s50")
def stamp_init(a):
    if STAMP=='lane': return
    if not STAMP: return
    for k in range(16): a(f"s_mov_b32 s{60+k}, 0")
    a("s_memtime s[50:51]"); a("s_waitcnt lgkmcnt(0)"); a("s_mov_b32 s53, s50")
def stamp_out(a):
    if STAMP=='lane':
        a(f"s_lshl_b32 s52, s{S_RANK}, 2"); a(f"s_add_u32 s52, s52, s{S_WAVE}"); a("s_lshl_b32 s52, s52, 10"); a(f"s_add_u32 s52, s52, {LY.DBGS}")
        a("v_lshrrev_b32 v99, 2, v6")
        lab=a.newlabel("L_so")
        a(f"s_cmp_ge_u32 s{S_RANK}, 16"); a(f"s_cbranch_scc1 {lab}")
        for i,r in enumerate((2,1,0,0)): a(f"buffer_store_dword v{r}, v99, s[{S_WS}:{S_WS+3}], s52 offen offset:{256*i}")
        a(f"s_branch {lab}_e")
        a.label(lab)
        for i,r in enumerate(VALREGS): a(f"buffer_store_dword v{r}, v99, s[{S_WS}:{S_WS+3}], s52 offen offset:{256*i}")
        a.label(lab+"_e")
        return
    if not STAMP: return
    a(f"s_lshl_b32 s52, s{S_RANK}, 2"); a(f"s_add_u32 s52, s52, s{S_WAVE}"); a("s_lshl_b32 s52, s52, 6"); a(f"s_add_u32 s52, s52, {LY.MISC}")
    for k in range(16): a(f"v_mov_b32 v{100+k}, s{60+k}")
    a("v_mov_b32 v99, 0")
    a("v_cmp_eq_u32 vcc, 0, v1"); a(f"s_and_saveexec_b64 s[{S_EX}:{S_EX+1}], vcc")
    for k in range(4): a(f"buffer_store_dwordx4 v[{100+4*k}:{103+4*k}], v99, s[{S_WS}:{S_WS+3}], s52 offen offset:{16*k}")
    a(f"s_mov_b64 exec, s[{S_EX}:{S_EX+1}]")

def srd(a, d, b, n):
    a(f"s_mov_b32 s{d}, s{b}"); a(f"s_and_b32 s{d+1}, s{b+1}, 0xffff"); a(f"s_mov_b32 s{d+2}, {n}"); a(f"s_mov_b32 s{d+3}, 0x20000")

def chk_poison(a, regs, t0, t1):
    regs=list(regs)
    a(f"v_max3_u32 v{t0}, v{regs[0]}, v{regs[1]}, v{regs[2]}")
    rest=regs[3:]
    use=[t1,t0]; first=True
    if len(rest)>=3:
        a(f"v_max3_u32 v{t1}, v{rest[0]}, v{rest[1]}, v{rest[2]}"); rest=rest[3:]
        cur=[t0,t1]; k=0
        while len(rest)>=2:
            a(f"v_max3_u32 v{cur[k]}, v{cur[k]}, v{rest[0]}, v{rest[1]}"); rest=rest[2:]; k^=1
        if rest: a(f"v_max3_u32 v{t0}, v{t0}, v{t1}, v{rest[0]}")
        else: a(f"v_max_u32 v{t0}, v{t0}, v{t1}")
    else:
        for r in rest: a(f"v_max_u32 v{t0}, v{t0}, v{r}")
    a(f"v_cmp_eq_u32 vcc, -1, v{t0}")

def poll_loop(a, loads, regs, t0, t1, sleep=0):
    lab=a.newlabel("L_poll"); ok=lab+"_ok"
    a(f"s_mov_b32 s{S_CNT}, 0")
    a.label(lab)
    for l in loads: a(l)
    a("s_waitcnt vmcnt(0)")
    chk_poison(a, regs, t0, t1)
    a(f"s_cbranch_vccz {ok}")
    if sleep: a(f"s_sleep {sleep}")
    a(f"s_add_u32 s{S_CNT}, s{S_CNT}, 1")
    a(f"s_cmp_lt_u32 s{S_CNT}, {POLL_MAX}")
    a(f"s_cbranch_scc1 {lab}")
    a(f"s_mov_b32 s{S_FAIL}, 1")
    a.label(ok)
    if STAMP is True: a(f"s_add_u32 s{72 if len(loads)==2 else 73}, s{72 if len(loads)==2 else 73}, s{S_CNT}")

def poll2(a, mkloads, sets, nregs, t0, t1, cont, gap):
    lab=a.newlabel("L_p2"); done=lab+"_done"
    n=len(mkloads(sets[0]))
    a(f"s_mov_b32 s{S_CNT}, 0")
    for l in mkloads(sets[0]): a(l)
    if gap: a(f"s_sleep {gap}")
    for l in mkloads(sets[1]): a(l)
    a.label(lab)
    for i in range(2):
        a(f"s_waitcnt vmcnt({n})")
        chk_poison(a, range(sets[i],sets[i]+nregs), t0, t1)
        a(f"s_cbranch_vccz {lab}_ok{i}")
        for l in mkloads(sets[i]): a(l)
    a(f"s_add_u32 s{S_CNT}, s{S_CNT}, 1")
    a(f"s_cmp_lt_u32 s{S_CNT}, {POLL_MAX}")
    a(f"s_cbranch_scc1 {lab}")
    a(f"s_mov_b32 s{S_FAIL}, 1")
    a.label(f"{lab}_ok0"); cont(sets[0]); a(f"s_branch {done}")
    a.label(f"{lab}_ok1"); cont(sets[1])
    a.label(done)

def mem_share2(a, PA, PB, t0, t1, gap):
    W=f"s[{S_WS}:{S_WS+3}]"
    def mk(b): return [f"buffer_load_dwordx4 {vr(b,4)}, v4, {W}, s{S_MEMOFF} offen sc1", f"buffer_load_dwordx4 {vr(b+4,4)}, v5, {W}, s{S_MEMOFF} offen sc1"]
    def cont(b):
        stamp(a,0)
        a(f"ds_write_b128 v4, {vr(b,4)} offset:{L_MEM}")
        a(f"ds_write_b128 v4, {vr(b+4,4)} offset:{L_MEM+4096}")
    poll2(a, mk, [PA,PB], 8, t0, t1, cont, gap)
    a("s_waitcnt lgkmcnt(0)")
    a("s_barrier")
    stamp(a,1)

def mem_share(a, P0, t0, t1, sleep=0):
    poll_loop(a, [f"buffer_load_dwordx4 {vr(P0,4)}, v4, s[{S_WS}:{S_WS+3}], s{S_MEMOFF} offen sc1",
                  f"buffer_load_dwordx4 {vr(P0+4,4)}, v5, s[{S_WS}:{S_WS+3}], s{S_MEMOFF} offen sc1"],
              range(P0,P0+8), t0, t1, sleep)
    stamp(a,0)
    a(f"ds_write_b128 v4, {vr(P0,4)} offset:{L_MEM}")
    a(f"ds_write_b128 v4, {vr(P0+4,4)} offset:{L_MEM+4096}")
    a("s_waitcnt lgkmcnt(0)")
    a("s_barrier")
    stamp(a,1)

def lane_consts(a):
    a("v_lshlrev_b32 v4, 4, v0")
    a("v_add_u32 v5, 4096, v4")
    a(f"v_mov_b32 v2, {OOB}")
    a("v_cmp_gt_u32 vcc, 192, v0")
    a("s_nop 1")
    a("v_cndmask_b32 v5, v2, v5, vcc")
    a("v_lshlrev_b32 v6, 4, v1")
    a("v_and_b32 v2, 8, v1"); a("v_cmp_eq_u32 vcc, 0, v2")
    a("v_mov_b32 v3, 0xeeee"); a("v_mov_b32 v2, 0x4444"); a("s_nop 0")
    a("v_cndmask_b32 v3, v3, v2, vcc")

def common_prologue(a, target_xcc=0, nteam=30):
    a("s_load_dwordx2 s[16:17], s[0:1], 128")
    a("s_load_dwordx2 s[18:19], s[0:1], 120")
    a(f"s_getreg_b32 s{S_XCC}, hwreg(HW_REG_XCC_ID)")
    a(f"s_and_b32 s{S_XCC}, s{S_XCC}, 15")
    a("v_lshrrev_b32 v2, 6, v0")
    a("v_and_b32 v1, 63, v0")
    a("s_waitcnt lgkmcnt(0)")
    srd(a, S_WS, 16, WS_BYTES)
    srd(a, S_DBG, 18, 256)
    a(f"v_readfirstlane_b32 s{S_WAVE}, v2")
    a(f"s_cmp_lt_u32 s2, 256"); a("s_cbranch_scc0 L_exit")
    a(f"s_cmp_eq_u32 s{S_XCC}, {target_xcc}"); a("s_cbranch_scc0 L_exit")
    a(f"s_cmp_eq_u32 s{S_WAVE}, 0"); a("s_cbranch_scc0 L_norank")
    a("v_cmp_eq_u32 vcc, 0, v0"); a(f"s_and_saveexec_b64 s[{S_EX}:{S_EX+1}], vcc")
    a("v_mov_b32 v4, 0"); a("v_mov_b32 v5, 1")
    a(f"buffer_atomic_add v5, v4, s[{S_DBG}:{S_DBG+3}], 0 offen sc0")
    a("s_waitcnt vmcnt(0)")
    a(f"v_mov_b32 v6, {L_RANK}"); a("ds_write_b32 v6, v5"); a("s_waitcnt lgkmcnt(0)")
    a(f"s_mov_b64 exec, s[{S_EX}:{S_EX+1}]")
    a.label("L_norank")
    a("s_barrier")
    a(f"v_mov_b32 v6, {L_RANK}"); a("ds_read_b32 v5, v6"); a("s_waitcnt lgkmcnt(0)")
    a("s_nop 0")
    a(f"v_readfirstlane_b32 s{S_RANK}, v5")
    a(f"s_cmp_lt_u32 s{S_RANK}, {nteam}"); a("s_cbranch_scc0 L_exit")
    a(f"s_mov_b32 s{S_FAIL}, 0")
    lane_consts(a)

def gfrag(fi):
    return ar(8*fi,8) if fi<32 else vr(120+8*(fi-32),8)
def gfrag_half(fi,hh):
    return ar(8*fi+4*hh,4) if fi<32 else vr(120+8*(fi-32)+4*hh,4)

def score_role(a, timing=False, sleep=0, nsteps=63):
    MS=16; ACC=44; BJ=72
    W=f"s[{S_WS}:{S_WS+3}]"
    a("v_and_b32 v16, 15, v1")
    a("v_lshrrev_b32 v17, 4, v1")
    a("v_and_b32 v18, 12, v16"); a("v_and_b32 v19, 1, v16"); a("v_lshlrev_b32 v19, 1, v19")
    a("v_bfe_u32 v20, v16, 1, 1"); a("v_or_b32 v18, v18, v19"); a("v_or_b32 v18, v18, v20")
    a("v_mul_u32_u24 v21, 896, v18"); a("v_lshlrev_b32 v22, 5, v17"); a("v_add_u32 v21, v21, v22")
    a(f"s_mul_i32 s{S_T0}, s{S_RANK}, {448*896}")
    a(f"s_mul_i32 s{S_T1}, s{S_WAVE}, {7*16*896}")
    a(f"s_add_u32 s{S_T0}, s{S_T0}, s{S_T1}")
    a(f"s_add_u32 s{S_T0}, s{S_T0}, {LY.WP}")
    n=0
    for t in range(7):
        for ks in range(7):
            fi=t*7+ks
            for hh in range(2):
                a(f"buffer_load_dwordx4 {gfrag_half(fi,hh)}, v21, {W}, s{S_T0} offen offset:{ks*128+hh*16}")
                n+=1
                if n%32==0: a("s_waitcnt vmcnt(24)")
        a(f"s_add_u32 s{S_T0}, s{S_T0}, {16*896}")
    a("v_lshlrev_b32 v7, 4, v16")
    a("v_and_b32 v22, 1, v17"); a("v_lshlrev_b32 v22, 3, v22"); a("v_add_u32 v7, v7, v22")
    a(f"s_mul_i32 s{S_T1}, s{S_WAVE}, {7*256}"); a(f"s_add_u32 s{S_T1}, s{S_T1}, {L_STAG}")
    a(f"v_add_u32 v8, s{S_T1}, v7")
    a("v_lshrrev_b32 v22, 5, v1"); a("v_lshlrev_b32 v22, 8, v22"); a("v_add_u32 v7, v8, v22")
    a("v_lshlrev_b32 v9, 8, v17"); a("v_lshlrev_b32 v22, 3, v16"); a("v_add_u32 v9, v9, v22"); a(f"v_add_u32 v9, {L_STAG}, v9")
    a("v_lshlrev_b32 v10, 9, v17"); a("v_lshlrev_b32 v22, 4, v16"); a("v_add_u32 v10, v10, v22")
    a(f"s_lshl_b32 s{S_T1}, s{S_WAVE}, 8"); a(f"s_add_u32 s{S_T1}, s{S_T1}, {L_XS}"); a(f"v_add_u32 v10, s{S_T1}, v10")
    a("v_lshlrev_b32 v23, 7, v17"); a("v_and_b32 v22, 7, v16"); a("v_lshlrev_b32 v22, 4, v22"); a("v_add_u32 v23, v23, v22")
    if L_MEM: a(f"v_add_u32 v23, {L_MEM}, v23")
    a(f"s_cmp_eq_u32 s{S_WAVE}, 2"); a("s_cselect_b64 vcc, -1, 0"); a("s_nop 1"); a("v_cndmask_b32 v10, v10, v23, vcc")
    a("v_and_b32 v22, 1, v17"); a("v_lshlrev_b32 v22, 2, v22"); a("v_lshrrev_b32 v23, 5, v1"); a("v_add_u32 v22, v22, v23")
    a("v_mul_u32_u24 v11, 192, v22"); a("v_lshlrev_b32 v22, 2, v16"); a("v_add_u32 v11, v11, v22")
    a(f"s_lshl_b32 s{S_T1}, s{S_WAVE}, 6"); a(f"s_add_u32 s{S_T1}, s{S_T1}, {L_SB}"); a(f"v_add_u32 v11, s{S_T1}, v11")
    a("v_lshrrev_b32 v22, 3, v1"); a("v_and_b32 v23, 7, v1")
    a("v_mul_u32_u24 v12, 192, v23"); a(f"v_add_u32 v12, {L_SB}, v12")
    a("v_lshlrev_b32 v24, 2, v22"); a("v_add_u32 v13, v12, v24"); a("v_add_u32 v13, 128, v13")
    a("v_lshlrev_b32 v24, 4, v22"); a("v_add_u32 v12, v12, v24")
    a("v_lshrrev_b32 v24, 1, v22"); a("v_lshlrev_b32 v24, 3, v24"); a("v_add_u32 v24, v24, v23"); a("v_lshlrev_b32 v14, 4, v24")
    a("v_and_b32 v24, 1, v22"); a("v_lshlrev_b32 v24, 3, v24"); a("v_add_u32 v14, v14, v24")
    a("v_lshlrev_b32 v15, 4, v23"); a("v_lshlrev_b32 v24, 1, v22"); a("v_add_u32 v15, v15, v24")
    a(f"s_mov_b32 s{S_STEP}, 0")
    a(f"s_mov_b32 s{S_MEMOFF}, {LY.MEM}")
    a(f"s_lshl_b32 s{S_PX}, s{S_RANK}, 9"); a(f"s_add_u32 s{S_PX}, s{S_PX}, {LY.PX}")
    a(f"s_lshl_b32 s{S_PM}, s{S_RANK}, 7"); a(f"s_add_u32 s{S_PM}, s{S_PM}, {LY.PM}")
    a(f"s_mov_b32 s{S_XS}, {LY.HFRAG}")
    def xs_dma(nw):
        a(f"s_mul_i32 s{S_T0}, s{S_WAVE}, {7*1024}")
        a(f"s_add_u32 s{S_T1}, s{S_T0}, s{S_XS}")
        a(f"s_add_u32 s{S_T0}, s{S_T0}, {L_XS}")
        a(f"s_mov_b32 m0, s{S_T0}"); a("s_nop 0")
        for i in range(4): a(f"buffer_load_dwordx4 v6, {W}, s{S_T1} offen offset:{i*1024} lds")
        a(f"s_add_u32 s{S_T0}, s{S_T0}, 4096"); a(f"s_add_u32 s{S_T1}, s{S_T1}, 4096")
        a(f"s_mov_b32 m0, s{S_T0}"); a("s_nop 0")
        for i in range(3): a(f"buffer_load_dwordx4 v6, {W}, s{S_T1} offen offset:{i*1024} lds")
    xs_dma(4)
    a("s_waitcnt vmcnt(0)")
    if timing: a("s_memtime s[40:41]")
    stamp_init(a)
    a.label(LB("L_sstep"))
    for r in range(ACC,ACC+28): a(f"v_mov_b32 v{r}, 0")
    if EXP.get('preA'): a(f"s_sleep {EXP['preA']}")
    if EXP.get('p2A'): mem_share2(a, 72, 84, 80, 81, EXP.get('gapA',2))
    else: mem_share(a, 72, 80, 81, sleep)
    for ks in range(7): a(f"ds_read_b128 {vr(MS+4*ks,4)}, v6 offset:{L_MEM+ks*1024}")
    order=[(t,ks) for t in range(5) for ks in range(7)]
    for ks in range(7): order+= [(5,ks),(6,ks)]
    mains=[]
    for i,(t,ks) in enumerate(order):
        m=f"v_smfmac_f32_16x16x64_bf16 {vr(ACC+4*t,4)}, {vr(MS+4*ks,4)}, {gfrag(t*7+ks)}, v3"
        if i<7: m=f"s_waitcnt lgkmcnt({6-i})\n"+m
        mains.append(m)
    T0=112+0
    def post_pair(ta,tb,tmp):
        o=[]
        for i in range(4): o.append(f"v_permlane32_swap_b32 v{ACC+4*ta+i}, v{ACC+4*tb+i}")
        for i in range(4): o.append(f"v_add_f32 v{ACC+4*ta+i}, v{ACC+4*ta+i}, v{ACC+4*tb+i}")
        o.append(f"v_cvt_pk_bf16_f32 v{ACC+4*tb}, v{ACC+4*ta}, v{ACC+4*ta+1}")
        o.append(f"v_cvt_pk_bf16_f32 v{ACC+4*tb+1}, v{ACC+4*ta+2}, v{ACC+4*ta+3}")
        o.append(f"ds_write_b64 v7, {vr(ACC+4*tb,2)} offset:{ta*256}")
        return o
    def post_single(t, tmp):
        o=[]
        for i in range(4): o.append(f"v_mov_b32 v{tmp+i}, v{ACC+4*t+i}")
        o.append("s_nop 0")
        for i in range(4): o.append(f"v_permlane32_swap_b32 v{ACC+4*t+i}, v{tmp+i}")
        for i in range(4): o.append(f"v_add_f32 v{ACC+4*t+i}, v{ACC+4*t+i}, v{tmp+i}")
        o.append(f"v_cvt_pk_bf16_f32 v{tmp}, v{ACC+4*t}, v{ACC+4*t+1}")
        o.append(f"v_cvt_pk_bf16_f32 v{tmp+1}, v{ACC+4*t+2}, v{ACC+4*t+3}")
        o.append(f"ds_write_b64 v8, {vr(tmp,2)} offset:{t*256}")
        return o
    fill=[]
    for x in post_pair(0,1,None): fill.append((22,x))
    for x in post_pair(2,3,None): fill.append((36,x))
    for x in post_single(4, ACC+0): fill.append((43,x))
    return_fill=fill
    lab2=a.newlabel("L_t2"); labj=a.newlabel("L_tj")
    a(f"s_cmp_eq_u32 s{S_WAVE}, 2"); a(f"s_cbranch_scc1 {lab2}")
    for variant in (0,1):
        if variant==1: a.label(lab2)
        pre=[(7,"s_waitcnt vmcnt(0)")]
        for ks in range(6):
            if variant==0:
                pre.append((8+2*ks, f"ds_read_b128 {vr(BJ+8*ks,4)}, v10 offset:{ks*4096}"))
                pre.append((8+2*ks, f"ds_read_b128 {vr(BJ+8*ks+4,4)}, v10 offset:{ks*4096+2048}"))
            else:
                pre.append((8+2*ks, f"ds_read_b128 {vr(BJ+8*ks,4)}, v10 offset:{ks*1024}"))
                pre.append((8+2*ks, f"ds_read_b128 {vr(BJ+8*ks+4,4)}, v10 offset:{ks*1024+512}"))
        if EXP.get('nopre'): pre=[]
        if EXP.get('nofill'):
            rest=interleave(a, mains, pre);
            for _,x in fill: a(x)
        else:
            rest=interleave(a, mains, pre+fill, per_gap=EXP.get('per_gap',3))
            for _,x in rest: a(x)
        stamp(a,2)
        a.nop(8)
        for x in post_pair(5,6,None): a(x)
        for i in range(4): a(f"v_mov_b32 v{ACC+8+i}, 0")
        a("s_waitcnt lgkmcnt(0)")
        a("s_barrier")
        stamp(a,3)
        if variant==0:
            a(f"s_cmp_eq_u32 s{S_WAVE}, 3"); a("s_cbranch_scc1 "+LB("L_s_w3"))
            a(f"ds_read_b128 {vr(ACC,4)}, v10 offset:{6*4096}"); a(f"ds_read_b128 {vr(ACC+4,4)}, v10 offset:{6*4096+2048}")
        else:
            a(f"ds_read_b128 {vr(ACC,4)}, v10 offset:{6*1024}"); a(f"ds_read_b128 {vr(ACC+4,4)}, v10 offset:{6*1024+512}")
        if variant==0: a(f"s_branch {labj}")
    a.label(labj)
    for ks in range(7):
        a(f"ds_read_b64_tr_b16 {vr(MS+4*ks,2)}, v9 offset:{ks*1024}")
        a(f"ds_read_b64_tr_b16 {vr(MS+4*ks+2,2)}, v9 offset:{ks*1024+128}")
    for ks in range(7):
        a(f"s_waitcnt lgkmcnt({min(15,2*(6-ks))})")
        b = vr(BJ+8*ks,8) if ks<6 else vr(ACC,8)
        a(f"v_smfmac_f32_16x16x64_bf16 {vr(ACC+8,4)}, {vr(MS+4*ks,4)}, {b}, v3")
    a.nop(8)
    S=ACC+8
    a(f"v_permlane32_swap_b32 v{S}, v{S+1}"); a(f"v_permlane32_swap_b32 v{S+2}, v{S+3}")
    a(f"v_add_f32 v{S}, v{S}, v{S+1}"); a(f"v_add_f32 v{S+2}, v{S+2}, v{S+3}")
    a(f"ds_write_b32 v11, v{S}"); a(f"ds_write_b32 v11, v{S+2} offset:{2*192}")
    a("s_waitcnt lgkmcnt(0)")
    stamp(a,4)
    a("s_barrier")
    stamp(a,5)
    a("s_branch "+LB("L_s_after"))
    a.label(LB("L_s_w3"))
    a("s_barrier")
    stamp(a,5)
    X=72
    a(f"ds_read_b128 {vr(X,4)}, v12"); a(f"ds_read_b32 v{X+4}, v13")
    a("s_waitcnt lgkmcnt(0)")
    a(f"v_max3_f32 v{X+5}, v{X}, v{X+1}, v{X+2}"); a(f"v_max3_f32 v{X+5}, v{X+5}, v{X+3}, v{X+4}")
    def xred(op, r, t):
        a("s_nop 1"); a(f"{op}_dpp v{r}, v{r}, v{r} row_ror:8 row_mask:0xf bank_mask:0xf")
        a(f"v_mov_b32 v{t}, v{r}"); a("s_nop 1"); a(f"v_permlane16_swap_b32 v{r}, v{t}"); a(f"{op} v{r}, v{r}, v{t}")
        a(f"v_mov_b32 v{t}, v{r}"); a("s_nop 1"); a(f"v_permlane32_swap_b32 v{r}, v{t}"); a(f"{op} v{r}, v{r}, v{t}")
    xred("v_max_f32", X+5, X+6)
    for i in range(5): a(f"v_sub_f32 v{X+i}, v{X+i}, v{X+5}")
    for i in range(5): a(f"v_exp_f32 v{X+i}, v{X+i}")
    a("s_nop 0")
    a(f"v_add_f32 v{X+5}, v{X}, v{X+1}"); a(f"v_add_f32 v{X+6}, v{X+2}, v{X+3}"); a(f"v_add_f32 v{X+5}, v{X+5}, v{X+4}"); a(f"v_add_f32 v{X+5}, v{X+5}, v{X+6}")
    xred("v_add_f32", X+5, X+6)
    a(f"v_rcp_f32 v{X+5}, v{X+5}"); a("s_nop 0")
    for i in range(5): a(f"v_mul_f32 v{X+i}, v{X+i}, v{X+5}")
    a(f"v_cvt_pk_bf16_f32 v{X+8}, v{X}, v{X+1}"); a(f"v_cvt_pk_bf16_f32 v{X+9}, v{X+2}, v{X+3}")
    a(f"v_mov_b32_dpp v{X+6}, v{X+4} row_ror:8 row_mask:0xf bank_mask:0xf")
    a(f"buffer_store_dwordx2 {vr(X+8,2)}, v14, {W}, s{S_PX} offen {XST()}")
    a(f"v_cvt_pk_bf16_f32 v{X+7}, v{X+4}, v{X+6}")
    a("s_mov_b32 exec_lo, 0x00ff00ff"); a("s_mov_b32 exec_hi, 0x00ff00ff")
    a(f"buffer_store_dword v{X+7}, v15, {W}, s{S_PM} offen {XST()}")
    a("s_mov_b64 exec, -1")
    stamp(a,6)
    a.label(LB("L_s_after"))
    a("s_barrier")
    a(f"s_add_u32 s{S_STEP}, s{S_STEP}, 1")
    a(f"s_add_u32 s{S_MEMOFF}, s{S_MEMOFF}, 7168")
    a(f"s_add_u32 s{S_PX}, s{S_PX}, 8192"); a(f"s_add_u32 s{S_PM}, s{S_PM}, 2048"); a(f"s_add_u32 s{S_XS}, s{S_XS}, 28672")
    a(f"s_cmp_lt_u32 s{S_STEP}, {nsteps}"); a("s_cbranch_scc0 L_fin")
    xs_dma(4)
    stamp(a,7)
    a(f"s_cmp_eq_u32 s{S_FAIL}, 0"); a("s_cbranch_scc1 "+LB("L_sstep"))
    a("s_branch L_fin")

def ufrag(fi):
    if fi<32: return ar(8*fi,8)
    if fi<40: return vr(192+8*(fi-32),8)
    return None
def value_role(a, timing=False, sleep=0, nsteps=64):
    MS=16; ACC=44; UT=76; BF=100; PP=132; MF=152; OA=160; PR=168
    W=f"s[{S_WS}:{S_WS+3}]"
    S_J=36
    a(f"s_sub_u32 s{S_J}, s{S_RANK}, 16")
    a("v_and_b32 v16, 15, v1"); a("v_lshrrev_b32 v17, 4, v1")
    a("v_mul_u32_u24 v21, 896, v16"); a("v_lshlrev_b32 v22, 5, v17"); a("v_add_u32 v21, v21, v22")
    for a2 in range(4):
        for ct in range(2):
            a(f"s_lshl_b32 s{S_T0}, s{S_WAVE}, 2"); a(f"s_add_u32 s{S_T0}, s{S_T0}, {a2}")
            a(f"s_mul_i32 s{S_T0}, s{S_T0}, 448"); a(f"s_lshl_b32 s{S_T1}, s{S_J}, 5"); a(f"s_add_u32 s{S_T0}, s{S_T0}, s{S_T1}")
            a(f"s_add_u32 s{S_T0}, s{S_T0}, {7168+16*ct}"); a(f"s_mul_i32 s{S_T0}, s{S_T0}, 896"); a(f"s_add_u32 s{S_T0}, s{S_T0}, {LY.WP}")
            for ks in range(7):
                fi=(a2*2+ct)*7+ks
                if fi<40:
                    for hh in range(2):
                        dst = ar(8*fi+4*hh,4) if fi<32 else vr(192+8*(fi-32)+4*hh,4)
                        a(f"buffer_load_dwordx4 {dst}, v21, {W}, s{S_T0} offen offset:{ks*128+hh*16}")
                else:
                    for hh in range(2):
                        a(f"s_lshl_b32 s{S_T1}, s{S_WAVE}, 15"); a(f"s_add_u32 s{S_T1}, s{S_T1}, {L_U+(fi-40)*2048+hh*1024}")
                        a(f"s_mov_b32 m0, s{S_T1}"); a(f"s_add_u32 s{S_T2}, s{S_T0}, {ks*128+hh*16}")
                        a(f"buffer_load_dwordx4 v21, {W}, s{S_T2} offen lds")
            a("s_waitcnt vmcnt(30)")
    a(f"s_lshl_b32 s{S_T1}, s{S_WAVE}, 15"); a(f"s_add_u32 s{S_T1}, s{S_T1}, {L_U}"); a(f"v_add_u32 v7, s{S_T1}, v6")
    a("v_lshlrev_b32 v8, 3, v17"); a("v_and_b32 v22, 7, v16"); a("v_add_u32 v8, v8, v22"); a("v_lshlrev_b32 v8, 4, v8")
    a("v_lshrrev_b32 v22, 3, v16"); a("v_lshlrev_b32 v22, 9, v22"); a("v_add_u32 v8, v8, v22")
    a(f"s_lshl_b32 s{S_T1}, s{S_WAVE}, 11"); a(f"s_add_u32 s{S_T1}, s{S_T1}, {L_RED}"); a(f"v_add_u32 v9, s{S_T1}, v6")
    a(f"s_lshl_b32 s{S_T1}, s{S_WAVE}, 10"); a(f"s_add_u32 s{S_T1}, s{S_T1}, {L_RED}"); a(f"v_add_u32 v10, s{S_T1}, v6")
    a("v_lshrrev_b32 v22, 1, v17"); a("v_lshlrev_b32 v11, 7, v22"); a("v_and_b32 v22, 7, v16"); a("v_lshlrev_b32 v22, 4, v22"); a("v_add_u32 v11, v11, v22")
    a("v_and_b32 v22, 1, v17"); a("v_lshlrev_b32 v22, 3, v22"); a("v_add_u32 v11, v11, v22")
    a(f"s_mov_b32 s{S_STEP}, 0"); a(f"s_mov_b32 s{S_MEMOFF}, {LY.MEM}")
    a(f"s_lshl_b32 s{S_PX}, s{S_WAVE}, 11"); a(f"s_add_u32 s{S_PX}, s{S_PX}, {LY.PX}")
    a(f"s_lshl_b32 s{S_PM}, s{S_WAVE}, 9"); a(f"s_add_u32 s{S_PM}, s{S_PM}, {LY.PM}")
    a("v_lshrrev_b32 v22, 3, v16"); a("v_lshlrev_b32 v22, 8, v22"); a("v_add_u32 v187, v11, v22")
    a(f"s_lshl_b32 s{S_BF}, s{S_J}, 15"); a(f"s_lshl_b32 s{S_T1}, s{S_WAVE}, 12"); a(f"s_add_u32 s{S_BF}, s{S_BF}, s{S_T1}"); a(f"s_add_u32 s{S_BF}, s{S_BF}, {LY.BFRAG}")
    a(f"s_lshl_b32 s{S_MF}, s{S_J}, 13"); a(f"s_lshl_b32 s{S_T1}, s{S_WAVE}, 10"); a(f"s_add_u32 s{S_MF}, s{S_MF}, s{S_T1}"); a(f"s_add_u32 s{S_MF}, s{S_MF}, {LY.MFRAG}")
    a(f"s_lshl_b32 s{S_T0}, s{S_J}, 1"); a(f"s_add_u32 s{S_T0}, s{S_T0}, s{S_WAVE}")
    a(f"s_lshl_b32 s{S_MST}, s{S_T0}, 8"); a(f"s_add_u32 s{S_MST}, s{S_MST}, {LY.MEM+7168}")
    if FUSED:
        for r in (12,13,14,15,1): a(f"v_mov_b32 v{r}, 0")
        a(f"s_mov_b32 s{S_PC}, {LY.BRDY}")
        a(f"s_mov_b32 s{S_MC}, {LY.MCNT}"); a(f"s_add_u32 s{S_MX}, s{S_MST}, {LY.MEMX-LY.MEM}")
        a("v_mov_b32 v0, 1")
    def b_prefetch():
        for ct in range(2):
            a(f"s_add_u32 s{S_T0}, s{S_BF}, {ct*16384}")
            for a2 in range(4):
                a(f"buffer_load_dwordx4 {vr(BF+4*(a2*2+ct),4)}, v6, {W}, s{S_T0} offen offset:{a2*1024}")
        if EXP.get('warmP'):
            for a2 in range(4): a(f"buffer_load_dwordx4 {vr(PP+4*a2,4)}, v8, {W}, s{S_PX} offen offset:{a2*512} sc1")
            a(f"buffer_load_dwordx4 {vr(PP+16,4)}, v8, {W}, s{S_PM} offen sc1")
    def mf_store(off):
        fl="sc1" if FUSED else ""
        a(f"s_add_u32 s{S_T1}, s{S_MF}, {off}"); a(f"s_add_u32 s{S_T0}, s{S_MF}, {(off+4096)&0xffffffff}")
        a(f"buffer_store_dwordx4 {vr(MF,4)}, v6, {W}, s{S_T1} offen {fl}")
        a(f"buffer_store_dwordx4 {vr(MF+4,4)}, v6, {W}, s{S_T0} offen {fl}")
    def b_check():
        if FUSED:
            lp=a.newlabel("L_pc")
            def chk():
                a("v_and_b32 v2, v12, v13"); a("v_and_b32 v2, v2, v14"); a("v_and_b32 v2, v2, v15"); a("s_nop 0"); a(f"v_readfirstlane_b32 s{S_T0}, v2"); a("s_nop 3")
                a(f"s_cmp_eq_u32 s{S_T0}, 1"); a(f"s_cbranch_scc1 {lp}_ok")
            chk()
            a(f"s_mov_b32 s{S_CNT}, 0")
            a.label(lp)
            a(f"buffer_load_dwordx4 v[12:15], v1, {W}, s{S_PC} offen sc1"); a("s_waitcnt vmcnt(0)")
            chk()
            a("s_sleep 1"); a(f"s_add_u32 s{S_CNT}, s{S_CNT}, 1"); a(f"s_cmp_lt_u32 s{S_CNT}, {POLL_MAX}"); a(f"s_cbranch_scc1 {lp}")
            a(f"s_mov_b32 s{S_FAIL}, 1")
            a.label(lp+"_ok")
    b_check(); b_prefetch()
    for r in range(ACC,ACC+32): a(f"v_mov_b32 v{r}, 0")
    a("s_waitcnt vmcnt(0)")
    if timing: a("s_memtime s[40:41]")
    stamp_init(a)
    def zero_acc():
        for r in range(ACC,ACC+32): a(f"v_mov_b32 v{r}, 0")
        for r in range(OA,OA+8): a(f"v_mov_b32 v{r}, 0")
    a.label(LB("L_vstep"))
    mem_share(a, PR, 178, 179, sleep)
    for ks in range(7): a(f"ds_read_b128 {vr(MS+4*ks,4)}, v6 offset:{L_MEM+ks*1024}")
    if EXP.get('bin'): b_check(); a(f"s_add_u32 s{S_T2}, s{S_BF}, 16384")
    a(f"s_add_u32 s{S_T3}, s{S_PC}, 64")
    def store_window_a():
        l0=a.newlabel("L_sw")
        a(f"s_cmp_eq_u32 s{S_STEP}, 0"); a(f"s_cbranch_scc1 {l0}")
        mf_store(-28*4096 & 0xffffffff)
        a.label(l0)
    def store_window_b():
        if not FUSED: return
        lx=a.newlabel("L_mx")
        a(f"s_cmp_eq_u32 s{S_STEP}, 0"); a(f"s_cbranch_scc1 {lx}")
        a(f"s_cmp_lt_u32 s{S_WAVE}, 2"); a(f"s_cbranch_scc0 {lx}")
        a(f"s_sub_u32 s{S_T0}, s{S_MX}, 7168")
        a("s_mov_b32 exec_lo, 0x00ff00ff"); a("s_mov_b32 exec_hi, 0x00ff00ff")
        a(f"buffer_store_dwordx2 v[180:181], v11, {W}, s{S_T0} offen sc1"); a("s_mov_b64 exec, -1"); a("s_nop 3")
        a.label(lx)
    def store_window_c():
        if not FUSED: return
        lm=a.newlabel("L_mc")
        a(f"s_cmp_ge_u32 s{S_STEP}, 2"); a(f"s_cbranch_scc0 {lm}")
        a(f"s_cmp_eq_u32 s{S_WAVE}, 3"); a(f"s_cbranch_scc0 {lm}")
        a(f"s_sub_u32 s{S_T0}, s{S_MC}, 256"); a("s_mov_b64 exec, 1")
        a(f"buffer_atomic_add v0, v1, {W}, s{S_T0} offen sc1"); a("s_mov_b64 exec, -1"); a("s_nop 3")
        a.label(lm)
    def post_pair(ct,pr):
        ta=(2*pr)*2+ct; tb=(2*pr+1)*2+ct; o=[]
        for i in range(4): o.append(f"v_permlane32_swap_b32 v{ACC+4*ta+i}, v{ACC+4*tb+i}")
        for i in range(4): o.append(f"v_add_f32 v{ACC+4*ta+i}, v{ACC+4*ta+i}, v{ACC+4*tb+i}")
        o.append(f"v_cvt_pk_bf16_f32 v{MF+4*ct+2*pr}, v{ACC+4*ta}, v{ACC+4*ta+1}")
        o.append(f"v_cvt_pk_bf16_f32 v{MF+4*ct+2*pr+1}, v{ACC+4*ta+2}, v{ACC+4*ta+3}")
        return o
    tiles=[(a2,ct) for a2 in range(4) for ct in range(2)]
    seq=[]
    for (a2,ct) in tiles:
        for ks in range(7): seq.append(((a2*2+ct), ks))
    regseq=[x for x in seq if x[0]*7+x[1]<40]; ldsseq=[x for x in seq if x[0]*7+x[1]>=40]
    order=regseq[:7]; r=regseq[7:]; l=ldsseq[:]
    while r or l:
        for _ in range(2):
            if r: order.append(r.pop(0))
        if l: order.append(l.pop(0))
    ldsidx=[i for i,x in enumerate(order) if x[0]*7+x[1]>=40]
    last={}
    for i,(t,ks) in enumerate(order): last[t]=i
    early=post_pair(0,0)+post_pair(1,0)
    epos=max(last[0],last[1],last[2],last[3])+9
    calls={2:store_window_a, 4:store_window_b, 5:store_window_c}
    bfill={}
    if EXP.get('bin'):
        pos=EXP.get('bpos',8); stp=EXP.get('bstep',2)
        for ct in range(2):
            for a2 in range(4):
                bfill[pos]=f"buffer_load_dwordx4 {vr(BF+4*(a2*2+ct),4)}, v6, {W}, s{S_BF if ct==0 else S_T2} offen offset:{a2*1024}"; pos+=stp
        if FUSED: bfill[pos]=f"buffer_load_dwordx4 v[12:15], v1, {W}, s{S_T3} offen sc1"
    elif FUSED: bfill[EXP.get('rpos',20)]=f"buffer_load_dwordx4 v[12:15], v1, {W}, s{S_T3} offen sc1"
    def ldsread(k):
        t,ks=order[ldsidx[k]]; fi=t*7+ks
        return [f"ds_read_b128 {vr(UT+8*(k%3),4)}, v7 offset:{(fi-40)*2048}", f"ds_read_b128 {vr(UT+8*(k%3)+4,4)}, v7 offset:{(fi-40)*2048+1024}"]
    issued=0
    for i,(t,ks) in enumerate(order):
        fi=t*7+ks
        b = ufrag(fi) if fi<40 else vr(UT+8*(ldsidx.index(i)%3),8)
        if i<7: a(f"s_waitcnt lgkmcnt({6-i})")
        if fi>=40:
            k=ldsidx.index(i)
            a(f"s_waitcnt lgkmcnt({2*(issued-1-k)})")
        a(f"v_smfmac_f32_16x16x64_bf16 {vr(ACC+4*t,4)}, {vr(MS+4*ks,4)}, {b}, v3")
        if i in calls: calls[i]()
        if i in bfill: a(bfill[i])
        if i==6:
            for k in range(3):
                for x in ldsread(k): a(x)
            issued=3
        if fi>=40:
            k=ldsidx.index(i)
            if issued<len(ldsidx) and issued==k+3:
                for x in ldsread(issued): a(x)
                issued+=1
        if i>=epos:
            for _ in range(3):
                if early: a(early.pop(0))
    stamp(a,2)
    for x in early: a(x)
    a.nop(8)
    for x in post_pair(0,1)+post_pair(1,1): a(x)
    a(f"s_cmp_eq_u32 s{S_STEP}, {nsteps-1}"); a("s_cbranch_scc0 "+LB("L_v_cont"))
    mf_store(0)
    if FUSED:
        a("s_waitcnt vmcnt(0)"); a("s_barrier")
        a(f"s_cmp_eq_u32 s{S_WAVE}, 0"); a("s_cbranch_scc0 L_fin")
        a(f"s_sub_u32 s{S_T0}, s{S_MC}, 128"); a("s_mov_b64 exec, 1")
        a(f"buffer_atomic_add v0, v1, {W}, s{S_T0} offen sc1"); a(f"buffer_atomic_add v0, v1, {W}, s{S_MC} offen sc1"); a("s_mov_b64 exec, -1")
    a("s_branch L_fin")
    a.label(LB("L_v_cont"))
    if EXP.get('p2B'):
        for r in range(OA,OA+8): a(f"v_mov_b32 v{r}, 0")
    else: zero_acc()
    stamp(a,3)
    def mk(b): return [f"buffer_load_dwordx4 {vr(b,4)}, v8, {W}, s{S_PX} offen sc1", f"buffer_load_dwordx4 {vr(b+4,4)}, v8, {W}, s{S_PX} offen offset:1024 sc1",
                       f"buffer_load_dwordx2 {vr(b+8,2)}, v187, {W}, s{S_PM} offen sc1"]
    if EXP.get('preB'): a(f"s_sleep {EXP['preB']}")
    Y=PP+10
    def pw(b):
        stamp(a,4)
        dpp=lambda d,sr_: a(f"v_mov_b32_dpp v{d}, v{sr_} row_ror:8 row_mask:0xf bank_mask:0xf")
        def mm(ct,A,B): a(f"v_mfma_f32_16x16x32_bf16 {vr(OA+4*ct,4)}, {A}, {B}, {vr(OA+4*ct,4)}")
        mm(0,vr(BF+4*(0*2+0),4),vr(b,4));
        for i in range(3): dpp(Y+i,b+i)
        mm(1,vr(BF+4*(0*2+1),4),vr(b,4))
        dpp(Y+3,b+3); dpp(Y+4,b+4); dpp(Y+5,b+5)
        mm(0,vr(BF+4*(2*2+0),4),vr(b+4,4))
        dpp(Y+6,b+6); dpp(Y+7,b+7); a(f"v_mov_b32 v188, v{b+8}")
        mm(1,vr(BF+4*(2*2+1),4),vr(b+4,4))
        a(f"v_mov_b32 v189, v{b+9}"); dpp(190,b+8); dpp(191,b+9)
        mm(0,vr(BF+4*(1*2+0),4),vr(Y,4)); mm(1,vr(BF+4*(1*2+1),4),vr(Y,4))
        mm(0,vr(BF+4*(3*2+0),4),vr(Y+4,4)); mm(1,vr(BF+4*(3*2+1),4),vr(Y+4,4))
        mm(0,vr(MF,4),"v[188:191]"); mm(1,vr(MF+4,4),"v[188:191]")
    if EXP.get('p2B'):
        poll2(a, mk, [PP, ACC], 10, 176, 177, pw, EXP.get('gapB',2))
    else:
        poll_loop(a, mk(PP), range(PP,PP+10), 176, 177, sleep)
        pw(PP)
    a.nop(8)
    a(f"ds_write_b128 v9, {vr(OA,4)}"); a(f"ds_write_b128 v9, {vr(OA+4,4)} offset:1024")
    a("s_waitcnt lgkmcnt(0)")
    stamp(a,5)
    a("s_barrier")
    stamp(a,6)
    a(f"s_cmp_lt_u32 s{S_WAVE}, 2"); a("s_cbranch_scc0 "+LB("L_v_nored"))
    RT=UT
    for w in range(4): a(f"ds_read_b128 {vr(RT+4*w,4)}, v10 offset:{w*2048}")
    a("s_waitcnt lgkmcnt(2)")
    for i in range(4): a(f"v_add_f32 v{RT+i}, v{RT+i}, v{RT+4+i}")
    a("s_waitcnt lgkmcnt(0)")
    for i in range(4): a(f"v_add_f32 v{RT+8+i}, v{RT+8+i}, v{RT+12+i}")
    for i in range(4): a(f"v_add_f32 v{RT+i}, v{RT+i}, v{RT+8+i}")
    a(f"v_cvt_pk_bf16_f32 v180, v{RT}, v{RT+1}"); a(f"v_cvt_pk_bf16_f32 v181, v{RT+2}, v{RT+3}")
    a("s_mov_b32 exec_lo, 0x00ff00ff"); a("s_mov_b32 exec_hi, 0x00ff00ff")
    a(f"buffer_store_dwordx2 v[180:181], v11, {W}, s{S_MST} offen {XST()}")
    a("s_mov_b64 exec, -1")
    a.label(LB("L_v_nored"))
    stamp(a,7)
    a("s_barrier")
    if EXP.get('p2B'):
        a("s_waitcnt vmcnt(1)")
        for r in range(ACC,ACC+32): a(f"v_mov_b32 v{r}, 0")
    a(f"s_add_u32 s{S_STEP}, s{S_STEP}, 1")
    a(f"s_add_u32 s{S_MEMOFF}, s{S_MEMOFF}, 7168"); a(f"s_add_u32 s{S_MST}, s{S_MST}, 7168")
    a(f"s_add_u32 s{S_PX}, s{S_PX}, 8192"); a(f"s_add_u32 s{S_PM}, s{S_PM}, 2048")
    a(f"s_add_u32 s{S_BF}, s{S_BF}, {28*16384}"); a(f"s_add_u32 s{S_MF}, s{S_MF}, {28*4096}")
    if FUSED:
        a(f"s_add_u32 s{S_PC}, s{S_PC}, 64"); a(f"s_add_u32 s{S_MC}, s{S_MC}, 128"); a(f"s_add_u32 s{S_MX}, s{S_MX}, 7168")
    if not EXP.get('bin'): b_check(); b_prefetch()
    stamp(a,8)
    a(f"s_cmp_eq_u32 s{S_FAIL}, 0"); a("s_cbranch_scc1 "+LB("L_vstep"))
    a("s_branch L_fin")

def prefetch_role(a, nsteps=64, ahead=3):
    W=f"s[{S_WS}:{S_WS+3}]"
    a(f"s_sub_u32 s36, s{S_RANK}, 30")
    a(f"s_mov_b32 s{S_STEP}, 0")
    a("v_mov_b32 v9, 0"); a("v_mov_b32 v31, 1")
    a(f"s_cmp_eq_u32 s36, 1"); a("s_cbranch_scc1 L_relay")
    a(f"s_mov_b32 s44, s{S_WAVE}")
    a("v_lshlrev_b32 v7, 7, v1")
    a(f"s_mul_i32 s{S_BF}, s44, {896*128}"); a(f"s_add_u32 s{S_BF}, s{S_BF}, {LY.BFRAG}")
    a(f"s_mov_b32 s{S_XS}, {LY.HFRAG}"); a(f"s_mov_b32 s{S_PX}, {LY.PX}"); a(f"s_mov_b32 s{S_PM}, {LY.PM}")
    a(f"s_mov_b32 s{S_MEMOFF}, {LY.MEM}")
    a("v_mov_b32 v8, 7164")
    a(f"s_mov_b32 s{S_PC}, {LY.PCNT if FUSED else 0}")
    a(f"s_lshl_b32 s46, s44, 2"); a(f"s_add_u32 s46, s46, {LY.BRDY}")
    a.label("L_pf")
    a(f"s_cmp_lt_u32 s{S_STEP}, {ahead+1}"); a("s_cbranch_scc1 L_pf_go")
    a(f"s_add_u32 s{S_MEMOFF}, s{S_MEMOFF}, 7168")
    a(f"s_mov_b32 s{S_CNT}, 0")
    a.label("L_pf_w")
    a(f"buffer_load_dword v10, v8, {W}, s{S_MEMOFF} offen sc1"); a("s_waitcnt vmcnt(0)")
    a("v_cmp_eq_u32 vcc, -1, v10"); a("s_cbranch_vccz L_pf_go")
    a("s_sleep 4")
    a(f"s_add_u32 s{S_CNT}, s{S_CNT}, 1"); a(f"s_cmp_lt_u32 s{S_CNT}, {POLL_MAX}"); a("s_cbranch_scc1 L_pf_w")
    a("s_branch L_fin")
    a.label("L_pf_go")
    if FUSED:
        a(f"s_mov_b32 s{S_CNT}, 0")
        a.label("L_pf_c")
        a(f"buffer_load_dword v19, v9, {W}, s{S_PC} offen sc1"); a("s_waitcnt vmcnt(0)"); a(f"v_readfirstlane_b32 s{S_T0}, v19"); a("s_nop 3")
        a(f"s_cmp_ge_u32 s{S_T0}, 112"); a("s_cbranch_scc1 L_pf_c_ok")
        a("s_sleep 4"); a(f"s_add_u32 s{S_CNT}, s{S_CNT}, 1"); a(f"s_cmp_lt_u32 s{S_CNT}, {POLL_MAX}"); a("s_cbranch_scc1 L_pf_c")
        a("s_branch L_fin")
        a.label("L_pf_c_ok")
        a(f"s_add_u32 s{S_PC}, s{S_PC}, 128")
    a(f"s_lshl_b32 s{S_T0}, s44, 13"); a(f"s_add_u32 s{S_T0}, s{S_T0}, s{S_XS}"); a(f"buffer_load_dword v17, v7, {W}, s{S_T0} offen")
    a("s_cmp_eq_u32 s44, 0"); a(f"s_cselect_b32 s{S_T0}, s{S_PX}, s{S_PM}")
    a(f"s_mul_i32 s{S_T1}, s{S_STEP}, 7168"); a(f"s_add_u32 s{S_T1}, s{S_T1}, {LY.MEM+7168}"); a("s_cmp_eq_u32 s44, 2"); a(f"s_cselect_b32 s{S_T0}, s{S_T1}, s{S_T0}")
    a(f"buffer_load_dword v18, v7, {W}, s{S_T0} offen sc1")
    a("s_waitcnt vmcnt(0)")
    if FUSED:
        lb=a.newlabel("L_br")
        a(f"s_cmp_eq_u32 s42, 0"); a("s_mov_b64 exec, 1"); a(f"s_cbranch_scc0 {lb}")
        a(f"buffer_store_dword v31, v9, {W}, s46 offen"); a(f"s_branch {lb}_e")
        a.label(lb); a(f"buffer_store_dword v31, v9, {W}, s46 offen sc1")
        a.label(lb+"_e"); a("s_mov_b64 exec, -1"); a("s_add_u32 s46, s46, 64")
    a(f"s_add_u32 s{S_BF}, s{S_BF}, {28*16384}"); a(f"s_add_u32 s{S_XS}, s{S_XS}, 28672"); a(f"s_add_u32 s{S_PX}, s{S_PX}, 8192"); a(f"s_add_u32 s{S_PM}, s{S_PM}, 2048")
    a(f"s_add_u32 s{S_STEP}, s{S_STEP}, 1"); a(f"s_cmp_lt_u32 s{S_STEP}, {nsteps}"); a("s_cbranch_scc1 L_pf")
    a("s_branch L_fin")
    a.label("L_relay")
    if not FUSED or not EXP.get('relay'):
        a("s_branch L_fin"); return
    a(f"s_mov_b32 s44, s{S_WAVE}")
    a("s_cmp_eq_u32 s44, 3"); a("s_cbranch_scc1 L_rmem")
    NCH=38
    a(f"s_mul_i32 s45, s44, {37*1024}"); a(f"s_add_u32 s{S_MF}, s45, {LY.MFL}"); a(f"s_add_u32 s{S_MST}, s45, {LY.MFRAG}")
    a(f"s_mov_b32 s{S_PC}, {LY.LFLAG}"); a(f"s_mov_b32 s{S_MC}, {LY.MCNT}")
    a("v_lshlrev_b32 v7, 2, v1"); a("v_min_u32 v7, 52, v7")
    a.label("L_rl")
    a(f"s_mov_b32 s{S_CNT}, 0")
    a.label("L_rl_w")
    a(f"buffer_load_dword v10, v7, {W}, s{S_PC} offen sc1"); a("s_waitcnt vmcnt(0)")
    a("v_cmp_eq_u32 vcc, 0, v10"); a("s_cbranch_vccz L_rl_go")
    a("s_sleep 2"); a(f"s_add_u32 s{S_CNT}, s{S_CNT}, 1"); a(f"s_cmp_lt_u32 s{S_CNT}, {POLL_MAX}"); a("s_cbranch_scc1 L_rl_w")
    a("s_branch L_fin")
    a.label("L_rl_go")
    a(f"s_mov_b32 s{S_T0}, s{S_MF}")
    for i in range(NCH):
        a(f"buffer_load_dwordx4 {vr(32+4*i,4)}, v6, {W}, s{S_T0} offen offset:{(i&3)*1024} sc1")
        if (i&3)==3: a(f"s_add_u32 s{S_T0}, s{S_T0}, 4096")
    a(f"s_mov_b32 s{S_T0}, s{S_MST}")
    for i in range(NCH):
        a(f"s_waitcnt vmcnt({NCH-1})")
        a(f"buffer_store_dwordx4 {vr(32+4*i,4)}, v6, {W}, s{S_T0} offen offset:{(i&3)*1024} sc1")
        if (i&3)==3: a(f"s_add_u32 s{S_T0}, s{S_T0}, 4096")
    a("s_waitcnt vmcnt(0)")
    a("s_mov_b64 exec, 1"); a(f"buffer_atomic_add v31, v9, {W}, s{S_MC} offen sc1"); a("s_mov_b64 exec, -1")
    a(f"s_add_u32 s{S_MF}, s{S_MF}, {28*4096}"); a(f"s_add_u32 s{S_MST}, s{S_MST}, {28*4096}"); a(f"s_add_u32 s{S_PC}, s{S_PC}, 64"); a(f"s_add_u32 s{S_MC}, s{S_MC}, 128")
    a(f"s_add_u32 s{S_STEP}, s{S_STEP}, 1"); a(f"s_cmp_lt_u32 s{S_STEP}, {nsteps}"); a("s_cbranch_scc1 L_rl")
    a("s_branch L_fin")
    a.label("L_rmem")
    a(f"s_mov_b32 s{S_MEMOFF}, {LY.MEM+7168}"); a(f"s_mov_b32 s{S_MX}, {LY.MEMX+7168}"); a(f"s_mov_b32 s{S_STEP}, 1")
    a.label("L_rm")
    a(f"s_add_u32 s{S_T1}, s{S_MEMOFF}, 4096")
    loads=[f"buffer_load_dwordx4 {vr(32+4*k,4)}, v6, {W}, s{S_MEMOFF if k<4 else S_T1} offen offset:{(k&3)*1024} sc1" for k in range(7)]
    poll_loop(a, loads, range(32,60), 60, 61, 2)
    a(f"s_add_u32 s{S_T1}, s{S_MX}, 4096")
    for k in range(7): a(f"buffer_store_dwordx4 {vr(32+4*k,4)}, v6, {W}, s{S_MX if k<4 else S_T1} offen offset:{(k&3)*1024} sc1")
    a(f"s_add_u32 s{S_MEMOFF}, s{S_MEMOFF}, 7168"); a(f"s_add_u32 s{S_MX}, s{S_MX}, 7168")
    a(f"s_add_u32 s{S_STEP}, s{S_STEP}, 1"); a(f"s_cmp_lt_u32 s{S_STEP}, 64"); a("s_cbranch_scc0 L_fin")
    a(f"s_cmp_eq_u32 s{S_FAIL}, 0"); a("s_cbranch_scc1 L_rm")
    a("s_branch L_fin")

def gen_rec(timing=True, sleep=0, target_xcc=0):
    a=Asm()
    common_prologue(a, target_xcc, 32 if EXP.get('pf') else 30)
    a(f"s_cmp_ge_u32 s{S_RANK}, 30"); a("s_cbranch_scc1 L_pref")
    a(f"s_cmp_ge_u32 s{S_RANK}, 16"); a("s_cbranch_scc1 L_value")
    global LANEREG
    LANEREG={0:2,1:1,6:0}
    score_role(a, timing, sleep)
    a.label("L_value")
    LANEREG={4:12,7:13,0:14,3:15}
    value_role(a, timing, sleep)
    a.label("L_pref")
    a("s_memtime s[40:41]")
    prefetch_role(a, ahead=EXP.get('ahead',3))
    a.label("L_fin")
    stamp_out(a)
    if timing:
        a("s_memtime s[42:43]"); a("s_waitcnt lgkmcnt(0)")
        a("s_sub_u32 s42, s42, s40")
        a("v_mov_b32 v20, s42"); a(f"v_mov_b32 v21, s{S_FAIL}")
        a(f"s_lshl_b32 s44, s{S_RANK}, 3"); a("s_add_u32 s44, s44, 8"); a("v_mov_b32 v22, s44")
        a("v_cmp_eq_u32 vcc, 0, v4"); a(f"s_and_saveexec_b64 s[{S_EX}:{S_EX+1}], vcc")
        a(f"buffer_store_dwordx2 v[20:21], v22, s[{S_DBG}:{S_DBG+3}], 0 offen")
        a(f"s_mov_b64 exec, s[{S_EX}:{S_EX+1}]")
    a("s_waitcnt vmcnt(0)")
    a.label("L_exit")
    return a.text()
if __name__=="__main__":
    t=gen_rec()
    open("rec_body.s","w").write(t); print(len(t.splitlines()))
```

```python
from common_k import *
from k0 import ln_stats, f2u
NEGINF=0xff800000
X1_LDS=28672
def x1_task(a, WS, ld="", st="", fused=False):
    W=S4(WS)
    a("v_and_b32 v2, 15, v1"); a("v_lshrrev_b32 v3, 4, v1")
    a("v_lshlrev_b32 v4, 4, v1")
    a("s_mul_i32 s23, s20, 28672"); a(f"s_add_u32 s23, s23, {LY.HFRAG}"); a("s_mul_i32 s24, s22, 7168"); a("s_add_u32 s23, s23, s24")
    a("s_mov_b32 m0, s24"); a("s_nop 0")
    for i in range(4): a(f"buffer_load_dwordx4 v4, {W}, s23 offen offset:{i*1024} lds")
    a("s_add_u32 s24, s24, 4096"); a("s_add_u32 s23, s23, 4096"); a("s_mov_b32 m0, s24"); a("s_nop 0")
    for i in range(3): a(f"buffer_load_dwordx4 v4, {W}, s23 offen offset:{i*1024} lds")
    if fused:
        a("v_mov_b32 v11, 0"); a("s_lshl_b32 s34, s20, 7"); a(f"s_add_u32 s34, s34, {LY.PCNT}")
        wait_cnt(a, W, 34, 112, 12, 11, 35, 36)
    a("s_lshl_b32 s25, s21, 2"); a("s_add_u32 s25, s25, s22")
    a("s_lshl_b32 s26, s20, 4"); a("s_add_u32 s26, s26, s25"); a("s_mul_i32 s26, s26, 28672"); a(f"s_add_u32 s26, s26, {LY.TFRAG}")
    TF=32
    for tt in range(2):
        a(f"s_add_u32 s27, s26, {tt*1024}")
        for ks in range(14):
            a(f"buffer_load_dwordx4 {vr(TF+56*tt+4*ks,4)}, v4, {W}, s27 offen offset:{(ks&1)*2048} {ld}")
            if ks&1: a("s_add_u32 s27, s27, 4096")
    MF=144
    a("v_lshlrev_b32 v5, 7, v3"); a("v_and_b32 v6, 7, v2"); a("v_lshlrev_b32 v6, 4, v6"); a("v_add_u32 v5, v5, v6")
    a("s_mul_i32 s28, s20, 7168"); a(f"s_add_u32 s28, s28, {LY.MEMX if fused else LY.MEM}")
    a("s_add_u32 s29, s28, 4096")
    memloads=[f"buffer_load_dwordx4 {vr(MF+4*ks,4)}, v5, {W}, s{28 if ks<8 else 29} offen offset:{(ks*512)%4096} sc1" for ks in range(14)]
    a("v_lshrrev_b32 v7, 2, v2"); a("v_lshlrev_b32 v7, 3, v7"); a("v_and_b32 v8, 3, v2"); a("v_add_u32 v7, v7, v8"); a("v_lshlrev_b32 v7, 4, v7")
    a("v_lshlrev_b32 v8, 9, v3"); a("v_add_u32 v7, v7, v8")
    a("v_lshlrev_b32 v9, 3, v3"); a("v_sub_u32 v9, v9, v2")
    ACC=200
    for r in range(ACC,ACC+24): a(f"v_mov_b32 v{r}, 0")
    a("s_waitcnt vmcnt(0)"); a("s_barrier")
    KB=224
    seq=[(T,ks) for ks in range(14) for T in range(2)]
    def kread(i):
        T,ks=seq[i]; a(f"ds_read_b128 {vr(KB+4*(i%3),4)}, v7 offset:{ks*2048+T*64}")
    kread(0); kread(1)
    for i,(T,ks) in enumerate(seq):
        if i+2<len(seq): kread(i+2)
        a(f"s_waitcnt lgkmcnt({min(2,len(seq)-1-i)})")
        for tt in range(2):
            a(f"v_mfma_f32_16x16x32_bf16 {vr(ACC+12*tt+4*T,4)}, {vr(KB+4*(i%3),4)}, {vr(TF+56*tt+4*ks,4)}, {vr(ACC+12*tt+4*T,4)}")
    poll_data(a, memloads, range(MF,MF+56), 12, 13, 36, sleep=8)
    for ks in range(14):
        for tt in range(2):
            a(f"v_mfma_f32_16x16x32_bf16 {vr(ACC+12*tt+8,4)}, {vr(MF+4*ks,4)}, {vr(TF+56*tt+4*ks,4)}, {vr(ACC+12*tt+8,4)}")
    a.nop(10)
    a(f"v_mov_b32 v10, {NEGINF:#x}")
    a("s_lshl_b32 s30, s20, 1")
    for tt in range(2):
        S=ACC+12*tt
        for T in range(2):
            for i in range(4):
                a(f"v_cmp_lt_i32 vcc, {16*tt-4*T-i}, v9"); a("s_nop 1"); a(f"v_cndmask_b32 v{S+4*T+i}, v{S+4*T+i}, v10, vcc")
        a("v_cmp_lt_u32 vcc, 1, v3"); a("s_nop 1")
        for i in range(4): a(f"v_cndmask_b32 v{S+8+i}, v{S+8+i}, v10, vcc")
        m=236; t=237
        a(f"v_max3_f32 v{m}, v{S}, v{S+1}, v{S+2}")
        for k in range(3,11,2): a(f"v_max3_f32 v{m}, v{m}, v{S+k}, v{S+k+1}")
        a(f"v_max_f32 v{m}, v{m}, v{S+11}")
        xred_g(a,"v_max_f32",m,t)
        for k in range(12): a(f"v_sub_f32 v{S+k}, v{S+k}, v{m}")
        for k in range(12): a(f"v_exp_f32 v{S+k}, v{S+k}")
        a("s_nop 0")
        a(f"v_add_f32 v{m}, v{S}, v{S+1}")
        for k in range(2,12): a(f"v_add_f32 v{m}, v{m}, v{S+k}")
        xred_g(a,"v_add_f32",m,t)
        a(f"v_rcp_f32 v{m}, v{m}"); a("s_nop 0")
        for k in range(12): a(f"v_mul_f32 v{S+k}, v{S+k}, v{m}")
        O=240+ 0
        for z in range(6): a(f"v_cvt_pk_bf16_f32 v{O+z}, v{S+2*z}, v{S+2*z+1}")
        a(f"s_add_u32 s31, s30, {tt}"); a("s_lshl_b32 s32, s31, 4"); a("s_add_u32 s32, s32, s25"); a("s_lshl_b32 s32, s32, 10"); a(f"s_add_u32 s32, s32, {LY.PFX}")
        a(f"buffer_store_dwordx4 {vr(O,4)}, v4, {W}, s32 offen {st}")
        a("s_lshl_b32 s32, s31, 2"); a("s_add_u32 s32, s32, s21"); a("s_lshl_b32 s32, s32, 10"); a(f"s_add_u32 s32, s32, {LY.PFM}")
        a("s_and_b32 s33, s22, 1"); a("s_lshl_b32 s33, s33, 9"); a("s_add_u32 s32, s32, s33"); a("s_lshr_b32 s33, s22, 1"); a("s_lshl_b32 s33, s33, 3"); a("s_add_u32 s32, s32, s33")
        a("s_mov_b32 exec_hi, 0")
        a(f"buffer_store_dwordx2 {vr(O+4,2)}, v4, {W}, s32 offen {st}")
        a("s_mov_b32 exec_hi, -1")
        a("s_nop 1")
def gen_x1():
    a=Asm()
    a("s_cmp_lt_u32 s2, 256"); a("s_cbranch_scc0 L_end")
    a("v_and_b32 v1, 63, v0"); a("v_lshrrev_b32 v2, 6, v0"); a("s_nop 0"); a("v_readfirstlane_b32 s22, v2")
    srds(a,[(16,'ws')])
    a("s_lshr_b32 s20, s2, 2"); a("s_and_b32 s21, s2, 3")
    x1_task(a,16)
    a.label("L_end"); a("s_waitcnt vmcnt(0)")
    return a.text()

X2_LDS=40960
def x2_task(a, WS, XS, ld="", st="", fused=False):
    W=S4(WS)
    a("v_and_b32 v2, 15, v1"); a("v_lshrrev_b32 v3, 4, v1"); a("v_lshlrev_b32 v4, 4, v1")
    if not fused:
        a("s_lshl_b32 s23, s20, 15"); a(f"s_add_u32 s23, s23, {LY.PFX}"); a("s_lshl_b32 s24, s22, 13"); a("s_add_u32 s23, s23, s24")
        for half in range(2):
            a("s_mov_b32 m0, s24"); a("s_nop 0")
            for i in range(4): a(f"buffer_load_dwordx4 v4, {W}, s23 offen offset:{i*1024} lds {ld}")
            a("s_add_u32 s24, s24, 4096"); a("s_add_u32 s23, s23, 4096")
        a("s_lshl_b32 s23, s20, 13"); a(f"s_add_u32 s23, s23, {LY.PFM}"); a("s_lshl_b32 s24, s22, 11"); a("s_add_u32 s23, s23, s24"); a("s_add_u32 s24, s24, 32768")
        a("s_mov_b32 m0, s24"); a("s_nop 0")
        for i in range(2): a(f"buffer_load_dwordx4 v4, {W}, s23 offen offset:{i*1024} lds {ld}")
    a("s_lshl_b32 s25, s21, 2"); a("s_add_u32 s25, s25, s22")
    a("s_mul_i32 s26, s20, 28"); a("s_add_u32 s26, s26, s25")
    a("s_lshl_b32 s27, s26, 14"); a(f"s_add_u32 s27, s27, {LY.BFRAG}")
    AF=32
    if fused:
        a("v_mov_b32 v11, 0"); a("s_lshl_b32 s34, s20, 7"); a(f"s_add_u32 s34, s34, {LY.PCNT}")
        wait_cnt(a, W, 34, 112, 12, 11, 35, 36)
    for h in range(16):
        a(f"buffer_load_dwordx4 {vr(AF+4*h,4)}, v4, {W}, s27 offen offset:{(h&3)*1024} {ld}")
        if (h&3)==3: a("s_add_u32 s27, s27, 4096")
    def mloads():
        a("s_lshl_b32 s27, s26, 12"); a(f"s_add_u32 s27, s27, {LY.MFRAG}")
        for w in range(4): a(f"buffer_load_dwordx4 {vr(AF+64+4*w,4)}, v4, {W}, s27 offen offset:{w*1024} {ld}")
    if not fused: mloads()
    a("v_mul_u32_u24 v5, 896, v2"); a("v_lshlrev_b32 v6, 3, v3"); a("v_add_u32 v5, v5, v6")
    a("s_mul_i32 s28, s20, 28672"); a("s_lshl_b32 s29, s25, 5"); a("s_add_u32 s28, s28, s29")
    a(f"buffer_load_dwordx2 v[120:121], v5, {S4(XS)}, s28 offen"); a(f"s_add_u32 s28, s28, {16*896}"); a(f"buffer_load_dwordx2 v[122:123], v5, {S4(XS)}, s28 offen")
    a("v_lshlrev_b32 v6, 4, v3"); a("s_lshl_b32 s29, s25, 6"); a(f"s_add_u32 s29, s29, {LY.MOD+2*448*4}")
    a(f"buffer_load_dwordx4 v[124:127], v6, {W}, s29 offen")
    ACC=112
    for r in range(ACC,ACC+8): a(f"v_mov_b32 v{r}, 0")
    if fused:
        a("v_lshlrev_b32 v10, 4, v0")
        a("s_lshl_b32 s31, s20, 15"); a(f"s_add_u32 s31, s31, {LY.PFX}"); a("s_add_u32 s32, s31, 16384")
        a("s_lshl_b32 s33, s20, 13"); a(f"s_add_u32 s33, s33, {LY.PFM}")
        PR=148
        a("v_add_u32 v13, 4096, v10"); a("v_add_u32 v14, 8192, v10"); a("v_add_u32 v15, 12288, v10")
        loads=[]
        for k in range(8): loads.append(f"buffer_load_dwordx4 {vr(PR+4*k,4)}, v{[10,13,14,15][k&3]}, {W}, s{31 if k<4 else 32} offen sc1")
        for k in range(2): loads.append(f"buffer_load_dwordx4 {vr(PR+32+4*k,4)}, v{[10,13][k]}, {W}, s33 offen sc1")
        poll_data(a, loads, range(PR,PR+40), 16, 17, 36, sleep=8)
        for k in range(10): a(f"ds_write_b128 v10, {vr(PR+4*k,4)} offset:{k*4096}")
        a("s_lshl_b32 s34, s20, 7"); a(f"s_add_u32 s34, s34, {LY.MCNT}")
        wait_cnt(a, W, 34, 14, 12, 11, 35, 36)
        mloads()
        a("s_waitcnt lgkmcnt(0)")
    a("s_waitcnt vmcnt(0)"); a("s_barrier")
    PB=128
    seq=[(tt,k) for k in range(20) for tt in range(2)]
    def pread(i):
        tt,k=seq[i]; off = tt*16384+k*1024 if k<16 else 32768+tt*4096+(k-16)*1024
        a(f"ds_read_b128 {vr(PB+4*(i%4),4)}, v4 offset:{off}")
    for i in range(3): pread(i)
    for i,(tt,k) in enumerate(seq):
        if i+3<len(seq): pread(i+3)
        a(f"s_waitcnt lgkmcnt({min(3,len(seq)-1-i)})")
        a(f"v_mfma_f32_16x16x32_bf16 {vr(ACC+4*tt,4)}, {vr(AF+4*k,4)}, {vr(PB+4*(i%4),4)}, {vr(ACC+4*tt,4)}")
    a.nop(10)
    a("v_mul_u32_u24 v7, 1792, v2"); a("v_lshlrev_b32 v8, 4, v3"); a("v_add_u32 v7, v7, v8")
    a(f"s_mul_i32 s30, s20, {32*1792}"); a("s_lshl_b32 s29, s25, 6"); a("s_add_u32 s30, s30, s29"); a(f"s_add_u32 s30, s30, {LY.X1}")
    for tt in range(2):
        xr=120+2*tt
        unpack_lo(a,144,xr); unpack_hi(a,145,xr); unpack_lo(a,146,xr+1); unpack_hi(a,147,xr+1)
        for i in range(4): a(f"v_fmac_f32 v{144+i}, v{124+i}, v{ACC+4*tt+i}")
        a(f"buffer_store_dwordx4 v[144:147], v7, {W}, s30 offen {st}")
        a(f"s_add_u32 s30, s30, {16*1792}"); a("s_nop 1")
def gen_x2():
    a=Asm()
    a("s_cmp_lt_u32 s2, 448"); a("s_cbranch_scc0 L_end")
    a("v_and_b32 v1, 63, v0"); a("v_lshrrev_b32 v2, 6, v0"); a("s_nop 0"); a("v_readfirstlane_b32 s22, v2")
    srds(a,[(16,'ws'),(12,'x')])
    a("s_mul_i32 s20, s2, 9363"); a("s_lshr_b32 s20, s20, 16"); a("s_mul_i32 s21, s20, 7"); a("s_sub_u32 s21, s2, s21")
    x2_task(a,16,12)
    a.label("L_end"); a("s_waitcnt vmcnt(0)")
    return a.text()

def x3_task(a, WS, OUT, WR, ld=""):
    W=S4(WS)
    a("v_and_b32 v3, 7, v1"); a("v_lshrrev_b32 v4, 3, v1")
    a("s_lshl_b32 s23, s22, 3"); a("v_add_u32 v5, s23, v3")
    a("v_mul_u32_u24 v6, 1792, v5"); a("v_lshlrev_b32 v7, 5, v4"); a("v_add_u32 v6, v6, v7")
    a(f"s_mul_i32 s24, s20, {32*1792}"); a(f"s_add_u32 s24, s24, {LY.X1}")
    X=64; X0=8
    for i in range(7):
        a(f"buffer_load_dwordx4 {vr(X+8*i,4)}, v6, {W}, s24 offen offset:{256*i} {ld}"); a(f"buffer_load_dwordx4 {vr(X+8*i+4,4)}, v6, {W}, s24 offen offset:{256*i+16} {ld}")
    a("v_lshlrev_b32 v8, 5, v4")
    SB=120; CB=176; GB=232
    a(f"s_mov_b32 s25, {LY.MOD+3*448*4}"); a(f"s_mov_b32 s26, {LY.MOD+4*448*4}"); a(f"s_mov_b32 s27, {LY.MOD+5*448*4}")
    for i in range(7):
        a(f"buffer_load_dwordx4 {vr(SB+8*i,4)}, v8, {W}, s25 offen offset:{256*i}"); a(f"buffer_load_dwordx4 {vr(SB+8*i+4,4)}, v8, {W}, s25 offen offset:{256*i+16}")
        a(f"buffer_load_dwordx4 {vr(CB+8*i,4)}, v8, {W}, s26 offen offset:{256*i}"); a(f"buffer_load_dwordx4 {vr(CB+8*i+4,4)}, v8, {W}, s26 offen offset:{256*i+16}")
    a("v_lshlrev_b32 v9, 4, v4")
    WRr=32
    for i in range(7): a(f"buffer_load_dwordx4 {vr(WRr+4*i,4)}, v9, {S4(WR)}, 0 offen offset:{128*i}")
    a("s_waitcnt vmcnt(35)")
    ln_stats(a,X,56,10,12,13)
    a("s_waitcnt vmcnt(0)")
    for k in range(56):
        a(f"v_add_f32 v{CB+k}, 1.0, v{CB+k}"); a(f"v_mul_f32 v{CB+k}, v{CB+k}, v11"); a(f"v_fmac_f32 v{SB+k}, v{X+k}, v{CB+k}")
    for i in range(7):
        a(f"buffer_load_dwordx4 {vr(CB+8*i,4)}, v8, {W}, s27 offen offset:{256*i}"); a(f"buffer_load_dwordx4 {vr(CB+8*i+4,4)}, v8, {W}, s27 offen offset:{256*i+16}")
    for k in range(0,56,2):
        a(f"v_cvt_pk_bf16_f32 v14, v{SB+k}, v{SB+k+1}"); unpack_lo(a,SB+k,14); unpack_hi(a,SB+k+1,14)
    a("v_mul_u32_u24 v17, 896, v5"); a("v_lshlrev_b32 v18, 4, v4"); a("v_add_u32 v17, v17, v18"); a("s_mul_i32 s29, s20, 28672"); a(f"s_add_u32 s29, s29, {LY.H2}")
    for i in range(7):
        for q in range(4): a(f"v_cvt_pk_bf16_f32 v{20+q}, v{SB+8*i+2*q}, v{SB+8*i+2*q+1}")
        a(f"buffer_store_dwordx4 v[20:23], v17, {W}, s29 offen offset:{128*i}"); a("s_nop 1")
    a("v_mov_b32 v15, 0")
    for i in range(7):
        for q in range(4):
            unpack_lo(a,14,WRr+4*i+q); a(f"v_fmac_f32 v15, v14, v{SB+8*i+2*q}"); unpack_hi(a,14,WRr+4*i+q); a(f"v_fmac_f32 v15, v14, v{SB+8*i+2*q+1}")
    xred(a,"v_add_f32",15,12)
    a("v_lshlrev_b32 v16, 2, v5"); a("s_lshl_b32 s28, s20, 7"); a(f"s_add_u32 s28, s28, {LY.R}")
    a("s_mov_b64 exec, 0xff"); a(f"buffer_store_dword v15, v16, {W}, s28 offen"); a("s_mov_b64 exec, -1")
    a("s_waitcnt vmcnt(8)")
    for k in range(56):
        a(f"v_add_f32 v{X+k}, v{X+k}, v10"); a(f"v_fmac_f32 v{X+k}, v{CB+k}, v{SB+k}")
    a("v_mul_u32_u24 v6, 896, v5"); a("v_lshlrev_b32 v7, 4, v4"); a("v_add_u32 v6, v6, v7"); a("s_mul_i32 s24, s20, 28672")
    for i in range(7):
        for q in range(4): a(f"v_cvt_pk_bf16_f32 v{32+4*i+q}, v{X+8*i+2*q}, v{X+8*i+2*q+1}")
        a(f"buffer_store_dwordx4 {vr(32+4*i,4)}, v6, {S4(OUT)}, s24 offen offset:{128*i}")
def gen_x3():
    a=Asm()
    a("s_cmp_lt_u32 s2, 64"); a("s_cbranch_scc0 L_end")
    a("v_and_b32 v1, 63, v0"); a("v_lshrrev_b32 v2, 6, v0"); a("s_nop 0"); a("v_readfirstlane_b32 s22, v2")
    srds(a,[(16,'ws'),(12,'out'),(8,'wr')])
    a("s_mov_b32 s20, s2")
    x3_task(a,16,12,8)
    a.label("L_end"); a("s_waitcnt vmcnt(0)")
    return a.text()
if __name__=="__main__":
    print(len(gen_x1().splitlines()),len(gen_x2().splitlines()),len(gen_x3().splitlines()))
```

```python
from tutil import *
import re, k0, k0n, k1, rec, xf, tail, mainK, layout as LY
def uniq(body,tag): return re.sub(r"\bL_(\w+)", lambda m: f"L{tag}_{m.group(1)}", body)
def kernels():
    rec.STAMP=('lane' if os.environ.get('STAMP') else False); rec.EXP={'pf':1,'bin':1,'bpos':10,'bstep':4,'p2B':1,'gapB':3,'preB':4,'preA':14}
    if os.environ.get('EXP'): rec.EXP.update(eval(os.environ['EXP'])); rec.EXP={k:v for k,v in rec.EXP.items() if v}
    return [("k0_kernel",uniq(k0n.gen_k0(),"a"),256,k0n.K0_LDS,256,256),
            ("main_kernel",uniq(mainK.gen_main(),"m"),256,rec.LDS_BYTES,512,256),
            ("k5_kernel",uniq(tail.gen_k5(),"h"),112,tail.K5_LDS,256,256),
            ("k6_kernel",uniq(tail.gen_k6(),"i"),56,tail.K6_LDS,256,256)]
HDR=open("adaLN_cond__memory_aug_recurrent_mem_tr__moe_arch_mod__prompt.s.ref").read().split("; Override launch")[0]
def make(): return HDR+mkfile(kernels())
if __name__=="__main__":
    asm=make()
    if not on_gpu():
        check_local(asm,[k[0] for k in kernels()]); open("full2.s","w").write(asm); print(len(asm))
```

```python
from asmlib import *
import layout as LY
WS_BYTES = 268435456
KA = dict(x=0, mem0=8, Wq=16, Wk=24, Wv=32, Wo=40, seg=48, Bx=56, wr=64, wg=72, wu=80, wd=88, c=96, wmod=104, out=112, dbg=120, ws=128)
SZ = dict(x=1835008, mem0=7168, Wq=3670016, Wk=3670016, Wv=3670016, Wo=3670016, wr=896, wg=1605632, wu=1605632, wd=1605632, c=896, wmod=2408448, out=1835008, dbg=256, ws=WS_BYTES)
def load_srd(a, d, name, tmp):
    a(f"s_load_dwordx2 s[{tmp}:{tmp+1}], s[0:1], {KA[name]}")
def mk_srd(a, d, name, tmp):
    a(f"s_mov_b32 s{d}, s{tmp}"); a(f"s_and_b32 s{d+1}, s{tmp+1}, 0xffff"); a(f"s_mov_b32 s{d+2}, {SZ[name]}"); a(f"s_mov_b32 s{d+3}, 0x20000")
def srds(a, spec, tmp0=60):
    for i,(d,n) in enumerate(spec): load_srd(a,d,n,tmp0+2*i)
    a("s_waitcnt lgkmcnt(0)")
    for i,(d,n) in enumerate(spec): mk_srd(a,d,n,tmp0+2*i)
def S4(d): return f"s[{d}:{d+3}]"
def xred(a, op, r, t):
    a("s_nop 1"); a(f"{op}_dpp v{r}, v{r}, v{r} row_ror:8 row_mask:0xf bank_mask:0xf")
    a(f"v_mov_b32 v{t}, v{r}"); a("s_nop 1"); a(f"v_permlane16_swap_b32 v{r}, v{t}"); a(f"{op} v{r}, v{r}, v{t}")
    a(f"v_mov_b32 v{t}, v{r}"); a("s_nop 1"); a(f"v_permlane32_swap_b32 v{r}, v{t}"); a(f"{op} v{r}, v{r}, v{t}")
def xred_g(a, op, r, t):
    a(f"v_mov_b32 v{t}, v{r}"); a("s_nop 1"); a(f"v_permlane16_swap_b32 v{r}, v{t}"); a(f"{op} v{r}, v{r}, v{t}")
    a(f"v_mov_b32 v{t}, v{r}"); a("s_nop 1"); a(f"v_permlane32_swap_b32 v{r}, v{t}"); a(f"{op} v{r}, v{r}, v{t}")
def unpack_lo(a, dst, src): a(f"v_lshlrev_b32 v{dst}, 16, v{src}")
def unpack_hi(a, dst, src): a(f"v_and_b32 v{dst}, 0xffff0000, v{src}")
POLL_MAX=400000
def wait_cnt(a, W, soff, target, v, vz, st, sc, sleep=8):
    lp=a.newlabel("L_wc")
    a(f"s_mov_b32 s{sc}, 0")
    a.label(lp)
    a(f"buffer_load_dword v{v}, v{vz}, {W}, s{soff} offen sc1"); a("s_waitcnt vmcnt(0)"); a(f"v_readfirstlane_b32 s{st}, v{v}"); a("s_nop 3")
    a(f"s_cmp_ge_u32 s{st}, {target}"); a(f"s_cbranch_scc1 {lp}_ok")
    a(f"s_sleep {sleep}"); a(f"s_add_u32 s{sc}, s{sc}, 1"); a(f"s_cmp_lt_u32 s{sc}, {POLL_MAX}"); a(f"s_cbranch_scc1 {lp}")
    a.label(lp+"_ok")
def chk_poison(a, regs, t0, t1):
    regs=list(regs)
    a(f"v_max3_u32 v{t0}, v{regs[0]}, v{regs[1]}, v{regs[2]}")
    rest=regs[3:]
    if len(rest)>=3:
        a(f"v_max3_u32 v{t1}, v{rest[0]}, v{rest[1]}, v{rest[2]}"); rest=rest[3:]
        cur=[t0,t1]; k=0
        while len(rest)>=2:
            a(f"v_max3_u32 v{cur[k]}, v{cur[k]}, v{rest[0]}, v{rest[1]}"); rest=rest[2:]; k^=1
        if rest: a(f"v_max3_u32 v{t0}, v{t0}, v{t1}, v{rest[0]}")
        else: a(f"v_max_u32 v{t0}, v{t0}, v{t1}")
    else:
        for r in rest: a(f"v_max_u32 v{t0}, v{t0}, v{r}")
    a(f"v_cmp_eq_u32 vcc, -1, v{t0}")
def poll_data(a, loads, regs, t0, t1, sc, sleep=8):
    lab=a.newlabel("L_pd")
    a(f"s_mov_b32 s{sc}, 0")
    a.label(lab)
    for l in loads: a(l)
    a("s_waitcnt vmcnt(0)")
    chk_poison(a, regs, t0, t1)
    a(f"s_cbranch_vccz {lab}_ok")
    a(f"s_sleep {sleep}"); a(f"s_add_u32 s{sc}, s{sc}, 1"); a(f"s_cmp_lt_u32 s{sc}, {POLL_MAX}"); a(f"s_cbranch_scc1 {lab}")
    a.label(lab+"_ok")

import os
def wst(a,k):
    if os.environ.get('STAMP'): a(f"s_memrealtime s[{80+2*k}:{81+2*k}]"); a("s_waitcnt lgkmcnt(0)")

NONCE=False
S_N=97
def wait_flags(a, W, soff, nwords, vx, vy, lanesrc, sc, sleep=4, stride=None):
    lab=a.newlabel("L_wf")
    per = 1 if nwords<=64 else (2 if nwords<=128 else 4)
    nl=(nwords+per-1)//per
    a(lanesrc); a(f"v_min_u32 v{vx}, {nl-1}, v{vx}"); a(f"v_lshlrev_b32 v{vx}, {stride if stride else (2 if per==1 else (3 if per==2 else 4))}, v{vx}")
    a(f"s_mov_b32 s{sc}, 0")
    a.label(lab)
    op={1:"buffer_load_dword",2:"buffer_load_dwordx2",4:"buffer_load_dwordx4"}[per]
    a(f"{op} {vr(vy,per)}, v{vx}, {W}, s{soff} offen sc1"); a("s_waitcnt vmcnt(0)")
    for i in range(per): a(f"v_xor_b32 v{vy+i}, s{S_N}, v{vy+i}")
    for i in range(1,per): a(f"v_or_b32 v{vy}, v{vy}, v{vy+i}")
    a(f"v_cmp_ne_u32 vcc, 0, v{vy}"); a(f"s_cbranch_vccz {lab}_ok")
    a(f"s_sleep {sleep}"); a(f"s_add_u32 s{sc}, s{sc}, 1"); a(f"s_cmp_lt_u32 s{sc}, {POLL_MAX}"); a(f"s_cbranch_scc1 {lab}")
    a.label(lab+"_ok")
def set_flag(a, W, soff, vd, vz):
    a(f"v_mov_b32 v{vd}, s{S_N}"); a(f"v_mov_b32 v{vz}, 0"); a("s_mov_b64 exec, 1")
    a(f"buffer_store_dword v{vd}, v{vz}, {W}, s{soff} offen sc1"); a("s_mov_b64 exec, -1")
def get_nonce(a, DBG, v0_, sc, st):
    lab=a.newlabel("L_gn")
    a(f"v_mov_b32 v{v0_+2}, 0"); a(f"s_mov_b32 s{sc}, 0")
    a.label(lab)
    a(f"buffer_load_dwordx2 {vr(v0_,2)}, v{v0_+2}, {DBG}, 0 offen sc1"); a("s_waitcnt vmcnt(0)")
    a(f"v_readfirstlane_b32 s{st}, v{v0_}"); a(f"v_readfirstlane_b32 s{S_N}, v{v0_+1}"); a("s_nop 3")
    a(f"s_and_b32 s{st+1}, s{st}, s{S_N}"); a(f"s_and_b32 s{st+1}, s{st+1}, 0x80808080"); a(f"s_cmp_eq_u32 s{st+1}, 0x80808080"); a(f"s_cbranch_scc1 {lab}_ok")
    a("s_sleep 1"); a(f"s_add_u32 s{sc}, s{sc}, 1"); a(f"s_cmp_lt_u32 s{sc}, {POLL_MAX}"); a(f"s_cbranch_scc1 {lab}")
    a.label(lab+"_ok")
    a(f"s_lshr_b32 s{st}, s{st}, 3"); a(f"s_and_b32 s{st}, s{st}, 0x0f0f0f0f"); a(f"s_lshl_b32 s{S_N}, s{S_N}, 1"); a(f"s_and_b32 s{S_N}, s{S_N}, 0xf0f0f0f0")
    a(f"s_or_b32 s{S_N}, s{S_N}, s{st}"); a(f"s_or_b32 s{S_N}, s{S_N}, 0x100"); a(f"s_and_b32 s{S_N}, s{S_N}, 0xfffffdff")
```

```python
import os
from common_k import *
from k0 import f2u, SC, ln_stats
import layout as LY
LA=0; LW=114688
L_MODS=LW+4*10240
K0_LDS=L_MODS+8192
assert K0_LDS<=163840, K0_LDS
PITCH=80
def ln_job(a, W, XS, DBG, nmod, sseg, stok, st=''):
    a("v_and_b32 v3, 7, v1"); a("v_lshrrev_b32 v4, 3, v1")
    a(f"s_lshl_b32 s28, s{stok}, 3"); a("v_add_u32 v5, s28, v3")
    a("v_mul_u32_u24 v6, 896, v5"); a("v_lshlrev_b32 v7, 4, v4"); a("v_add_u32 v6, v6, v7")
    a(f"s_mul_i32 s29, s{sseg}, 28672")
    for i in range(7): a(f"buffer_load_dwordx4 {vr(32+4*i,4)}, v6, {S4(XS)}, s29 offen offset:{128*i}")
    X=64
    a("s_waitcnt vmcnt(0)")
    for i in range(7):
        for q in range(4): unpack_lo(a,X+8*i+2*q,32+4*i+q); unpack_hi(a,X+8*i+2*q+1,32+4*i+q)
    ln_stats(a,X,56,10,12,13)
    for k in range(56):
        a(f"v_mul_f32 v{X+k}, v{X+k}, v11"); a(f"v_fma_f32 v{X+k}, v{X+k}, v{192+k}, v{128+k}")
    for i in range(7):
        for q in range(4): a(f"v_cvt_pk_bf16_f32 v{32+4*i+q}, v{X+8*i+2*q}, v{X+8*i+2*q+1}")
    a("v_lshlrev_b32 v14, 9, v4"); a("v_lshlrev_b32 v15, 4, v5"); a("v_add_u32 v14, v14, v15")
    a(f"s_add_u32 s33, s29, {LY.HFRAG}")
    for i in range(7): a(f"buffer_store_dwordx4 {vr(32+4*i,4)}, v14, {W}, s33 offen {st}"); a("s_add_u32 s33, s33, 4096")
    a("v_lshrrev_b32 v16, 2, v4"); a("v_lshlrev_b32 v16, 9, v16")
    a("v_bfe_u32 v17, v4, 1, 1"); a("v_lshlrev_b32 v17, 11, v17"); a("v_add_u32 v16, v16, v17")
    a("v_and_b32 v17, 1, v4"); a("v_lshlrev_b32 v17, 2, v17"); a("v_add_u32 v16, v16, v17"); a("v_add_u32 v16, v16, v15")
    a(f"s_add_u32 s33, s29, {LY.HPERM}")
    for i in range(7):
        for d in range(4): a(f"buffer_store_dword v{32+4*i+d}, v16, {W}, s33 offen offset:{(d>>1)*1024+(d&1)*8} {st}")
        a("s_add_u32 s33, s33, 4096")
    a("s_nop 1")

def gen_k0(nmod=42):
    a=Asm()
    k0_body(a,nmod,"",False)
    return a.text()
def k0_body(a,nmod,st,fused):
    ST=bool(os.environ.get('STAMP0'))
    SMAP={0:0,1:1,4:2,5:3,6:4,7:5}
    def stp(k):
        if ST and k in SMAP: a(f's_memrealtime s[{80+2*SMAP[k]}:{81+2*SMAP[k]}]'); a('s_waitcnt lgkmcnt(0)')
    stp(0)
    if not fused: a("s_cmp_lt_u32 s2, 256"); a("s_cbranch_scc0 L_end")
    a("v_and_b32 v1, 63, v0"); a("v_lshrrev_b32 v2, 6, v0"); a("s_nop 0"); a("v_readfirstlane_b32 s22, v2")
    for n,t in (('Wq',60),('Wk',62),('Wv',64),('Wo',66),('ws',68),('wmod',70),('c',72),('mem0',74),('x',76),('dbg',78)): a(f"s_load_dwordx2 s[{t}:{t+1}], s[0:1], {KA[n]}")
    a("s_waitcnt lgkmcnt(0)")
    mk_srd(a,16,'ws',68); mk_srd(a,44,'x',76); mk_srd(a,48,'dbg',78)
    W=S4(16)
    a("s_and_b32 s20, s2, 31"); a("s_lshr_b32 s21, s2, 5")
    a("s_and_b32 s23, s20, 15")
    a("s_and_b32 s26, s21, 1"); a("s_lshr_b32 s27, s21, 1")
    a("s_cmp_lt_u32 s20, 16"); a("s_cbranch_scc0 L_isU")
    mk_srd(a,8,'Wq',60); mk_srd(a,12,'Wk',62); a("s_branch L_srd")
    a.label("L_isU"); mk_srd(a,8,'Wv',64); mk_srd(a,12,'Wo',66)
    a.label("L_srd")
    BF=64; T=128
    a("s_lshl_b32 s24, s27, 2"); a("s_add_u32 s24, s24, s22")
    a("s_cmp_lt_u32 s24, 14"); a("s_cselect_b32 s25, 1, 0")
    a("v_and_b32 v20, 31, v1"); a("v_lshrrev_b32 v21, 5, v1")
    a("s_cmp_eq_u32 s25, 0"); a("s_cbranch_scc1 L_noB0")
    a("s_cmp_lt_u32 s20, 16"); a("s_cbranch_scc0 L_BU0")
    a("v_lshlrev_b32 v22, 13, v20"); a("v_lshlrev_b32 v23, 4, v21"); a("v_add_u32 v22, v22, v23")
    a("s_lshl_b32 s35, s24, 18"); a("s_lshl_b32 s33, s23, 9"); a("s_add_u32 s35, s35, s33")
    for kk in range(16): a(f"buffer_load_dwordx4 {vr(BF+4*kk,4)}, v22, {S4(12)}, s35 offen offset:{kk*32}")
    a("s_branch L_noB0")
    a.label("L_BU0")
    a("v_lshrrev_b32 v24, 2, v1"); a("v_and_b32 v25, 3, v1")
    a("v_mul_u32_u24 v26, 896, v24"); a("v_lshlrev_b32 v27, 4, v25"); a("v_add_u32 v26, v26, v27")
    a(f"v_mul_u32_u24 v28, {PITCH}, v24"); a("v_add_u32 v28, v28, v27"); a(f"s_mul_i32 s36, s22, 10240"); a(f"s_add_u32 s36, s36, {LW}"); a("v_add_u32 v28, s36, v28")
    a(f"s_mul_i32 s35, s23, {256*896}"); a("s_lshl_b32 s33, s24, 6"); a("s_add_u32 s35, s35, s33")
    for i in range(16):
        a(f"buffer_load_dwordx4 {vr(T+4*i,4)}, v26, {S4(12)}, s35 offen"); a(f"s_add_u32 s35, s35, {16*896}")
    a.label("L_noB0")
    a("v_lshrrev_b32 v3, 4, v1"); a("v_and_b32 v4, 15, v1")
    a("v_lshrrev_b32 v5, 1, v3"); a("v_lshlrev_b32 v5, 3, v5"); a("v_and_b32 v6, 1, v3"); a("v_add_u32 v5, v5, v6")
    a("s_and_b32 s28, s22, 1"); a("s_lshl_b32 s28, s28, 2"); a("s_lshr_b32 s29, s22, 1"); a("s_lshl_b32 s29, s29, 1"); a("s_add_u32 s28, s28, s29")
    a("v_add_u32 v5, s28, v5"); a("v_lshlrev_b32 v5, 13, v5")
    a("v_xor_b32 v6, v4, v3"); a("s_lshl_b32 s28, s22, 2"); a("v_xor_b32 v6, s28, v6"); a("v_lshlrev_b32 v6, 4, v6"); a("v_add_u32 v8, v5, v6")
    for i in range(7):
        a(f"s_mul_i32 s28, s26, 7"); a(f"s_add_u32 s28, s28, {i}")
        a("s_lshr_b32 s29, s28, 1"); a("s_lshl_b32 s29, s29, 6"); a("s_and_b32 s30, s28, 1"); a("s_lshl_b32 s30, s30, 4"); a("s_add_u32 s29, s29, s30")
        a("s_lshl_b32 s29, s29, 13"); a("s_lshl_b32 s30, s23, 9"); a(f"s_add_u32 s{52+i}, s29, s30")
    a("s_lshl_b32 s31, s22, 10")
    for half in range(2):
        for jj in range(14):
            a(f"s_add_u32 s32, s{52+(jj>>1)}, {(jj&1)*32*8192+half*256}")
            a(f"s_add_u32 s33, s31, {LA+half*57344+jj*4096}"); a("s_mov_b32 m0, s33"); a("s_nop 0")
            a(f"buffer_load_dwordx4 v8, {S4(8)}, s32 offen lds")
    stp(1)
    a("s_cmp_eq_u32 s25, 0"); a("s_cbranch_scc1 L_noB"); a("s_cmp_lt_u32 s20, 16"); a("s_cbranch_scc1 L_noB")
    a("v_and_b32 v24, 15, v1"); a("v_lshrrev_b32 v25, 2, v24"); a("v_lshlrev_b32 v27, 3, v21"); a("v_add_u32 v25, v25, v27")
    a(f"v_mul_u32_u24 v29, {PITCH}, v25"); a("v_and_b32 v25, 3, v24"); a("v_lshlrev_b32 v25, 3, v25"); a("v_add_u32 v29, v29, v25")
    a("v_bfe_u32 v25, v1, 4, 1"); a("v_lshlrev_b32 v25, 5, v25"); a("v_add_u32 v29, v29, v25"); a("v_add_u32 v29, s36, v29")
    for half in range(2):
        for i in range(8):
            a(f"s_waitcnt vmcnt({28+15-(half*8+i)})")
            a(f"ds_write_b128 v28, {vr(T+4*(half*8+i),4)} offset:{i*16*PITCH}")
        a("s_waitcnt lgkmcnt(0)")
        for k8 in range(8):
            kk=half*8+k8
            a(f"ds_read_b64_tr_b16 {vr(BF+4*kk,2)}, v29 offset:{16*k8*PITCH}"); a(f"ds_read_b64_tr_b16 {vr(BF+4*kk+2,2)}, v29 offset:{(16*k8+4)*PITCH}")
        a("s_waitcnt lgkmcnt(0)")
    a.label("L_noB")
    stp(2)
    a("s_cmp_ge_u32 s2, 192"); a("s_cbranch_scc0 L_nomod"); a(f"s_cmp_lt_u32 s2, {192+nmod}"); a("s_cbranch_scc0 L_nomod")
    mk_srd(a,56,'wmod',70); mk_srd(a,40,'c',72)
    a("s_sub_u32 s37, s2, 192")
    a("v_and_b32 v30, 7, v0"); a("v_lshrrev_b32 v31, 3, v0")
    a("v_mul_u32_u24 v32, 28, v31")
    M0=192
    for j in range(14): a(f"buffer_load_ushort v{M0+j}, v32, {S4(40)}, 0 offen offset:{2*j}")
    a("v_mul_u32_u24 v33, 14, v31"); a("s_movk_i32 s38, 5376"); a("v_mul_lo_u32 v33, v33, s38"); a("v_lshlrev_b32 v34, 4, v30"); a("v_add_u32 v33, v33, v34")
    a("s_lshl_b32 s39, s37, 7")
    MW=128
    for j in range(14):
        a(f"buffer_load_dwordx4 {vr(MW+4*j,4)}, v33, {S4(56)}, s39 offen"); a("s_add_u32 s39, s39, 5376")
    a("s_waitcnt vmcnt(14)")
    for j in range(14):
        r=M0+j
        a(f"v_lshlrev_b32 v{r}, 16, v{r}")
        a(f"v_mul_f32 v35, 0xbfb8aa3b, v{r}"); a("v_exp_f32 v35, v35"); a("s_nop 0"); a("v_add_f32 v35, 1.0, v35"); a("v_rcp_f32 v35, v35"); a("s_nop 0")
        a(f"v_mul_f32 v{r}, v{r}, v35"); a(f"v_cvt_pk_bf16_f32 v{r}, v{r}, v{r}"); a(f"v_lshlrev_b32 v{r}, 16, v{r}")
    for r in range(40,48): a(f"v_mov_b32 v{r}, 0")
    for j in range(14):
        a(f"s_waitcnt vmcnt({13-j})")
        for q in range(4):
            a(f"v_lshlrev_b32 v36, 16, v{MW+4*j+q}"); a(f"v_and_b32 v37, 0xffff0000, v{MW+4*j+q}")
            a(f"v_fmac_f32 v{40+2*q}, v36, v{M0+j}"); a(f"v_fmac_f32 v{41+2*q}, v37, v{M0+j}")
    for r in range(40,48): xred(a,"v_add_f32",r,48)
    a("v_lshlrev_b32 v49, 5, v30"); a("s_lshl_b32 s38, s22, 8"); a(f"s_add_u32 s38, s38, {L_MODS}"); a("v_add_u32 v49, s38, v49")
    a("s_mov_b64 exec, 0xff"); a("ds_write_b128 v49, v[40:43]"); a("ds_write_b128 v49, v[44:47] offset:16"); a("s_mov_b64 exec, -1")
    a("s_waitcnt lgkmcnt(0)"); a("s_barrier")
    a("s_cmp_eq_u32 s22, 3"); a("s_cbranch_scc0 L_modw")
    a("v_lshlrev_b32 v50, 2, v1"); a(f"v_add_u32 v51, {L_MODS}, v50")
    for w in range(4): a(f"ds_read_b32 v{52+w}, v51 offset:{w*256}")
    a("s_waitcnt lgkmcnt(0)"); a("v_add_f32 v52, v52, v53"); a("v_add_f32 v54, v54, v55"); a("v_add_f32 v52, v52, v54")
    a("v_cvt_pk_bf16_f32 v52, v52, v52"); a("v_lshlrev_b32 v52, 16, v52")
    a("s_lshl_b32 s38, s37, 8"); a(f"s_add_u32 s38, s38, {LY.MOD}")
    a(f"buffer_store_dword v52, v50, {W}, s38 offen sc1"); a("s_waitcnt vmcnt(0)")
    a("s_mov_b64 exec, 1"); a("v_mov_b32 v53, 1"); a("v_mov_b32 v54, 0"); a(f"buffer_atomic_add v53, v54, {S4(48)}, 0 offen offset:{76 if fused else 0} sc1"); a("s_mov_b64 exec, -1")
    a.label("L_modw")
    a.label("L_nomod")
    stp(3)
    ACC=128
    a("s_cmp_eq_u32 s25, 0"); a("s_cbranch_scc1 L_idle")
    for r in range(ACC,ACC+112): a(f"v_mov_b32 v{r}, 0")
    a("v_and_b32 v22, 15, v20"); a("v_lshlrev_b32 v23, 8, v20")
    for k8 in range(8):
        a(f"v_add_u32 v24, {2*k8}, v21"); a("v_xor_b32 v24, v24, v22"); a("v_lshlrev_b32 v24, 4, v24"); a(f"v_add_u32 v{32+k8}, v23, v24")
    a("s_waitcnt vmcnt(14)"); a("s_barrier")
    stp(4)
    AB=40
    for half in range(2):
        seq=[(k8,i) for k8 in range(8) for i in range(7)]
        def rd(n):
            k8,i=seq[n]; a(f"ds_read_b128 {vr(AB+4*(n%4),4)}, v{32+k8} offset:{i*8192}")
        if half==1:
            for k in range(8): a(f"v_add_u32 v{32+k}, 57344, v{32+k}")
            a("s_waitcnt vmcnt(0)"); a("s_barrier")
        for n in range(3): rd(n)
        for n,(k8,i) in enumerate(seq):
            if n+3<len(seq): rd(n+3)
            a(f"s_waitcnt lgkmcnt({min(3,len(seq)-1-n)})")
            a(f"v_mfma_f32_32x32x16_bf16 {vr(ACC+16*i,16)}, {vr(AB+4*(n%4),4)}, {vr(BF+4*(half*8+k8),4)}, {vr(ACC+16*i,16)}")
    stp(5)
    OP=448
    a("s_cmp_lt_u32 s20, 16"); a(f"s_cselect_b32 s38, {f2u(SC):#x}, 1.0"); a("s_cselect_b32 s39, 0, 7168")
    a("s_mul_i32 s33, s23, 448"); a("s_add_u32 s39, s39, s33"); a("s_lshl_b32 s33, s24, 5"); a("s_add_u32 s39, s39, s33"); a("s_mul_i32 s39, s39, 896"); a(f"s_add_u32 s39, s39, {LY.WP}")
    a("s_mul_i32 s33, s26, 448"); a("s_add_u32 s39, s39, s33")
    a("s_mul_i32 s34, s22, 14336")
    a(f"v_mul_u32_u24 v22, {OP}, v20"); a("v_lshlrev_b32 v23, 5, v21"); a("v_add_u32 v22, v22, v23"); a("v_add_u32 v22, s34, v22")
    for i in range(7):
        for r in range(0,16,2): a(f"v_pk_mul_f32 {vr(ACC+16*i+r,2)}, {vr(ACC+16*i+r,2)}, s[38:39] op_sel_hi:[1,0]")
        tt=40+8*(i&1)
        for r in range(8): a(f"v_cvt_pk_bf16_f32 v{tt+r}, v{ACC+16*i+2*r}, v{ACC+16*i+2*r+1}")
        a(f"ds_write_b128 v22, {vr(tt,4)} offset:{i*64}"); a(f"ds_write_b128 v22, {vr(tt+4,4)} offset:{i*64+16}")
    a("s_waitcnt lgkmcnt(0)")
    for k in range(14):
        a(f"v_add_u32 v24, {64*k}, v1"); a("v_mul_u32_u24 v25, 2341, v24"); a("v_lshrrev_b32 v25, 16, v25")
        a("v_mul_u32_u24 v26, 28, v25"); a("v_sub_u32 v26, v24, v26"); a("v_lshlrev_b32 v26, 4, v26")
        a(f"v_mul_u32_u24 v27, {OP}, v25"); a("v_add_u32 v27, v27, v26"); a("v_add_u32 v27, s34, v27")
        a(f"ds_read_b128 {vr(64+4*k,4)}, v27")
        a("v_mul_u32_u24 v28, 896, v25"); a(f"v_add_u32 v{192+k}, v28, v26")
    for k in range(14):
        a(f"s_waitcnt lgkmcnt({13-k})")
        a(f"buffer_store_dwordx4 {vr(64+4*k,4)}, v{192+k}, {W}, s39 offen {st}")
    stp(6)
    a("s_branch L_fill")
    a.label("L_idle")
    a("s_waitcnt vmcnt(14)"); a("s_barrier"); a("s_waitcnt vmcnt(0)"); a("s_barrier")
    a("v_mov_b32 v9, 0"); a("s_mov_b32 s30, 0")
    a.label("L_wm")
    a(f"buffer_load_dword v10, v9, {S4(48)}, 0 offen offset:{76 if fused else 0} sc1"); a("s_waitcnt vmcnt(0)"); a("v_readfirstlane_b32 s31, v10"); a("s_nop 3")
    a(f"s_cmp_ge_u32 s31, {nmod}"); a("s_cbranch_scc1 L_wm_ok"); a("s_sleep 2"); a("s_add_u32 s30, s30, 1"); a(f"s_cmp_lt_u32 s30, {POLL_MAX}"); a("s_cbranch_scc1 L_wm")
    a.label("L_wm_ok")
    a("v_lshrrev_b32 v4, 3, v1"); a("v_lshlrev_b32 v8, 5, v4"); a(f"s_mov_b32 s31, {LY.MOD}"); a(f"s_mov_b32 s32, {LY.MOD+448*4}")
    for i in range(7):
        a(f"buffer_load_dwordx4 {vr(128+8*i,4)}, v8, {W}, s31 offen offset:{256*i} sc1"); a(f"buffer_load_dwordx4 {vr(128+8*i+4,4)}, v8, {W}, s31 offen offset:{256*i+16} sc1")
        a(f"buffer_load_dwordx4 {vr(192+8*i,4)}, v8, {W}, s32 offen offset:{256*i} sc1"); a(f"buffer_load_dwordx4 {vr(192+8*i+4,4)}, v8, {W}, s32 offen offset:{256*i+16} sc1")
    a("s_waitcnt vmcnt(0)")
    for k in range(56): a(f"v_add_f32 v{192+k}, 1.0, v{192+k}")
    a("s_sub_u32 s40, s2, 192"); a("s_lshl_b32 s40, s40, 1"); a("s_add_u32 s40, s40, s22"); a("s_sub_u32 s40, s40, 2"); a("s_lshl_b32 s40, s40, 1")
    for e in range(2):
        a(f"s_add_u32 s41, s40, {e}"); a("s_lshr_b32 s42, s41, 2"); a("s_and_b32 s43, s41, 3")
        ln_job(a, W, 44, 48, nmod, 42, 43, st)
    a.label("L_fill")
    regions=[(LY.MEM+7168,64*7168,-1),(LY.PX,64*16*512,-1),(LY.PM,64*4*512,-1),(LY.MEMX+7168,63*7168,-1),(LY.PFX,64*2*16*1024,-1),(LY.PFM,64*2*4*1024,-1),(LY.CNT,LY.CNTB,0),(LY.R,8192,-1),(LY.ACT,2*1792*4,-1),(LY.H2,2048*896,-1),(LY.STATS,64*7*32*16,-1)]
    a("v_lshlrev_b32 v12, 4, v0")
    for (o,n,val) in regions:
        n=(n+4095)//4096*4096
        lab=a.newlabel("L_pz")
        for r in range(16,20): a(f"v_mov_b32 v{r}, {val}")
        a(f"s_lshl_b32 s28, s2, 12"); a(f"s_add_u32 s28, s28, {o}")
        a.label(lab)
        a(f"s_cmp_lt_u32 s28, {o+n}"); a(f"s_cbranch_scc0 {lab}_e")
        a(f"buffer_store_dwordx4 v[16:19], v12, {W}, s28 offen {st}")
        a(f"s_add_u32 s28, s28, {256*4096}"); a(f"s_branch {lab}")
        a.label(lab+"_e"); a("s_nop 1")
    a("s_cmp_eq_u32 s2, 100"); a("s_cbranch_scc0 L_nomem0")
    mk_srd(a,52,'mem0',74)
    for half in range(2):
        a(f"v_add_u32 v13, {256*half}, v0")
        a("v_cmp_gt_u32 vcc, 448, v13"); a("s_and_saveexec_b64 s[24:25], vcc")
        a("v_and_b32 v14, 7, v13"); a("v_mul_u32_u24 v14, 896, v14"); a("v_lshrrev_b32 v15, 3, v13"); a("v_lshlrev_b32 v15, 4, v15"); a("v_add_u32 v14, v14, v15")
        a(f"buffer_load_dwordx4 v[16:19], v14, {S4(52)}, 0 offen"); a("s_waitcnt vmcnt(0)")
        a("v_lshlrev_b32 v15, 4, v13"); a(f"s_mov_b32 s28, {LY.MEM}"); a(f"buffer_store_dwordx4 v[16:19], v15, {W}, s28 offen {st}")
        a(f"s_mov_b32 s28, {LY.MEMX}"); a(f"buffer_store_dwordx4 v[16:19], v15, {W}, s28 offen {st}"); a("s_nop 1")
        a("s_mov_b64 exec, s[24:25]")
    a.label("L_nomem0")
    a("s_waitcnt vmcnt(0)")
    stp(7)
    if ST:
        ls=a.newlabel("L_so")
        for k in range(6): a(f"v_mov_b32 v{20+k}, s{80+2*k}")
        a("v_mov_b32 v26, s22"); a("v_mov_b32 v27, s25")
        a("s_lshl_b32 s28, s2, 2"); a("s_add_u32 s28, s28, s22"); a("s_lshl_b32 s28, s28, 5"); a(f"s_add_u32 s28, s28, {LY.DBGS+(1<<19)+(1<<18)}"); a("v_mov_b32 v30, 0"); a("s_mov_b64 exec, 1")
        a(f"buffer_store_dwordx4 v[20:23], v30, {W}, s28 offen"); a(f"buffer_store_dwordx4 v[24:27], v30, {W}, s28 offen offset:16"); a("s_mov_b64 exec, -1")
    if not fused: a.label("L_end")
    a("s_waitcnt vmcnt(0)")
if __name__=="__main__": print(len(gen_k0().splitlines()), K0_LDS)
```

```python
import os
from common_k import *
from k0 import f2u, SC, ln_stats
import layout as LY
import common_k as CK
LA=0; LW=114688
L_OUT=LW+4*8192
L_CNT=L_OUT+8192
L_MODS=LW
K0_LDS=163840
PITCH=64
REGC=[(LY.MEM+7168,64*7168,-1),(LY.PX,64*16*512,-1),(LY.PM,64*4*512,-1),(LY.CNT,LY.CNTB,0),(LY.MEMX+7168,63*7168,-1)]
REGL=[(LY.PFX,64*2*16*1024,-1),(LY.PFM,64*2*4*1024,-1),(LY.R,8192,-1),(LY.ACT,2*1792*4,-1),(LY.ACTB,2*1792*4,-1),(LY.H2,2048*896,-1),(LY.STATS,64*7*32*16,-1)]
REG=REGC+REGL
def k0_body(a, nmod, st, fused, moff):
    ST=bool(os.environ.get('STAMP0'))
    SMAP={0:0,1:1,4:2,5:3,6:4,7:5}
    def stp(k):
        if ST and k in SMAP: a(f's_memrealtime s[{80+2*SMAP[k]}:{81+2*SMAP[k]}]'); a('s_waitcnt lgkmcnt(0)')
    stp(0)
    a("v_and_b32 v1, 63, v0"); a("v_lshrrev_b32 v2, 6, v0"); a("s_nop 0"); a("v_readfirstlane_b32 s22, v2")
    for n,t in (('Wq',60),('Wk',62),('Wv',64),('Wo',66),('ws',68),('wmod',70),('c',72),('mem0',74),('x',76),('dbg',78)): a(f"s_load_dwordx2 s[{t}:{t+1}], s[0:1], {KA[n]}")
    a("s_waitcnt lgkmcnt(0)")
    mk_srd(a,16,'ws',68); mk_srd(a,44,'x',76); mk_srd(a,48,'dbg',78)
    W=S4(16)
    a("s_and_b32 s20, s2, 31"); a("s_lshr_b32 s21, s2, 5")
    a("s_and_b32 s23, s20, 15"); a("s_and_b32 s26, s21, 1"); a("s_lshr_b32 s27, s21, 1")
    a("s_cmp_lt_u32 s20, 16"); a("s_cbranch_scc0 L_isU")
    mk_srd(a,8,'Wq',60); mk_srd(a,12,'Wk',62); a("s_branch L_srd")
    a.label("L_isU"); mk_srd(a,8,'Wv',64); mk_srd(a,12,'Wo',66)
    a.label("L_srd")
    BF=64; T=128
    a("s_lshl_b32 s24, s27, 2"); a("s_add_u32 s24, s24, s22"); a("s_cmp_lt_u32 s24, 14"); a("s_cselect_b32 s25, 1, 0")
    a("v_and_b32 v20, 31, v1"); a("v_lshrrev_b32 v21, 5, v1")
    if fused:
        a(f"v_mov_b32 v3, {L_CNT}"); a("v_mov_b32 v4, 0"); a("v_mov_b32 v5, 0"); a("v_mov_b32 v6, 0"); a("v_mov_b32 v7, 0"); a("ds_write_b128 v3, v[4:7]"); a("s_waitcnt lgkmcnt(0)")
    if fused and CK.NONCE:
        le=a.newlabel("L_ef")
        a("s_cmp_lt_u32 s22, 2"); a(f"s_cbranch_scc0 {le}")
        a("v_lshlrev_b32 v12, 4, v0")
        for r in range(16,20): a(f"v_mov_b32 v{r}, -1")
        for (o,n,val) in REGC:
            if val==0: continue
            n=(n+2047)//2048*2048
            lab=a.newlabel("L_pz")
            a(f"s_lshl_b32 s28, s2, 11"); a(f"s_add_u32 s28, s28, {o}")
            a.label(lab)
            a(f"s_cmp_lt_u32 s28, {o+n}"); a(f"s_cbranch_scc0 {lab}_e")
            a(f"buffer_store_dwordx4 v[16:19], v12, {W}, s28 offen sc1")
            a(f"s_add_u32 s28, s28, {256*2048}"); a(f"s_branch {lab}")
            a.label(lab+"_e")
        a("s_cmp_eq_u32 s2, 100"); a(f"s_cbranch_scc0 {le}")
        mk_srd(a,52,'mem0',74)
        for part in range(4):
            a(f"v_add_u32 v13, {128*part}, v0")
            a("v_cmp_gt_u32 vcc, 448, v13"); a("s_and_saveexec_b64 s[30:31], vcc")
            a("v_and_b32 v14, 7, v13"); a("v_mul_u32_u24 v14, 896, v14"); a("v_lshrrev_b32 v15, 3, v13"); a("v_lshlrev_b32 v15, 4, v15"); a("v_add_u32 v14, v14, v15")
            a(f"buffer_load_dwordx4 v[16:19], v14, {S4(52)}, 0 offen"); a("s_waitcnt vmcnt(0)")
            a("v_lshlrev_b32 v15, 4, v13"); a(f"s_mov_b32 s28, {LY.MEM}"); a(f"buffer_store_dwordx4 v[16:19], v15, {W}, s28 offen sc1")
            a(f"s_mov_b32 s28, {LY.MEMX}"); a(f"buffer_store_dwordx4 v[16:19], v15, {W}, s28 offen sc1"); a("s_nop 1")
            a("s_mov_b64 exec, s[30:31]")
        a.label(le)
    a("s_cmp_eq_u32 s22, 3"); a("s_cbranch_scc0 L_nox")
    a("v_and_b32 v3, 7, v1"); a("v_lshrrev_b32 v4, 3, v1"); a("s_and_b32 s28, s2, 3"); a("s_lshl_b32 s28, s28, 3"); a("v_add_u32 v5, s28, v3")
    a("v_mul_u32_u24 v6, 896, v5"); a("v_lshlrev_b32 v7, 4, v4"); a("v_add_u32 v6, v6, v7"); a("s_lshr_b32 s29, s2, 2"); a("s_mul_i32 s29, s29, 28672")
    for i in range(7): a(f"buffer_load_dwordx4 {ar(4*i,4)}, v6, {S4(44)}, s29 offen offset:{128*i}")
    a.label("L_nox")
    a("s_cmp_ge_u32 s2, 192"); a("s_cbranch_scc0 L_nomod"); a(f"s_cmp_lt_u32 s2, {192+nmod}"); a("s_cbranch_scc0 L_nomod")
    mk_srd(a,56,'wmod',70); mk_srd(a,40,'c',72)
    a("s_sub_u32 s37, s2, 192")
    a("v_and_b32 v30, 7, v0"); a("v_lshrrev_b32 v31, 3, v0"); a("v_mul_u32_u24 v32, 28, v31")
    M0=192
    for j in range(14): a(f"buffer_load_ushort v{M0+j}, v32, {S4(40)}, 0 offen offset:{2*j}")
    a("v_mul_u32_u24 v33, 14, v31"); a("s_movk_i32 s38, 5376"); a("v_mul_lo_u32 v33, v33, s38"); a("v_lshlrev_b32 v34, 4, v30"); a("v_add_u32 v33, v33, v34")
    a("s_lshl_b32 s39, s37, 7")
    MW=128
    for j in range(14):
        a(f"buffer_load_dwordx4 {vr(MW+4*j,4)}, v33, {S4(56)}, s39 offen"); a("s_add_u32 s39, s39, 5376")
    a("s_waitcnt vmcnt(14)")
    for j in range(14):
        r=M0+j
        a(f"v_lshlrev_b32 v{r}, 16, v{r}")
        a(f"v_mul_f32 v35, 0xbfb8aa3b, v{r}"); a("v_exp_f32 v35, v35"); a("s_nop 0"); a("v_add_f32 v35, 1.0, v35"); a("v_rcp_f32 v35, v35"); a("s_nop 0")
        a(f"v_mul_f32 v{r}, v{r}, v35"); a(f"v_cvt_pk_bf16_f32 v{r}, v{r}, v{r}"); a(f"v_lshlrev_b32 v{r}, 16, v{r}")
    for r in range(40,48): a(f"v_mov_b32 v{r}, 0")
    for j in range(14):
        a(f"s_waitcnt vmcnt({13-j})")
        for q in range(4):
            a(f"v_lshlrev_b32 v36, 16, v{MW+4*j+q}"); a(f"v_and_b32 v37, 0xffff0000, v{MW+4*j+q}")
            a(f"v_fmac_f32 v{40+2*q}, v36, v{M0+j}"); a(f"v_fmac_f32 v{41+2*q}, v37, v{M0+j}")
    for r in range(40,48): xred(a,"v_add_f32",r,48)
    a("v_lshlrev_b32 v49, 5, v30"); a("s_lshl_b32 s38, s22, 8"); a(f"s_add_u32 s38, s38, {L_OUT}"); a("v_add_u32 v49, s38, v49")
    a("s_mov_b64 exec, 0xff"); a("ds_write_b128 v49, v[40:43]"); a("ds_write_b128 v49, v[44:47] offset:16"); a("s_mov_b64 exec, -1")
    a("s_waitcnt lgkmcnt(0)"); a("s_barrier")
    a("s_cmp_eq_u32 s22, 2"); a("s_cbranch_scc0 L_modw")
    a("v_lshlrev_b32 v50, 2, v1"); a(f"v_add_u32 v51, {L_OUT}, v50")
    for w in range(4): a(f"ds_read_b32 v{52+w}, v51 offset:{w*256}")
    a("s_waitcnt lgkmcnt(0)"); a("v_add_f32 v52, v52, v53"); a("v_add_f32 v54, v54, v55"); a("v_add_f32 v52, v52, v54")
    a("v_cvt_pk_bf16_f32 v52, v52, v52"); a("v_lshlrev_b32 v52, 16, v52")
    a("s_lshl_b32 s38, s37, 8"); a(f"s_add_u32 s38, s38, {LY.MOD}")
    a(f"buffer_store_dword v52, v50, {W}, s38 offen sc1"); a("s_waitcnt vmcnt(0)")
    if fused and CK.NONCE:
        get_nonce(a, S4(48), 56, 38, 40)
        a("s_lshl_b32 s38, s37, 2"); a(f"s_add_u32 s38, s38, {LY.MODF}"); set_flag(a, W, 38, 53, 54)
    else:
        a("s_mov_b64 exec, 1"); a("v_mov_b32 v53, 1"); a("v_mov_b32 v54, 0"); a(f"s_mov_b32 s38, {LY.MODC}"); a(f"buffer_atomic_add v53, v54, {W if fused else S4(48)}, "+("s38" if fused else "0")+" offen sc1"); a("s_mov_b64 exec, -1")
    a.label("L_modw")
    a("s_barrier")
    a.label("L_nomod")
    a("s_cmp_eq_u32 s25, 0"); a("s_cbranch_scc1 L_noB0")
    a("s_cmp_lt_u32 s20, 16"); a("s_cbranch_scc0 L_BU0")
    a("v_lshlrev_b32 v22, 13, v20"); a("v_lshlrev_b32 v23, 4, v21"); a("v_add_u32 v22, v22, v23")
    a("s_lshl_b32 s35, s24, 18"); a("s_lshl_b32 s33, s23, 9"); a("s_add_u32 s35, s35, s33")
    for kk in range(16): a(f"buffer_load_dwordx4 {vr(BF+4*kk,4)}, v22, {S4(12)}, s35 offen offset:{kk*32}")
    a("s_branch L_noB0")
    a.label("L_BU0")
    a("v_lshrrev_b32 v24, 2, v1"); a("v_and_b32 v25, 3, v1")
    a("v_mul_u32_u24 v26, 896, v24"); a("v_lshlrev_b32 v27, 4, v25"); a("v_add_u32 v26, v26, v27")
    a(f"v_mul_u32_u24 v28, {PITCH}, v24"); a("v_add_u32 v28, v28, v27"); a(f"s_mul_i32 s36, s22, 8192"); a(f"s_add_u32 s36, s36, {LW}"); a("v_add_u32 v28, s36, v28")
    a(f"s_mul_i32 s35, s23, {256*896}"); a("s_lshl_b32 s33, s24, 6"); a("s_add_u32 s35, s35, s33")
    for i in range(16):
        a(f"buffer_load_dwordx4 {vr(T+4*i,4)}, v26, {S4(12)}, s35 offen"); a(f"s_add_u32 s35, s35, {16*896}")
    a.label("L_noB0")
    a("s_lshr_b32 s28, s22, 1"); a("s_lshl_b32 s28, s28, 5"); a("s_and_b32 s29, s22, 1"); a("s_lshl_b32 s30, s29, 1"); a("s_add_u32 s28, s28, s30")
    a("s_lshl_b32 s29, s29, 3")
    for jj in range(4):
        a(f"v_add_u32 v24, {8*(jj&1)+4*(jj>>1)}, v21"); a("v_add_u32 v24, s28, v24"); a("v_lshlrev_b32 v24, 13, v24")
        a(f"v_add_u32 v25, {2*jj}, v21"); a("v_add_u32 v25, s29, v25"); a("v_xor_b32 v25, v25, v20"); a("v_lshlrev_b32 v25, 4, v25"); a(f"v_add_u32 v{8+jj}, v24, v25")
    for i in range(7):
        a(f"s_mul_i32 s28, s26, 7"); a(f"s_add_u32 s28, s28, {i}")
        a("s_lshr_b32 s29, s28, 1"); a("s_lshl_b32 s29, s29, 6"); a("s_and_b32 s30, s28, 1"); a("s_lshl_b32 s30, s30, 4"); a("s_add_u32 s29, s29, s30")
        a("s_lshl_b32 s29, s29, 13"); a("s_lshl_b32 s30, s23, 9"); a("s_add_u32 s32, s29, s30")
        a("s_lshl_b32 s31, s22, 12"); a(f"s_add_u32 s31, s31, {LA+i*16384}")
        for jj in range(4):
            a("s_mov_b32 m0, s31"); a("s_add_u32 s31, s31, 1024")
            a(f"buffer_load_dwordx4 v{8+jj}, {S4(8)}, s32 offen lds")
    stp(1)
    a("v_lshlrev_b32 v12, 4, v0")
    nfill=0
    FILLMAX=0
    for (o,n,val) in REG:
        n=(n+4095)//4096*4096; FILLMAX+= (n//4096+255)//256
    a("s_cmp_eq_u32 s25, 0"); a("s_cbranch_scc1 L_noB"); a("s_cmp_lt_u32 s20, 16"); a("s_cbranch_scc1 L_noB")
    a("v_and_b32 v24, 15, v1"); a("v_lshrrev_b32 v25, 2, v24"); a("v_lshlrev_b32 v27, 3, v21"); a("v_add_u32 v25, v25, v27")
    a(f"v_mul_u32_u24 v29, {PITCH}, v25"); a("v_and_b32 v25, 3, v24"); a("v_lshlrev_b32 v25, 3, v25"); a("v_add_u32 v29, v29, v25")
    a("v_bfe_u32 v25, v1, 4, 1"); a("v_lshlrev_b32 v25, 5, v25"); a("v_add_u32 v29, v29, v25"); a("v_add_u32 v29, s36, v29")
    for half in range(2):
        for i in range(8):
            a(f"s_waitcnt vmcnt({28+15-(half*8+i)})")
            a(f"ds_write_b128 v28, {vr(T+4*(half*8+i),4)} offset:{i*16*PITCH}")
        a("s_waitcnt lgkmcnt(0)")
        for k8 in range(8):
            kk=half*8+k8
            a(f"ds_read_b64_tr_b16 {vr(BF+4*kk,2)}, v29 offset:{16*k8*PITCH}"); a(f"ds_read_b64_tr_b16 {vr(BF+4*kk+2,2)}, v29 offset:{(16*k8+4)*PITCH}")
        a("s_waitcnt lgkmcnt(0)")
    a.label("L_noB")
    a("v_and_b32 v22, 15, v20"); a("v_lshlrev_b32 v23, 9, v20")
    for k8 in range(8):
        a(f"v_add_u32 v24, {2*k8}, v21"); a("v_xor_b32 v24, v24, v22"); a("v_lshlrev_b32 v24, 4, v24"); a(f"v_add_u32 v{32+k8}, v23, v24")
    a("s_cmp_lt_u32 s20, 16"); a(f"s_cselect_b32 s38, {f2u(SC):#x}, 1.0"); a("s_cselect_b32 s39, 0, 7168")
    a("s_mul_i32 s33, s23, 448"); a("s_add_u32 s39, s39, s33"); a("s_lshl_b32 s33, s24, 5"); a("s_add_u32 s39, s39, s33"); a("s_mul_i32 s39, s39, 896"); a(f"s_add_u32 s39, s39, {LY.WP}")
    a("s_mul_i32 s33, s26, 448"); a("s_add_u32 s39, s39, s33")
    a("s_lshl_b32 s34, s22, 11"); a(f"s_add_u32 s34, s34, {L_OUT}")
    a("v_lshlrev_b32 v56, 6, v20"); a("v_lshlrev_b32 v24, 5, v21"); a("v_add_u32 v56, v56, v24"); a("v_add_u32 v56, s34, v56")
    a("v_lshlrev_b32 v57, 4, v1"); a("v_add_u32 v57, s34, v57")
    a("v_lshrrev_b32 v58, 2, v1"); a("v_mul_u32_u24 v58, 896, v58"); a("v_and_b32 v24, 3, v1"); a("v_lshlrev_b32 v24, 4, v24"); a("v_add_u32 v58, v58, v24")
    ACC=[128,144]; AB=40; PK=160; RB=168
    nst=0
    def epilogue(i):
        o=[]; ac=ACC[i&1]
        for r in range(0,16,2): o.append(f"v_pk_mul_f32 {vr(ac+r,2)}, {vr(ac+r,2)}, s[38:39] op_sel_hi:[1,0]")
        for r in range(8): o.append(f"v_cvt_pk_bf16_f32 v{PK+r}, v{ac+2*r}, v{ac+2*r+1}")
        o.append(f"ds_write_b128 v56, {vr(PK,4)}"); o.append(f"ds_write_b128 v56, {vr(PK+4,4)} offset:16")
        for r in range(16): o.append(f"v_mov_b32 v{ac+r}, 0")
        return o
    def epilogue2(i):
        return [f"ds_read_b128 {vr(RB,4)}, v57", f"ds_read_b128 {vr(RB+4,4)}, v57 offset:1024", "s_waitcnt lgkmcnt(0)",
                f"s_add_u32 s40, s39, {i*64}", f"s_add_u32 s41, s40, {16*896}",
                f"buffer_store_dwordx4 {vr(RB,4)}, v58, {W}, s40 offen {st}", f"buffer_store_dwordx4 {vr(RB+4,4)}, v58, {W}, s41 offen {st}"]
    for r in range(128,160): a(f"v_mov_b32 v{r}, 0")
    a("s_cmp_eq_u32 s25, 0"); a("s_cbranch_scc1 L_idle")
    AD=[32,176]
    for k in range(8): a(f"v_add_u32 v{176+k}, 16384, v{32+k}")
    lds=[]
    def issue(tag, ins): a(ins); lds.append(tag)
    def need(tag):
        idx=len(lds)-1-lds[::-1].index(tag); n=len(lds)-1-idx
        a(f"s_waitcnt lgkmcnt({min(n,15)})")
    flat=[(i,n) for i in range(7) for n in range(16)]
    nstores=[0]
    def sync_tile(i):
        a(f"s_waitcnt vmcnt({4*(6-i)+nstores[0]})"); a("s_barrier")
    def rd(q):
        i,n=flat[q]
        issue(("r",q), f"ds_read_b128 {vr(AB+4*(q%4),4)}, v{AD[i&1]+(n&7)} offset:{(n>>3)*256}")
    sync_tile(0); stp(4)
    for q in range(3): rd(q)
    pend=[]
    for q,(i,n) in enumerate(flat):
        if q+3<len(flat):
            i3,n3=flat[q+3]
            if n3==0: sync_tile(i3)
            rd(q+3)
            if n3==15 and i3+2<=6:
                for k in range(8): pend.append(("i", f"v_add_u32 v{AD[i3&1]+k}, 32768, v{AD[i3&1]+k}"))
        need(("r",q))
        a(f"v_mfma_f32_32x32x16_bf16 {vr(ACC[i&1],16)}, {vr(AB+4*(q%4),4)}, {vr(BF+4*n,4)}, {vr(ACC[i&1],16)}")
        if n==4 and i>0:
            j=i-1; ac=ACC[j&1]
            for r in range(0,16,2): pend.append(("i", f"v_pk_mul_f32 {vr(ac+r,2)}, {vr(ac+r,2)}, s[38:39] op_sel_hi:[1,0]"))
            for r in range(8): pend.append(("i", f"v_cvt_pk_bf16_f32 v{PK+r}, v{ac+2*r}, v{ac+2*r+1}"))
            pend.append(("l",("w",j,0), f"ds_write_b128 v56, {vr(PK,4)}")); pend.append(("l",("w",j,1), f"ds_write_b128 v56, {vr(PK+4,4)} offset:16"))
            for r in range(16): pend.append(("i", f"v_mov_b32 v{ac+r}, 0"))
            pend.append(("l",("b",j,0), f"ds_read_b128 {vr(RB,4)}, v57")); pend.append(("l",("b",j,1), f"ds_read_b128 {vr(RB+4,4)}, v57 offset:1024"))
            pend.append(("st",j))
        k=0
        while pend and k<3:
            it=pend[0]
            if it[0]=="st":
                if n<2 and False: break
                pend.pop(0); j=it[1]
                need(("b",j,1))
                a(f"s_add_u32 s40, s39, {j*64}"); a(f"s_add_u32 s41, s40, {16*896}")
                a(f"buffer_store_dwordx4 {vr(RB,4)}, v58, {W}, s40 offen {st}"); a(f"buffer_store_dwordx4 {vr(RB+4,4)}, v58, {W}, s41 offen {st}")
                nstores[0]+=2; k=3
            elif it[0]=="l": pend.pop(0); issue(it[1],it[2]); k+=1
            else: pend.pop(0); a(it[1]); k+=1
    while pend:
        it=pend.pop(0)
        if it[0]=="st":
            j=it[1]; need(("b",j,1)); a(f"s_add_u32 s40, s39, {j*64}"); a(f"s_add_u32 s41, s40, {16*896}")
            a(f"buffer_store_dwordx4 {vr(RB,4)}, v58, {W}, s40 offen {st}"); a(f"buffer_store_dwordx4 {vr(RB+4,4)}, v58, {W}, s41 offen {st}")
        elif it[0]=="l": issue(it[1],it[2])
        else: a(it[1])
    stp(5)
    a.nop(16)
    for x in epilogue(6): a(x)
    for x in epilogue2(6): a(x)
    stp(6)
    if fused:
        lg=a.newlabel("L_gw")
        a("s_waitcnt vmcnt(0)")
        a(f"v_mov_b32 v3, {L_CNT}"); a("v_mov_b32 v4, 1"); a("s_mov_b64 exec, 1"); a("ds_add_rtn_u32 v5, v3, v4"); a("s_waitcnt lgkmcnt(0)"); a("s_mov_b64 exec, -1")
        a("v_readfirstlane_b32 s28, v5"); a("s_cmp_eq_u32 s27, 3"); a("s_cselect_b32 s29, 1, 3"); a("s_cmp_eq_u32 s28, s29"); a(f"s_cbranch_scc0 {lg}")
        if CK.NONCE:
            get_nonce(a, S4(48), 6, 30, 40)
            a("s_lshl_b32 s28, s20, 3"); a("s_add_u32 s28, s28, s21"); a("s_lshl_b32 s28, s28, 2"); a(f"s_add_u32 s28, s28, {LY.GWF}"); set_flag(a, W, 28, 4, 3)
        else:
            a("s_lshl_b32 s28, s20, 7"); a(f"s_add_u32 s28, s28, {LY.GWC}"); a("v_mov_b32 v3, 0"); a("s_mov_b64 exec, 1"); a(f"buffer_atomic_add v4, v3, {W}, s28 offen sc1"); a("s_mov_b64 exec, -1")
        a.label(lg)
    a("s_branch L_ln")
    a.label("L_idle")
    for i in range(7): a(f"s_waitcnt vmcnt({4*(6-i)})"); a("s_barrier")
    a.label("L_ln")
    a("s_cmp_eq_u32 s22, 3"); a("s_cbranch_scc0 L_fill")
    if fused and CK.NONCE:
        get_nonce(a, S4(48), 6, 30, 40)
        a(f"s_mov_b32 s33, {LY.MODF}"); wait_flags(a, W, 33, nmod, 9, 10, "v_mov_b32 v9, v1", 30, sleep=2)
    else:
        a("v_mov_b32 v9, 0"); a("s_mov_b32 s30, 0")
        a.label("L_wm")
        a(f"s_mov_b32 s33, {LY.MODC}"); a(f"buffer_load_dword v10, v9, {W if fused else S4(48)}, "+("s33" if fused else "0")+" offen sc1"); a("s_waitcnt vmcnt(0)"); a("v_readfirstlane_b32 s31, v10"); a("s_nop 3")
        a(f"s_cmp_ge_u32 s31, {nmod}"); a("s_cbranch_scc1 L_wm_ok"); a("s_sleep 2"); a("s_add_u32 s30, s30, 1"); a(f"s_cmp_lt_u32 s30, {POLL_MAX}"); a("s_cbranch_scc1 L_wm")
        a.label("L_wm_ok")
    a("v_and_b32 v3, 7, v1"); a("v_lshrrev_b32 v4, 3, v1"); a("s_and_b32 s28, s2, 3"); a("s_lshl_b32 s28, s28, 3"); a("v_add_u32 v5, s28, v3")
    a("s_lshr_b32 s29, s2, 2"); a("s_mul_i32 s29, s29, 28672")
    a("v_lshlrev_b32 v8, 5, v4"); a(f"s_mov_b32 s31, {LY.MOD}"); a(f"s_mov_b32 s32, {LY.MOD+448*4}")
    for i in range(7):
        a(f"buffer_load_dwordx4 {vr(128+8*i,4)}, v8, {W}, s31 offen offset:{256*i} sc1"); a(f"buffer_load_dwordx4 {vr(128+8*i+4,4)}, v8, {W}, s31 offen offset:{256*i+16} sc1")
        a(f"buffer_load_dwordx4 {vr(192+8*i,4)}, v8, {W}, s32 offen offset:{256*i} sc1"); a(f"buffer_load_dwordx4 {vr(192+8*i+4,4)}, v8, {W}, s32 offen offset:{256*i+16} sc1")
    X=64
    for i in range(7):
        for q in range(4):
            a(f"v_accvgpr_read_b32 v{32+4*i+q}, a{4*i+q}")
    for i in range(7):
        for q in range(4): unpack_lo(a,X+8*i+2*q,32+4*i+q); unpack_hi(a,X+8*i+2*q+1,32+4*i+q)
    ln_stats(a,X,56,10,12,13)
    a("s_waitcnt vmcnt(0)")
    for k in range(56):
        a(f"v_mul_f32 v{X+k}, v{X+k}, v11"); a(f"v_add_f32 v{192+k}, 1.0, v{192+k}"); a(f"v_fma_f32 v{X+k}, v{X+k}, v{192+k}, v{128+k}")
    for i in range(7):
        for q in range(4): a(f"v_cvt_pk_bf16_f32 v{32+4*i+q}, v{X+8*i+2*q}, v{X+8*i+2*q+1}")
    a("v_lshlrev_b32 v14, 9, v4"); a("v_lshlrev_b32 v15, 4, v5"); a("v_add_u32 v14, v14, v15")
    a(f"s_add_u32 s33, s29, {LY.HFRAG}")
    for i in range(7): a(f"buffer_store_dwordx4 {vr(32+4*i,4)}, v14, {W}, s33 offen {st}"); a("s_add_u32 s33, s33, 4096")
    a("v_lshrrev_b32 v16, 2, v4"); a("v_lshlrev_b32 v16, 9, v16"); a("v_bfe_u32 v17, v4, 1, 1"); a("v_lshlrev_b32 v17, 11, v17"); a("v_add_u32 v16, v16, v17")
    a("v_and_b32 v17, 1, v4"); a("v_lshlrev_b32 v18, 10, v17"); a("v_add_u32 v16, v16, v18"); a("v_add_u32 v16, v16, v15")
    a("v_cmp_eq_u32 vcc, 1, v17")
    a(f"s_add_u32 s33, s29, {LY.HPERM}")
    for i in range(7):
        d=32+4*i; t=64+8*i
        a(f"v_cndmask_b32 v{t}, v{d+2}, v{d}, vcc"); a(f"v_cndmask_b32 v{t+1}, v{d+3}, v{d+1}, vcc")
        a(f"v_cndmask_b32 v{t+2}, v{d}, v{d+2}, vcc"); a(f"v_cndmask_b32 v{t+3}, v{d+1}, v{d+3}, vcc")
        a(f"v_mov_b32_dpp v{t+4}, v{t} row_ror:8 row_mask:0xf bank_mask:0xf"); a(f"v_mov_b32_dpp v{t+5}, v{t+1} row_ror:8 row_mask:0xf bank_mask:0xf")
        a(f"v_cndmask_b32 v{d}, v{t+2}, v{t+4}, vcc"); a(f"v_cndmask_b32 v{d+1}, v{t+4}, v{t+2}, vcc")
        a(f"v_cndmask_b32 v{d+2}, v{t+3}, v{t+5}, vcc"); a(f"v_cndmask_b32 v{d+3}, v{t+5}, v{t+3}, vcc")
    for i in range(7):
        a(f"buffer_store_dwordx4 {vr(32+4*i,4)}, v16, {W}, s33 offen {st}"); a("s_add_u32 s33, s33, 4096")
    a.label("L_fill")
    a("v_lshlrev_b32 v12, 4, v0")
    def fills(regs):
        for (o,n,val) in regs:
            n=(n+4095)//4096*4096
            lab=a.newlabel("L_pz")
            for r in range(16,20): a(f"v_mov_b32 v{r}, {val}")
            a(f"s_lshl_b32 s28, s2, 12"); a(f"s_add_u32 s28, s28, {o}")
            a.label(lab)
            a(f"s_cmp_lt_u32 s28, {o+n}"); a(f"s_cbranch_scc0 {lab}_e")
            a(f"buffer_store_dwordx4 v[16:19], v12, {W}, s28 offen {st}")
            a(f"s_add_u32 s28, s28, {256*4096}"); a(f"s_branch {lab}")
            a.label(lab+"_e"); a("s_nop 1")
    def signal(ldsoff, dbgoff):
        lg=a.newlabel("L_sg")
        a("s_waitcnt vmcnt(0)")
        a(f"v_mov_b32 v3, {L_CNT+ldsoff}"); a("v_mov_b32 v4, 1"); a("s_mov_b64 exec, 1"); a("ds_add_rtn_u32 v5, v3, v4"); a("s_waitcnt lgkmcnt(0)"); a("s_mov_b64 exec, -1")
        a("v_readfirstlane_b32 s28, v5"); a("s_nop 3"); a("s_cmp_eq_u32 s28, 3"); a(f"s_cbranch_scc0 {lg}")
        a("s_and_b32 s28, s2, 7"); a("s_lshl_b32 s28, s28, 7"); a(f"s_add_u32 s28, s28, {LY.LNCC}"); a("v_mov_b32 v3, 0"); a("s_mov_b64 exec, 1"); a(f"buffer_atomic_add v4, v3, {W}, s28 offen sc1"); a("s_mov_b64 exec, -1")
        a.label(lg)
    if not fused:
        fills(REGC)
    def mem0():
        a("s_cmp_eq_u32 s2, 100"); a("s_cbranch_scc0 L_nomem0")
        mk_srd(a,52,'mem0',74)
        for half in range(2):
            a(f"v_add_u32 v13, {256*half}, v0")
            a("v_cmp_gt_u32 vcc, 448, v13"); a("s_and_saveexec_b64 s[24:25], vcc")
            a("v_and_b32 v14, 7, v13"); a("v_mul_u32_u24 v14, 896, v14"); a("v_lshrrev_b32 v15, 3, v13"); a("v_lshlrev_b32 v15, 4, v15"); a("v_add_u32 v14, v14, v15")
            a(f"buffer_load_dwordx4 v[16:19], v14, {S4(52)}, 0 offen"); a("s_waitcnt vmcnt(0)")
            a("v_lshlrev_b32 v15, 4, v13"); a(f"s_mov_b32 s28, {LY.MEM}"); a(f"buffer_store_dwordx4 v[16:19], v15, {W}, s28 offen {st}")
            a(f"s_mov_b32 s28, {LY.MEMX}"); a(f"buffer_store_dwordx4 v[16:19], v15, {W}, s28 offen {st}"); a("s_nop 1")
            a("s_mov_b64 exec, s[24:25]")
        a.label("L_nomem0")
    if not fused:
        mem0(); fills(REGL)
    else:
        lg=a.newlabel("L_ls")
        a("s_cmp_eq_u32 s22, 3"); a(f"s_cbranch_scc0 {lg}")
        a("s_waitcnt vmcnt(0)")
        if CK.NONCE:
            a("s_lshl_b32 s28, s2, 2"); a(f"s_add_u32 s28, s28, {LY.LNF}"); set_flag(a, W, 28, 4, 3)
        else:
            a("s_and_b32 s28, s2, 7"); a("s_lshl_b32 s28, s28, 7"); a(f"s_add_u32 s28, s28, {LY.LNCC}"); a("v_mov_b32 v3, 0"); a("v_mov_b32 v4, 1"); a("s_mov_b64 exec, 1"); a(f"buffer_atomic_add v4, v3, {W}, s28 offen sc1"); a("s_mov_b64 exec, -1")
        a.label(lg)
    if not fused: a("s_waitcnt vmcnt(0)")
    stp(7)
    if ST:
        for k in range(6): a(f"v_mov_b32 v{20+k}, s{80+2*k}")
        a("v_mov_b32 v26, s22"); a("v_mov_b32 v27, s25")
        a("s_lshl_b32 s28, s2, 2"); a("s_add_u32 s28, s28, s22"); a("s_lshl_b32 s28, s28, 5"); a(f"s_add_u32 s28, s28, {LY.DBGS+(1<<19)+(1<<18)}"); a("v_mov_b32 v30, 0"); a("s_mov_b64 exec, 1")
        a(f"buffer_store_dwordx4 v[20:23], v30, {W}, s28 offen"); a(f"buffer_store_dwordx4 v[24:27], v30, {W}, s28 offen offset:16"); a("s_mov_b64 exec, -1"); a("s_waitcnt vmcnt(0)")
def gen_k0():
    a=Asm()
    a("s_cmp_lt_u32 s2, 256"); a("s_cbranch_scc0 L_end")
    k0_body(a,42,"",False,0)
    a.label("L_end")
    return a.text()
if __name__=="__main__": print(len(gen_k0().splitlines()))

def gen_init():
    a=Asm()
    a("s_cmp_lt_u32 s2, 256"); a("s_cbranch_scc0 L_end")
    srds(a,[(16,'ws'),(52,'mem0')])
    W=S4(16)
    a("v_lshlrev_b32 v12, 4, v0")
    for (o,n,val) in REG:
        n=(n+4095)//4096*4096
        lab=a.newlabel("L_pz")
        for r in range(16,20): a(f"v_mov_b32 v{r}, {val}")
        a(f"s_lshl_b32 s28, s2, 12"); a(f"s_add_u32 s28, s28, {o}")
        a.label(lab)
        a(f"s_cmp_lt_u32 s28, {o+n}"); a(f"s_cbranch_scc0 {lab}_e")
        a(f"buffer_store_dwordx4 v[16:19], v12, {W}, s28 offen")
        a(f"s_add_u32 s28, s28, {256*4096}"); a(f"s_branch {lab}")
        a.label(lab+"_e"); a("s_nop 1")
    a("s_cmp_eq_u32 s2, 255"); a("s_cbranch_scc0 L_end")
    for half in range(2):
        a(f"v_add_u32 v13, {256*half}, v0")
        a("v_cmp_gt_u32 vcc, 448, v13"); a("s_and_saveexec_b64 s[24:25], vcc")
        a("v_and_b32 v14, 7, v13"); a("v_mul_u32_u24 v14, 896, v14"); a("v_lshrrev_b32 v15, 3, v13"); a("v_lshlrev_b32 v15, 4, v15"); a("v_add_u32 v14, v14, v15")
        a(f"buffer_load_dwordx4 v[16:19], v14, {S4(52)}, 0 offen"); a("s_waitcnt vmcnt(0)")
        a("v_lshlrev_b32 v15, 4, v13"); a(f"s_mov_b32 s28, {LY.MEM}"); a(f"buffer_store_dwordx4 v[16:19], v15, {W}, s28 offen")
        a(f"s_mov_b32 s28, {LY.MEMX}"); a(f"buffer_store_dwordx4 v[16:19], v15, {W}, s28 offen"); a("s_nop 1")
        a("s_mov_b64 exec, s[24:25]")
    a.label("L_end"); a("s_waitcnt vmcnt(0)")
    return a.text()
```

```python
from common_k import *
L_H0=0; L_H1=28672
K1_LDS=2*28672
def producer(a, WS, st="", nseg=32, flags=False):
    W=S4(WS)
    a("s_and_b32 s21, s20, 1")
    a("s_lshr_b32 s23, s20, 1"); a("s_lshl_b32 s23, s23, 2"); a("s_add_u32 s23, s23, s22")
    a("v_and_b32 v2, 31, v1"); a("v_lshrrev_b32 v3, 5, v1")
    a("v_and_b32 v4, 0x13, v2"); a("v_bfe_u32 v5, v2, 2, 1"); a("v_lshlrev_b32 v5, 3, v5"); a("v_or_b32 v4, v4, v5")
    a("v_bfe_u32 v5, v2, 3, 1"); a("v_lshlrev_b32 v5, 2, v5"); a("v_or_b32 v4, v4, v5")
    a("s_cmp_lt_u32 s23, 224"); a("s_cselect_b64 vcc, -1, 0"); a("s_cselect_b32 s24, 1, 0")
    a("s_nop 1")
    a("v_cndmask_b32 v6, v2, v4, vcc")
    a("v_cndmask_b32 v7, v4, v2, vcc")
    a("v_mul_u32_u24 v6, 896, v6"); a("v_lshlrev_b32 v5, 4, v3"); a("v_add_u32 v6, v6, v5")
    a(f"s_mul_i32 s25, s23, {32*896}"); a(f"s_add_u32 s25, s25, {LY.WP}")
    WR=32
    for kk in range(28): a(f"buffer_load_dwordx4 {vr(WR+4*kk,4)}, v6, {W}, s25 offen offset:{kk*32}")
    a("v_lshlrev_b32 v8, 9, v3"); a("v_lshlrev_b32 v5, 4, v7"); a("v_add_u32 v8, v8, v5")
    a("v_lshrrev_b32 v10, 4, v2"); a("v_and_b32 v11, 15, v2"); a("v_lshlrev_b32 v12, 4, v3"); a("v_add_u32 v11, v11, v12"); a("v_lshlrev_b32 v11, 4, v11")
    a("v_lshlrev_b32 v12, 10, v10"); a("v_lshlrev_b32 v13, 14, v10"); a("v_cndmask_b32 v12, v13, v12, vcc"); a("v_add_u32 v9, v11, v12")
    a("s_cmp_lt_u32 s23, 224"); a("s_cselect_b32 s28, 0, 224"); a("s_sub_u32 s28, s23, s28")
    a("s_mul_i32 s29, s28, 4682"); a("s_lshr_b32 s29, s29, 16")
    a("s_mul_i32 s30, s29, 14"); a("s_sub_u32 s30, s28, s30")
    lT=a.newlabel("L_pT"); lJ=a.newlabel("L_pJ")
    a(f"s_cmp_eq_u32 s24, 1"); a(f"s_cbranch_scc1 {lT}")
    a("s_lshl_b32 s26, s30, 15"); a("s_lshl_b32 s31, s29, 10"); a("s_add_u32 s26, s26, s31"); a(f"s_add_u32 s26, s26, {LY.BFRAG}"); a(f"s_mov_b32 s27, {28*16384}")
    a(f"s_branch {lJ}")
    a.label(lT)
    a("s_mul_i32 s26, s29, 28672"); a("s_lshl_b32 s31, s30, 11"); a("s_add_u32 s26, s26, s31"); a(f"s_add_u32 s26, s26, {LY.TFRAG}"); a(f"s_mov_b32 s27, {16*28672}")
    a.label(lJ)
    a("s_mul_i32 s31, s21, s27"); a("s_add_u32 s26, s26, s31"); a("s_lshl_b32 s27, s27, 1")
    a("v_lshlrev_b32 v14, 4, v1")
    a(f"s_mul_i32 s32, s21, 28672"); a(f"s_mul_i32 s31, s22, 7168"); a("s_add_u32 s32, s32, s31"); a(f"s_add_u32 s32, s32, {LY.HPERM}")
    a("s_mov_b32 s33, s31")
    a("s_mov_b32 s34, 0")
    def dma():
        a("s_add_u32 s35, s33, s34"); a("s_mov_b32 m0, s35"); a("s_nop 0")
        for i in range(4): a(f"buffer_load_dwordx4 v14, {W}, s32 offen offset:{i*1024} lds")
        a("s_add_u32 s35, s35, 4096"); a("s_add_u32 s36, s32, 4096"); a("s_mov_b32 m0, s35"); a("s_nop 0")
        for i in range(3): a(f"buffer_load_dwordx4 v14, {W}, s36 offen offset:{i*1024} lds")
        a(f"s_add_u32 s32, s32, {2*28672}")
    dma()
    if flags:
        import common_k as CK
        if CK.NONCE:
            a(f"v_mov_b32 v16, s{S_N}"); a("v_mov_b32 v17, 0"); a("s_lshl_b32 s38, s21, 9"); a("s_lshr_b32 s39, s20, 1"); a("s_lshl_b32 s39, s39, 2"); a("s_add_u32 s38, s38, s39"); a(f"s_add_u32 s38, s38, {LY.PF}")
        else:
            a("v_mov_b32 v16, 1"); a("v_mov_b32 v17, 0"); a("s_lshl_b32 s38, s21, 7"); a(f"s_add_u32 s38, s38, {LY.PCNT}")
        PST=(lambda: f"buffer_store_dword v16, v17, {W}, s38 offen sc1") if CK.NONCE else (lambda: f"buffer_atomic_add v16, v17, {W}, s38 offen sc1")
        PINC=1024 if CK.NONCE else 256
    a("s_mov_b32 s37, 0")
    ACC=144; TB=160; OUT=176
    lab=a.newlabel("L_pl")
    a("s_waitcnt vmcnt(0)")
    a.label(lab)
    a("s_waitcnt vmcnt(2)")
    a("s_barrier")
    if flags:
        lf=a.newlabel("L_pf")
        a("s_cmp_ge_u32 s37, 2"); a(f"s_cbranch_scc0 {lf}"); a("s_cmp_eq_u32 s22, 0"); a(f"s_cbranch_scc0 {lf}")
        a("s_mov_b64 exec, 1"); a(PST()); a("s_mov_b64 exec, -1"); a(f"s_add_u32 s38, s38, {PINC}")
        a.label(lf)
    a(f"v_add_u32 v15, s34, v8")
    a("s_xor_b32 s34, s34, 28672")
    l2=a.newlabel("L_pn")
    a(f"s_cmp_lt_u32 s37, {nseg-1}"); a(f"s_cbranch_scc0 {l2}")
    dma()
    a.label(l2)
    for r in range(ACC,ACC+16): a(f"v_mov_b32 v{r}, 0")
    for variant in (1,0):
        lv=a.newlabel("L_pv")
        if variant==1: a(f"s_cmp_eq_u32 s24, 1"); a(f"s_cbranch_scc0 {lv}_b")
        else: a.label(f"{prev}_b")
        for k in range(2): a(f"ds_read_b128 {vr(TB+4*k,4)}, v15 offset:{k*1024}")
        for kk in range(28):
            if kk+2<28: a(f"ds_read_b128 {vr(TB+4*((kk+2)%3),4)}, v15 offset:{(kk+2)*1024}")
            a(f"s_waitcnt lgkmcnt({min(2,27-kk)})")
            t=vr(TB+4*(kk%3),4); w=vr(WR+4*kk,4)
            x,y=(w,t) if variant==1 else (t,w)
            a(f"v_mfma_f32_32x32x16_bf16 {vr(ACC,16)}, {x}, {y}, {vr(ACC,16)}")
        if variant==1: a(f"s_branch {lv}_j"); prev=lv; jl=lv
    a.label(f"{jl}_j")
    a.nop(16)
    for r in range(8): a(f"v_cvt_pk_bf16_f32 v{OUT+r}, v{ACC+2*r}, v{ACC+2*r+1}")
    a(f"buffer_store_dwordx4 {vr(OUT,4)}, v9, {W}, s26 offen {st}"); a(f"buffer_store_dwordx4 {vr(OUT+4,4)}, v9, {W}, s26 offen offset:512 {st}")
    a("s_add_u32 s26, s26, s27")
    a("s_add_u32 s37, s37, 1"); a(f"s_cmp_lt_u32 s37, {nseg}"); a(f"s_cbranch_scc1 {lab}")
    if flags:
        a("s_waitcnt vmcnt(0)"); a("s_barrier")
        lf=a.newlabel("L_pe")
        a("s_cmp_eq_u32 s22, 0"); a(f"s_cbranch_scc0 {lf}")
        a("s_mov_b64 exec, 1"); a(PST()); a(f"s_add_u32 s38, s38, {PINC}"); a(PST()); a("s_mov_b64 exec, -1")
        a.label(lf)
def gen_k1():
    a=Asm()
    a("s_cmp_lt_u32 s2, 224"); a("s_cbranch_scc0 L_end")
    a("v_and_b32 v1, 63, v0"); a("v_lshrrev_b32 v2, 6, v0"); a("s_nop 0"); a("v_readfirstlane_b32 s22, v2")
    srds(a,[(16,'ws')])
    a("s_mov_b32 s20, s2")
    producer(a,16)
    a.label("L_end"); a("s_waitcnt vmcnt(0)")
    return a.text()
```

```python
S=2048; D=448; H=16; DH=256; NSEG=64; SEG=32; M=8; F=1792
def al(x,a=4096): return (x+a-1)//a*a
off=0
def alloc(n):
    global off
    o=off; off=al(off+n); return o
WP    = alloc(14336*896)
HFRAG = alloc(64*28672)
HPERM = alloc(64*28672)
MOD   = alloc(2688*4)
MEM   = alloc(65*7168)
PX    = alloc(64*16*512)
PM    = alloc(64*4*512)
TFRAG = alloc(64*16*28672)
BFRAG = alloc(64*28*16*1024)
MFRAG = alloc(64*28*4*1024)
PFX   = alloc(64*2*16*1024)
PFM   = alloc(64*2*4*1024)
X1    = alloc(2048*448*4)
H2    = alloc(2048*896)
R     = alloc(2048*4)
ACT   = alloc(2*1792*4)
ACTB  = alloc(2*1792*4)
MISC  = alloc(65536)
MEMX  = alloc(64*7168+8192)
MFL   = alloc(64*28*4*1024)
CNT   = alloc(3*64*128+16*128+2*64*64+64*128)
STATS = alloc(64*7*32*16)
FLG   = alloc(64*512+64*2048+64*64+8192+2048+1024+1024)
DBGS  = alloc(1<<20)
PCNT=CNT; MCNT=CNT+64*128; XCNT=CNT+128*128; RCNT=CNT+192*128; LFLAG=CNT+208*128; BRDY=LFLAG+64*64; GWC=BRDY+64*64; LNCC=GWC+32*128; MODC=LNCC+8*128; CNTB=3*64*128+16*128+2*64*64+64*128
PF=FLG; MFF=PF+64*512; BRF=MFF+64*2048; MODF=BRF+64*64; GWF=MODF+8192; LNF=GWF+2048; FILLF=LNF+1024
TOTAL = off
if __name__=="__main__":
    for k,v in list(globals().items()):
        if k.isupper(): print(k,v)
```

```python
import os
from common_k import *
import rec, k1, xf, tail, k0n, k0p
import common_k as CK
from rec import S_WS,S_DBG,S_WAVE,S_RANK,S_XCC,S_FAIL,S_EX,L_RANK
TEAM_XCC=0
S_MODE=42
def dispatch(a, fk0=False):
    a("s_cmp_lt_u32 s2, 256"); a("s_cbranch_scc0 L_exit")
    if fk0:
        a("s_load_dwordx2 s[18:19], s[0:1], 128")
        a(f"s_getreg_b32 s{S_XCC}, hwreg(HW_REG_XCC_ID)"); a(f"s_and_b32 s98, s{S_XCC}, 7")
        a("s_waitcnt lgkmcnt(0)")
        rec.srd(a, 92, 18, WS_BYTES)
        a("s_lshl_b32 s96, s98, 7"); a(f"s_add_u32 s96, s96, {LY.RCNT}")
        a("v_mov_b32 v254, s96"); a("v_mov_b32 v255, 1")
        a("v_cmp_eq_u32 vcc, 0, v0"); a("s_and_saveexec_b64 s[96:97], vcc")
        lz=a.newlabel("L_ra"); a(f"s_cbranch_execz {lz}")
        a("buffer_atomic_add v255, v254, s[92:95], 0 offen sc0 sc1")
        a.label(lz); a("s_mov_b64 exec, s[96:97]")
        k0p.k0_body(a, 84, os.environ.get("K0ST","sc1"), True, 76)
        a("s_waitcnt vmcnt(0)"); a("s_barrier")
        a(f"s_mov_b32 s{S_XCC}, s98")
    a("s_load_dwordx2 s[16:17], s[0:1], 128")
    if not fk0: a(f"s_getreg_b32 s{S_XCC}, hwreg(HW_REG_XCC_ID)"); a(f"s_and_b32 s{S_XCC}, s{S_XCC}, 7")
    a("v_lshrrev_b32 v2, 6, v0"); a("v_and_b32 v1, 63, v0")
    a("s_waitcnt lgkmcnt(0)")
    rec.srd(a, S_WS, 16, WS_BYTES)
    a(f"v_readfirstlane_b32 s{S_WAVE}, v2"); a("s_nop 3")
    D=f"s[{S_WS}:{S_WS+3}]"
    a(f"s_cmp_eq_u32 s{S_WAVE}, 0"); a("s_cbranch_scc0 L_norank")
    if fk0:
        a("v_readfirstlane_b32 s24, v255")
        a(f"s_mov_b32 s23, {LY.RCNT}"); a("v_and_b32 v7, 7, v1"); a("v_lshlrev_b32 v7, 7, v7")
    else:
        a(f"s_mov_b32 s23, {LY.RCNT}")
        a(f"s_lshl_b32 s24, s{S_XCC}, 7"); a("v_mov_b32 v4, s24"); a("v_mov_b32 v5, 1")
        a("s_mov_b64 exec, 1")
        a(f"buffer_atomic_add v5, v4, {D}, s23 offen sc0 sc1"); a("s_waitcnt vmcnt(0)")
        a("s_mov_b64 exec, -1")
        a("v_readfirstlane_b32 s24, v5")
        a("v_and_b32 v7, 7, v1"); a("v_lshlrev_b32 v7, 7, v7")
    a("s_mov_b32 s21, 0")
    a.label("L_dw")
    a(f"buffer_load_dword v9, v7, {D}, s23 offen sc1"); a("s_waitcnt vmcnt(0)")
    for x in range(8): a(f"v_readlane_b32 s{60+x}, v9, {x}")
    a("s_nop 3")
    a(f"s_cmp_eq_u32 s{S_XCC}, {TEAM_XCC}"); a("s_cbranch_scc0 L_dsum")
    a(f"s_cmp_ge_u32 s{60+TEAM_XCC}, 32"); a("s_cbranch_scc0 L_dsum")
    a("s_cmp_lt_u32 s24, 32"); a("s_cbranch_scc0 L_dsum")
    a("s_mov_b32 s28, 0"); a("s_mov_b32 s29, s24"); a("s_branch L_dteam")
    a.label("L_dsum")
    a("s_add_u32 s25, s60, s61")
    for x in range(2,8): a(f"s_add_u32 s25, s25, s{60+x}")
    a("s_cmp_ge_u32 s25, 256"); a("s_cbranch_scc1 L_dall")
    a("s_sleep 2"); a("s_add_u32 s21, s21, 1"); a(f"s_cmp_lt_u32 s21, {POLL_MAX}"); a("s_cbranch_scc1 L_dw")
    a.label("L_dall")
    a(f"s_cmp_ge_u32 s{60+TEAM_XCC}, 32"); a("s_cselect_b32 s28, 0, 1")
    order=[TEAM_XCC]+[x for x in range(8) if x!=TEAM_XCC]
    a("s_mov_b32 s26, 0"); a("s_mov_b32 s27, 0")
    for x in order:
        a(f"s_cmp_eq_u32 s{S_XCC}, {x}"); a("s_cselect_b32 s27, s26, s27"); a(f"s_add_u32 s26, s26, s{60+x}")
    a("s_add_u32 s27, s27, s24")
    a("s_mov_b32 s30, 32")
    a("s_cmp_lt_u32 s27, s30"); a("s_cbranch_scc0 L_dwork")
    a("s_mov_b32 s29, s27"); a("s_branch L_dteam")
    a.label("L_dwork")
    a("s_sub_u32 s29, s27, s30"); a("s_add_u32 s29, s29, 64")
    a.label("L_dteam")
    a("v_mov_b32 v12, s29"); a("v_mov_b32 v13, s28"); a(f"v_mov_b32 v6, {L_RANK}"); a("ds_write_b64 v6, v[12:13]"); a("s_waitcnt lgkmcnt(0)")
    a.label("L_norank")
    a("s_barrier")
    a(f"v_mov_b32 v6, {L_RANK}"); a("ds_read_b64 v[4:5], v6"); a("s_waitcnt lgkmcnt(0)"); a("s_nop 0")
    a(f"v_readfirstlane_b32 s{S_RANK}, v4"); a(f"v_readfirstlane_b32 s{S_MODE}, v5"); a("s_nop 3")
    a(f"s_mov_b32 s{S_FAIL}, 0")


def dispatch_nonce(a):
    a("s_cmp_lt_u32 s2, 256"); a("s_cbranch_scc0 L_exit")
    a("s_load_dwordx2 s[18:19], s[0:1], 120"); a("s_load_dwordx2 s[90:91], s[0:1], 128")
    a(f"s_getreg_b32 s98, hwreg(HW_REG_XCC_ID)"); a("s_and_b32 s98, s98, 7")
    a("s_memrealtime s[96:97]")
    a("s_waitcnt lgkmcnt(0)")
    a("s_mov_b32 s92, s90"); a("s_and_b32 s93, s91, 0xffff"); a(f"s_mov_b32 s94, {WS_BYTES}"); a("s_mov_b32 s95, 0x20000")
    rec.srd(a, 8, 18, 256)
    a("s_lshr_b32 s96, s96, 2"); a("s_add_u32 s96, s96, s2"); a("s_and_b32 s96, s96, 15"); a("s_lshl_b32 s96, s96, 3"); a("s_or_b32 s96, s96, s98"); a("s_or_b32 s96, s96, 0x80")
    a("v_mov_b32 v254, s2"); a("v_mov_b32 v255, s96")
    a("v_cmp_eq_u32 vcc, 0, v0"); a("s_and_saveexec_b64 s[96:97], vcc")
    lz=a.newlabel("L_ra"); a(f"s_cbranch_execz {lz}")
    a("buffer_store_byte v255, v254, s[8:11], 0 offen sc1")
    a.label(lz); a("s_mov_b64 exec, s[96:97]")
    k0p.k0_body(a, 84, "sc1", True, 76)
    a("s_waitcnt vmcnt(0)"); a("s_barrier")
    a("s_load_dwordx2 s[16:17], s[0:1], 128"); a("s_load_dwordx2 s[18:19], s[0:1], 120")
    a("v_lshrrev_b32 v2, 6, v0"); a("v_and_b32 v1, 63, v0")
    a("s_waitcnt lgkmcnt(0)")
    rec.srd(a, S_WS, 16, WS_BYTES); rec.srd(a, S_DBG, 18, 256)
    a(f"v_readfirstlane_b32 s{S_WAVE}, v2"); a(f"s_mov_b32 s{S_XCC}, s98")
    get_nonce(a, f"s[{S_DBG}:{S_DBG+3}]", 8, 21, 24)
    a("v_lshlrev_b32 v7, 2, v1"); a("s_mov_b32 s21, 0")
    a.label("L_dw")
    a(f"buffer_load_dword v9, v7, s[{S_DBG}:{S_DBG+3}], 0 offen sc1"); a("s_waitcnt vmcnt(0)")
    a("v_and_b32 v10, 0x80808080, v9"); a("v_cmp_ne_u32 vcc, 0x80808080, v10"); a("s_cbranch_vccz L_dall")
    a("s_sleep 1"); a("s_add_u32 s21, s21, 1"); a(f"s_cmp_lt_u32 s21, {POLL_MAX}"); a("s_cbranch_scc1 L_dw")
    a.label("L_dall")
    for j in range(4):
        a(f"v_bfe_u32 v10, v9, {8*j}, 3"); a(f"v_cmp_eq_u32 s[{60+2*j}:{61+2*j}], {TEAM_XCC}, v10")
    a("s_nop 3")
    a("s_mov_b32 s24, 0")
    a("s_mov_b32 s25, 0")
    a("s_lshr_b32 s26, s2, 2"); a("s_and_b32 s27, s2, 3")
    a("s_bfm_b64 s[70:71], s26, 0")
    for j in range(4):
        a(f"s_bcnt1_i32_b64 s28, s[{60+2*j}:{61+2*j}]"); a("s_add_u32 s24, s24, s28")
        a(f"s_and_b64 s[72:73], s[{60+2*j}:{61+2*j}], s[70:71]"); a("s_bcnt1_i32_b64 s28, s[72:73]"); a("s_add_u32 s25, s25, s28")
        a(f"s_lshr_b64 s[72:73], s[{60+2*j}:{61+2*j}], s26"); a("s_and_b32 s28, s72, 1"); a(f"s_cmp_gt_u32 s27, {j}"); a("s_cselect_b32 s28, s28, 0"); a("s_add_u32 s25, s25, s28")
    a("s_cmp_ge_u32 s24, 32"); a("s_cselect_b32 s28, 0, 1")
    a("s_cmp_eq_u32 s28, 0"); a("s_cbranch_scc0 L_dslow")
    a(f"s_cmp_eq_u32 s{S_XCC}, {TEAM_XCC}"); a("s_cselect_b32 s30, 1, 0"); a("s_cmp_lt_u32 s25, 32"); a("s_cselect_b32 s30, s30, 0")
    a("s_min_u32 s31, s25, 32")
    a("s_cmp_eq_u32 s30, 1"); a("s_cbranch_scc0 L_dw2")
    a(f"s_mov_b32 s{S_RANK}, s25"); a("s_branch L_dfin")
    a.label("L_dw2")
    a("s_sub_u32 s29, s2, s31"); a(f"s_add_u32 s{S_RANK}, s29, 64"); a("s_branch L_dfin")
    a.label("L_dslow")
    a("s_cmp_lt_u32 s2, 32"); a("s_cbranch_scc0 L_ds2")
    a(f"s_mov_b32 s{S_RANK}, s2"); a("s_branch L_dfin")
    a.label("L_ds2")
    a(f"s_add_u32 s{S_RANK}, s2, 32")
    a.label("L_dfin")
    a(f"s_mov_b32 s{S_MODE}, s28"); a(f"s_mov_b32 s{S_FAIL}, 0")

def wait_lines(a, base, nlines, target, t=(7,9), from6=False, soff=None):
    lab=a.newlabel("L_wd"); x,y=t
    if from6: a(f"v_lshrrev_b32 v{x}, 4, v6")
    else: a(f"v_mov_b32 v{x}, v1")
    a(f"v_min_u32 v{x}, {nlines-1}, v{x}"); a(f"v_lshlrev_b32 v{x}, 7, v{x}"); a("s_mov_b32 s21, 0")
    if soff is None: a(f"s_mov_b32 s99, {base}"); so="s99"
    else: so=f"s{soff}"
    a.label(lab)
    a(f"buffer_load_dword v{y}, v{x}, s[92:95], {so} offen sc1"); a("s_waitcnt vmcnt(0)")
    a(f"v_cmp_gt_u32 vcc, {target}, v{y}"); a(f"s_cbranch_vccz {lab}_ok")
    a("s_sleep 2"); a("s_add_u32 s21, s21, 1"); a(f"s_cmp_lt_u32 s21, {POLL_MAX}"); a(f"s_cbranch_scc1 {lab}")
    a.label(lab+"_ok")

FK0=False
def worker(a):
    a(f"s_sub_u32 s41, s{S_RANK}, 64"); a(f"s_mov_b32 s22, s{S_WAVE}"); a("s_mov_b32 s78, s41")
    a("s_cmp_lt_u32 s41, 224"); a("s_cbranch_scc0 L_exit")
    srds(a,[(16,'ws'),(12,'x'),(44,'out'),(48,'wr')], tmp0=60)
    if CK.NONCE:
        a(f"s_mov_b32 s34, {LY.GWF}"); wait_flags(a, S4(16), 34, 256, 7, 8, "v_mov_b32 v7, v1", 21)
        a(f"s_mov_b32 s34, {LY.LNF}"); wait_flags(a, S4(16), 34, 256, 7, 8, "v_mov_b32 v7, v1", 21)
        a("v_lshlrev_b32 v12, 4, v0")
        for r in range(16,20): a(f"v_mov_b32 v{r}, -1")
        for (o,n,val) in k0p.REGL:
            n=(n+4095)//4096*4096
            lab=a.newlabel("L_lf")
            a(f"s_lshl_b32 s28, s41, 12"); a(f"s_add_u32 s28, s28, {o}")
            a.label(lab)
            a(f"s_cmp_lt_u32 s28, {o+n}"); a(f"s_cbranch_scc0 {lab}_e")
            a(f"buffer_store_dwordx4 v[16:19], v12, {S4(16)}, s28 offen sc1")
            a(f"s_add_u32 s28, s28, {224*4096}"); a(f"s_branch {lab}")
            a.label(lab+"_e")
        a("s_nop 1")
    elif FK0: wait_lines(a,LY.GWC,32,8); wait_lines(a,LY.LNCC,8,32)
    a("s_mov_b32 s20, s41")
    k1.producer(a,16,st="sc1",flags=True)
    if CK.NONCE:
        lf=a.newlabel("L_ff")
        a("s_cmp_eq_u32 s22, 0"); a(f"s_cbranch_scc0 {lf}")
        a("s_lshl_b32 s28, s41, 2"); a(f"s_add_u32 s28, s28, {LY.FILLF}"); set_flag(a, S4(16), 28, 16, 17)
        a.label(lf)
        a(f"s_mov_b32 s34, {LY.FILLF}"); wait_flags(a, S4(16), 34, 224, 7, 8, "v_mov_b32 v7, v1", 21)
    if rec.STAMP=='lane': a("s_memrealtime s[74:75]"); a("s_waitcnt lgkmcnt(0)")
    a("s_mov_b32 s40, s41")
    a.label("L_task")
    a("s_cmp_lt_u32 s40, 704"); a("s_cbranch_scc0 L_wdone")
    a("s_barrier")
    a("s_mul_i32 s20, s40, 5958"); a("s_lshr_b32 s20, s20, 16"); a("s_mul_i32 s21, s20, 11"); a("s_sub_u32 s21, s40, s21")
    a("s_cmp_lt_u32 s21, 4"); a("s_cbranch_scc0 L_tx2")
    xf.x1_task(a,16,ld="sc1",st="sc1",fused=True)
    a("s_branch L_tnext")
    a.label("L_tx2")
    a("s_sub_u32 s21, s21, 4")
    xf.x23_task(a,16,12,44,48)
    a.label("L_tnext")
    a("s_waitcnt vmcnt(0)")
    wst(a,3)
    a("s_add_u32 s40, s40, 224"); a("s_branch L_task")
    a.label("L_wdone")
    a("s_barrier")
    a("s_cmp_ge_u32 s41, 32"); a("s_cbranch_scc0 L_tdone"); a("s_cmp_lt_u32 s41, 200"); a("s_cbranch_scc0 L_tdone")
    srds(a,[(8,'wg'),(12,'wu'),(48,'wd')], tmp0=60)
    a("s_cmp_lt_u32 s41, 144"); a("s_cbranch_scc0 L_tdown")
    a("s_sub_u32 s43, s41, 32")
    tail.gateup_job(a,16,8,12,43)
    a("s_branch L_tdone")
    a.label("L_tdown")
    a("s_sub_u32 s43, s41, 144")
    tail.down_job(a,16,48,44,43)
    a.label("L_tdone")

def gen_main(timing=False, fk0=False):
    a=Asm()
    rec.FUSED=True
    global FK0
    FK0=fk0
    if rec.STAMP=='lane': a("s_memrealtime s[100:101]")
    if CK.NONCE: dispatch_nonce(a)
    else: dispatch(a, fk0)
    if rec.STAMP=='lane': a("s_memrealtime s[72:73]"); a("s_waitcnt lgkmcnt(0)"); a("s_mov_b32 s70, s100")
    a(f"s_cmp_ge_u32 s{S_RANK}, 64"); a("s_cbranch_scc1 L_worker")
    if CK.NONCE:
        W4=f"s[{S_WS}:{S_WS+3}]"
        lw=a.newlabel("L_tw")
        a(f"s_cmp_lt_u32 s{S_RANK}, 16"); a(f"s_cbranch_scc0 {lw}")
        a(f"s_lshl_b32 s99, s{S_RANK}, 5"); a(f"s_add_u32 s99, s99, {LY.GWF}")
        wait_flags(a, W4, 99, 8, 8, 10, "v_mov_b32 v8, v1", 21, sleep=1)
        a(f"s_branch {lw}_e")
        a.label(lw)
        a(f"s_mov_b32 s99, {LY.GWF+512}"); wait_flags(a, W4, 99, 128, 8, 10, "v_mov_b32 v8, v1", 21, sleep=1)
        a.label(lw+"_e")
        rec.lane_consts(a)
        def pre():
            a(f"s_mov_b32 s99, {LY.GWF}"); wait_flags(a, W4, 99, 256, 80, 84, "v_lshrrev_b32 v80, 4, v6", 21, sleep=1)
            a(f"s_mov_b32 s99, {LY.LNF}"); wait_flags(a, W4, 99, 256, 80, 84, "v_lshrrev_b32 v80, 4, v6", 21, sleep=1)
        rec.PRESTART=pre
    else:
        if fk0:
            lw=a.newlabel("L_tw")
            a(f"s_cmp_lt_u32 s{S_RANK}, 16"); a(f"s_cbranch_scc0 {lw}")
            a(f"s_lshl_b32 s99, s{S_RANK}, 7"); a(f"s_add_u32 s99, s99, {LY.GWC}")
            wait_lines(a,0,1,8,soff=99)
            a(f"s_branch {lw}_e")
            a.label(lw)
            wait_lines(a,LY.GWC+16*128,16,8)
            a.label(lw+"_e")
        rec.lane_consts(a)
        rec.PRESTART=(lambda: wait_lines(a,LY.LNCC,8,32,(80,81),True)) if fk0 else None
    a(f"s_cmp_ge_u32 s{S_RANK}, 30"); a("s_cbranch_scc1 L_pref")
    a(f"s_cmp_eq_u32 s{S_MODE}, 0"); a("s_cbranch_scc0 L_slowteam")
    for slow in (False,True):
        rec.SLOW=slow; rec.TAG="_s" if slow else "_f"
        if slow: a.label("L_slowteam")
        a(f"s_cmp_ge_u32 s{S_RANK}, 16"); a(f"s_cbranch_scc1 L_value{rec.TAG}")
        rec.LANEREG={0:2,1:1,6:0}
        rec.score_role(a, timing, 0)
        a.label(f"L_value{rec.TAG}")
        rec.LANEREG={4:184,7:185,int(os.environ.get("VST","1")):186}; rec.VALREGS=(184,185,186,186)
        rec.value_role(a, timing, 0)
    rec.SLOW=False; rec.TAG=""
    a.label("L_pref")
    rec.prefetch_role(a, ahead=rec.EXP.get('ahead',3))
    a.label("L_worker")
    worker(a)
    if rec.STAMP=='lane': a("s_branch L_wfin")
    a.label("L_fin")
    if rec.STAMP=='lane':
        a(f"s_cmp_ge_u32 s{S_RANK}, 30"); a("s_cbranch_scc1 L_wfin")
        a("s_memtime s[88:89]"); a("s_memrealtime s[90:91]"); a("s_waitcnt lgkmcnt(0)")
        rec.stamp_out(a)
    a.label("L_wfin")
    if rec.STAMP=='lane':
        a("s_memrealtime s[76:77]"); a("s_waitcnt lgkmcnt(0)")
        a("v_mov_b32 v20, s70"); a("v_mov_b32 v21, s72"); a("v_mov_b32 v22, s74"); a("v_mov_b32 v23, s76"); a(f"v_mov_b32 v24, s{S_RANK}"); a(f"v_mov_b32 v25, s{S_XCC}")
        for k in range(8): a(f"v_mov_b32 v{32+k}, s{80+2*k}")
        a("v_mov_b32 v40, s78"); a("v_mov_b32 v41, s43"); a("v_mov_b32 v42, s40")
        a("s_lshl_b32 s53, s2, 6"); a(f"s_add_u32 s53, s53, {LY.DBGS+(1<<19)+65536}"); a("v_mov_b32 v26, 0"); a("s_mov_b64 exec, 1")
        a(f"buffer_store_dwordx4 v[32:35], v26, s[{S_WS}:{S_WS+3}], s53 offen"); a(f"buffer_store_dwordx4 v[36:39], v26, s[{S_WS}:{S_WS+3}], s53 offen offset:16"); a(f"buffer_store_dwordx4 v[40:43], v26, s[{S_WS}:{S_WS+3}], s53 offen offset:32")
        a("s_mov_b64 exec, -1")
        a("s_lshl_b32 s52, s2, 5"); a(f"s_add_u32 s52, s52, {LY.DBGS+(1<<19)}"); a("v_mov_b32 v26, 0")
        a("s_mov_b64 exec, 1")
        a(f"buffer_store_dwordx4 v[20:23], v26, s[{S_WS}:{S_WS+3}], s52 offen"); a(f"buffer_store_dwordx2 v[24:25], v26, s[{S_WS}:{S_WS+3}], s52 offen offset:16")
        a("s_mov_b64 exec, -1")
    a("s_waitcnt vmcnt(0)")
    a.label("L_exit")
    rec.FUSED=False
    return a.text()
if __name__=="__main__":
    rec.EXP={'warmP':1,'maskP':1,'p2B':1,'pf':1}
    print(len(gen_main().splitlines()))
```

```python
from asmlib import *
import layout as LY
import common_k as CK

WS_BYTES = 268435456
OOB = 0x20000000
S_WS=4; S_DBG=8; S_WAVE=12; S_RANK=13; S_STEP=14; S_MEMOFF=15
S_XCC=20; S_CNT=21; S_FAIL=22; S_EX=24
S_PX=26; S_PM=27; S_XS=28; S_BF=29; S_MF=30; S_MST=31
S_T0=32; S_T1=33; S_T2=34; S_T3=35
POLL_MAX=400000
L_MEM=0; L_STAG=8192; L_SB=15360; L_XS=20480
L_RED=8192; L_U=16384
L_RANK=150000
LDS_BYTES=150016+64

STAMP=False
EXP={}
FUSED=False
SLOW=False
TAG=''
def XST(): return 'sc1' if SLOW else ''
def LB(n): return n+TAG
S_PC=37; S_MC=38; S_MX=39
LANEREG={}
PRESTART=None
VALREGS=(12,13,14,15)
def stamp(a,k):
    if STAMP=='lane':
        if k in LANEREG:
            a("s_memrealtime s[50:51]"); a("s_waitcnt lgkmcnt(0)"); a(f"s_mov_b32 m0, s{S_STEP}"); a("s_nop 0"); a(f"v_writelane_b32 v{LANEREG[k]}, s50, m0")
        return
    if STAMP=='abs':
        lab=a.newlabel("L_as")
        a(f"s_cmp_eq_u32 s{S_STEP}, 30"); a(f"s_cbranch_scc0 {lab}")
        a("s_memrealtime s[50:51]"); a("s_waitcnt lgkmcnt(0)"); a(f"s_mov_b32 s{60+k}, s50")
        a.label(lab); return
    if not STAMP: return
    a("s_memtime s[50:51]"); a("s_waitcnt lgkmcnt(0)")
    a("s_sub_u32 s52, s50, s53"); a(f"s_add_u32 s{60+k}, s{60+k}, s52"); a("s_mov_b32 s53, s50")
def stamp_init(a):
    if STAMP=='lane': return
    if not STAMP: return
    for k in range(16): a(f"s_mov_b32 s{60+k}, 0")
    a("s_memtime s[50:51]"); a("s_waitcnt lgkmcnt(0)"); a("s_mov_b32 s53, s50")
def stamp_out(a):
    if STAMP=='lane':
        a(f"s_lshl_b32 s52, s{S_RANK}, 2"); a(f"s_add_u32 s52, s52, s{S_WAVE}"); a("s_lshl_b32 s52, s52, 10"); a(f"s_add_u32 s52, s52, {LY.DBGS}")
        a("v_lshrrev_b32 v99, 2, v6")
        lab=a.newlabel("L_so")
        a(f"s_cmp_ge_u32 s{S_RANK}, 16"); a(f"s_cbranch_scc1 {lab}")
        for i,r in enumerate((2,1,0,0)): a(f"buffer_store_dword v{r}, v99, s[{S_WS}:{S_WS+3}], s52 offen offset:{256*i}")
        a(f"s_branch {lab}_e")
        a.label(lab)
        for i,r in enumerate(VALREGS): a(f"buffer_store_dword v{r}, v99, s[{S_WS}:{S_WS+3}], s52 offen offset:{256*i}")
        a.label(lab+"_e")
        return
    if not STAMP: return
    a(f"s_lshl_b32 s52, s{S_RANK}, 2"); a(f"s_add_u32 s52, s52, s{S_WAVE}"); a("s_lshl_b32 s52, s52, 6"); a(f"s_add_u32 s52, s52, {LY.MISC}")
    for k in range(16): a(f"v_mov_b32 v{100+k}, s{60+k}")
    a("v_mov_b32 v99, 0")
    a("v_cmp_eq_u32 vcc, 0, v1"); a(f"s_and_saveexec_b64 s[{S_EX}:{S_EX+1}], vcc")
    for k in range(4): a(f"buffer_store_dwordx4 v[{100+4*k}:{103+4*k}], v99, s[{S_WS}:{S_WS+3}], s52 offen offset:{16*k}")
    a(f"s_mov_b64 exec, s[{S_EX}:{S_EX+1}]")

def MINC(): return 2048 if CK.NONCE else 128
def MSIG(W,so): return (f"buffer_store_dword v0, v1, {W}, s{so} offen sc1" if CK.NONCE else f"buffer_atomic_add v0, v1, {W}, s{so} offen sc1")
def srd(a, d, b, n):
    a(f"s_mov_b32 s{d}, s{b}"); a(f"s_and_b32 s{d+1}, s{b+1}, 0xffff"); a(f"s_mov_b32 s{d+2}, {n}"); a(f"s_mov_b32 s{d+3}, 0x20000")

def chk_poison(a, regs, t0, t1):
    regs=list(regs)
    a(f"v_max3_u32 v{t0}, v{regs[0]}, v{regs[1]}, v{regs[2]}")
    rest=regs[3:]
    use=[t1,t0]; first=True
    if len(rest)>=3:
        a(f"v_max3_u32 v{t1}, v{rest[0]}, v{rest[1]}, v{rest[2]}"); rest=rest[3:]
        cur=[t0,t1]; k=0
        while len(rest)>=2:
            a(f"v_max3_u32 v{cur[k]}, v{cur[k]}, v{rest[0]}, v{rest[1]}"); rest=rest[2:]; k^=1
        if rest: a(f"v_max3_u32 v{t0}, v{t0}, v{t1}, v{rest[0]}")
        else: a(f"v_max_u32 v{t0}, v{t0}, v{t1}")
    else:
        for r in rest: a(f"v_max_u32 v{t0}, v{t0}, v{r}")
    a(f"v_cmp_eq_u32 vcc, -1, v{t0}")

def poll_loop(a, loads, regs, t0, t1, sleep=0):
    lab=a.newlabel("L_poll"); ok=lab+"_ok"
    a(f"s_mov_b32 s{S_CNT}, 0")
    a.label(lab)
    for l in loads: a(l)
    a("s_waitcnt vmcnt(0)")
    chk_poison(a, regs, t0, t1)
    a(f"s_cbranch_vccz {ok}")
    if sleep: a(f"s_sleep {sleep}")
    a(f"s_add_u32 s{S_CNT}, s{S_CNT}, 1")
    a(f"s_cmp_lt_u32 s{S_CNT}, {POLL_MAX}")
    a(f"s_cbranch_scc1 {lab}")
    a(f"s_mov_b32 s{S_FAIL}, 1")
    a.label(ok)
    if STAMP is True: a(f"s_add_u32 s{72 if len(loads)==2 else 73}, s{72 if len(loads)==2 else 73}, s{S_CNT}")

def poll2(a, mkloads, sets, nregs, t0, t1, cont, gap):
    lab=a.newlabel("L_p2"); done=lab+"_done"
    n=len(mkloads(sets[0]))
    a(f"s_mov_b32 s{S_CNT}, 0")
    for l in mkloads(sets[0]): a(l)
    if gap: a(f"s_sleep {gap}")
    for l in mkloads(sets[1]): a(l)
    a.label(lab)
    for i in range(2):
        a(f"s_waitcnt vmcnt({n})")
        chk_poison(a, range(sets[i],sets[i]+nregs), t0, t1)
        a(f"s_cbranch_vccz {lab}_ok{i}")
        for l in mkloads(sets[i]): a(l)
    a(f"s_add_u32 s{S_CNT}, s{S_CNT}, 1")
    a(f"s_cmp_lt_u32 s{S_CNT}, {POLL_MAX}")
    a(f"s_cbranch_scc1 {lab}")
    a(f"s_mov_b32 s{S_FAIL}, 1")
    a.label(f"{lab}_ok0"); cont(sets[0]); a(f"s_branch {done}")
    a.label(f"{lab}_ok1"); cont(sets[1])
    a.label(done)

def mem_share2(a, PA, PB, t0, t1, gap):
    W=f"s[{S_WS}:{S_WS+3}]"
    def mk(b): return [f"buffer_load_dwordx4 {vr(b,4)}, v4, {W}, s{S_MEMOFF} offen sc1", f"buffer_load_dwordx4 {vr(b+4,4)}, v5, {W}, s{S_MEMOFF} offen sc1"]
    def cont(b):
        stamp(a,0)
        a(f"ds_write_b128 v4, {vr(b,4)} offset:{L_MEM}")
        a(f"ds_write_b128 v4, {vr(b+4,4)} offset:{L_MEM+4096}")
    poll2(a, mk, [PA,PB], 8, t0, t1, cont, gap)
    a("s_waitcnt lgkmcnt(0)")
    a("s_barrier")
    stamp(a,1)

def mem_share(a, P0, t0, t1, sleep=0):
    poll_loop(a, [f"buffer_load_dwordx4 {vr(P0,4)}, v4, s[{S_WS}:{S_WS+3}], s{S_MEMOFF} offen sc1",
                  f"buffer_load_dwordx4 {vr(P0+4,4)}, v5, s[{S_WS}:{S_WS+3}], s{S_MEMOFF} offen sc1"],
              range(P0,P0+8), t0, t1, sleep)
    stamp(a,0)
    a(f"ds_write_b128 v4, {vr(P0,4)} offset:{L_MEM}")
    a(f"ds_write_b128 v4, {vr(P0+4,4)} offset:{L_MEM+4096}")
    a("s_waitcnt lgkmcnt(0)")
    a("s_barrier")
    stamp(a,1)

def lane_consts(a):
    a("v_lshlrev_b32 v4, 4, v0")
    a("v_add_u32 v5, 4096, v4")
    a(f"v_mov_b32 v2, {OOB}")
    a("v_cmp_gt_u32 vcc, 192, v0")
    a("s_nop 1")
    a("v_cndmask_b32 v5, v2, v5, vcc")
    a("v_lshlrev_b32 v6, 4, v1")
    a("v_and_b32 v2, 8, v1"); a("v_cmp_eq_u32 vcc, 0, v2")
    a("v_mov_b32 v3, 0xeeee"); a("v_mov_b32 v2, 0x4444"); a("s_nop 0")
    a("v_cndmask_b32 v3, v3, v2, vcc")

def common_prologue(a, target_xcc=0, nteam=30):
    a("s_load_dwordx2 s[16:17], s[0:1], 128")
    a("s_load_dwordx2 s[18:19], s[0:1], 120")
    a(f"s_getreg_b32 s{S_XCC}, hwreg(HW_REG_XCC_ID)")
    a(f"s_and_b32 s{S_XCC}, s{S_XCC}, 15")
    a("v_lshrrev_b32 v2, 6, v0")
    a("v_and_b32 v1, 63, v0")
    a("s_waitcnt lgkmcnt(0)")
    srd(a, S_WS, 16, WS_BYTES)
    srd(a, S_DBG, 18, 256)
    a(f"v_readfirstlane_b32 s{S_WAVE}, v2")
    a(f"s_cmp_lt_u32 s2, 256"); a("s_cbranch_scc0 L_exit")
    a(f"s_cmp_eq_u32 s{S_XCC}, {target_xcc}"); a("s_cbranch_scc0 L_exit")
    a(f"s_cmp_eq_u32 s{S_WAVE}, 0"); a("s_cbranch_scc0 L_norank")
    a("v_cmp_eq_u32 vcc, 0, v0"); a(f"s_and_saveexec_b64 s[{S_EX}:{S_EX+1}], vcc")
    a("v_mov_b32 v4, 0"); a("v_mov_b32 v5, 1")
    a(f"buffer_atomic_add v5, v4, s[{S_DBG}:{S_DBG+3}], 0 offen sc0")
    a("s_waitcnt vmcnt(0)")
    a(f"v_mov_b32 v6, {L_RANK}"); a("ds_write_b32 v6, v5"); a("s_waitcnt lgkmcnt(0)")
    a(f"s_mov_b64 exec, s[{S_EX}:{S_EX+1}]")
    a.label("L_norank")
    a("s_barrier")
    a(f"v_mov_b32 v6, {L_RANK}"); a("ds_read_b32 v5, v6"); a("s_waitcnt lgkmcnt(0)")
    a("s_nop 0")
    a(f"v_readfirstlane_b32 s{S_RANK}, v5")
    a(f"s_cmp_lt_u32 s{S_RANK}, {nteam}"); a("s_cbranch_scc0 L_exit")
    a(f"s_mov_b32 s{S_FAIL}, 0")
    lane_consts(a)

def gfrag(fi):
    return ar(8*fi,8) if fi<32 else vr(120+8*(fi-32),8)
def gfrag_half(fi,hh):
    return ar(8*fi+4*hh,4) if fi<32 else vr(120+8*(fi-32)+4*hh,4)

def score_role(a, timing=False, sleep=0, nsteps=63):
    MS=16; ACC=44; BJ=72
    W=f"s[{S_WS}:{S_WS+3}]"
    a("v_and_b32 v16, 15, v1")
    a("v_lshrrev_b32 v17, 4, v1")
    a("v_and_b32 v18, 12, v16"); a("v_and_b32 v19, 1, v16"); a("v_lshlrev_b32 v19, 1, v19")
    a("v_bfe_u32 v20, v16, 1, 1"); a("v_or_b32 v18, v18, v19"); a("v_or_b32 v18, v18, v20")
    a("v_mul_u32_u24 v21, 896, v18"); a("v_lshlrev_b32 v22, 5, v17"); a("v_add_u32 v21, v21, v22")
    a(f"s_mul_i32 s{S_T0}, s{S_RANK}, {448*896}")
    a(f"s_mul_i32 s{S_T1}, s{S_WAVE}, {7*16*896}")
    a(f"s_add_u32 s{S_T0}, s{S_T0}, s{S_T1}")
    a(f"s_add_u32 s{S_T0}, s{S_T0}, {LY.WP}")
    n=0
    for t in range(7):
        for ks in range(7):
            fi=t*7+ks
            for hh in range(2):
                a(f"buffer_load_dwordx4 {gfrag_half(fi,hh)}, v21, {W}, s{S_T0} offen offset:{ks*128+hh*16}")
                n+=1
                if n%32==0: a("s_waitcnt vmcnt(24)")
        a(f"s_add_u32 s{S_T0}, s{S_T0}, {16*896}")
    a("v_lshlrev_b32 v7, 4, v16")
    a("v_and_b32 v22, 1, v17"); a("v_lshlrev_b32 v22, 3, v22"); a("v_add_u32 v7, v7, v22")
    a(f"s_mul_i32 s{S_T1}, s{S_WAVE}, {7*256}"); a(f"s_add_u32 s{S_T1}, s{S_T1}, {L_STAG}")
    a(f"v_add_u32 v8, s{S_T1}, v7")
    a("v_lshrrev_b32 v22, 5, v1"); a("v_lshlrev_b32 v22, 8, v22"); a("v_add_u32 v7, v8, v22")
    a("v_lshlrev_b32 v9, 8, v17"); a("v_lshlrev_b32 v22, 3, v16"); a("v_add_u32 v9, v9, v22"); a(f"v_add_u32 v9, {L_STAG}, v9")
    a("v_lshlrev_b32 v10, 9, v17"); a("v_lshlrev_b32 v22, 4, v16"); a("v_add_u32 v10, v10, v22")
    a(f"s_lshl_b32 s{S_T1}, s{S_WAVE}, 8"); a(f"s_add_u32 s{S_T1}, s{S_T1}, {L_XS}"); a(f"v_add_u32 v10, s{S_T1}, v10")
    a("v_lshlrev_b32 v23, 7, v17"); a("v_and_b32 v22, 7, v16"); a("v_lshlrev_b32 v22, 4, v22"); a("v_add_u32 v23, v23, v22")
    if L_MEM: a(f"v_add_u32 v23, {L_MEM}, v23")
    a(f"s_cmp_eq_u32 s{S_WAVE}, 2"); a("s_cselect_b64 vcc, -1, 0"); a("s_nop 1"); a("v_cndmask_b32 v10, v10, v23, vcc")
    a("v_and_b32 v22, 1, v17"); a("v_lshlrev_b32 v22, 2, v22"); a("v_lshrrev_b32 v23, 5, v1"); a("v_add_u32 v22, v22, v23")
    a("v_mul_u32_u24 v11, 192, v22"); a("v_lshlrev_b32 v22, 2, v16"); a("v_add_u32 v11, v11, v22")
    a(f"s_lshl_b32 s{S_T1}, s{S_WAVE}, 6"); a(f"s_add_u32 s{S_T1}, s{S_T1}, {L_SB}"); a(f"v_add_u32 v11, s{S_T1}, v11")
    a("v_lshrrev_b32 v22, 3, v1"); a("v_and_b32 v23, 7, v1")
    a("v_mul_u32_u24 v12, 192, v23"); a(f"v_add_u32 v12, {L_SB}, v12")
    a("v_lshlrev_b32 v24, 2, v22"); a("v_add_u32 v13, v12, v24"); a("v_add_u32 v13, 128, v13")
    a("v_lshlrev_b32 v24, 4, v22"); a("v_add_u32 v12, v12, v24")
    a("v_lshrrev_b32 v24, 1, v22"); a("v_lshlrev_b32 v24, 3, v24"); a("v_add_u32 v24, v24, v23"); a("v_lshlrev_b32 v14, 4, v24")
    a("v_and_b32 v24, 1, v22"); a("v_lshlrev_b32 v24, 3, v24"); a("v_add_u32 v14, v14, v24")
    a("v_lshlrev_b32 v15, 4, v23"); a("v_lshlrev_b32 v24, 1, v22"); a("v_add_u32 v15, v15, v24")
    a(f"s_mov_b32 s{S_STEP}, 0")
    a(f"s_mov_b32 s{S_MEMOFF}, {LY.MEM}")
    a(f"s_lshl_b32 s{S_PX}, s{S_RANK}, 9"); a(f"s_add_u32 s{S_PX}, s{S_PX}, {LY.PX}")
    a(f"s_lshl_b32 s{S_PM}, s{S_RANK}, 7"); a(f"s_add_u32 s{S_PM}, s{S_PM}, {LY.PM}")
    a(f"s_mov_b32 s{S_XS}, {LY.HFRAG}")
    def xs_dma(nw):
        a(f"s_mul_i32 s{S_T0}, s{S_WAVE}, {7*1024}")
        a(f"s_add_u32 s{S_T1}, s{S_T0}, s{S_XS}")
        a(f"s_add_u32 s{S_T0}, s{S_T0}, {L_XS}")
        a(f"s_mov_b32 m0, s{S_T0}"); a("s_nop 0")
        for i in range(4): a(f"buffer_load_dwordx4 v6, {W}, s{S_T1} offen offset:{i*1024} lds")
        a(f"s_add_u32 s{S_T0}, s{S_T0}, 4096"); a(f"s_add_u32 s{S_T1}, s{S_T1}, 4096")
        a(f"s_mov_b32 m0, s{S_T0}"); a("s_nop 0")
        for i in range(3): a(f"buffer_load_dwordx4 v6, {W}, s{S_T1} offen offset:{i*1024} lds")
    if PRESTART:
        a("s_waitcnt vmcnt(0)"); PRESTART()
    xs_dma(4)
    a("s_waitcnt vmcnt(0)")
    if timing: a("s_memtime s[40:41]")
    stamp_init(a)
    a.label(LB("L_sstep"))
    for r in range(ACC,ACC+28): a(f"v_mov_b32 v{r}, 0")
    if EXP.get('preA'): a(f"s_sleep {EXP['preA']}")
    if EXP.get('p2A'): mem_share2(a, 72, 84, 80, 81, EXP.get('gapA',2))
    else: mem_share(a, 72, 80, 81, sleep)
    for ks in range(7): a(f"ds_read_b128 {vr(MS+4*ks,4)}, v6 offset:{L_MEM+ks*1024}")
    order=[(t,ks) for t in range(5) for ks in range(7)]
    for ks in range(7): order+= [(5,ks),(6,ks)]
    mains=[]
    for i,(t,ks) in enumerate(order):
        m=f"v_smfmac_f32_16x16x64_bf16 {vr(ACC+4*t,4)}, {vr(MS+4*ks,4)}, {gfrag(t*7+ks)}, v3"
        if i<7: m=f"s_waitcnt lgkmcnt({6-i})\n"+m
        mains.append(m)
    T0=112+0
    def post_pair(ta,tb,tmp):
        o=[]
        for i in range(4): o.append(f"v_permlane32_swap_b32 v{ACC+4*ta+i}, v{ACC+4*tb+i}")
        for i in range(4): o.append(f"v_add_f32 v{ACC+4*ta+i}, v{ACC+4*ta+i}, v{ACC+4*tb+i}")
        o.append(f"v_cvt_pk_bf16_f32 v{ACC+4*tb}, v{ACC+4*ta}, v{ACC+4*ta+1}")
        o.append(f"v_cvt_pk_bf16_f32 v{ACC+4*tb+1}, v{ACC+4*ta+2}, v{ACC+4*ta+3}")
        o.append(f"ds_write_b64 v7, {vr(ACC+4*tb,2)} offset:{ta*256}")
        return o
    def post_single(t, tmp):
        o=[]
        for i in range(4): o.append(f"v_mov_b32 v{tmp+i}, v{ACC+4*t+i}")
        o.append("s_nop 0")
        for i in range(4): o.append(f"v_permlane32_swap_b32 v{ACC+4*t+i}, v{tmp+i}")
        for i in range(4): o.append(f"v_add_f32 v{ACC+4*t+i}, v{ACC+4*t+i}, v{tmp+i}")
        o.append(f"v_cvt_pk_bf16_f32 v{tmp}, v{ACC+4*t}, v{ACC+4*t+1}")
        o.append(f"v_cvt_pk_bf16_f32 v{tmp+1}, v{ACC+4*t+2}, v{ACC+4*t+3}")
        o.append(f"ds_write_b64 v8, {vr(tmp,2)} offset:{t*256}")
        return o
    fill=[]
    for x in post_pair(0,1,None): fill.append((22,x))
    for x in post_pair(2,3,None): fill.append((36,x))
    for x in post_single(4, ACC+0): fill.append((43,x))
    return_fill=fill
    lab2=a.newlabel("L_t2"); labj=a.newlabel("L_tj")
    a(f"s_cmp_eq_u32 s{S_WAVE}, 2"); a(f"s_cbranch_scc1 {lab2}")
    for variant in (0,1):
        if variant==1: a.label(lab2)
        pre=[(7,"s_waitcnt vmcnt(0)")]
        for ks in range(6):
            if variant==0:
                pre.append((8+2*ks, f"ds_read_b128 {vr(BJ+8*ks,4)}, v10 offset:{ks*4096}"))
                pre.append((8+2*ks, f"ds_read_b128 {vr(BJ+8*ks+4,4)}, v10 offset:{ks*4096+2048}"))
            else:
                pre.append((8+2*ks, f"ds_read_b128 {vr(BJ+8*ks,4)}, v10 offset:{ks*1024}"))
                pre.append((8+2*ks, f"ds_read_b128 {vr(BJ+8*ks+4,4)}, v10 offset:{ks*1024+512}"))
        if EXP.get('nopre'): pre=[]
        if EXP.get('nofill'):
            rest=interleave(a, mains, pre);
            for _,x in fill: a(x)
        else:
            rest=interleave(a, mains, pre+fill, per_gap=EXP.get('per_gap',3))
            for _,x in rest: a(x)
        stamp(a,2)
        a.nop(8)
        for x in post_pair(5,6,None): a(x)
        for i in range(4): a(f"v_mov_b32 v{ACC+8+i}, 0")
        a("s_waitcnt lgkmcnt(0)")
        a("s_barrier")
        stamp(a,3)
        if variant==0:
            a(f"s_cmp_eq_u32 s{S_WAVE}, 3"); a("s_cbranch_scc1 "+LB("L_s_w3"))
            a(f"ds_read_b128 {vr(ACC,4)}, v10 offset:{6*4096}"); a(f"ds_read_b128 {vr(ACC+4,4)}, v10 offset:{6*4096+2048}")
        else:
            a(f"ds_read_b128 {vr(ACC,4)}, v10 offset:{6*1024}"); a(f"ds_read_b128 {vr(ACC+4,4)}, v10 offset:{6*1024+512}")
        if variant==0: a(f"s_branch {labj}")
    a.label(labj)
    for ks in range(7):
        a(f"ds_read_b64_tr_b16 {vr(MS+4*ks,2)}, v9 offset:{ks*1024}")
        a(f"ds_read_b64_tr_b16 {vr(MS+4*ks+2,2)}, v9 offset:{ks*1024+128}")
    for ks in range(7):
        a(f"s_waitcnt lgkmcnt({min(15,2*(6-ks))})")
        b = vr(BJ+8*ks,8) if ks<6 else vr(ACC,8)
        a(f"v_smfmac_f32_16x16x64_bf16 {vr(ACC+8,4)}, {vr(MS+4*ks,4)}, {b}, v3")
    a.nop(8)
    S=ACC+8
    a(f"v_permlane32_swap_b32 v{S}, v{S+1}"); a(f"v_permlane32_swap_b32 v{S+2}, v{S+3}")
    a(f"v_add_f32 v{S}, v{S}, v{S+1}"); a(f"v_add_f32 v{S+2}, v{S+2}, v{S+3}")
    a(f"ds_write_b32 v11, v{S}"); a(f"ds_write_b32 v11, v{S+2} offset:{2*192}")
    a("s_waitcnt lgkmcnt(0)")
    stamp(a,4)
    a("s_barrier")
    stamp(a,5)
    a("s_branch "+LB("L_s_after"))
    a.label(LB("L_s_w3"))
    a("s_barrier")
    stamp(a,5)
    X=72
    a(f"ds_read_b128 {vr(X,4)}, v12"); a(f"ds_read_b32 v{X+4}, v13")
    a("s_waitcnt lgkmcnt(0)")
    a(f"v_max3_f32 v{X+5}, v{X}, v{X+1}, v{X+2}"); a(f"v_max3_f32 v{X+5}, v{X+5}, v{X+3}, v{X+4}")
    def xred(op, r, t):
        a("s_nop 1"); a(f"{op}_dpp v{r}, v{r}, v{r} row_ror:8 row_mask:0xf bank_mask:0xf")
        a(f"v_mov_b32 v{t}, v{r}"); a("s_nop 1"); a(f"v_permlane16_swap_b32 v{r}, v{t}"); a(f"{op} v{r}, v{r}, v{t}")
        a(f"v_mov_b32 v{t}, v{r}"); a("s_nop 1"); a(f"v_permlane32_swap_b32 v{r}, v{t}"); a(f"{op} v{r}, v{r}, v{t}")
    xred("v_max_f32", X+5, X+6)
    for i in range(5): a(f"v_sub_f32 v{X+i}, v{X+i}, v{X+5}")
    for i in range(5): a(f"v_exp_f32 v{X+i}, v{X+i}")
    a("s_nop 0")
    a(f"v_add_f32 v{X+5}, v{X}, v{X+1}"); a(f"v_add_f32 v{X+6}, v{X+2}, v{X+3}"); a(f"v_add_f32 v{X+5}, v{X+5}, v{X+4}"); a(f"v_add_f32 v{X+5}, v{X+5}, v{X+6}")
    xred("v_add_f32", X+5, X+6)
    a(f"v_rcp_f32 v{X+5}, v{X+5}"); a("s_nop 0")
    for i in range(5): a(f"v_mul_f32 v{X+i}, v{X+i}, v{X+5}")
    a(f"v_cvt_pk_bf16_f32 v{X+8}, v{X}, v{X+1}"); a(f"v_cvt_pk_bf16_f32 v{X+9}, v{X+2}, v{X+3}")
    a(f"v_mov_b32_dpp v{X+6}, v{X+4} row_ror:8 row_mask:0xf bank_mask:0xf")
    a(f"buffer_store_dwordx2 {vr(X+8,2)}, v14, {W}, s{S_PX} offen {XST()}")
    a(f"v_cvt_pk_bf16_f32 v{X+7}, v{X+4}, v{X+6}")
    a("s_mov_b32 exec_lo, 0x00ff00ff"); a("s_mov_b32 exec_hi, 0x00ff00ff")
    a(f"buffer_store_dword v{X+7}, v15, {W}, s{S_PM} offen {XST()}")
    a("s_mov_b64 exec, -1")
    stamp(a,6)
    a.label(LB("L_s_after"))
    a("s_barrier")
    a(f"s_add_u32 s{S_STEP}, s{S_STEP}, 1")
    a(f"s_add_u32 s{S_MEMOFF}, s{S_MEMOFF}, 7168")
    a(f"s_add_u32 s{S_PX}, s{S_PX}, 8192"); a(f"s_add_u32 s{S_PM}, s{S_PM}, 2048"); a(f"s_add_u32 s{S_XS}, s{S_XS}, 28672")
    a(f"s_cmp_lt_u32 s{S_STEP}, {nsteps}"); a("s_cbranch_scc0 L_fin")
    xs_dma(4)
    stamp(a,7)
    a(f"s_cmp_eq_u32 s{S_FAIL}, 0"); a("s_cbranch_scc1 "+LB("L_sstep"))
    a("s_branch L_fin")

def ufrag(fi):
    if fi<32: return ar(8*fi,8)
    if fi<40: return vr(192+8*(fi-32),8)
    return None
def value_role(a, timing=False, sleep=0, nsteps=64):
    MS=16; ACC=44; UT=76; BF=100; PP=132; MF=152; OA=160; PR=168
    W=f"s[{S_WS}:{S_WS+3}]"
    S_J=36
    a(f"s_sub_u32 s{S_J}, s{S_RANK}, 16")
    a("v_and_b32 v16, 15, v1"); a("v_lshrrev_b32 v17, 4, v1")
    a("v_mul_u32_u24 v21, 896, v16"); a("v_lshlrev_b32 v22, 5, v17"); a("v_add_u32 v21, v21, v22")
    for a2 in range(4):
        for ct in range(2):
            a(f"s_lshl_b32 s{S_T0}, s{S_WAVE}, 2"); a(f"s_add_u32 s{S_T0}, s{S_T0}, {a2}")
            a(f"s_mul_i32 s{S_T0}, s{S_T0}, 448"); a(f"s_lshl_b32 s{S_T1}, s{S_J}, 5"); a(f"s_add_u32 s{S_T0}, s{S_T0}, s{S_T1}")
            a(f"s_add_u32 s{S_T0}, s{S_T0}, {7168+16*ct}"); a(f"s_mul_i32 s{S_T0}, s{S_T0}, 896"); a(f"s_add_u32 s{S_T0}, s{S_T0}, {LY.WP}")
            for ks in range(7):
                fi=(a2*2+ct)*7+ks
                if fi<40:
                    for hh in range(2):
                        dst = ar(8*fi+4*hh,4) if fi<32 else vr(192+8*(fi-32)+4*hh,4)
                        a(f"buffer_load_dwordx4 {dst}, v21, {W}, s{S_T0} offen offset:{ks*128+hh*16}")
                else:
                    for hh in range(2):
                        a(f"s_lshl_b32 s{S_T1}, s{S_WAVE}, 15"); a(f"s_add_u32 s{S_T1}, s{S_T1}, {L_U+(fi-40)*2048+hh*1024}")
                        a(f"s_mov_b32 m0, s{S_T1}"); a(f"s_add_u32 s{S_T2}, s{S_T0}, {ks*128+hh*16}")
                        a(f"buffer_load_dwordx4 v21, {W}, s{S_T2} offen lds")
            a("s_waitcnt vmcnt(30)")
    a(f"s_lshl_b32 s{S_T1}, s{S_WAVE}, 15"); a(f"s_add_u32 s{S_T1}, s{S_T1}, {L_U}"); a(f"v_add_u32 v7, s{S_T1}, v6")
    a("v_lshlrev_b32 v8, 3, v17"); a("v_and_b32 v22, 7, v16"); a("v_add_u32 v8, v8, v22"); a("v_lshlrev_b32 v8, 4, v8")
    a("v_lshrrev_b32 v22, 3, v16"); a("v_lshlrev_b32 v22, 9, v22"); a("v_add_u32 v8, v8, v22")
    a(f"s_lshl_b32 s{S_T1}, s{S_WAVE}, 11"); a(f"s_add_u32 s{S_T1}, s{S_T1}, {L_RED}"); a(f"v_add_u32 v9, s{S_T1}, v6")
    a(f"s_lshl_b32 s{S_T1}, s{S_WAVE}, 10"); a(f"s_add_u32 s{S_T1}, s{S_T1}, {L_RED}"); a(f"v_add_u32 v10, s{S_T1}, v6")
    a("v_lshrrev_b32 v22, 1, v17"); a("v_lshlrev_b32 v11, 7, v22"); a("v_and_b32 v22, 7, v16"); a("v_lshlrev_b32 v22, 4, v22"); a("v_add_u32 v11, v11, v22")
    a("v_and_b32 v22, 1, v17"); a("v_lshlrev_b32 v22, 3, v22"); a("v_add_u32 v11, v11, v22")
    a(f"s_mov_b32 s{S_STEP}, 0"); a(f"s_mov_b32 s{S_MEMOFF}, {LY.MEM}")
    a(f"s_lshl_b32 s{S_PX}, s{S_WAVE}, 11"); a(f"s_add_u32 s{S_PX}, s{S_PX}, {LY.PX}")
    a(f"s_lshl_b32 s{S_PM}, s{S_WAVE}, 9"); a(f"s_add_u32 s{S_PM}, s{S_PM}, {LY.PM}")
    a("v_lshrrev_b32 v22, 3, v16"); a("v_lshlrev_b32 v22, 8, v22"); a("v_add_u32 v187, v11, v22")
    a(f"s_lshl_b32 s{S_BF}, s{S_J}, 15"); a(f"s_lshl_b32 s{S_T1}, s{S_WAVE}, 12"); a(f"s_add_u32 s{S_BF}, s{S_BF}, s{S_T1}"); a(f"s_add_u32 s{S_BF}, s{S_BF}, {LY.BFRAG}")
    a(f"s_lshl_b32 s{S_MF}, s{S_J}, 13"); a(f"s_lshl_b32 s{S_T1}, s{S_WAVE}, 10"); a(f"s_add_u32 s{S_MF}, s{S_MF}, s{S_T1}"); a(f"s_add_u32 s{S_MF}, s{S_MF}, {LY.MFRAG}")
    a(f"s_lshl_b32 s{S_T0}, s{S_J}, 1"); a(f"s_add_u32 s{S_T0}, s{S_T0}, s{S_WAVE}")
    a(f"s_lshl_b32 s{S_MST}, s{S_T0}, 8"); a(f"s_add_u32 s{S_MST}, s{S_MST}, {LY.MEM+7168}")
    if FUSED:
        for r in (12,13,14,15,1): a(f"v_mov_b32 v{r}, 0")
        a(f"s_mov_b32 s{S_PC}, {LY.BRF if CK.NONCE else LY.BRDY}")
        if CK.NONCE:
            a(f"s_lshl_b32 s{S_MC}, s{S_J}, 7"); a(f"s_add_u32 s{S_MC}, s{S_MC}, {LY.MFF}"); a(f"v_mov_b32 v0, s{CK.S_N}")
        else:
            a(f"s_mov_b32 s{S_MC}, {LY.MCNT}"); a("v_mov_b32 v0, 1")
        a(f"s_add_u32 s{S_MX}, s{S_MST}, {LY.MEMX-LY.MEM}")
    def b_prefetch():
        for ct in range(2):
            a(f"s_add_u32 s{S_T0}, s{S_BF}, {ct*16384}")
            for a2 in range(4):
                a(f"buffer_load_dwordx4 {vr(BF+4*(a2*2+ct),4)}, v6, {W}, s{S_T0} offen offset:{a2*1024}")
        if EXP.get('warmP'):
            for a2 in range(4): a(f"buffer_load_dwordx4 {vr(PP+4*a2,4)}, v8, {W}, s{S_PX} offen offset:{a2*512} sc1")
            a(f"buffer_load_dwordx4 {vr(PP+16,4)}, v8, {W}, s{S_PM} offen sc1")
    def mf_store(off):
        fl="sc1" if FUSED else ""
        a(f"s_add_u32 s{S_T1}, s{S_MF}, {off}"); a(f"s_add_u32 s{S_T0}, s{S_MF}, {(off+4096)&0xffffffff}")
        a(f"buffer_store_dwordx4 {vr(MF,4)}, v6, {W}, s{S_T1} offen {fl}")
        a(f"buffer_store_dwordx4 {vr(MF+4,4)}, v6, {W}, s{S_T0} offen {fl}")
    def b_check():
        if FUSED:
            lp=a.newlabel("L_pc")
            def chk():
                if CK.NONCE:
                    a(f"v_xor_b32 v2, v0, v12"); a("v_xor_b32 v182, v0, v13"); a("v_or_b32 v2, v2, v182"); a("v_xor_b32 v182, v0, v14"); a("v_or_b32 v2, v2, v182"); a("v_xor_b32 v182, v0, v15"); a("v_or_b32 v2, v2, v182")
                    a("s_nop 0"); a(f"v_readfirstlane_b32 s{S_T0}, v2"); a("s_nop 3"); a(f"s_cmp_eq_u32 s{S_T0}, 0"); a(f"s_cbranch_scc1 {lp}_ok")
                else:
                    a("v_and_b32 v2, v12, v13"); a("v_and_b32 v2, v2, v14"); a("v_and_b32 v2, v2, v15"); a("s_nop 0"); a(f"v_readfirstlane_b32 s{S_T0}, v2"); a("s_nop 3")
                    a(f"s_cmp_eq_u32 s{S_T0}, 1"); a(f"s_cbranch_scc1 {lp}_ok")
            chk()
            a(f"s_mov_b32 s{S_CNT}, 0")
            a.label(lp)
            a(f"buffer_load_dwordx4 v[12:15], v1, {W}, s{S_PC} offen sc1"); a("s_waitcnt vmcnt(0)")
            chk()
            a("s_sleep 1"); a(f"s_add_u32 s{S_CNT}, s{S_CNT}, 1"); a(f"s_cmp_lt_u32 s{S_CNT}, {POLL_MAX}"); a(f"s_cbranch_scc1 {lp}")
            a(f"s_mov_b32 s{S_FAIL}, 1")
            a.label(lp+"_ok")
    if PRESTART:
        a("s_waitcnt vmcnt(0)"); PRESTART()
    b_check(); b_prefetch()
    for r in range(ACC,ACC+32): a(f"v_mov_b32 v{r}, 0")
    a("s_waitcnt vmcnt(0)")
    if timing: a("s_memtime s[40:41]")
    stamp_init(a)
    def zero_acc():
        for r in range(ACC,ACC+32): a(f"v_mov_b32 v{r}, 0")
        for r in range(OA,OA+8): a(f"v_mov_b32 v{r}, 0")
    a.label(LB("L_vstep"))
    mem_share(a, PR, 178, 179, sleep)
    for ks in range(7): a(f"ds_read_b128 {vr(MS+4*ks,4)}, v6 offset:{L_MEM+ks*1024}")
    if EXP.get('bin'): b_check(); a(f"s_add_u32 s{S_T2}, s{S_BF}, 16384")
    a(f"s_add_u32 s{S_T3}, s{S_PC}, 64")
    def store_window_a():
        l0=a.newlabel("L_sw")
        a(f"s_cmp_eq_u32 s{S_STEP}, 0"); a(f"s_cbranch_scc1 {l0}")
        mf_store(-28*4096 & 0xffffffff)
        a.label(l0)
    def store_window_b():
        if not FUSED: return
        lx=a.newlabel("L_mx")
        a(f"s_cmp_eq_u32 s{S_STEP}, 0"); a(f"s_cbranch_scc1 {lx}")
        a(f"s_cmp_lt_u32 s{S_WAVE}, 2"); a(f"s_cbranch_scc0 {lx}")
        a(f"s_sub_u32 s{S_T0}, s{S_MX}, 7168")
        a("s_mov_b32 exec_lo, 0x00ff00ff"); a("s_mov_b32 exec_hi, 0x00ff00ff")
        a(f"buffer_store_dwordx2 v[180:181], v11, {W}, s{S_T0} offen sc1"); a("s_mov_b64 exec, -1"); a("s_nop 3")
        a.label(lx)
    def store_window_c():
        if not FUSED: return
        lm=a.newlabel("L_mc")
        a(f"s_cmp_ge_u32 s{S_STEP}, 2"); a(f"s_cbranch_scc0 {lm}")
        a(f"s_cmp_eq_u32 s{S_WAVE}, 3"); a(f"s_cbranch_scc0 {lm}")
        a(f"s_sub_u32 s{S_T0}, s{S_MC}, {2*MINC()}"); a("s_mov_b64 exec, 1")
        a(MSIG(W,S_T0)); a("s_mov_b64 exec, -1"); a("s_nop 3")
        a.label(lm)
    def post_pair(ct,pr):
        ta=(2*pr)*2+ct; tb=(2*pr+1)*2+ct; o=[]
        for i in range(4): o.append(f"v_permlane32_swap_b32 v{ACC+4*ta+i}, v{ACC+4*tb+i}")
        for i in range(4): o.append(f"v_add_f32 v{ACC+4*ta+i}, v{ACC+4*ta+i}, v{ACC+4*tb+i}")
        o.append(f"v_cvt_pk_bf16_f32 v{MF+4*ct+2*pr}, v{ACC+4*ta}, v{ACC+4*ta+1}")
        o.append(f"v_cvt_pk_bf16_f32 v{MF+4*ct+2*pr+1}, v{ACC+4*ta+2}, v{ACC+4*ta+3}")
        return o
    tiles=[(a2,ct) for a2 in range(4) for ct in range(2)]
    seq=[]
    for (a2,ct) in tiles:
        for ks in range(7): seq.append(((a2*2+ct), ks))
    regseq=[x for x in seq if x[0]*7+x[1]<40]; ldsseq=[x for x in seq if x[0]*7+x[1]>=40]
    order=regseq[:7]; r=regseq[7:]; l=ldsseq[:]
    while r or l:
        for _ in range(2):
            if r: order.append(r.pop(0))
        if l: order.append(l.pop(0))
    ldsidx=[i for i,x in enumerate(order) if x[0]*7+x[1]>=40]
    last={}
    for i,(t,ks) in enumerate(order): last[t]=i
    early=post_pair(0,0)+post_pair(1,0)
    epos=max(last[0],last[1],last[2],last[3])+9
    calls={2:store_window_a, 4:store_window_b, 5:store_window_c}
    bfill={}
    if EXP.get('bin'):
        pos=EXP.get('bpos',8); stp=EXP.get('bstep',2)
        for ct in range(2):
            for a2 in range(4):
                bfill[pos]=f"buffer_load_dwordx4 {vr(BF+4*(a2*2+ct),4)}, v6, {W}, s{S_BF if ct==0 else S_T2} offen offset:{a2*1024}"; pos+=stp
        if FUSED: bfill[pos]=f"buffer_load_dwordx4 v[12:15], v1, {W}, s{S_T3} offen sc1"
    elif FUSED: bfill[EXP.get('rpos',20)]=f"buffer_load_dwordx4 v[12:15], v1, {W}, s{S_T3} offen sc1"
    def ldsread(k):
        t,ks=order[ldsidx[k]]; fi=t*7+ks
        return [f"ds_read_b128 {vr(UT+8*(k%3),4)}, v7 offset:{(fi-40)*2048}", f"ds_read_b128 {vr(UT+8*(k%3)+4,4)}, v7 offset:{(fi-40)*2048+1024}"]
    issued=0
    for i,(t,ks) in enumerate(order):
        fi=t*7+ks
        b = ufrag(fi) if fi<40 else vr(UT+8*(ldsidx.index(i)%3),8)
        if i<7: a(f"s_waitcnt lgkmcnt({6-i})")
        if fi>=40:
            k=ldsidx.index(i)
            a(f"s_waitcnt lgkmcnt({2*(issued-1-k)})")
        a(f"v_smfmac_f32_16x16x64_bf16 {vr(ACC+4*t,4)}, {vr(MS+4*ks,4)}, {b}, v3")
        if i in calls: calls[i]()
        if i in bfill: a(bfill[i])
        if i==6:
            for k in range(3):
                for x in ldsread(k): a(x)
            issued=3
        if fi>=40:
            k=ldsidx.index(i)
            if issued<len(ldsidx) and issued==k+3:
                for x in ldsread(issued): a(x)
                issued+=1
        if i>=epos:
            for _ in range(3):
                if early: a(early.pop(0))
    stamp(a,2)
    for x in early: a(x)
    a.nop(8)
    for x in post_pair(0,1)+post_pair(1,1): a(x)
    a(f"s_cmp_eq_u32 s{S_STEP}, {nsteps-1}"); a("s_cbranch_scc0 "+LB("L_v_cont"))
    mf_store(0)
    if FUSED:
        a("s_waitcnt vmcnt(0)"); a("s_barrier")
        a(f"s_cmp_eq_u32 s{S_WAVE}, 0"); a("s_cbranch_scc0 L_fin")
        a(f"s_sub_u32 s{S_T0}, s{S_MC}, {MINC()}"); a("s_mov_b64 exec, 1")
        a(MSIG(W,S_T0)); a(MSIG(W,S_MC)); a("s_mov_b64 exec, -1")
    a("s_branch L_fin")
    a.label(LB("L_v_cont"))
    if EXP.get('p2B'):
        for r in range(OA,OA+8): a(f"v_mov_b32 v{r}, 0")
    else: zero_acc()
    stamp(a,3)
    def mk(b): return [f"buffer_load_dwordx4 {vr(b,4)}, v8, {W}, s{S_PX} offen sc1", f"buffer_load_dwordx4 {vr(b+4,4)}, v8, {W}, s{S_PX} offen offset:1024 sc1",
                       f"buffer_load_dwordx2 {vr(b+8,2)}, v187, {W}, s{S_PM} offen sc1"]
    if EXP.get('preB'): a(f"s_sleep {EXP['preB']}")
    Y=PP+10
    def pw(b):
        stamp(a,4)
        dpp=lambda d,sr_: a(f"v_mov_b32_dpp v{d}, v{sr_} row_ror:8 row_mask:0xf bank_mask:0xf")
        def mm(ct,A,B): a(f"v_mfma_f32_16x16x32_bf16 {vr(OA+4*ct,4)}, {A}, {B}, {vr(OA+4*ct,4)}")
        mm(0,vr(BF+4*(0*2+0),4),vr(b,4));
        for i in range(3): dpp(Y+i,b+i)
        mm(1,vr(BF+4*(0*2+1),4),vr(b,4))
        dpp(Y+3,b+3); dpp(Y+4,b+4); dpp(Y+5,b+5)
        mm(0,vr(BF+4*(2*2+0),4),vr(b+4,4))
        dpp(Y+6,b+6); dpp(Y+7,b+7); a(f"v_mov_b32 v188, v{b+8}")
        mm(1,vr(BF+4*(2*2+1),4),vr(b+4,4))
        a(f"v_mov_b32 v189, v{b+9}"); dpp(190,b+8); dpp(191,b+9)
        mm(0,vr(BF+4*(1*2+0),4),vr(Y,4)); mm(1,vr(BF+4*(1*2+1),4),vr(Y,4))
        mm(0,vr(BF+4*(3*2+0),4),vr(Y+4,4)); mm(1,vr(BF+4*(3*2+1),4),vr(Y+4,4))
        mm(0,vr(MF,4),"v[188:191]"); mm(1,vr(MF+4,4),"v[188:191]")
    if EXP.get('p2B'):
        poll2(a, mk, [PP, ACC], 10, 176, 177, pw, EXP.get('gapB',2))
    else:
        poll_loop(a, mk(PP), range(PP,PP+10), 176, 177, sleep)
        pw(PP)
    a.nop(8)
    a(f"ds_write_b128 v9, {vr(OA,4)}"); a(f"ds_write_b128 v9, {vr(OA+4,4)} offset:1024")
    a("s_waitcnt lgkmcnt(0)")
    stamp(a,5)
    a("s_barrier")
    stamp(a,6)
    a(f"s_cmp_lt_u32 s{S_WAVE}, 2"); a("s_cbranch_scc0 "+LB("L_v_nored"))
    RT=UT
    for w in range(4): a(f"ds_read_b128 {vr(RT+4*w,4)}, v10 offset:{w*2048}")
    a("s_waitcnt lgkmcnt(2)")
    for i in range(4): a(f"v_add_f32 v{RT+i}, v{RT+i}, v{RT+4+i}")
    a("s_waitcnt lgkmcnt(0)")
    for i in range(4): a(f"v_add_f32 v{RT+8+i}, v{RT+8+i}, v{RT+12+i}")
    for i in range(4): a(f"v_add_f32 v{RT+i}, v{RT+i}, v{RT+8+i}")
    a(f"v_cvt_pk_bf16_f32 v180, v{RT}, v{RT+1}"); a(f"v_cvt_pk_bf16_f32 v181, v{RT+2}, v{RT+3}")
    a("s_mov_b32 exec_lo, 0x00ff00ff"); a("s_mov_b32 exec_hi, 0x00ff00ff")
    a(f"buffer_store_dwordx2 v[180:181], v11, {W}, s{S_MST} offen {XST()}")
    a("s_mov_b64 exec, -1")
    a.label(LB("L_v_nored"))
    stamp(a,7)
    a("s_barrier")
    if EXP.get('p2B'):
        a("s_waitcnt vmcnt(1)")
        for r in range(ACC,ACC+32): a(f"v_mov_b32 v{r}, 0")
    a(f"s_add_u32 s{S_STEP}, s{S_STEP}, 1")
    a(f"s_add_u32 s{S_MEMOFF}, s{S_MEMOFF}, 7168"); a(f"s_add_u32 s{S_MST}, s{S_MST}, 7168")
    a(f"s_add_u32 s{S_PX}, s{S_PX}, 8192"); a(f"s_add_u32 s{S_PM}, s{S_PM}, 2048")
    a(f"s_add_u32 s{S_BF}, s{S_BF}, {28*16384}"); a(f"s_add_u32 s{S_MF}, s{S_MF}, {28*4096}")
    if FUSED:
        a(f"s_add_u32 s{S_PC}, s{S_PC}, 64"); a(f"s_add_u32 s{S_MC}, s{S_MC}, {MINC()}"); a(f"s_add_u32 s{S_MX}, s{S_MX}, 7168")
    if not EXP.get('bin'): b_check(); b_prefetch()
    stamp(a,8)
    a(f"s_cmp_eq_u32 s{S_FAIL}, 0"); a("s_cbranch_scc1 "+LB("L_vstep"))
    a("s_branch L_fin")

def prefetch_role(a, nsteps=64, ahead=3):
    W=f"s[{S_WS}:{S_WS+3}]"
    if PRESTART: PRESTART()
    a(f"s_sub_u32 s36, s{S_RANK}, 30")
    a(f"s_mov_b32 s{S_STEP}, 0")
    a("v_mov_b32 v9, 0"); a(f"v_mov_b32 v31, s{CK.S_N}" if CK.NONCE else "v_mov_b32 v31, 1")
    a(f"s_cmp_eq_u32 s36, 1"); a("s_cbranch_scc1 L_relay")
    a(f"s_mov_b32 s44, s{S_WAVE}")
    a("v_lshlrev_b32 v7, 7, v1")
    a(f"s_mul_i32 s{S_BF}, s44, {896*128}"); a(f"s_add_u32 s{S_BF}, s{S_BF}, {LY.BFRAG}")
    a(f"s_mov_b32 s{S_XS}, {LY.HFRAG}"); a(f"s_mov_b32 s{S_PX}, {LY.PX}"); a(f"s_mov_b32 s{S_PM}, {LY.PM}")
    a(f"s_mov_b32 s{S_MEMOFF}, {LY.MEM}")
    a("v_mov_b32 v8, 7164")
    a(f"s_mov_b32 s{S_PC}, {(LY.PF if CK.NONCE else LY.PCNT) if FUSED else 0}")
    a(f"s_lshl_b32 s46, s44, 2"); a(f"s_add_u32 s46, s46, {LY.BRF if CK.NONCE else LY.BRDY}")
    a.label("L_pf")
    a(f"s_cmp_lt_u32 s{S_STEP}, {ahead+1}"); a("s_cbranch_scc1 L_pf_go")
    a(f"s_add_u32 s{S_MEMOFF}, s{S_MEMOFF}, 7168")
    a(f"s_mov_b32 s{S_CNT}, 0")
    a.label("L_pf_w")
    a(f"buffer_load_dword v10, v8, {W}, s{S_MEMOFF} offen sc1"); a("s_waitcnt vmcnt(0)")
    a("v_cmp_eq_u32 vcc, -1, v10"); a("s_cbranch_vccz L_pf_go")
    a("s_sleep 4")
    a(f"s_add_u32 s{S_CNT}, s{S_CNT}, 1"); a(f"s_cmp_lt_u32 s{S_CNT}, {POLL_MAX}"); a("s_cbranch_scc1 L_pf_w")
    a("s_branch L_fin")
    a.label("L_pf_go")
    if FUSED and CK.NONCE:
        pass
    elif FUSED:
        a(f"s_mov_b32 s{S_CNT}, 0")
        a.label("L_pf_c")
        a(f"buffer_load_dword v19, v9, {W}, s{S_PC} offen sc1"); a("s_waitcnt vmcnt(0)"); a(f"v_readfirstlane_b32 s{S_T0}, v19"); a("s_nop 3")
        a(f"s_cmp_ge_u32 s{S_T0}, 112"); a("s_cbranch_scc1 L_pf_c_ok")
        a("s_sleep 4"); a(f"s_add_u32 s{S_CNT}, s{S_CNT}, 1"); a(f"s_cmp_lt_u32 s{S_CNT}, {POLL_MAX}"); a("s_cbranch_scc1 L_pf_c")
        a("s_branch L_fin")
        a.label("L_pf_c_ok")
        a(f"s_add_u32 s{S_PC}, s{S_PC}, 128")
    a(f"s_lshl_b32 s{S_T0}, s44, 13"); a(f"s_add_u32 s{S_T0}, s{S_T0}, s{S_XS}"); a(f"buffer_load_dword v17, v7, {W}, s{S_T0} offen")
    a("s_cmp_eq_u32 s44, 0"); a(f"s_cselect_b32 s{S_T0}, s{S_PX}, s{S_PM}")
    a(f"s_mul_i32 s{S_T1}, s{S_STEP}, 7168"); a(f"s_add_u32 s{S_T1}, s{S_T1}, {LY.MEM+7168}"); a("s_cmp_eq_u32 s44, 2"); a(f"s_cselect_b32 s{S_T0}, s{S_T1}, s{S_T0}")
    a(f"buffer_load_dword v18, v7, {W}, s{S_T0} offen sc1")
    a("s_waitcnt vmcnt(0)")
    if FUSED and not CK.NONCE:
        lb=a.newlabel("L_br")
        a(f"s_cmp_eq_u32 s42, 0"); a("s_mov_b64 exec, 1"); a(f"s_cbranch_scc0 {lb}")
        a(f"buffer_store_dword v31, v9, {W}, s46 offen"); a(f"s_branch {lb}_e")
        a.label(lb); a(f"buffer_store_dword v31, v9, {W}, s46 offen sc1")
        a.label(lb+"_e"); a("s_mov_b64 exec, -1"); a("s_add_u32 s46, s46, 64")
    a(f"s_add_u32 s{S_BF}, s{S_BF}, {28*16384}"); a(f"s_add_u32 s{S_XS}, s{S_XS}, 28672"); a(f"s_add_u32 s{S_PX}, s{S_PX}, 8192"); a(f"s_add_u32 s{S_PM}, s{S_PM}, 2048")
    a(f"s_add_u32 s{S_STEP}, s{S_STEP}, 1"); a(f"s_cmp_lt_u32 s{S_STEP}, {nsteps}"); a("s_cbranch_scc1 L_pf")
    a("s_branch L_fin")
    a.label("L_relay")
    if FUSED and CK.NONCE:
        a(f"s_cmp_eq_u32 s{S_WAVE}, 0"); a("s_cbranch_scc0 L_fin")
        a(f"s_mov_b32 s{S_PC}, {LY.PF}"); a(f"s_mov_b32 s46, {LY.BRF}")
        for r in range(28,32): a(f"v_mov_b32 v{r}, s{CK.S_N}")
        a.label("L_bf")
        CK.wait_flags(a, W, S_PC, 112, 20, 22, "v_mov_b32 v20, v1", S_CNT, sleep=2)
        lb=a.newlabel("L_br")
        a(f"s_cmp_eq_u32 s42, 0"); a("s_mov_b64 exec, 1"); a(f"s_cbranch_scc0 {lb}")
        a(f"buffer_store_dwordx4 v[28:31], v9, {W}, s46 offen"); a(f"s_branch {lb}_e")
        a.label(lb); a(f"buffer_store_dwordx4 v[28:31], v9, {W}, s46 offen sc1")
        a.label(lb+"_e"); a("s_mov_b64 exec, -1")
        a(f"s_add_u32 s{S_PC}, s{S_PC}, 512"); a("s_add_u32 s46, s46, 64")
        a(f"s_add_u32 s{S_STEP}, s{S_STEP}, 1"); a(f"s_cmp_lt_u32 s{S_STEP}, {nsteps}"); a("s_cbranch_scc1 L_bf")
        a("s_branch L_fin"); return
    if not FUSED or not EXP.get('relay'):
        a("s_branch L_fin"); return
    a(f"s_mov_b32 s44, s{S_WAVE}")
    a("s_cmp_eq_u32 s44, 3"); a("s_cbranch_scc1 L_rmem")
    NCH=38
    a(f"s_mul_i32 s45, s44, {37*1024}"); a(f"s_add_u32 s{S_MF}, s45, {LY.MFL}"); a(f"s_add_u32 s{S_MST}, s45, {LY.MFRAG}")
    a(f"s_mov_b32 s{S_PC}, {LY.LFLAG}"); a(f"s_mov_b32 s{S_MC}, {LY.MCNT}")
    a("v_lshlrev_b32 v7, 2, v1"); a("v_min_u32 v7, 52, v7")
    a.label("L_rl")
    a(f"s_mov_b32 s{S_CNT}, 0")
    a.label("L_rl_w")
    a(f"buffer_load_dword v10, v7, {W}, s{S_PC} offen sc1"); a("s_waitcnt vmcnt(0)")
    a("v_cmp_eq_u32 vcc, 0, v10"); a("s_cbranch_vccz L_rl_go")
    a("s_sleep 2"); a(f"s_add_u32 s{S_CNT}, s{S_CNT}, 1"); a(f"s_cmp_lt_u32 s{S_CNT}, {POLL_MAX}"); a("s_cbranch_scc1 L_rl_w")
    a("s_branch L_fin")
    a.label("L_rl_go")
    a(f"s_mov_b32 s{S_T0}, s{S_MF}")
    for i in range(NCH):
        a(f"buffer_load_dwordx4 {vr(32+4*i,4)}, v6, {W}, s{S_T0} offen offset:{(i&3)*1024} sc1")
        if (i&3)==3: a(f"s_add_u32 s{S_T0}, s{S_T0}, 4096")
    a(f"s_mov_b32 s{S_T0}, s{S_MST}")
    for i in range(NCH):
        a(f"s_waitcnt vmcnt({NCH-1})")
        a(f"buffer_store_dwordx4 {vr(32+4*i,4)}, v6, {W}, s{S_T0} offen offset:{(i&3)*1024} sc1")
        if (i&3)==3: a(f"s_add_u32 s{S_T0}, s{S_T0}, 4096")
    a("s_waitcnt vmcnt(0)")
    a("s_mov_b64 exec, 1"); a(f"buffer_atomic_add v31, v9, {W}, s{S_MC} offen sc1"); a("s_mov_b64 exec, -1")
    a(f"s_add_u32 s{S_MF}, s{S_MF}, {28*4096}"); a(f"s_add_u32 s{S_MST}, s{S_MST}, {28*4096}"); a(f"s_add_u32 s{S_PC}, s{S_PC}, 64"); a(f"s_add_u32 s{S_MC}, s{S_MC}, 128")
    a(f"s_add_u32 s{S_STEP}, s{S_STEP}, 1"); a(f"s_cmp_lt_u32 s{S_STEP}, {nsteps}"); a("s_cbranch_scc1 L_rl")
    a("s_branch L_fin")
    a.label("L_rmem")
    a(f"s_mov_b32 s{S_MEMOFF}, {LY.MEM+7168}"); a(f"s_mov_b32 s{S_MX}, {LY.MEMX+7168}"); a(f"s_mov_b32 s{S_STEP}, 1")
    a.label("L_rm")
    a(f"s_add_u32 s{S_T1}, s{S_MEMOFF}, 4096")
    loads=[f"buffer_load_dwordx4 {vr(32+4*k,4)}, v6, {W}, s{S_MEMOFF if k<4 else S_T1} offen offset:{(k&3)*1024} sc1" for k in range(7)]
    poll_loop(a, loads, range(32,60), 60, 61, 2)
    a(f"s_add_u32 s{S_T1}, s{S_MX}, 4096")
    for k in range(7): a(f"buffer_store_dwordx4 {vr(32+4*k,4)}, v6, {W}, s{S_MX if k<4 else S_T1} offen offset:{(k&3)*1024} sc1")
    a(f"s_add_u32 s{S_MEMOFF}, s{S_MEMOFF}, 7168"); a(f"s_add_u32 s{S_MX}, s{S_MX}, 7168")
    a(f"s_add_u32 s{S_STEP}, s{S_STEP}, 1"); a(f"s_cmp_lt_u32 s{S_STEP}, 64"); a("s_cbranch_scc0 L_fin")
    a(f"s_cmp_eq_u32 s{S_FAIL}, 0"); a("s_cbranch_scc1 L_rm")
    a("s_branch L_fin")

def gen_rec(timing=True, sleep=0, target_xcc=0):
    a=Asm()
    common_prologue(a, target_xcc, 32 if EXP.get('pf') else 30)
    a(f"s_cmp_ge_u32 s{S_RANK}, 30"); a("s_cbranch_scc1 L_pref")
    a(f"s_cmp_ge_u32 s{S_RANK}, 16"); a("s_cbranch_scc1 L_value")
    global LANEREG
    LANEREG={0:2,1:1,6:0}
    score_role(a, timing, sleep)
    a.label("L_value")
    LANEREG={4:12,7:13,0:14,3:15}
    value_role(a, timing, sleep)
    a.label("L_pref")
    a("s_memtime s[40:41]")
    prefetch_role(a, ahead=EXP.get('ahead',3))
    a.label("L_fin")
    stamp_out(a)
    if timing:
        a("s_memtime s[42:43]"); a("s_waitcnt lgkmcnt(0)")
        a("s_sub_u32 s42, s42, s40")
        a("v_mov_b32 v20, s42"); a(f"v_mov_b32 v21, s{S_FAIL}")
        a(f"s_lshl_b32 s44, s{S_RANK}, 3"); a("s_add_u32 s44, s44, 8"); a("v_mov_b32 v22, s44")
        a("v_cmp_eq_u32 vcc, 0, v4"); a(f"s_and_saveexec_b64 s[{S_EX}:{S_EX+1}], vcc")
        a(f"buffer_store_dwordx2 v[20:21], v22, s[{S_DBG}:{S_DBG+3}], 0 offen")
        a(f"s_mov_b64 exec, s[{S_EX}:{S_EX+1}]")
    a("s_waitcnt vmcnt(0)")
    a.label("L_exit")
    return a.text()
if __name__=="__main__":
    t=gen_rec()
    open("rec_body.s","w").write(t); print(len(t.splitlines()))
```

```python
from common_k import *
from k0 import f2u
def wave_max_u32(a, r, t):
    for ror in (4,2,1):
        a("s_nop 1"); a(f"v_max_u32_dpp v{r}, v{r}, v{r} row_ror:{ror} row_mask:0xf bank_mask:0xf")
    xred(a,"v_max_u32",r,t)
def top2(a, WS, ld=""):
    W=S4(WS)
    a("v_lshlrev_b32 v2, 5, v0"); a(f"s_mov_b32 s23, {LY.R}")
    a(f"buffer_load_dwordx4 v[8:11], v2, {W}, s23 offen {ld}"); a(f"buffer_load_dwordx4 v[12:15], v2, {W}, s23 offen offset:16 {ld}")
    a("v_lshlrev_b32 v3, 3, v0"); a("v_sub_u32 v3, 2047, v3")
    a("s_waitcnt vmcnt(0)")
    for i in range(8):
        r=8+i
        a(f"v_ashrrev_i32 v4, 31, v{r}"); a("v_or_b32 v4, 0x80000000, v4"); a(f"v_xor_b32 v{r}, v{r}, v4")
        a(f"v_and_b32 v{r}, 0xfffff800, v{r}"); a(f"v_subrev_u32 v4, {i}, v3"); a(f"v_or_b32 v{r}, v{r}, v4")
    a("v_lshrrev_b32 v20, 6, v0"); a("v_lshlrev_b32 v20, 2, v20"); a("v_mov_b32 v21, 0")
    for rnd in range(2):
        a("v_max3_u32 v16, v8, v9, v10"); a("v_max3_u32 v16, v16, v11, v12"); a("v_max3_u32 v16, v16, v13, v14"); a("v_max_u32 v16, v16, v15")
        wave_max_u32(a,16,17)
        a(f"ds_write_b32 v20, v16 offset:{rnd*16}"); a("s_waitcnt lgkmcnt(0)"); a("s_barrier")
        a(f"ds_read_b128 v[24:27], v21 offset:{rnd*16}"); a("s_waitcnt lgkmcnt(0)")
        a("v_max3_u32 v16, v24, v25, v26"); a("v_max_u32 v16, v16, v27")
        a("v_and_b32 v18, 0x7ff, v16"); a("v_sub_u32 v18, 2047, v18"); a("s_nop 0"); a(f"v_readfirstlane_b32 s{40+rnd}, v18")
        if rnd==0:
            for i in range(8):
                a(f"v_cmp_ne_u32 vcc, v{8+i}, v16"); a("s_nop 1"); a(f"v_cndmask_b32 v{8+i}, 0, v{8+i}, vcc")
    a("s_nop 3")
K5_LDS=8192
def gen_k5():
    a=Asm()
    a("s_cmp_lt_u32 s2, 112"); a("s_cbranch_scc0 L_end")
    a("v_and_b32 v1, 63, v0"); a("v_lshrrev_b32 v2, 6, v0"); a("s_nop 0"); a("v_readfirstlane_b32 s22, v2")
    srds(a,[(16,'ws'),(8,'wg'),(12,'wu')])
    W=S4(16)
    a("v_and_b32 v30, 7, v0"); a("v_lshrrev_b32 v31, 3, v0")
    a("v_mul_u32_u24 v32, 14, v31"); a("s_movk_i32 s24, 3584"); a("v_mul_lo_u32 v33, v32, s24"); a("v_lshlrev_b32 v34, 2, v30"); a("v_add_u32 v33, v33, v34")
    a("s_lshl_b32 s25, s2, 5")
    for j in range(14):
        a(f"buffer_load_dword v{64+j}, v33, {S4(8)}, s25 offen"); a(f"buffer_load_dword v{80+j}, v33, {S4(12)}, s25 offen"); a("s_add_u32 s25, s25, 3584")
    top2(a,16)
    a("s_cmp_eq_u32 s2, 0"); a("s_cbranch_scc0 L_noidx")
    a("v_mov_b32 v4, s40"); a("v_mov_b32 v5, s41"); a("v_mov_b32 v6, 0"); a(f"s_mov_b32 s26, {LY.MISC}")
    a("s_mov_b64 exec, 1"); a(f"buffer_store_dwordx2 v[4:5], v6, {W}, s26 offen"); a("s_mov_b64 exec, -1")
    a.label("L_noidx")
    a("v_lshlrev_b32 v35, 1, v32")
    a("s_mul_i32 s26, s40, 896"); a(f"s_add_u32 s26, s26, {LY.H2}"); a("s_mul_i32 s27, s41, 896"); a(f"s_add_u32 s27, s27, {LY.H2}")
    for j in range(14):
        a(f"buffer_load_ushort v{96+j}, v35, {W}, s26 offen offset:{2*j}"); a(f"buffer_load_ushort v{112+j}, v35, {W}, s27 offen offset:{2*j}")
    for r in range(40,48): a(f"v_mov_b32 v{r}, 0")
    a("s_waitcnt vmcnt(0)")
    for j in range(14):
        a(f"v_lshlrev_b32 v{96+j}, 16, v{96+j}"); a(f"v_lshlrev_b32 v{112+j}, 16, v{112+j}")
        unpack_lo(a,48,64+j); unpack_hi(a,49,64+j); unpack_lo(a,50,80+j); unpack_hi(a,51,80+j)
        for t,hb in ((0,96),(1,112)):
            for q in range(4): a(f"v_fmac_f32 v{40+4*t+q}, v{48+q}, v{hb+j}")
    for r in range(40,48): xred(a,"v_add_f32",r,52)
    a("v_lshlrev_b32 v53, 5, v30"); a("s_lshl_b32 s28, s22, 8"); a("s_add_u32 s28, s28, 256"); a("v_add_u32 v53, s28, v53")
    a("s_mov_b64 exec, 0xff"); a("ds_write_b128 v53, v[40:43]"); a("ds_write_b128 v53, v[44:47] offset:16"); a("s_mov_b64 exec, -1")
    a("s_waitcnt lgkmcnt(0)"); a("s_barrier")
    a("v_cmp_gt_u32 vcc, 32, v0"); a("s_and_saveexec_b64 s[30:31], vcc"); a("s_cbranch_execz L_fin")
    a("v_lshrrev_b32 v54, 4, v0"); a("v_and_b32 v55, 15, v0"); a("v_lshrrev_b32 v56, 1, v55"); a("v_lshlrev_b32 v56, 3, v56"); a("v_lshlrev_b32 v57, 2, v54"); a("v_add_u32 v56, v56, v57")
    a("v_and_b32 v57, 1, v55"); a("v_add_u32 v56, v56, v57"); a("v_lshlrev_b32 v56, 2, v56"); a("v_add_u32 v56, 256, v56")
    for w in range(4): a(f"ds_read_b32 v{60+w}, v56 offset:{w*256}"); a(f"ds_read_b32 v{64+w}, v56 offset:{w*256+8}")
    a("s_waitcnt lgkmcnt(0)")
    a("v_add_f32 v60, v60, v61"); a("v_add_f32 v62, v62, v63"); a("v_add_f32 v60, v60, v62")
    a("v_add_f32 v64, v64, v65"); a("v_add_f32 v66, v66, v67"); a("v_add_f32 v64, v64, v66")
    def rb(r): a(f"v_cvt_pk_bf16_f32 v{r}, v{r}, v{r}"); a(f"v_lshlrev_b32 v{r}, 16, v{r}")
    rb(60); rb(64)
    a("v_mul_f32 v61, 0xbfb8aa3b, v60"); a("v_exp_f32 v61, v61"); a("s_nop 0"); a("v_add_f32 v61, 1.0, v61"); a("v_rcp_f32 v61, v61"); a("s_nop 0"); a("v_mul_f32 v60, v60, v61")
    rb(60); a("v_mul_f32 v60, v60, v64"); rb(60)
    a("v_mul_u32_u24 v58, 7168, v54"); a("v_lshlrev_b32 v59, 2, v55"); a("v_add_u32 v58, v58, v59"); a("s_lshl_b32 s28, s2, 6"); a(f"s_add_u32 s28, s28, {LY.ACT}")
    a(f"buffer_store_dword v60, v58, {W}, s28 offen")
    a.label("L_fin"); a("s_mov_b64 exec, s[30:31]")
    a.label("L_end"); a("s_waitcnt vmcnt(0)")
    return a.text()
K6_LDS=4096
def gen_k6():
    a=Asm()
    a("s_cmp_lt_u32 s2, 56"); a("s_cbranch_scc0 L_end")
    a("v_and_b32 v1, 63, v0"); a("v_lshrrev_b32 v2, 6, v0"); a("s_nop 0"); a("v_readfirstlane_b32 s22, v2")
    srds(a,[(16,'ws'),(8,'wd'),(12,'out')])
    W=S4(16)
    a("v_and_b32 v30, 3, v0"); a("v_lshrrev_b32 v31, 2, v0")
    a("v_mul_u32_u24 v32, 28, v31"); a("v_mul_u32_u24 v33, 896, v32"); a("v_lshlrev_b32 v34, 2, v30"); a("v_add_u32 v33, v33, v34"); a("s_lshl_b32 s26, s2, 4")
    for j in range(28):
        a(f"buffer_load_dword v{64+j}, v33, {S4(8)}, s26 offen"); a("s_add_u32 s26, s26, 896")
    a("v_lshlrev_b32 v35, 2, v32"); a(f"s_mov_b32 s27, {LY.ACT}"); a(f"s_mov_b32 s28, {LY.ACT+7168}")
    for j in range(7):
        a(f"buffer_load_dwordx4 {vr(96+4*j,4)}, v35, {W}, s27 offen offset:{16*j}"); a(f"buffer_load_dwordx4 {vr(128+4*j,4)}, v35, {W}, s28 offen offset:{16*j}")
    a("v_mov_b32 v6, 0"); a(f"s_mov_b32 s29, {LY.MISC}"); a(f"buffer_load_dwordx2 v[4:5], v6, {W}, s29 offen")
    for r in range(40,44): a(f"v_mov_b32 v{r}, 0")
    a("s_waitcnt vmcnt(0)")
    a("v_readfirstlane_b32 s40, v4"); a("v_readfirstlane_b32 s41, v5")
    for j in range(28):
        unpack_lo(a,48,64+j); unpack_hi(a,49,64+j)
        a(f"v_fmac_f32 v40, v48, v{96+j}"); a(f"v_fmac_f32 v41, v49, v{96+j}"); a(f"v_fmac_f32 v42, v48, v{128+j}"); a(f"v_fmac_f32 v43, v49, v{128+j}")
    for r in range(40,44):
        a("s_nop 1"); a(f"v_add_f32_dpp v{r}, v{r}, v{r} row_ror:4 row_mask:0xf bank_mask:0xf"); xred(a,"v_add_f32",r,52)
    a("v_lshlrev_b32 v53, 4, v30"); a("s_lshl_b32 s30, s22, 6"); a("v_add_u32 v53, s30, v53")
    a("s_mov_b64 exec, 0xf"); a("ds_write_b128 v53, v[40:43]"); a("s_mov_b64 exec, -1")
    a("s_waitcnt lgkmcnt(0)"); a("s_barrier")
    a("v_cmp_gt_u32 vcc, 16, v0"); a("s_and_saveexec_b64 s[32:33], vcc"); a("s_cbranch_execz L_fin")
    a("v_lshrrev_b32 v54, 3, v0"); a("v_and_b32 v55, 7, v0"); a("v_lshrrev_b32 v56, 1, v55"); a("v_lshlrev_b32 v56, 2, v56"); a("v_lshlrev_b32 v57, 1, v54"); a("v_add_u32 v56, v56, v57")
    a("v_and_b32 v57, 1, v55"); a("v_add_u32 v56, v56, v57"); a("v_lshlrev_b32 v56, 2, v56")
    for w in range(4): a(f"ds_read_b32 v{60+w}, v56 offset:{w*64}")
    a("v_mov_b32 v58, s40"); a("v_mov_b32 v59, s41"); a("v_cmp_eq_u32 vcc, 0, v54"); a("s_nop 1"); a("v_cndmask_b32 v58, v59, v58, vcc")
    a("s_lshl_b32 s34, s2, 3"); a("v_add_u32 v59, s34, v55")
    a("s_movk_i32 s35, 448"); a("v_mul_lo_u32 v64, v58, s35"); a("v_add_u32 v64, v64, v59")
    a("v_lshlrev_b32 v65, 2, v64"); a(f"s_mov_b32 s36, {LY.X1}"); a(f"buffer_load_dword v66, v65, {W}, s36 offen")
    a("v_lshlrev_b32 v67, 1, v64"); a(f"s_mov_b32 s37, {LY.H2}"); a(f"buffer_load_ushort v68, v67, {W}, s37 offen")
    a("v_lshlrev_b32 v69, 2, v59"); a(f"s_mov_b32 s38, {LY.MOD+5*448*4}"); a(f"buffer_load_dword v70, v69, {W}, s38 offen")
    a("v_lshlrev_b32 v71, 2, v58"); a(f"s_mov_b32 s39, {LY.R}"); a(f"buffer_load_dword v72, v71, {W}, s39 offen")
    a("s_waitcnt vmcnt(0) lgkmcnt(0)")
    a("v_add_f32 v60, v60, v61"); a("v_add_f32 v62, v62, v63"); a("v_add_f32 v60, v60, v62")
    def rb(r): a(f"v_cvt_pk_bf16_f32 v{r}, v{r}, v{r}"); a(f"v_lshlrev_b32 v{r}, 16, v{r}")
    rb(60)
    a("v_mul_f32 v72, 0xbfb8aa3b, v72"); a("v_exp_f32 v72, v72"); a("s_nop 0"); a("v_add_f32 v72, 1.0, v72"); a("v_rcp_f32 v72, v72"); a("s_nop 0")
    a("v_mul_f32 v60, v60, v72"); rb(60)
    a("v_lshlrev_b32 v68, 16, v68"); a("v_add_f32 v60, v60, v68"); a("v_fmac_f32 v66, v70, v60")
    a("v_cvt_pk_bf16_f32 v66, v66, v66")
    a(f"buffer_store_short v66, v67, {S4(12)}, 0 offen")
    a.label("L_fin"); a("s_mov_b64 exec, s[32:33]")
    a.label("L_end"); a("s_waitcnt vmcnt(0)")
    return a.text()
if __name__=="__main__": print(len(gen_k5().splitlines()),len(gen_k6().splitlines()))


def top2_poll(a, WS):
    W=S4(WS)
    a("v_lshlrev_b32 v2, 5, v0"); a(f"s_mov_b32 s23, {LY.R}")
    poll_data(a, [f"buffer_load_dwordx4 v[8:11], v2, {W}, s23 offen sc1", f"buffer_load_dwordx4 v[12:15], v2, {W}, s23 offen offset:16 sc1"], range(8,16), 4, 5, 36, sleep=4)
    a("v_lshlrev_b32 v3, 3, v0"); a("v_sub_u32 v3, 2047, v3")
    for i in range(8):
        r=8+i
        a(f"v_ashrrev_i32 v4, 31, v{r}"); a("v_or_b32 v4, 0x80000000, v4"); a(f"v_xor_b32 v{r}, v{r}, v4")
        a(f"v_and_b32 v{r}, 0xfffff800, v{r}"); a(f"v_subrev_u32 v4, {i}, v3"); a(f"v_or_b32 v{r}, v{r}, v4")
    a("v_lshrrev_b32 v20, 6, v0"); a("v_lshlrev_b32 v20, 2, v20"); a("v_mov_b32 v21, 0")
    for rnd in range(2):
        a("v_max3_u32 v16, v8, v9, v10"); a("v_max3_u32 v16, v16, v11, v12"); a("v_max3_u32 v16, v16, v13, v14"); a("v_max_u32 v16, v16, v15")
        wave_max_u32(a,16,17)
        a(f"ds_write_b32 v20, v16 offset:{rnd*16}"); a("s_waitcnt lgkmcnt(0)"); a("s_barrier")
        a(f"ds_read_b128 v[24:27], v21 offset:{rnd*16}"); a("s_waitcnt lgkmcnt(0)")
        a("v_max3_u32 v16, v24, v25, v26"); a("v_max_u32 v16, v16, v27")
        a("v_and_b32 v18, 0x7ff, v16"); a("v_sub_u32 v18, 2047, v18"); a("s_nop 0"); a(f"v_readfirstlane_b32 s{40+rnd}, v18")
        if rnd==0:
            for i in range(8):
                a(f"v_cmp_ne_u32 vcc, v{8+i}, v16"); a("s_nop 1"); a(f"v_cndmask_b32 v{8+i}, 0, v{8+i}, vcc")
    a("s_nop 3")

def gateup_job(a, WS, WG, WU, sidx):
    W=S4(WS)
    a("v_and_b32 v30, 7, v0"); a("v_lshrrev_b32 v31, 3, v0")
    a("v_mul_u32_u24 v32, 14, v31"); a("s_movk_i32 s24, 3584"); a("v_mul_lo_u32 v33, v32, s24"); a("v_lshlrev_b32 v34, 2, v30"); a("v_add_u32 v33, v33, v34")
    a(f"s_lshl_b32 s25, s{sidx}, 5")
    for j in range(14):
        a(f"buffer_load_dword v{64+j}, v33, {S4(WG)}, s25 offen"); a(f"buffer_load_dword v{80+j}, v33, {S4(WU)}, s25 offen"); a("s_add_u32 s25, s25, 3584")
    wst(a,4)
    top2_poll(a,WS)
    wst(a,5)
    a("v_lshlrev_b32 v35, 1, v32")
    a("s_mul_i32 s26, s40, 896"); a(f"s_add_u32 s26, s26, {LY.H2}"); a("s_mul_i32 s27, s41, 896"); a(f"s_add_u32 s27, s27, {LY.H2}")
    hl=[]
    for j in range(7):
        hl.append(f"buffer_load_dword v{96+j}, v35, {W}, s26 offen offset:{4*j} sc1"); hl.append(f"buffer_load_dword v{112+j}, v35, {W}, s27 offen offset:{4*j} sc1")
    poll_data(a, hl, list(range(96,103))+list(range(112,119)), 4, 5, 36, sleep=1)
    for r in range(40,48): a(f"v_mov_b32 v{r}, 0")
    a("s_waitcnt vmcnt(0)")
    for j in range(14):
        unpack_lo(a,48,64+j); unpack_hi(a,49,64+j); unpack_lo(a,50,80+j); unpack_hi(a,51,80+j)
        for t,hb in ((0,96),(1,112)):
            (unpack_lo if j%2==0 else unpack_hi)(a,52,hb+j//2)
            for q in range(4): a(f"v_fmac_f32 v{40+4*t+q}, v{48+q}, v52")
    for r in range(40,48): xred(a,"v_add_f32",r,52)
    a("v_lshlrev_b32 v53, 5, v30"); a("s_lshl_b32 s28, s22, 8"); a("s_add_u32 s28, s28, 256"); a("v_add_u32 v53, s28, v53")
    a("s_mov_b64 exec, 0xff"); a("ds_write_b128 v53, v[40:43]"); a("ds_write_b128 v53, v[44:47] offset:16"); a("s_mov_b64 exec, -1")
    a("s_waitcnt lgkmcnt(0)"); a("s_barrier")
    lf=a.newlabel("L_gf")
    a("v_cmp_gt_u32 vcc, 32, v0"); a("s_and_saveexec_b64 s[30:31], vcc"); a(f"s_cbranch_execz {lf}")
    a("v_lshrrev_b32 v54, 4, v0"); a("v_and_b32 v55, 15, v0"); a("v_lshrrev_b32 v56, 1, v55"); a("v_lshlrev_b32 v56, 3, v56"); a("v_lshlrev_b32 v57, 2, v54"); a("v_add_u32 v56, v56, v57")
    a("v_and_b32 v57, 1, v55"); a("v_add_u32 v56, v56, v57"); a("v_lshlrev_b32 v56, 2, v56"); a("v_add_u32 v56, 256, v56")
    for w in range(4): a(f"ds_read_b32 v{60+w}, v56 offset:{w*256}"); a(f"ds_read_b32 v{64+w}, v56 offset:{w*256+8}")
    a("s_waitcnt lgkmcnt(0)")
    a("v_add_f32 v60, v60, v61"); a("v_add_f32 v62, v62, v63"); a("v_add_f32 v60, v60, v62")
    a("v_add_f32 v64, v64, v65"); a("v_add_f32 v66, v66, v67"); a("v_add_f32 v64, v64, v66")
    def rb(r): a(f"v_cvt_pk_bf16_f32 v{r}, v{r}, v{r}"); a(f"v_lshlrev_b32 v{r}, 16, v{r}")
    rb(60); rb(64)
    a("v_mul_f32 v61, 0xbfb8aa3b, v60"); a("v_exp_f32 v61, v61"); a("s_nop 0"); a("v_add_f32 v61, 1.0, v61"); a("v_rcp_f32 v61, v61"); a("s_nop 0"); a("v_mul_f32 v60, v60, v61")
    rb(60); a("v_mul_f32 v60, v60, v64"); rb(60)
    a("v_mul_u32_u24 v58, 7168, v54"); a("v_lshlrev_b32 v59, 2, v55"); a("v_add_u32 v58, v58, v59"); a(f"s_lshl_b32 s28, s{sidx}, 6"); a(f"s_add_u32 s28, s28, {LY.ACT}")
    a(f"buffer_store_dword v60, v58, {W}, s28 offen sc1")
    a.label(lf); a("s_mov_b64 exec, s[30:31]")

def down_job(a, WS, WD, OUT, sidx):
    W=S4(WS)
    a("v_and_b32 v30, 3, v0"); a("v_lshrrev_b32 v31, 2, v0")
    a("v_mul_u32_u24 v32, 28, v31"); a("v_mul_u32_u24 v33, 896, v32"); a("v_lshlrev_b32 v34, 2, v30"); a("v_add_u32 v33, v33, v34"); a(f"s_lshl_b32 s26, s{sidx}, 4")
    for j in range(28):
        a(f"buffer_load_dword v{64+j}, v33, {S4(WD)}, s26 offen"); a("s_add_u32 s26, s26, 896")
    top2_poll(a,WS)
    a("v_lshrrev_b32 v54, 3, v0"); a("v_and_b32 v54, 1, v54"); a("v_and_b32 v55, 7, v0")
    a("v_mov_b32 v58, s40"); a("v_mov_b32 v59, s41"); a("v_cmp_eq_u32 vcc, 0, v54"); a("s_nop 1"); a("v_cndmask_b32 v58, v59, v58, vcc")
    a(f"s_lshl_b32 s34, s{sidx}, 3"); a("v_add_u32 v59, s34, v55")
    a("s_movk_i32 s35, 448"); a("v_mul_lo_u32 v160, v58, s35"); a("v_add_u32 v160, v160, v59")
    a("v_lshlrev_b32 v163, 1, v160"); a("v_and_b32 v161, -4, v163"); a(f"s_mov_b32 s37, {LY.H2}")
    poll_data(a, [f"buffer_load_dword v164, v161, {W}, s37 offen sc1"], [164,164,164], 4, 5, 36, sleep=1)
    a(f"buffer_load_ushort v162, v163, {S4(OUT)}, 0 offen sc1")
    a("v_lshlrev_b32 v165, 2, v59"); a(f"s_mov_b32 s38, {LY.MOD+5*448*4}"); a(f"buffer_load_dword v166, v165, {W}, s38 offen")
    a("v_lshlrev_b32 v167, 2, v58"); a(f"s_mov_b32 s39, {LY.R}"); a(f"buffer_load_dword v168, v167, {W}, s39 offen sc1")
    a("v_lshlrev_b32 v35, 2, v32"); a(f"s_mov_b32 s27, {LY.ACT}"); a(f"s_mov_b32 s28, {LY.ACT+7168}")
    loads=[]
    for j in range(7):
        loads.append(f"buffer_load_dwordx4 {vr(96+4*j,4)}, v35, {W}, s27 offen offset:{16*j} sc1"); loads.append(f"buffer_load_dwordx4 {vr(128+4*j,4)}, v35, {W}, s28 offen offset:{16*j} sc1")
    wst(a,5)
    poll_data(a, loads, list(range(96,124))+list(range(128,156)), 4, 5, 36, sleep=2)
    wst(a,6)
    for r in range(40,44): a(f"v_mov_b32 v{r}, 0")
    for j in range(28):
        unpack_lo(a,48,64+j); unpack_hi(a,49,64+j)
        a(f"v_fmac_f32 v40, v48, v{96+j}"); a(f"v_fmac_f32 v41, v49, v{96+j}"); a(f"v_fmac_f32 v42, v48, v{128+j}"); a(f"v_fmac_f32 v43, v49, v{128+j}")
    for r in range(40,44):
        a("s_nop 1"); a(f"v_add_f32_dpp v{r}, v{r}, v{r} row_ror:4 row_mask:0xf bank_mask:0xf"); xred(a,"v_add_f32",r,52)
    a("v_lshlrev_b32 v53, 4, v30"); a("s_lshl_b32 s30, s22, 6"); a("s_add_u32 s30, s30, 64"); a("v_add_u32 v53, s30, v53")
    a("s_mov_b64 exec, 0xf"); a("ds_write_b128 v53, v[40:43]"); a("s_mov_b64 exec, -1")
    a("s_waitcnt lgkmcnt(0)"); a("s_barrier")
    lf=a.newlabel("L_df")
    a("v_cmp_gt_u32 vcc, 16, v0"); a("s_and_saveexec_b64 s[32:33], vcc"); a(f"s_cbranch_execz {lf}")
    a("v_lshrrev_b32 v56, 1, v55"); a("v_lshlrev_b32 v56, 2, v56"); a("v_lshlrev_b32 v57, 1, v54"); a("v_add_u32 v56, v56, v57")
    a("v_and_b32 v57, 1, v55"); a("v_add_u32 v56, v56, v57"); a("v_lshlrev_b32 v56, 2, v56"); a("v_add_u32 v56, 64, v56")
    for w in range(4): a(f"ds_read_b32 v{60+w}, v56 offset:{w*64}")
    a("s_waitcnt lgkmcnt(0)")
    a("v_add_f32 v60, v60, v61"); a("v_add_f32 v62, v62, v63"); a("v_add_f32 v60, v60, v62")
    def rb(r): a(f"v_cvt_pk_bf16_f32 v{r}, v{r}, v{r}"); a(f"v_lshlrev_b32 v{r}, 16, v{r}")
    rb(60)
    a("v_mul_f32 v168, 0xbfb8aa3b, v168"); a("v_exp_f32 v168, v168"); a("s_nop 0"); a("v_add_f32 v168, 1.0, v168"); a("v_rcp_f32 v168, v168"); a("s_nop 0")
    a("v_mul_f32 v60, v60, v168"); rb(60)
    a("v_lshlrev_b32 v162, 16, v162"); a("v_fmac_f32 v162, v166, v60")
    a("v_cvt_pk_bf16_f32 v162, v162, v162")
    a(f"buffer_store_short v162, v163, {S4(OUT)}, 0 offen sc1")
    a.label(lf); a("s_mov_b64 exec, s[32:33]")
```

```python
from common_k import *
import common_k as CK
def wait_prod(a,W,seg,vx,vy,so,st,sc):
    if CK.NONCE:
        a(f"s_lshl_b32 s{so}, s{seg}, 9"); a(f"s_add_u32 s{so}, s{so}, {LY.PF}")
        wait_flags(a, W, so, 112, vx, vy, f"v_mov_b32 v{vx}, v1", sc, sleep=8)
    else:
        a(f"v_mov_b32 v{vx}, 0"); a(f"s_lshl_b32 s{so}, s{seg}, 7"); a(f"s_add_u32 s{so}, s{so}, {LY.PCNT}")
        wait_cnt(a, W, so, 112, vy, vx, st, sc)
def wait_m(a,W,seg,vx,vy,so,st,sc):
    if CK.NONCE:
        a(f"s_lshl_b32 s{so}, s{seg}, 11"); a(f"s_add_u32 s{so}, s{so}, {LY.MFF}")
        wait_flags(a, W, so, 14, vx, vy, f"v_mov_b32 v{vx}, v1", sc, sleep=8, stride=7)
    else:
        a(f"v_mov_b32 v{vx}, 0"); a(f"s_lshl_b32 s{so}, s{seg}, 7"); a(f"s_add_u32 s{so}, s{so}, {LY.MCNT}")
        wait_cnt(a, W, so, 14, vy, vx, st, sc, sleep=4)
from k0 import ln_stats, f2u
NEGINF=0xff800000
X1_LDS=28672
def x1_task(a, WS, ld="", st="", fused=False):
    W=S4(WS)
    a("v_and_b32 v2, 15, v1"); a("v_lshrrev_b32 v3, 4, v1")
    a("v_lshlrev_b32 v4, 4, v1")
    a("s_mul_i32 s23, s20, 28672"); a(f"s_add_u32 s23, s23, {LY.HFRAG}"); a("s_mul_i32 s24, s22, 7168"); a("s_add_u32 s23, s23, s24")
    a("s_mov_b32 m0, s24"); a("s_nop 0")
    for i in range(4): a(f"buffer_load_dwordx4 v4, {W}, s23 offen offset:{i*1024} lds")
    a("s_add_u32 s24, s24, 4096"); a("s_add_u32 s23, s23, 4096"); a("s_mov_b32 m0, s24"); a("s_nop 0")
    for i in range(3): a(f"buffer_load_dwordx4 v4, {W}, s23 offen offset:{i*1024} lds")
    if fused:
        wait_prod(a,W,20,11,12,34,35,36)
    a("s_lshl_b32 s25, s21, 2"); a("s_add_u32 s25, s25, s22")
    a("s_lshl_b32 s26, s20, 4"); a("s_add_u32 s26, s26, s25"); a("s_mul_i32 s26, s26, 28672"); a(f"s_add_u32 s26, s26, {LY.TFRAG}")
    TF=32
    for tt in range(2):
        a(f"s_add_u32 s27, s26, {tt*1024}")
        for ks in range(14):
            a(f"buffer_load_dwordx4 {vr(TF+56*tt+4*ks,4)}, v4, {W}, s27 offen offset:{(ks&1)*2048} {ld}")
            if ks&1: a("s_add_u32 s27, s27, 4096")
    MF=144
    a("v_lshlrev_b32 v5, 7, v3"); a("v_and_b32 v6, 7, v2"); a("v_lshlrev_b32 v6, 4, v6"); a("v_add_u32 v5, v5, v6")
    a("s_mul_i32 s28, s20, 7168"); a(f"s_add_u32 s28, s28, {LY.MEMX if fused else LY.MEM}")
    a("s_add_u32 s29, s28, 4096")
    memloads=[f"buffer_load_dwordx4 {vr(MF+4*ks,4)}, v5, {W}, s{28 if ks<8 else 29} offen offset:{(ks*512)%4096} sc1" for ks in range(14)]
    a("v_lshrrev_b32 v7, 2, v2"); a("v_lshlrev_b32 v7, 3, v7"); a("v_and_b32 v8, 3, v2"); a("v_add_u32 v7, v7, v8"); a("v_lshlrev_b32 v7, 4, v7")
    a("v_lshlrev_b32 v8, 9, v3"); a("v_add_u32 v7, v7, v8")
    a("v_lshlrev_b32 v9, 3, v3"); a("v_sub_u32 v9, v9, v2")
    ACC=200
    for r in range(ACC,ACC+24): a(f"v_mov_b32 v{r}, 0")
    a("s_waitcnt vmcnt(0)"); a("s_barrier")
    KB=224
    seq=[(T,ks) for ks in range(14) for T in range(2)]
    def kread(i):
        T,ks=seq[i]; a(f"ds_read_b128 {vr(KB+4*(i%3),4)}, v7 offset:{ks*2048+T*64}")
    kread(0); kread(1)
    for i,(T,ks) in enumerate(seq):
        if i+2<len(seq): kread(i+2)
        a(f"s_waitcnt lgkmcnt({min(2,len(seq)-1-i)})")
        for tt in range(2):
            a(f"v_mfma_f32_16x16x32_bf16 {vr(ACC+12*tt+4*T,4)}, {vr(KB+4*(i%3),4)}, {vr(TF+56*tt+4*ks,4)}, {vr(ACC+12*tt+4*T,4)}")
    wst(a,0)
    poll_data(a, memloads, range(MF,MF+56), 12, 13, 36, sleep=3)
    wst(a,1)
    for ks in range(14):
        for tt in range(2):
            a(f"v_mfma_f32_16x16x32_bf16 {vr(ACC+12*tt+8,4)}, {vr(MF+4*ks,4)}, {vr(TF+56*tt+4*ks,4)}, {vr(ACC+12*tt+8,4)}")
    a.nop(10)
    a(f"v_mov_b32 v10, {NEGINF:#x}")
    a("s_lshl_b32 s30, s20, 1")
    for tt in range(2):
        S=ACC+12*tt
        for T in range(2):
            for i in range(4):
                a(f"v_cmp_lt_i32 vcc, {16*tt-4*T-i}, v9"); a("s_nop 1"); a(f"v_cndmask_b32 v{S+4*T+i}, v{S+4*T+i}, v10, vcc")
        a("v_cmp_lt_u32 vcc, 1, v3"); a("s_nop 1")
        for i in range(4): a(f"v_cndmask_b32 v{S+8+i}, v{S+8+i}, v10, vcc")
        m=236; t=237
        a(f"v_max3_f32 v{m}, v{S}, v{S+1}, v{S+2}")
        for k in range(3,11,2): a(f"v_max3_f32 v{m}, v{m}, v{S+k}, v{S+k+1}")
        a(f"v_max_f32 v{m}, v{m}, v{S+11}")
        xred_g(a,"v_max_f32",m,t)
        for k in range(12): a(f"v_sub_f32 v{S+k}, v{S+k}, v{m}")
        for k in range(12): a(f"v_exp_f32 v{S+k}, v{S+k}")
        a("s_nop 0")
        a(f"v_add_f32 v{m}, v{S}, v{S+1}")
        for k in range(2,12): a(f"v_add_f32 v{m}, v{m}, v{S+k}")
        xred_g(a,"v_add_f32",m,t)
        a(f"v_rcp_f32 v{m}, v{m}"); a("s_nop 0")
        for k in range(12): a(f"v_mul_f32 v{S+k}, v{S+k}, v{m}")
        O=240+ 0
        for z in range(6): a(f"v_cvt_pk_bf16_f32 v{O+z}, v{S+2*z}, v{S+2*z+1}")
        a(f"s_add_u32 s31, s30, {tt}"); a("s_lshl_b32 s32, s31, 4"); a("s_add_u32 s32, s32, s25"); a("s_lshl_b32 s32, s32, 10"); a(f"s_add_u32 s32, s32, {LY.PFX}")
        a(f"buffer_store_dwordx4 {vr(O,4)}, v4, {W}, s32 offen {st}")
        a("s_lshl_b32 s32, s31, 2"); a("s_add_u32 s32, s32, s21"); a("s_lshl_b32 s32, s32, 10"); a(f"s_add_u32 s32, s32, {LY.PFM}")
        a("s_and_b32 s33, s22, 1"); a("s_lshl_b32 s33, s33, 9"); a("s_add_u32 s32, s32, s33"); a("s_lshr_b32 s33, s22, 1"); a("s_lshl_b32 s33, s33, 3"); a("s_add_u32 s32, s32, s33")
        a("s_mov_b32 exec_hi, 0")
        a(f"buffer_store_dwordx2 {vr(O+4,2)}, v4, {W}, s32 offen {st}")
        a("s_mov_b32 exec_hi, -1")
        a("s_nop 1")
def gen_x1():
    a=Asm()
    a("s_cmp_lt_u32 s2, 256"); a("s_cbranch_scc0 L_end")
    a("v_and_b32 v1, 63, v0"); a("v_lshrrev_b32 v2, 6, v0"); a("s_nop 0"); a("v_readfirstlane_b32 s22, v2")
    srds(a,[(16,'ws')])
    a("s_lshr_b32 s20, s2, 2"); a("s_and_b32 s21, s2, 3")
    x1_task(a,16)
    a.label("L_end"); a("s_waitcnt vmcnt(0)")
    return a.text()

X2_LDS=40960
def x2_task(a, WS, XS, ld="", st="", fused=False):
    W=S4(WS)
    a("v_and_b32 v2, 15, v1"); a("v_lshrrev_b32 v3, 4, v1"); a("v_lshlrev_b32 v4, 4, v1")
    if not fused:
        a("s_lshl_b32 s23, s20, 15"); a(f"s_add_u32 s23, s23, {LY.PFX}"); a("s_lshl_b32 s24, s22, 13"); a("s_add_u32 s23, s23, s24")
        for half in range(2):
            a("s_mov_b32 m0, s24"); a("s_nop 0")
            for i in range(4): a(f"buffer_load_dwordx4 v4, {W}, s23 offen offset:{i*1024} lds {ld}")
            a("s_add_u32 s24, s24, 4096"); a("s_add_u32 s23, s23, 4096")
        a("s_lshl_b32 s23, s20, 13"); a(f"s_add_u32 s23, s23, {LY.PFM}"); a("s_lshl_b32 s24, s22, 11"); a("s_add_u32 s23, s23, s24"); a("s_add_u32 s24, s24, 32768")
        a("s_mov_b32 m0, s24"); a("s_nop 0")
        for i in range(2): a(f"buffer_load_dwordx4 v4, {W}, s23 offen offset:{i*1024} lds {ld}")
    a("s_lshl_b32 s25, s21, 2"); a("s_add_u32 s25, s25, s22")
    a("s_mul_i32 s26, s20, 28"); a("s_add_u32 s26, s26, s25")
    a("s_lshl_b32 s27, s26, 14"); a(f"s_add_u32 s27, s27, {LY.BFRAG}")
    AF=32
    if fused:
        a("v_mov_b32 v11, 0"); a("s_lshl_b32 s34, s20, 7"); a(f"s_add_u32 s34, s34, {LY.PCNT}")
        wait_cnt(a, W, 34, 112, 12, 11, 35, 36)
    for h in range(16):
        a(f"buffer_load_dwordx4 {vr(AF+4*h,4)}, v4, {W}, s27 offen offset:{(h&3)*1024} {ld}")
        if (h&3)==3: a("s_add_u32 s27, s27, 4096")
    def mloads():
        a("s_lshl_b32 s27, s26, 12"); a(f"s_add_u32 s27, s27, {LY.MFRAG}")
        for w in range(4): a(f"buffer_load_dwordx4 {vr(AF+64+4*w,4)}, v4, {W}, s27 offen offset:{w*1024} {ld}")
    if not fused: mloads()
    a("v_mul_u32_u24 v5, 896, v2"); a("v_lshlrev_b32 v6, 3, v3"); a("v_add_u32 v5, v5, v6")
    a("s_mul_i32 s28, s20, 28672"); a("s_lshl_b32 s29, s25, 5"); a("s_add_u32 s28, s28, s29")
    a(f"buffer_load_dwordx2 v[120:121], v5, {S4(XS)}, s28 offen"); a(f"s_add_u32 s28, s28, {16*896}"); a(f"buffer_load_dwordx2 v[122:123], v5, {S4(XS)}, s28 offen")
    a("v_lshlrev_b32 v6, 4, v3"); a("s_lshl_b32 s29, s25, 6"); a(f"s_add_u32 s29, s29, {LY.MOD+2*448*4}")
    a(f"buffer_load_dwordx4 v[124:127], v6, {W}, s29 offen")
    ACC=112
    for r in range(ACC,ACC+8): a(f"v_mov_b32 v{r}, 0")
    if fused:
        a("v_lshlrev_b32 v10, 4, v0")
        a("s_lshl_b32 s31, s20, 15"); a(f"s_add_u32 s31, s31, {LY.PFX}"); a("s_add_u32 s32, s31, 16384")
        a("s_lshl_b32 s33, s20, 13"); a(f"s_add_u32 s33, s33, {LY.PFM}")
        PR=148
        a("v_add_u32 v13, 4096, v10"); a("v_add_u32 v14, 8192, v10"); a("v_add_u32 v15, 12288, v10")
        loads=[]
        for k in range(8): loads.append(f"buffer_load_dwordx4 {vr(PR+4*k,4)}, v{[10,13,14,15][k&3]}, {W}, s{31 if k<4 else 32} offen sc1")
        for k in range(2): loads.append(f"buffer_load_dwordx4 {vr(PR+32+4*k,4)}, v{[10,13][k]}, {W}, s33 offen sc1")
        wst(a,0)
        poll_data(a, loads, range(PR,PR+40), 16, 17, 36, sleep=8)
        wst(a,1)
        for k in range(10): a(f"ds_write_b128 v10, {vr(PR+4*k,4)} offset:{k*4096}")
        a("s_lshl_b32 s34, s20, 7"); a(f"s_add_u32 s34, s34, {LY.MCNT}")
        wait_cnt(a, W, 34, 14, 12, 11, 35, 36)
        wst(a,2)
        mloads()
        a("s_waitcnt lgkmcnt(0)")
    a("s_waitcnt vmcnt(0)"); a("s_barrier")
    PB=128
    seq=[(tt,k) for k in range(20) for tt in range(2)]
    def pread(i):
        tt,k=seq[i]; off = tt*16384+k*1024 if k<16 else 32768+tt*4096+(k-16)*1024
        a(f"ds_read_b128 {vr(PB+4*(i%4),4)}, v4 offset:{off}")
    for i in range(3): pread(i)
    for i,(tt,k) in enumerate(seq):
        if i+3<len(seq): pread(i+3)
        a(f"s_waitcnt lgkmcnt({min(3,len(seq)-1-i)})")
        a(f"v_mfma_f32_16x16x32_bf16 {vr(ACC+4*tt,4)}, {vr(AF+4*k,4)}, {vr(PB+4*(i%4),4)}, {vr(ACC+4*tt,4)}")
    a.nop(10)
    a("v_mul_u32_u24 v7, 1792, v2"); a("v_lshlrev_b32 v8, 4, v3"); a("v_add_u32 v7, v7, v8")
    a(f"s_mul_i32 s30, s20, {32*1792}"); a("s_lshl_b32 s29, s25, 6"); a("s_add_u32 s30, s30, s29"); a(f"s_add_u32 s30, s30, {LY.X1}")
    for tt in range(2):
        xr=120+2*tt
        unpack_lo(a,144,xr); unpack_hi(a,145,xr); unpack_lo(a,146,xr+1); unpack_hi(a,147,xr+1)
        for i in range(4): a(f"v_fmac_f32 v{144+i}, v{124+i}, v{ACC+4*tt+i}")
        a(f"buffer_store_dwordx4 v[144:147], v7, {W}, s30 offen {st}")
        a(f"s_add_u32 s30, s30, {16*1792}"); a("s_nop 1")
def gen_x2():
    a=Asm()
    a("s_cmp_lt_u32 s2, 448"); a("s_cbranch_scc0 L_end")
    a("v_and_b32 v1, 63, v0"); a("v_lshrrev_b32 v2, 6, v0"); a("s_nop 0"); a("v_readfirstlane_b32 s22, v2")
    srds(a,[(16,'ws'),(12,'x')])
    a("s_mul_i32 s20, s2, 9363"); a("s_lshr_b32 s20, s20, 16"); a("s_mul_i32 s21, s20, 7"); a("s_sub_u32 s21, s2, s21")
    x2_task(a,16,12)
    a.label("L_end"); a("s_waitcnt vmcnt(0)")
    return a.text()

def x3_task(a, WS, OUT, WR, ld="", st=""):
    W=S4(WS)
    a("v_and_b32 v3, 7, v1"); a("v_lshrrev_b32 v4, 3, v1")
    a("s_lshl_b32 s23, s22, 3"); a("v_add_u32 v5, s23, v3")
    a("v_mul_u32_u24 v6, 1792, v5"); a("v_lshlrev_b32 v7, 5, v4"); a("v_add_u32 v6, v6, v7")
    a(f"s_mul_i32 s24, s20, {32*1792}"); a(f"s_add_u32 s24, s24, {LY.X1}")
    X=64
    for i in range(7):
        a(f"buffer_load_dwordx4 {vr(X+8*i,4)}, v6, {W}, s24 offen offset:{256*i} {ld}"); a(f"buffer_load_dwordx4 {vr(X+8*i+4,4)}, v6, {W}, s24 offen offset:{256*i+16} {ld}")
    a("v_lshlrev_b32 v8, 5, v4")
    SB=120; CB=176; GB=256-0
    a(f"s_mov_b32 s25, {LY.MOD+3*448*4}"); a(f"s_mov_b32 s26, {LY.MOD+4*448*4}"); a(f"s_mov_b32 s27, {LY.MOD+5*448*4}")
    for i in range(7):
        a(f"buffer_load_dwordx4 {vr(SB+8*i,4)}, v8, {W}, s25 offen offset:{256*i}"); a(f"buffer_load_dwordx4 {vr(SB+8*i+4,4)}, v8, {W}, s25 offen offset:{256*i+16}")
        a(f"buffer_load_dwordx4 {vr(CB+8*i,4)}, v8, {W}, s26 offen offset:{256*i}"); a(f"buffer_load_dwordx4 {vr(CB+8*i+4,4)}, v8, {W}, s26 offen offset:{256*i+16}")
    a("v_lshlrev_b32 v9, 4, v4")
    WRr=32
    for i in range(7): a(f"buffer_load_dwordx4 {vr(WRr+4*i,4)}, v9, {S4(WR)}, 0 offen offset:{128*i}")
    a("s_waitcnt vmcnt(35)")
    ln_stats(a,X,56,10,12,13)
    a("s_waitcnt vmcnt(0)")
    for k in range(56):
        a(f"v_add_f32 v{CB+k}, 1.0, v{CB+k}"); a(f"v_mul_f32 v{CB+k}, v{CB+k}, v11"); a(f"v_fmac_f32 v{SB+k}, v{X+k}, v{CB+k}")
    for i in range(7):
        a(f"buffer_load_dwordx4 {vr(CB+8*i,4)}, v8, {W}, s27 offen offset:{256*i}"); a(f"buffer_load_dwordx4 {vr(CB+8*i+4,4)}, v8, {W}, s27 offen offset:{256*i+16}")
    a("v_mul_u32_u24 v17, 896, v5"); a("v_lshlrev_b32 v18, 4, v4"); a("v_add_u32 v17, v17, v18"); a("s_mul_i32 s29, s20, 28672"); a(f"s_add_u32 s28, s29, {LY.H2}")
    for i in range(7):
        t=20+4*(i&1)
        for q in range(4):
            k=8*i+2*q
            a(f"v_cvt_pk_bf16_f32 v{t+q}, v{SB+k}, v{SB+k+1}"); unpack_lo(a,SB+k,t+q); unpack_hi(a,SB+k+1,t+q)
        a(f"buffer_store_dwordx4 {vr(t,4)}, v17, {W}, s28 offen offset:{128*i} {st}")
    a("v_mov_b32 v15, 0")
    for i in range(7):
        for q in range(4):
            unpack_lo(a,14,WRr+4*i+q); a(f"v_fmac_f32 v15, v14, v{SB+8*i+2*q}"); unpack_hi(a,14,WRr+4*i+q); a(f"v_fmac_f32 v15, v14, v{SB+8*i+2*q+1}")
    xred(a,"v_add_f32",15,12)
    a("s_waitcnt vmcnt(7)")
    for k in range(56):
        a(f"v_add_f32 v{X+k}, v{X+k}, v10"); a(f"v_fmac_f32 v{X+k}, v{CB+k}, v{SB+k}")
    for i in range(7):
        for q in range(4): a(f"v_cvt_pk_bf16_f32 v{32+4*i+q}, v{X+8*i+2*q}, v{X+8*i+2*q+1}")
        a(f"buffer_store_dwordx4 {vr(32+4*i,4)}, v17, {S4(OUT)}, s29 offen offset:{128*i} {st}")
    a("v_lshlrev_b32 v16, 2, v5"); a("s_lshl_b32 s28, s20, 7"); a(f"s_add_u32 s28, s28, {LY.R}")
    a("s_waitcnt vmcnt(0)")
    a("s_mov_b64 exec, 0xff"); a(f"buffer_store_dword v15, v16, {W}, s28 offen {st}"); a("s_mov_b64 exec, -1")
def gen_x3():
    a=Asm()
    a("s_cmp_lt_u32 s2, 64"); a("s_cbranch_scc0 L_end")
    a("v_and_b32 v1, 63, v0"); a("v_lshrrev_b32 v2, 6, v0"); a("s_nop 0"); a("v_readfirstlane_b32 s22, v2")
    srds(a,[(16,'ws'),(12,'out'),(8,'wr')])
    a("s_mov_b32 s20, s2")
    x3_task(a,16,12,8)
    a.label("L_end"); a("s_waitcnt vmcnt(0)")
    return a.text()
if __name__=="__main__":
    print(len(gen_x1().splitlines()),len(gen_x2().splitlines()),len(gen_x3().splitlines()))


def x23_task(a, WS, XS, OUT, WR):
    W=S4(WS)
    a("v_and_b32 v2, 15, v1"); a("v_lshrrev_b32 v3, 4, v1"); a("v_lshlrev_b32 v4, 4, v1")
    a("s_lshl_b32 s25, s21, 2"); a("s_add_u32 s25, s25, s22")
    a("s_mul_i32 s26, s20, 28"); a("s_add_u32 s26, s26, s25")
    a("s_lshl_b32 s27, s26, 14"); a(f"s_add_u32 s27, s27, {LY.BFRAG}")
    AF=32
    a("v_mul_u32_u24 v5, 896, v2"); a("v_lshlrev_b32 v6, 3, v3"); a("v_add_u32 v5, v5, v6")
    a("s_mul_i32 s28, s20, 28672"); a("s_lshl_b32 s29, s25, 5"); a("s_add_u32 s28, s28, s29")
    a(f"s_add_u32 s30, s28, {16*896}")
    a(f"buffer_load_dwordx2 v[120:121], v5, {S4(XS)}, s28 offen"); a(f"buffer_load_dwordx2 v[122:123], v5, {S4(XS)}, s30 offen")
    a("v_lshlrev_b32 v6, 4, v3"); a("s_lshl_b32 s29, s25, 6")
    for k,(reg,idx) in enumerate(((124,2),(188,3),(192,4),(196,5))):
        a(f"s_add_u32 s31, s29, {LY.MOD+idx*448*4}"); a(f"buffer_load_dwordx4 {vr(reg,4)}, v6, {W}, s31 offen")
    a("v_lshlrev_b32 v7, 3, v3"); a("s_lshl_b32 s31, s25, 5"); a(f"buffer_load_dwordx2 v[200:201], v7, {S4(WR)}, s31 offen")
    a("v_lshlrev_b32 v8, 2, v1"); a("v_lshlrev_b32 v9, 1, v1")
    a(f"s_mov_b32 s31, {LY.MOD+3*448*4}"); a(f"s_mov_b32 s32, {LY.MOD+4*448*4}")
    for j in range(7):
        a(f"buffer_load_dword v{204+j}, v8, {W}, s31 offen offset:{256*j}"); a(f"buffer_load_dword v{212+j}, v8, {W}, s32 offen offset:{256*j}")
        a(f"buffer_load_ushort v{220+j}, v9, {S4(WR)}, 0 offen offset:{128*j}")
    wait_prod(a,W,20,11,12,34,35,36)
    for h in range(16):
        a(f"buffer_load_dwordx4 {vr(AF+4*h,4)}, v4, {W}, s27 offen offset:{(h&3)*1024} sc1")
        if (h&3)==3: a("s_add_u32 s27, s27, 4096")
    a("v_mov_b32 v228, 0"); a("v_mov_b32 v229, 0")
    for j in range(7):
        a(f"v_lshlrev_b32 v{220+j}, 16, v{220+j}"); a(f"v_fmac_f32 v228, v{204+j}, v{220+j}"); a(f"v_add_f32 v{212+j}, 1.0, v{212+j}"); a(f"v_fmac_f32 v229, v{212+j}, v{220+j}")
    for r in (228,229):
        for ror in (4,2,1):
            a("s_nop 1"); a(f"v_add_f32_dpp v{r}, v{r}, v{r} row_ror:{ror} row_mask:0xf bank_mask:0xf")
        xred(a,"v_add_f32",r,230)
    for i in range(4): a(f"v_add_f32 v{192+i}, 1.0, v{192+i}")
    unpack_lo(a,232,200); unpack_hi(a,233,200); unpack_lo(a,234,201); unpack_hi(a,235,201)
    for i in range(4): a(f"v_mul_f32 v{236+i}, v{192+i}, v{232+i}")
    ACC=112
    for r in range(ACC,ACC+8): a(f"v_mov_b32 v{r}, 0")
    wait_m(a,W,20,11,12,34,35,36)
    a("s_lshl_b32 s27, s26, 12"); a(f"s_add_u32 s27, s27, {LY.MFRAG}")
    for w in range(4): a(f"buffer_load_dwordx4 {vr(AF+64+4*w,4)}, v4, {W}, s27 offen offset:{w*1024} sc1")
    a("v_lshlrev_b32 v10, 4, v0")
    a("s_lshl_b32 s31, s20, 15"); a(f"s_add_u32 s31, s31, {LY.PFX}"); a("s_add_u32 s32, s31, 16384")
    a("s_lshl_b32 s33, s20, 13"); a(f"s_add_u32 s33, s33, {LY.PFM}")
    PR=148
    a("v_add_u32 v13, 4096, v10"); a("v_add_u32 v14, 8192, v10"); a("v_add_u32 v15, 12288, v10")
    loads=[]
    for k in range(8): loads.append(f"buffer_load_dwordx4 {vr(PR+4*k,4)}, v{[10,13,14,15][k&3]}, {W}, s{31 if k<4 else 32} offen sc1")
    for k in range(2): loads.append(f"buffer_load_dwordx4 {vr(PR+32+4*k,4)}, v{[10,13][k]}, {W}, s33 offen sc1")
    wst(a,0)
    poll_data(a, loads, range(PR,PR+40), 16, 17, 36, sleep=2)
    wst(a,1)
    for k in range(10): a(f"ds_write_b128 v10, {vr(PR+4*k,4)} offset:{k*4096}")
    a("s_waitcnt lgkmcnt(0)"); a("s_barrier")
    PB=128
    seq=[(tt,k) for k in range(20) for tt in range(2)]
    def pread(i):
        tt,k=seq[i]; off = tt*16384+k*1024 if k<16 else 32768+tt*4096+(k-16)*1024
        a(f"ds_read_b128 {vr(PB+4*(i%4),4)}, v4 offset:{off}")
    for i in range(3): pread(i)
    for i,(tt,k) in enumerate(seq):
        if i+3<len(seq): pread(i+3)
        a(f"s_waitcnt lgkmcnt({min(3,len(seq)-1-i)})")
        a(f"v_mfma_f32_16x16x32_bf16 {vr(ACC+4*tt,4)}, {vr(AF+4*k,4)}, {vr(PB+4*(i%4),4)}, {vr(ACC+4*tt,4)}")
    a.nop(10)
    X=144; PS=152
    for tt in range(2):
        xr=120+2*tt; x=X+4*tt
        unpack_lo(a,x,xr); unpack_hi(a,x+1,xr); unpack_lo(a,x+2,xr+1); unpack_hi(a,x+3,xr+1)
        for i in range(4): a(f"v_fmac_f32 v{x+i}, v{124+i}, v{ACC+4*tt+i}")
        p=PS+3*tt
        a(f"v_add_f32 v{p}, v{x}, v{x+1}"); a(f"v_add_f32 v{p}, v{p}, v{x+2}"); a(f"v_add_f32 v{p}, v{p}, v{x+3}")
        a(f"v_mul_f32 v{p+1}, v{x}, v{x}");
        for i in range(1,4): a(f"v_fmac_f32 v{p+1}, v{x+i}, v{x+i}")
        a(f"v_mul_f32 v{p+2}, v{x}, v236")
        for i in range(1,4): a(f"v_fmac_f32 v{p+2}, v{x+i}, v{236+i}")
    for r in range(PS,PS+6): xred_g(a,"v_add_f32",r,158)
    LS=41984
    a("v_lshlrev_b32 v16, 4, v2"); a("s_lshl_b32 s35, s22, 9"); a(f"s_add_u32 s35, s35, {LS}"); a("v_add_u32 v16, s35, v16")
    a("v_mov_b32 v159, 0")
    a("s_mov_b64 exec, 0xffff")
    for tt in range(2):
        a(f"v_mov_b32 v160, v{PS+3*tt}"); a(f"v_mov_b32 v161, v{PS+3*tt+1}"); a(f"v_mov_b32 v162, v{PS+3*tt+2}"); a("v_mov_b32 v163, 0")
        a(f"ds_write_b128 v16, v[160:163] offset:{tt*256}")
    a("s_mov_b64 exec, -1")
    a("s_waitcnt lgkmcnt(0)"); a("s_barrier")
    lw=a.newlabel("L_st")
    a("s_cmp_eq_u32 s22, 0"); a(f"s_cbranch_scc0 {lw}")
    a("s_mov_b32 exec_hi, 0")
    a("v_lshlrev_b32 v17, 4, v1"); a(f"v_add_u32 v18, {LS}, v17")
    for w in range(4): a(f"ds_read_b128 {vr(164+4*w,4)}, v18 offset:{w*512}")
    a("s_waitcnt lgkmcnt(0)")
    for i in range(3):
        a(f"v_add_f32 v{164+i}, v{164+i}, v{168+i}"); a(f"v_add_f32 v{172+i}, v{172+i}, v{176+i}"); a(f"v_add_f32 v{164+i}, v{164+i}, v{172+i}")
    a("s_mul_i32 s35, s20, 7"); a("s_add_u32 s35, s35, s21"); a("s_lshl_b32 s35, s35, 9"); a(f"s_add_u32 s35, s35, {LY.STATS}")
    a(f"buffer_store_dwordx4 v[164:167], v17, {W}, s35 offen sc1")
    a("s_mov_b32 exec_hi, -1")
    a.label(lw)
    a("v_lshlrev_b32 v19, 4, v2")
    a(f"s_mul_i32 s35, s20, {7*512}"); a(f"s_add_u32 s35, s35, {LY.STATS}")
    SG=32
    loads=[]
    for cg in range(7):
        for tt in range(2):
            loads.append(f"buffer_load_dwordx4 {vr(SG+4*(2*cg+tt),4)}, v19, {W}, s35 offen offset:{cg*512+tt*256} sc1")
    wst(a,2)
    poll_data(a, loads, [SG+4*k+i for k in range(14) for i in range(3)], 16, 17, 36, sleep=1)
    from k0 import f2u
    for tt in range(2):
        for i in range(3):
            b=SG+4*tt+i
            for cg in range(1,7): a(f"v_add_f32 v{b}, v{b}, v{SG+4*(2*cg+tt)+i}")
        p1,p2,p3=SG+4*tt,SG+4*tt+1,SG+4*tt+2
        mean=96+4*tt; rstd=mean+1; rr=mean+2
        a(f"v_mul_f32 v{mean}, {f2u(1/448):#x}, v{p1}")
        a(f"v_mul_f32 v{rstd}, v{mean}, v{mean}"); a(f"v_mov_b32 v104, {f2u(1e-5):#x}"); a(f"v_sub_f32 v104, v104, v{rstd}"); a(f"v_fmac_f32 v104, {f2u(1/448):#x}, v{p2}")
        a(f"v_rsq_f32 v{rstd}, v104"); a("s_nop 0")
        a(f"v_fma_f32 v105, -v{mean}, v229, v{p3}"); a(f"v_fma_f32 v{rr}, v105, v{rstd}, v228")
    lr=a.newlabel("L_r")
    a("s_add_u32 s35, s21, s22"); a("s_cmp_eq_u32 s35, 0"); a(f"s_cbranch_scc0 {lr}")
    a("v_lshlrev_b32 v20, 2, v2"); a("s_lshl_b32 s35, s20, 7"); a(f"s_add_u32 s35, s35, {LY.R}")
    a("s_mov_b64 exec, 0xffff"); a(f"buffer_store_dword v98, v20, {W}, s35 offen sc1"); a(f"buffer_store_dword v102, v20, {W}, s35 offen offset:64 sc1"); a("s_mov_b64 exec, -1")
    a.label(lr)
    for tt in range(2):
        x=X+4*tt; mean=96+4*tt; rstd=mean+1; hh=108+4*tt*0
        for i in range(4):
            a(f"v_sub_f32 v{108+i}, v{x+i}, v{mean}"); a(f"v_mul_f32 v{108+i}, v{108+i}, v{rstd}"); a(f"v_fma_f32 v{108+i}, v{108+i}, v{192+i}, v{188+i}")
        H=240+2*tt; O=244+2*tt
        a(f"v_cvt_pk_bf16_f32 v{H}, v108, v109"); a(f"v_cvt_pk_bf16_f32 v{H+1}, v110, v111")
        unpack_lo(a,108,H); unpack_hi(a,109,H); unpack_lo(a,110,H+1); unpack_hi(a,111,H+1)
        for i in range(4): a(f"v_fmac_f32 v{x+i}, v{196+i}, v{108+i}")
        a(f"v_cvt_pk_bf16_f32 v{O}, v{x}, v{x+1}"); a(f"v_cvt_pk_bf16_f32 v{O+1}, v{x+2}, v{x+3}")
    a(f"buffer_store_dwordx2 v[244:245], v5, {S4(OUT)}, s28 offen sc1"); a(f"buffer_store_dwordx2 v[246:247], v5, {S4(OUT)}, s30 offen sc1")
    a("s_waitcnt vmcnt(0)")
    a(f"s_add_u32 s28, s28, {LY.H2}"); a(f"s_add_u32 s30, s30, {LY.H2}")
    a(f"buffer_store_dwordx2 v[240:241], v5, {W}, s28 offen sc1"); a(f"buffer_store_dwordx2 v[242:243], v5, {W}, s30 offen sc1")
```

```python
from tutil import *
import common_k as CK
import re, k0, k0n, k0p, k1, rec, xf, tail, mainK, layout as LY
def uniq(body,tag): return re.sub(r"\bL_(\w+)", lambda m: f"L{tag}_{m.group(1)}", body)
def kernels():
    rec.STAMP=('lane' if os.environ.get('STAMP') else False); rec.EXP={'pf':1,'bin':1,'bpos':10,'bstep':4,'p2B':1,'gapB':3,'preB':4,'preA':14,'p2A':1,'gapA':2}
    if os.environ.get('EXP'): rec.EXP.update(eval(os.environ['EXP'])); rec.EXP={k:v for k,v in rec.EXP.items() if v}
    CK.NONCE=True
    return [("main_kernel",uniq(mainK.gen_main(fk0=True),"m"),256,163840,512,256)]
HDR=open("adaLN_cond__memory_aug_recurrent_mem_tr__moe_arch_mod__prompt.s.ref").read().split("; Override launch")[0]
def make(): return HDR+mkfile(kernels())
if __name__=="__main__":
    asm=make()
    if not on_gpu():
        check_local(asm,[k[0] for k in kernels()]); open("full4.s","w").write(asm); print(len(asm))
```

```python
from asmlib import *
import layout as LY
import common_k as CK

WS_BYTES = 268435456
OOB = 0x20000000
S_WS=4; S_DBG=8; S_WAVE=12; S_RANK=13; S_STEP=14; S_MEMOFF=15
S_XCC=20; S_CNT=21; S_FAIL=22; S_EX=24
S_PX=26; S_PM=27; S_XS=28; S_BF=29; S_MF=30; S_MST=31
S_T0=32; S_T1=33; S_T2=34; S_T3=35
POLL_MAX=400000
L_MEM=0; L_STAG=8192; L_SB=15360; L_XS=20480
L_RED=8192; L_U=16384
L_RANK=150000
LDS_BYTES=150016+64

STAMP=False
EXP={}
FUSED=False
SLOW=False
TAG=''
def XST(): return 'sc1' if SLOW else ''
def LB(n): return n+TAG
S_PC=37; S_MC=38; S_MX=39
LANEREG={}
PRESTART=None
VALREGS=(12,13,14,15)
def stamp(a,k):
    if STAMP=='lane':
        if k in LANEREG:
            a("s_memrealtime s[50:51]"); a("s_waitcnt lgkmcnt(0)"); a(f"s_mov_b32 m0, s{S_STEP}"); a("s_nop 0"); a(f"v_writelane_b32 v{LANEREG[k]}, s50, m0")
        return
    if STAMP=='abs':
        lab=a.newlabel("L_as")
        a(f"s_cmp_eq_u32 s{S_STEP}, 30"); a(f"s_cbranch_scc0 {lab}")
        a("s_memrealtime s[50:51]"); a("s_waitcnt lgkmcnt(0)"); a(f"s_mov_b32 s{60+k}, s50")
        a.label(lab); return
    if not STAMP: return
    a("s_memtime s[50:51]"); a("s_waitcnt lgkmcnt(0)")
    a("s_sub_u32 s52, s50, s53"); a(f"s_add_u32 s{60+k}, s{60+k}, s52"); a("s_mov_b32 s53, s50")
def stamp_init(a):
    if STAMP=='lane': return
    if not STAMP: return
    for k in range(16): a(f"s_mov_b32 s{60+k}, 0")
    a("s_memtime s[50:51]"); a("s_waitcnt lgkmcnt(0)"); a("s_mov_b32 s53, s50")
def stamp_out(a):
    if STAMP=='lane':
        a(f"s_lshl_b32 s52, s{S_RANK}, 2"); a(f"s_add_u32 s52, s52, s{S_WAVE}"); a("s_lshl_b32 s52, s52, 10"); a(f"s_add_u32 s52, s52, {LY.DBGS}")
        a("v_lshrrev_b32 v99, 2, v6")
        lab=a.newlabel("L_so")
        a(f"s_cmp_ge_u32 s{S_RANK}, 16"); a(f"s_cbranch_scc1 {lab}")
        for i,r in enumerate((2,1,0,0)): a(f"buffer_store_dword v{r}, v99, s[{S_WS}:{S_WS+3}], s52 offen offset:{256*i}")
        a(f"s_branch {lab}_e")
        a.label(lab)
        for i,r in enumerate(VALREGS): a(f"buffer_store_dword v{r}, v99, s[{S_WS}:{S_WS+3}], s52 offen offset:{256*i}")
        a.label(lab+"_e")
        return
    if not STAMP: return
    a(f"s_lshl_b32 s52, s{S_RANK}, 2"); a(f"s_add_u32 s52, s52, s{S_WAVE}"); a("s_lshl_b32 s52, s52, 6"); a(f"s_add_u32 s52, s52, {LY.MISC}")
    for k in range(16): a(f"v_mov_b32 v{100+k}, s{60+k}")
    a("v_mov_b32 v99, 0")
    a("v_cmp_eq_u32 vcc, 0, v1"); a(f"s_and_saveexec_b64 s[{S_EX}:{S_EX+1}], vcc")
    for k in range(4): a(f"buffer_store_dwordx4 v[{100+4*k}:{103+4*k}], v99, s[{S_WS}:{S_WS+3}], s52 offen offset:{16*k}")
    a(f"s_mov_b64 exec, s[{S_EX}:{S_EX+1}]")

def MINC(): return 2048 if CK.NONCE else 128
def MSIG(W,so): return (f"buffer_store_dword v0, v1, {W}, s{so} offen sc1" if CK.NONCE else f"buffer_atomic_add v0, v1, {W}, s{so} offen sc1")
def srd(a, d, b, n):
    a(f"s_mov_b32 s{d}, s{b}"); a(f"s_and_b32 s{d+1}, s{b+1}, 0xffff"); a(f"s_mov_b32 s{d+2}, {n}"); a(f"s_mov_b32 s{d+3}, 0x20000")

def chk_poison(a, regs, t0, t1):
    regs=list(regs)
    a(f"v_max3_u32 v{t0}, v{regs[0]}, v{regs[1]}, v{regs[2]}")
    rest=regs[3:]
    use=[t1,t0]; first=True
    if len(rest)>=3:
        a(f"v_max3_u32 v{t1}, v{rest[0]}, v{rest[1]}, v{rest[2]}"); rest=rest[3:]
        cur=[t0,t1]; k=0
        while len(rest)>=2:
            a(f"v_max3_u32 v{cur[k]}, v{cur[k]}, v{rest[0]}, v{rest[1]}"); rest=rest[2:]; k^=1
        if rest: a(f"v_max3_u32 v{t0}, v{t0}, v{t1}, v{rest[0]}")
        else: a(f"v_max_u32 v{t0}, v{t0}, v{t1}")
    else:
        for r in rest: a(f"v_max_u32 v{t0}, v{t0}, v{r}")
    a(f"v_cmp_eq_u32 vcc, -1, v{t0}")

def poll_loop(a, loads, regs, t0, t1, sleep=0):
    lab=a.newlabel("L_poll"); ok=lab+"_ok"
    a(f"s_mov_b32 s{S_CNT}, 0")
    a.label(lab)
    for l in loads: a(l)
    a("s_waitcnt vmcnt(0)")
    chk_poison(a, regs, t0, t1)
    a(f"s_cbranch_vccz {ok}")
    if sleep: a(f"s_sleep {sleep}")
    a(f"s_add_u32 s{S_CNT}, s{S_CNT}, 1")
    a(f"s_cmp_lt_u32 s{S_CNT}, {POLL_MAX}")
    a(f"s_cbranch_scc1 {lab}")
    a(f"s_mov_b32 s{S_FAIL}, 1")
    a.label(ok)
    if STAMP is True: a(f"s_add_u32 s{72 if len(loads)==2 else 73}, s{72 if len(loads)==2 else 73}, s{S_CNT}")

def poll2(a, mkloads, sets, nregs, t0, t1, cont, gap):
    lab=a.newlabel("L_p2"); done=lab+"_done"
    n=len(mkloads(sets[0]))
    a(f"s_mov_b32 s{S_CNT}, 0")
    for l in mkloads(sets[0]): a(l)
    if gap: a(f"s_sleep {gap}")
    for l in mkloads(sets[1]): a(l)
    a.label(lab)
    for i in range(2):
        a(f"s_waitcnt vmcnt({n})")
        chk_poison(a, range(sets[i],sets[i]+nregs), t0, t1)
        a(f"s_cbranch_vccz {lab}_ok{i}")
        for l in mkloads(sets[i]): a(l)
    a(f"s_add_u32 s{S_CNT}, s{S_CNT}, 1")
    a(f"s_cmp_lt_u32 s{S_CNT}, {POLL_MAX}")
    a(f"s_cbranch_scc1 {lab}")
    a(f"s_mov_b32 s{S_FAIL}, 1")
    a.label(f"{lab}_ok0"); cont(sets[0]); a(f"s_branch {done}")
    a.label(f"{lab}_ok1"); cont(sets[1])
    a.label(done)

def mem_share2(a, PA, PB, t0, t1, gap):
    W=f"s[{S_WS}:{S_WS+3}]"
    def mk(b): return [f"buffer_load_dwordx4 {vr(b,4)}, v4, {W}, s{S_MEMOFF} offen sc1", f"buffer_load_dwordx4 {vr(b+4,4)}, v5, {W}, s{S_MEMOFF} offen sc1"]
    def cont(b):
        stamp(a,0)
        a(f"ds_write_b128 v4, {vr(b,4)} offset:{L_MEM}")
        a(f"ds_write_b128 v4, {vr(b+4,4)} offset:{L_MEM+4096}")
    poll2(a, mk, [PA,PB], 8, t0, t1, cont, gap)
    a("s_waitcnt lgkmcnt(0)")
    a("s_barrier")
    stamp(a,1)

def mem_share(a, P0, t0, t1, sleep=0):
    poll_loop(a, [f"buffer_load_dwordx4 {vr(P0,4)}, v4, s[{S_WS}:{S_WS+3}], s{S_MEMOFF} offen sc1",
                  f"buffer_load_dwordx4 {vr(P0+4,4)}, v5, s[{S_WS}:{S_WS+3}], s{S_MEMOFF} offen sc1"],
              range(P0,P0+8), t0, t1, sleep)
    stamp(a,0)
    a(f"ds_write_b128 v4, {vr(P0,4)} offset:{L_MEM}")
    a(f"ds_write_b128 v4, {vr(P0+4,4)} offset:{L_MEM+4096}")
    a("s_waitcnt lgkmcnt(0)")
    a("s_barrier")
    stamp(a,1)

def lane_consts(a):
    a("v_lshlrev_b32 v4, 4, v0")
    a("v_add_u32 v5, 4096, v4")
    a(f"v_mov_b32 v2, {OOB}")
    a("v_cmp_gt_u32 vcc, 192, v0")
    a("s_nop 1")
    a("v_cndmask_b32 v5, v2, v5, vcc")
    a("v_lshlrev_b32 v6, 4, v1")
    a("v_and_b32 v2, 8, v1"); a("v_cmp_eq_u32 vcc, 0, v2")
    a("v_mov_b32 v3, 0xeeee"); a("v_mov_b32 v2, 0x4444"); a("s_nop 0")
    a("v_cndmask_b32 v3, v3, v2, vcc")

def common_prologue(a, target_xcc=0, nteam=30):
    a("s_load_dwordx2 s[16:17], s[0:1], 128")
    a("s_load_dwordx2 s[18:19], s[0:1], 120")
    a(f"s_getreg_b32 s{S_XCC}, hwreg(HW_REG_XCC_ID)")
    a(f"s_and_b32 s{S_XCC}, s{S_XCC}, 15")
    a("v_lshrrev_b32 v2, 6, v0")
    a("v_and_b32 v1, 63, v0")
    a("s_waitcnt lgkmcnt(0)")
    srd(a, S_WS, 16, WS_BYTES)
    srd(a, S_DBG, 18, 256)
    a(f"v_readfirstlane_b32 s{S_WAVE}, v2")
    a(f"s_cmp_lt_u32 s2, 256"); a("s_cbranch_scc0 L_exit")
    a(f"s_cmp_eq_u32 s{S_XCC}, {target_xcc}"); a("s_cbranch_scc0 L_exit")
    a(f"s_cmp_eq_u32 s{S_WAVE}, 0"); a("s_cbranch_scc0 L_norank")
    a("v_cmp_eq_u32 vcc, 0, v0"); a(f"s_and_saveexec_b64 s[{S_EX}:{S_EX+1}], vcc")
    a("v_mov_b32 v4, 0"); a("v_mov_b32 v5, 1")
    a(f"buffer_atomic_add v5, v4, s[{S_DBG}:{S_DBG+3}], 0 offen sc0")
    a("s_waitcnt vmcnt(0)")
    a(f"v_mov_b32 v6, {L_RANK}"); a("ds_write_b32 v6, v5"); a("s_waitcnt lgkmcnt(0)")
    a(f"s_mov_b64 exec, s[{S_EX}:{S_EX+1}]")
    a.label("L_norank")
    a("s_barrier")
    a(f"v_mov_b32 v6, {L_RANK}"); a("ds_read_b32 v5, v6"); a("s_waitcnt lgkmcnt(0)")
    a("s_nop 0")
    a(f"v_readfirstlane_b32 s{S_RANK}, v5")
    a(f"s_cmp_lt_u32 s{S_RANK}, {nteam}"); a("s_cbranch_scc0 L_exit")
    a(f"s_mov_b32 s{S_FAIL}, 0")
    lane_consts(a)

def gfrag(fi):
    return ar(8*fi,8) if fi<32 else vr(120+8*(fi-32),8)
def gfrag_half(fi,hh):
    return ar(8*fi+4*hh,4) if fi<32 else vr(120+8*(fi-32)+4*hh,4)

def score_role(a, timing=False, sleep=0, nsteps=63):
    MS=16; ACC=44; BJ=72
    W=f"s[{S_WS}:{S_WS+3}]"
    a("v_and_b32 v16, 15, v1")
    a("v_lshrrev_b32 v17, 4, v1")
    a("v_and_b32 v18, 12, v16"); a("v_and_b32 v19, 1, v16"); a("v_lshlrev_b32 v19, 1, v19")
    a("v_bfe_u32 v20, v16, 1, 1"); a("v_or_b32 v18, v18, v19"); a("v_or_b32 v18, v18, v20")
    a("v_mul_u32_u24 v21, 896, v18"); a("v_lshlrev_b32 v22, 5, v17"); a("v_add_u32 v21, v21, v22")
    a(f"s_mul_i32 s{S_T0}, s{S_RANK}, {448*896}")
    a(f"s_mul_i32 s{S_T1}, s{S_WAVE}, {7*16*896}")
    a(f"s_add_u32 s{S_T0}, s{S_T0}, s{S_T1}")
    a(f"s_add_u32 s{S_T0}, s{S_T0}, {LY.WP}")
    n=0
    for t in range(7):
        for ks in range(7):
            fi=t*7+ks
            for hh in range(2):
                a(f"buffer_load_dwordx4 {gfrag_half(fi,hh)}, v21, {W}, s{S_T0} offen offset:{ks*128+hh*16}")
                n+=1
                if n%32==0: a("s_waitcnt vmcnt(24)")
        a(f"s_add_u32 s{S_T0}, s{S_T0}, {16*896}")
    a("v_lshlrev_b32 v7, 4, v16")
    a("v_and_b32 v22, 1, v17"); a("v_lshlrev_b32 v22, 3, v22"); a("v_add_u32 v7, v7, v22")
    a(f"s_mul_i32 s{S_T1}, s{S_WAVE}, {7*256}"); a(f"s_add_u32 s{S_T1}, s{S_T1}, {L_STAG}")
    a(f"v_add_u32 v8, s{S_T1}, v7")
    a("v_lshrrev_b32 v22, 5, v1"); a("v_lshlrev_b32 v22, 8, v22"); a("v_add_u32 v7, v8, v22")
    a("v_lshlrev_b32 v9, 8, v17"); a("v_lshlrev_b32 v22, 3, v16"); a("v_add_u32 v9, v9, v22"); a(f"v_add_u32 v9, {L_STAG}, v9")
    a("v_lshlrev_b32 v10, 9, v17"); a("v_lshlrev_b32 v22, 4, v16"); a("v_add_u32 v10, v10, v22")
    a(f"s_lshl_b32 s{S_T1}, s{S_WAVE}, 8"); a(f"s_add_u32 s{S_T1}, s{S_T1}, {L_XS}"); a(f"v_add_u32 v10, s{S_T1}, v10")
    a("v_lshlrev_b32 v23, 7, v17"); a("v_and_b32 v22, 7, v16"); a("v_lshlrev_b32 v22, 4, v22"); a("v_add_u32 v23, v23, v22")
    if L_MEM: a(f"v_add_u32 v23, {L_MEM}, v23")
    a(f"s_cmp_eq_u32 s{S_WAVE}, 2"); a("s_cselect_b64 vcc, -1, 0"); a("s_nop 1"); a("v_cndmask_b32 v10, v10, v23, vcc")
    a("v_and_b32 v22, 1, v17"); a("v_lshlrev_b32 v22, 2, v22"); a("v_lshrrev_b32 v23, 5, v1"); a("v_add_u32 v22, v22, v23")
    a("v_mul_u32_u24 v11, 192, v22"); a("v_lshlrev_b32 v22, 2, v16"); a("v_add_u32 v11, v11, v22")
    a(f"s_lshl_b32 s{S_T1}, s{S_WAVE}, 6"); a(f"s_add_u32 s{S_T1}, s{S_T1}, {L_SB}"); a(f"v_add_u32 v11, s{S_T1}, v11")
    a("v_lshrrev_b32 v22, 3, v1"); a("v_and_b32 v23, 7, v1")
    a("v_mul_u32_u24 v12, 192, v23"); a(f"v_add_u32 v12, {L_SB}, v12")
    a("v_lshlrev_b32 v24, 2, v22"); a("v_add_u32 v13, v12, v24"); a("v_add_u32 v13, 128, v13")
    a("v_lshlrev_b32 v24, 4, v22"); a("v_add_u32 v12, v12, v24")
    a("v_lshrrev_b32 v24, 1, v22"); a("v_lshlrev_b32 v24, 3, v24"); a("v_add_u32 v24, v24, v23"); a("v_lshlrev_b32 v14, 4, v24")
    a("v_and_b32 v24, 1, v22"); a("v_lshlrev_b32 v24, 3, v24"); a("v_add_u32 v14, v14, v24")
    a("v_lshlrev_b32 v15, 4, v23"); a("v_lshlrev_b32 v24, 1, v22"); a("v_add_u32 v15, v15, v24")
    a(f"s_mov_b32 s{S_STEP}, 0")
    a(f"s_mov_b32 s{S_MEMOFF}, {LY.MEM}")
    a(f"s_lshl_b32 s{S_PX}, s{S_RANK}, 9"); a(f"s_add_u32 s{S_PX}, s{S_PX}, {LY.PX}")
    a(f"s_lshl_b32 s{S_PM}, s{S_RANK}, 7"); a(f"s_add_u32 s{S_PM}, s{S_PM}, {LY.PM}")
    a(f"s_mov_b32 s{S_XS}, {LY.HFRAG}")
    def xs_dma(nw):
        a(f"s_mul_i32 s{S_T0}, s{S_WAVE}, {7*1024}")
        a(f"s_add_u32 s{S_T1}, s{S_T0}, s{S_XS}")
        a(f"s_add_u32 s{S_T0}, s{S_T0}, {L_XS}")
        a(f"s_mov_b32 m0, s{S_T0}"); a("s_nop 0")
        for i in range(4): a(f"buffer_load_dwordx4 v6, {W}, s{S_T1} offen offset:{i*1024} lds")
        a(f"s_add_u32 s{S_T0}, s{S_T0}, 4096"); a(f"s_add_u32 s{S_T1}, s{S_T1}, 4096")
        a(f"s_mov_b32 m0, s{S_T0}"); a("s_nop 0")
        for i in range(3): a(f"buffer_load_dwordx4 v6, {W}, s{S_T1} offen offset:{i*1024} lds")
    if PRESTART:
        a("s_waitcnt vmcnt(0)"); PRESTART()
    xs_dma(4)
    a("s_waitcnt vmcnt(0)")
    if timing: a("s_memtime s[40:41]")
    stamp_init(a)
    a.label(LB("L_sstep"))
    for r in range(ACC,ACC+28): a(f"v_mov_b32 v{r}, 0")
    if EXP.get('preA'): a(f"s_sleep {EXP['preA']}")
    ND=EXP.get('dir',0)
    if ND:
        W_=f"s[{S_WS}:{S_WS+3}]"
        loads=[f"buffer_load_dwordx4 {vr(72,4)}, v4, {W_}, s{S_MEMOFF} offen sc1", f"buffer_load_dwordx4 {vr(76,4)}, v5, {W_}, s{S_MEMOFF} offen sc1"]
        loads+=[f"buffer_load_dwordx4 {vr(MS+4*k,4)}, v6, {W_}, s{S_MEMOFF} offen offset:{k*1024} sc1" for k in range(ND)]
        poll_loop(a, loads, list(range(72,80))+list(range(MS,MS+4*ND)), 80, 81, sleep)
        stamp(a,0)
        a(f"ds_write_b128 v4, {vr(72,4)} offset:{L_MEM}"); a(f"ds_write_b128 v4, {vr(76,4)} offset:{L_MEM+4096}")
        for t in range(7): a(f"v_smfmac_f32_16x16x64_bf16 {vr(ACC+4*t,4)}, {vr(MS,4)}, {gfrag(t*7)}, v3")
        a("s_waitcnt lgkmcnt(0)"); a("s_barrier")
        stamp(a,1)
    elif EXP.get('p2A'): mem_share2(a, 72, 84, 80, 81, EXP.get('gapA',2))
    else: mem_share(a, 72, 80, 81, sleep)
    for ks in range(ND,7): a(f"ds_read_b128 {vr(MS+4*ks,4)}, v6 offset:{L_MEM+ks*1024}")
    order=[]
    if ND==2: order+=[(t,1) for t in range(7)]
    k0_=ND if ND else 0
    order+=[(t,ks) for t in range(5) for ks in range(k0_,7)]
    for ks in range(k0_,7): order+= [(5,ks),(6,ks)]
    mains=[]; seen=set()
    for i,(t,ks) in enumerate(order):
        m=f"v_smfmac_f32_16x16x64_bf16 {vr(ACC+4*t,4)}, {vr(MS+4*ks,4)}, {gfrag(t*7+ks)}, v3"
        if ks>=ND and ks not in seen:
            seen.add(ks); m=f"s_waitcnt lgkmcnt({6-ks})\n"+m
        mains.append(m)
    lastidx={}
    for i,(t,ks) in enumerate(order): lastidx[t]=i
    firstfree=max(i for i,(t,ks) in enumerate(order) if t==0)+1
    T0=112+0
    def post_pair(ta,tb,tmp):
        o=[]
        for i in range(4): o.append(f"v_permlane32_swap_b32 v{ACC+4*ta+i}, v{ACC+4*tb+i}")
        for i in range(4): o.append(f"v_add_f32 v{ACC+4*ta+i}, v{ACC+4*ta+i}, v{ACC+4*tb+i}")
        o.append(f"v_cvt_pk_bf16_f32 v{ACC+4*tb}, v{ACC+4*ta}, v{ACC+4*ta+1}")
        o.append(f"v_cvt_pk_bf16_f32 v{ACC+4*tb+1}, v{ACC+4*ta+2}, v{ACC+4*ta+3}")
        o.append(f"ds_write_b64 v7, {vr(ACC+4*tb,2)} offset:{ta*256}")
        return o
    def post_single(t, tmp):
        o=[]
        for i in range(4): o.append(f"v_mov_b32 v{tmp+i}, v{ACC+4*t+i}")
        o.append("s_nop 0")
        for i in range(4): o.append(f"v_permlane32_swap_b32 v{ACC+4*t+i}, v{tmp+i}")
        for i in range(4): o.append(f"v_add_f32 v{ACC+4*t+i}, v{ACC+4*t+i}, v{tmp+i}")
        o.append(f"v_cvt_pk_bf16_f32 v{tmp}, v{ACC+4*t}, v{ACC+4*t+1}")
        o.append(f"v_cvt_pk_bf16_f32 v{tmp+1}, v{ACC+4*t+2}, v{ACC+4*t+3}")
        o.append(f"ds_write_b64 v8, {vr(tmp,2)} offset:{t*256}")
        return o
    fill=[]
    for x in post_pair(0,1,None): fill.append((lastidx[1]+9,x))
    for x in post_pair(2,3,None): fill.append((lastidx[3]+9,x))
    for x in post_single(4, ACC+0): fill.append((lastidx[4]+9,x))
    return_fill=fill
    lab2=a.newlabel("L_t2"); labj=a.newlabel("L_tj")
    a(f"s_cmp_eq_u32 s{S_WAVE}, 2"); a(f"s_cbranch_scc1 {lab2}")
    for variant in (0,1):
        if variant==1: a.label(lab2)
        pre=[(firstfree,"s_waitcnt vmcnt(0)")]
        pstep=2 if not ND else 1
        for ks in range(6):
            if variant==0:
                pre.append((firstfree+1+pstep*ks, f"ds_read_b128 {vr(BJ+8*ks,4)}, v10 offset:{ks*4096}"))
                pre.append((firstfree+1+pstep*ks, f"ds_read_b128 {vr(BJ+8*ks+4,4)}, v10 offset:{ks*4096+2048}"))
            else:
                pre.append((firstfree+1+pstep*ks, f"ds_read_b128 {vr(BJ+8*ks,4)}, v10 offset:{ks*1024}"))
                pre.append((firstfree+1+pstep*ks, f"ds_read_b128 {vr(BJ+8*ks+4,4)}, v10 offset:{ks*1024+512}"))
        if EXP.get('nopre'): pre=[]
        if EXP.get('nofill'):
            rest=interleave(a, mains, pre);
            for _,x in fill: a(x)
        else:
            rest=interleave(a, mains, pre+fill, per_gap=EXP.get('per_gap',3))
            for _,x in rest: a(x)
        stamp(a,2)
        a.nop(8)
        for x in post_pair(5,6,None): a(x)
        for i in range(4): a(f"v_mov_b32 v{ACC+8+i}, 0")
        a("s_waitcnt lgkmcnt(0)")
        a("s_barrier")
        stamp(a,3)
        if variant==0:
            a(f"s_cmp_eq_u32 s{S_WAVE}, 3"); a("s_cbranch_scc1 "+LB("L_s_w3"))
            a(f"ds_read_b128 {vr(ACC,4)}, v10 offset:{6*4096}"); a(f"ds_read_b128 {vr(ACC+4,4)}, v10 offset:{6*4096+2048}")
        else:
            a(f"ds_read_b128 {vr(ACC,4)}, v10 offset:{6*1024}"); a(f"ds_read_b128 {vr(ACC+4,4)}, v10 offset:{6*1024+512}")
        if variant==0: a(f"s_branch {labj}")
    a.label(labj)
    for ks in range(7):
        a(f"ds_read_b64_tr_b16 {vr(MS+4*ks,2)}, v9 offset:{ks*1024}")
        a(f"ds_read_b64_tr_b16 {vr(MS+4*ks+2,2)}, v9 offset:{ks*1024+128}")
    for ks in range(7):
        a(f"s_waitcnt lgkmcnt({min(15,2*(6-ks))})")
        b = vr(BJ+8*ks,8) if ks<6 else vr(ACC,8)
        a(f"v_smfmac_f32_16x16x64_bf16 {vr(ACC+8,4)}, {vr(MS+4*ks,4)}, {b}, v3")
    a.nop(8)
    S=ACC+8
    a(f"v_permlane32_swap_b32 v{S}, v{S+1}"); a(f"v_permlane32_swap_b32 v{S+2}, v{S+3}")
    a(f"v_add_f32 v{S}, v{S}, v{S+1}"); a(f"v_add_f32 v{S+2}, v{S+2}, v{S+3}")
    a(f"ds_write_b32 v11, v{S}"); a(f"ds_write_b32 v11, v{S+2} offset:{2*192}")
    a("s_waitcnt lgkmcnt(0)")
    stamp(a,4)
    a("s_barrier")
    stamp(a,5)
    a("s_branch "+LB("L_s_after"))
    a.label(LB("L_s_w3"))
    a("s_barrier")
    stamp(a,5)
    X=72
    a(f"ds_read_b128 {vr(X,4)}, v12"); a(f"ds_read_b32 v{X+4}, v13")
    a("s_waitcnt lgkmcnt(0)")
    a(f"v_max3_f32 v{X+5}, v{X}, v{X+1}, v{X+2}"); a(f"v_max3_f32 v{X+5}, v{X+5}, v{X+3}, v{X+4}")
    def xred(op, r, t):
        a("s_nop 1"); a(f"{op}_dpp v{r}, v{r}, v{r} row_ror:8 row_mask:0xf bank_mask:0xf")
        a(f"v_mov_b32 v{t}, v{r}"); a("s_nop 1"); a(f"v_permlane16_swap_b32 v{r}, v{t}"); a(f"{op} v{r}, v{r}, v{t}")
        a(f"v_mov_b32 v{t}, v{r}"); a("s_nop 1"); a(f"v_permlane32_swap_b32 v{r}, v{t}"); a(f"{op} v{r}, v{r}, v{t}")
    xred("v_max_f32", X+5, X+6)
    for i in range(5): a(f"v_sub_f32 v{X+i}, v{X+i}, v{X+5}")
    for i in range(5): a(f"v_exp_f32 v{X+i}, v{X+i}")
    a("s_nop 0")
    a(f"v_add_f32 v{X+5}, v{X}, v{X+1}"); a(f"v_add_f32 v{X+6}, v{X+2}, v{X+3}"); a(f"v_add_f32 v{X+5}, v{X+5}, v{X+4}"); a(f"v_add_f32 v{X+5}, v{X+5}, v{X+6}")
    xred("v_add_f32", X+5, X+6)
    a(f"v_rcp_f32 v{X+5}, v{X+5}"); a("s_nop 0")
    for i in range(5): a(f"v_mul_f32 v{X+i}, v{X+i}, v{X+5}")
    a(f"v_cvt_pk_bf16_f32 v{X+8}, v{X}, v{X+1}"); a(f"v_cvt_pk_bf16_f32 v{X+9}, v{X+2}, v{X+3}")
    a(f"v_mov_b32_dpp v{X+6}, v{X+4} row_ror:8 row_mask:0xf bank_mask:0xf")
    a(f"buffer_store_dwordx2 {vr(X+8,2)}, v14, {W}, s{S_PX} offen {XST()}")
    a(f"v_cvt_pk_bf16_f32 v{X+7}, v{X+4}, v{X+6}")
    a("s_mov_b32 exec_lo, 0x00ff00ff"); a("s_mov_b32 exec_hi, 0x00ff00ff")
    a(f"buffer_store_dword v{X+7}, v15, {W}, s{S_PM} offen {XST()}")
    a("s_mov_b64 exec, -1")
    stamp(a,6)
    a.label(LB("L_s_after"))
    a("s_barrier")
    a(f"s_add_u32 s{S_STEP}, s{S_STEP}, 1")
    a(f"s_add_u32 s{S_MEMOFF}, s{S_MEMOFF}, 7168")
    a(f"s_add_u32 s{S_PX}, s{S_PX}, 8192"); a(f"s_add_u32 s{S_PM}, s{S_PM}, 2048"); a(f"s_add_u32 s{S_XS}, s{S_XS}, 28672")
    a(f"s_cmp_lt_u32 s{S_STEP}, {nsteps}"); a("s_cbranch_scc0 L_fin")
    xs_dma(4)
    stamp(a,7)
    a(f"s_cmp_eq_u32 s{S_FAIL}, 0"); a("s_cbranch_scc1 "+LB("L_sstep"))
    a("s_branch L_fin")

def ufrag(fi):
    if fi<32: return ar(8*fi,8)
    if fi<40: return vr(192+8*(fi-32),8)
    return None
def value_role(a, timing=False, sleep=0, nsteps=64):
    MS=16; ACC=44; UT=76; BF=100; PP=132; MF=152; OA=160; PR=168
    W=f"s[{S_WS}:{S_WS+3}]"
    S_J=36
    a(f"s_sub_u32 s{S_J}, s{S_RANK}, 16")
    a("v_and_b32 v16, 15, v1"); a("v_lshrrev_b32 v17, 4, v1")
    a("v_mul_u32_u24 v21, 896, v16"); a("v_lshlrev_b32 v22, 5, v17"); a("v_add_u32 v21, v21, v22")
    for a2 in range(4):
        for ct in range(2):
            a(f"s_lshl_b32 s{S_T0}, s{S_WAVE}, 2"); a(f"s_add_u32 s{S_T0}, s{S_T0}, {a2}")
            a(f"s_mul_i32 s{S_T0}, s{S_T0}, 448"); a(f"s_lshl_b32 s{S_T1}, s{S_J}, 5"); a(f"s_add_u32 s{S_T0}, s{S_T0}, s{S_T1}")
            a(f"s_add_u32 s{S_T0}, s{S_T0}, {7168+16*ct}"); a(f"s_mul_i32 s{S_T0}, s{S_T0}, 896"); a(f"s_add_u32 s{S_T0}, s{S_T0}, {LY.WP}")
            for ks in range(7):
                fi=(a2*2+ct)*7+ks
                if fi<40:
                    for hh in range(2):
                        dst = ar(8*fi+4*hh,4) if fi<32 else vr(192+8*(fi-32)+4*hh,4)
                        a(f"buffer_load_dwordx4 {dst}, v21, {W}, s{S_T0} offen offset:{ks*128+hh*16}")
                else:
                    for hh in range(2):
                        a(f"s_lshl_b32 s{S_T1}, s{S_WAVE}, 15"); a(f"s_add_u32 s{S_T1}, s{S_T1}, {L_U+(fi-40)*2048+hh*1024}")
                        a(f"s_mov_b32 m0, s{S_T1}"); a(f"s_add_u32 s{S_T2}, s{S_T0}, {ks*128+hh*16}")
                        a(f"buffer_load_dwordx4 v21, {W}, s{S_T2} offen lds")
            a("s_waitcnt vmcnt(30)")
    a(f"s_lshl_b32 s{S_T1}, s{S_WAVE}, 15"); a(f"s_add_u32 s{S_T1}, s{S_T1}, {L_U}"); a(f"v_add_u32 v7, s{S_T1}, v6")
    a("v_lshlrev_b32 v8, 3, v17"); a("v_and_b32 v22, 7, v16"); a("v_add_u32 v8, v8, v22"); a("v_lshlrev_b32 v8, 4, v8")
    a("v_lshrrev_b32 v22, 3, v16"); a("v_lshlrev_b32 v22, 9, v22"); a("v_add_u32 v8, v8, v22")
    a(f"s_lshl_b32 s{S_T1}, s{S_WAVE}, 11"); a(f"s_add_u32 s{S_T1}, s{S_T1}, {L_RED}"); a(f"v_add_u32 v9, s{S_T1}, v6")
    a(f"s_lshl_b32 s{S_T1}, s{S_WAVE}, 10"); a(f"s_add_u32 s{S_T1}, s{S_T1}, {L_RED}"); a(f"v_add_u32 v10, s{S_T1}, v6")
    a("v_lshrrev_b32 v22, 1, v17"); a("v_lshlrev_b32 v11, 7, v22"); a("v_and_b32 v22, 7, v16"); a("v_lshlrev_b32 v22, 4, v22"); a("v_add_u32 v11, v11, v22")
    a("v_and_b32 v22, 1, v17"); a("v_lshlrev_b32 v22, 3, v22"); a("v_add_u32 v11, v11, v22")
    a(f"s_mov_b32 s{S_STEP}, 0"); a(f"s_mov_b32 s{S_MEMOFF}, {LY.MEM}")
    a(f"s_lshl_b32 s{S_PX}, s{S_WAVE}, 11"); a(f"s_add_u32 s{S_PX}, s{S_PX}, {LY.PX}")
    a(f"s_lshl_b32 s{S_PM}, s{S_WAVE}, 9"); a(f"s_add_u32 s{S_PM}, s{S_PM}, {LY.PM}")
    a("v_lshrrev_b32 v22, 3, v16"); a("v_lshlrev_b32 v22, 8, v22"); a("v_add_u32 v187, v11, v22")
    a(f"s_lshl_b32 s{S_BF}, s{S_J}, 15"); a(f"s_lshl_b32 s{S_T1}, s{S_WAVE}, 12"); a(f"s_add_u32 s{S_BF}, s{S_BF}, s{S_T1}"); a(f"s_add_u32 s{S_BF}, s{S_BF}, {LY.BFRAG}")
    a(f"s_lshl_b32 s{S_MF}, s{S_J}, 13"); a(f"s_lshl_b32 s{S_T1}, s{S_WAVE}, 10"); a(f"s_add_u32 s{S_MF}, s{S_MF}, s{S_T1}"); a(f"s_add_u32 s{S_MF}, s{S_MF}, {LY.MFRAG}")
    a(f"s_lshl_b32 s{S_T0}, s{S_J}, 1"); a(f"s_add_u32 s{S_T0}, s{S_T0}, s{S_WAVE}")
    a(f"s_lshl_b32 s{S_MST}, s{S_T0}, 8"); a(f"s_add_u32 s{S_MST}, s{S_MST}, {LY.MEM+7168}")
    if FUSED:
        for r in (12,13,14,15,1): a(f"v_mov_b32 v{r}, 0")
        a(f"s_mov_b32 s{S_PC}, {LY.BRF if CK.NONCE else LY.BRDY}")
        if CK.NONCE:
            a(f"s_lshl_b32 s{S_MC}, s{S_J}, 7"); a(f"s_add_u32 s{S_MC}, s{S_MC}, {LY.MFF}"); a(f"v_mov_b32 v0, s{CK.S_N}")
        else:
            a(f"s_mov_b32 s{S_MC}, {LY.MCNT}"); a("v_mov_b32 v0, 1")
        a(f"s_add_u32 s{S_MX}, s{S_MST}, {LY.MEMX-LY.MEM}")
    def b_prefetch():
        for ct in range(2):
            a(f"s_add_u32 s{S_T0}, s{S_BF}, {ct*16384}")
            for a2 in range(4):
                a(f"buffer_load_dwordx4 {vr(BF+4*(a2*2+ct),4)}, v6, {W}, s{S_T0} offen offset:{a2*1024}")
        if EXP.get('warmP'):
            for a2 in range(4): a(f"buffer_load_dwordx4 {vr(PP+4*a2,4)}, v8, {W}, s{S_PX} offen offset:{a2*512} sc1")
            a(f"buffer_load_dwordx4 {vr(PP+16,4)}, v8, {W}, s{S_PM} offen sc1")
    def mf_store(off):
        fl="sc1" if FUSED else ""
        a(f"s_add_u32 s{S_T1}, s{S_MF}, {off}"); a(f"s_add_u32 s{S_T0}, s{S_MF}, {(off+4096)&0xffffffff}")
        a(f"buffer_store_dwordx4 {vr(MF,4)}, v6, {W}, s{S_T1} offen {fl}")
        a(f"buffer_store_dwordx4 {vr(MF+4,4)}, v6, {W}, s{S_T0} offen {fl}")
    def b_check():
        if FUSED:
            lp=a.newlabel("L_pc")
            def chk():
                if CK.NONCE:
                    a(f"v_xor_b32 v2, v0, v12"); a("v_xor_b32 v182, v0, v13"); a("v_or_b32 v2, v2, v182"); a("v_xor_b32 v182, v0, v14"); a("v_or_b32 v2, v2, v182"); a("v_xor_b32 v182, v0, v15"); a("v_or_b32 v2, v2, v182")
                    a("s_nop 0"); a(f"v_readfirstlane_b32 s{S_T0}, v2"); a("s_nop 3"); a(f"s_cmp_eq_u32 s{S_T0}, 0"); a(f"s_cbranch_scc1 {lp}_ok")
                else:
                    a("v_and_b32 v2, v12, v13"); a("v_and_b32 v2, v2, v14"); a("v_and_b32 v2, v2, v15"); a("s_nop 0"); a(f"v_readfirstlane_b32 s{S_T0}, v2"); a("s_nop 3")
                    a(f"s_cmp_eq_u32 s{S_T0}, 1"); a(f"s_cbranch_scc1 {lp}_ok")
            chk()
            a(f"s_mov_b32 s{S_CNT}, 0")
            a.label(lp)
            a(f"buffer_load_dwordx4 v[12:15], v1, {W}, s{S_PC} offen sc1"); a("s_waitcnt vmcnt(0)")
            chk()
            a("s_sleep 1"); a(f"s_add_u32 s{S_CNT}, s{S_CNT}, 1"); a(f"s_cmp_lt_u32 s{S_CNT}, {POLL_MAX}"); a(f"s_cbranch_scc1 {lp}")
            a(f"s_mov_b32 s{S_FAIL}, 1")
            a.label(lp+"_ok")
    if PRESTART:
        a("s_waitcnt vmcnt(0)"); PRESTART()
    b_check(); b_prefetch()
    for r in range(ACC,ACC+32): a(f"v_mov_b32 v{r}, 0")
    a("s_waitcnt vmcnt(0)")
    if timing: a("s_memtime s[40:41]")
    stamp_init(a)
    def zero_acc():
        for r in range(ACC,ACC+32): a(f"v_mov_b32 v{r}, 0")
        for r in range(OA,OA+8): a(f"v_mov_b32 v{r}, 0")
    a.label(LB("L_vstep"))
    mem_share(a, PR, 178, 179, sleep)
    for ks in range(7): a(f"ds_read_b128 {vr(MS+4*ks,4)}, v6 offset:{L_MEM+ks*1024}")
    if EXP.get('bin'): b_check(); a(f"s_add_u32 s{S_T2}, s{S_BF}, 16384")
    a(f"s_add_u32 s{S_T3}, s{S_PC}, 64")
    def store_window_a():
        l0=a.newlabel("L_sw")
        a(f"s_cmp_eq_u32 s{S_STEP}, 0"); a(f"s_cbranch_scc1 {l0}")
        mf_store(-28*4096 & 0xffffffff)
        a.label(l0)
    def store_window_b():
        if not FUSED: return
        lx=a.newlabel("L_mx")
        a(f"s_cmp_eq_u32 s{S_STEP}, 0"); a(f"s_cbranch_scc1 {lx}")
        a(f"s_cmp_lt_u32 s{S_WAVE}, 2"); a(f"s_cbranch_scc0 {lx}")
        a(f"s_sub_u32 s{S_T0}, s{S_MX}, 7168")
        a("s_mov_b32 exec_lo, 0x00ff00ff"); a("s_mov_b32 exec_hi, 0x00ff00ff")
        a(f"buffer_store_dwordx2 v[180:181], v11, {W}, s{S_T0} offen sc1"); a("s_mov_b64 exec, -1"); a("s_nop 3")
        a.label(lx)
    def store_window_c():
        if not FUSED: return
        lm=a.newlabel("L_mc")
        a(f"s_cmp_ge_u32 s{S_STEP}, 2"); a(f"s_cbranch_scc0 {lm}")
        a(f"s_cmp_eq_u32 s{S_WAVE}, 3"); a(f"s_cbranch_scc0 {lm}")
        a(f"s_sub_u32 s{S_T0}, s{S_MC}, {2*MINC()}"); a("s_mov_b64 exec, 1")
        a(MSIG(W,S_T0)); a("s_mov_b64 exec, -1"); a("s_nop 3")
        a.label(lm)
    def post_pair(ct,pr):
        ta=(2*pr)*2+ct; tb=(2*pr+1)*2+ct; o=[]
        for i in range(4): o.append(f"v_permlane32_swap_b32 v{ACC+4*ta+i}, v{ACC+4*tb+i}")
        for i in range(4): o.append(f"v_add_f32 v{ACC+4*ta+i}, v{ACC+4*ta+i}, v{ACC+4*tb+i}")
        o.append(f"v_cvt_pk_bf16_f32 v{MF+4*ct+2*pr}, v{ACC+4*ta}, v{ACC+4*ta+1}")
        o.append(f"v_cvt_pk_bf16_f32 v{MF+4*ct+2*pr+1}, v{ACC+4*ta+2}, v{ACC+4*ta+3}")
        return o
    tiles=[(a2,ct) for a2 in range(4) for ct in range(2)]
    seq=[]
    for (a2,ct) in tiles:
        for ks in range(7): seq.append(((a2*2+ct), ks))
    regseq=[x for x in seq if x[0]*7+x[1]<40]; ldsseq=[x for x in seq if x[0]*7+x[1]>=40]
    order=regseq[:7]; r=regseq[7:]; l=ldsseq[:]
    while r or l:
        for _ in range(2):
            if r: order.append(r.pop(0))
        if l: order.append(l.pop(0))
    ldsidx=[i for i,x in enumerate(order) if x[0]*7+x[1]>=40]
    last={}
    for i,(t,ks) in enumerate(order): last[t]=i
    early=post_pair(0,0)+post_pair(1,0)
    epos=max(last[0],last[1],last[2],last[3])+9
    calls={2:store_window_a, 4:store_window_b, 5:store_window_c}
    bfill={}
    if EXP.get('bin'):
        pos=EXP.get('bpos',8); stp=EXP.get('bstep',2)
        for ct in range(2):
            for a2 in range(4):
                bfill[pos]=f"buffer_load_dwordx4 {vr(BF+4*(a2*2+ct),4)}, v6, {W}, s{S_BF if ct==0 else S_T2} offen offset:{a2*1024}"; pos+=stp
        if FUSED: bfill[pos]=f"buffer_load_dwordx4 v[12:15], v1, {W}, s{S_T3} offen sc1"
    elif FUSED: bfill[EXP.get('rpos',20)]=f"buffer_load_dwordx4 v[12:15], v1, {W}, s{S_T3} offen sc1"
    def ldsread(k):
        t,ks=order[ldsidx[k]]; fi=t*7+ks
        return [f"ds_read_b128 {vr(UT+8*(k%3),4)}, v7 offset:{(fi-40)*2048}", f"ds_read_b128 {vr(UT+8*(k%3)+4,4)}, v7 offset:{(fi-40)*2048+1024}"]
    issued=0
    for i,(t,ks) in enumerate(order):
        fi=t*7+ks
        b = ufrag(fi) if fi<40 else vr(UT+8*(ldsidx.index(i)%3),8)
        if i<7: a(f"s_waitcnt lgkmcnt({6-i})")
        if fi>=40:
            k=ldsidx.index(i)
            a(f"s_waitcnt lgkmcnt({2*(issued-1-k)})")
        a(f"v_smfmac_f32_16x16x64_bf16 {vr(ACC+4*t,4)}, {vr(MS+4*ks,4)}, {b}, v3")
        if i in calls: calls[i]()
        if i in bfill: a(bfill[i])
        if i==6:
            for k in range(3):
                for x in ldsread(k): a(x)
            issued=3
        if fi>=40:
            k=ldsidx.index(i)
            if issued<len(ldsidx) and issued==k+3:
                for x in ldsread(issued): a(x)
                issued+=1
        if i>=epos:
            for _ in range(3):
                if early: a(early.pop(0))
    stamp(a,2)
    for x in early: a(x)
    a.nop(8)
    for x in post_pair(0,1)+post_pair(1,1): a(x)
    a(f"s_cmp_eq_u32 s{S_STEP}, {nsteps-1}"); a("s_cbranch_scc0 "+LB("L_v_cont"))
    mf_store(0)
    if FUSED:
        a("s_waitcnt vmcnt(0)"); a("s_barrier")
        a(f"s_cmp_eq_u32 s{S_WAVE}, 0"); a("s_cbranch_scc0 L_fin")
        a(f"s_sub_u32 s{S_T0}, s{S_MC}, {MINC()}"); a("s_mov_b64 exec, 1")
        a(MSIG(W,S_T0)); a(MSIG(W,S_MC)); a("s_mov_b64 exec, -1")
    a("s_branch L_fin")
    a.label(LB("L_v_cont"))
    if EXP.get('p2B'):
        for r in range(OA,OA+8): a(f"v_mov_b32 v{r}, 0")
    else: zero_acc()
    stamp(a,3)
    def mk(b): return [f"buffer_load_dwordx4 {vr(b,4)}, v8, {W}, s{S_PX} offen sc1", f"buffer_load_dwordx4 {vr(b+4,4)}, v8, {W}, s{S_PX} offen offset:1024 sc1",
                       f"buffer_load_dwordx2 {vr(b+8,2)}, v187, {W}, s{S_PM} offen sc1"]
    if EXP.get('preB'): a(f"s_sleep {EXP['preB']}")
    Y=PP+10
    def pw(b):
        stamp(a,4)
        dpp=lambda d,sr_: a(f"v_mov_b32_dpp v{d}, v{sr_} row_ror:8 row_mask:0xf bank_mask:0xf")
        def mm(ct,A,B): a(f"v_mfma_f32_16x16x32_bf16 {vr(OA+4*ct,4)}, {A}, {B}, {vr(OA+4*ct,4)}")
        mm(0,vr(BF+4*(0*2+0),4),vr(b,4));
        for i in range(3): dpp(Y+i,b+i)
        mm(1,vr(BF+4*(0*2+1),4),vr(b,4))
        dpp(Y+3,b+3); dpp(Y+4,b+4); dpp(Y+5,b+5)
        mm(0,vr(BF+4*(2*2+0),4),vr(b+4,4))
        dpp(Y+6,b+6); dpp(Y+7,b+7); a(f"v_mov_b32 v188, v{b+8}")
        mm(1,vr(BF+4*(2*2+1),4),vr(b+4,4))
        a(f"v_mov_b32 v189, v{b+9}"); dpp(190,b+8); dpp(191,b+9)
        mm(0,vr(BF+4*(1*2+0),4),vr(Y,4)); mm(1,vr(BF+4*(1*2+1),4),vr(Y,4))
        mm(0,vr(BF+4*(3*2+0),4),vr(Y+4,4)); mm(1,vr(BF+4*(3*2+1),4),vr(Y+4,4))
        mm(0,vr(MF,4),"v[188:191]"); mm(1,vr(MF+4,4),"v[188:191]")
    if EXP.get('p2B'):
        poll2(a, mk, [PP, ACC], 10, 176, 177, pw, EXP.get('gapB',2))
    else:
        poll_loop(a, mk(PP), range(PP,PP+10), 176, 177, sleep)
        pw(PP)
    a.nop(8)
    a(f"ds_write_b128 v9, {vr(OA,4)}"); a(f"ds_write_b128 v9, {vr(OA+4,4)} offset:1024")
    a("s_waitcnt lgkmcnt(0)")
    stamp(a,5)
    a("s_barrier")
    stamp(a,6)
    a(f"s_cmp_lt_u32 s{S_WAVE}, 2"); a("s_cbranch_scc0 "+LB("L_v_nored"))
    RT=UT
    for w in range(4): a(f"ds_read_b128 {vr(RT+4*w,4)}, v10 offset:{w*2048}")
    a("s_waitcnt lgkmcnt(2)")
    for i in range(4): a(f"v_add_f32 v{RT+i}, v{RT+i}, v{RT+4+i}")
    a("s_waitcnt lgkmcnt(0)")
    for i in range(4): a(f"v_add_f32 v{RT+8+i}, v{RT+8+i}, v{RT+12+i}")
    for i in range(4): a(f"v_add_f32 v{RT+i}, v{RT+i}, v{RT+8+i}")
    a(f"v_cvt_pk_bf16_f32 v180, v{RT}, v{RT+1}"); a(f"v_cvt_pk_bf16_f32 v181, v{RT+2}, v{RT+3}")
    a("s_mov_b32 exec_lo, 0x00ff00ff"); a("s_mov_b32 exec_hi, 0x00ff00ff")
    a(f"buffer_store_dwordx2 v[180:181], v11, {W}, s{S_MST} offen {XST()}")
    if FUSED:
        le=a.newlabel("L_mxe")
        a(f"s_cmp_eq_u32 s{S_STEP}, {nsteps-2}"); a(f"s_cbranch_scc0 {le}")
        a(f"buffer_store_dwordx2 v[180:181], v11, {W}, s{S_MX} offen sc1")
        a.label(le)
    a("s_mov_b64 exec, -1")
    a.label(LB("L_v_nored"))
    stamp(a,7)
    a("s_barrier")
    if EXP.get('p2B'):
        a("s_waitcnt vmcnt(1)")
        for r in range(ACC,ACC+32): a(f"v_mov_b32 v{r}, 0")
    a(f"s_add_u32 s{S_STEP}, s{S_STEP}, 1")
    a(f"s_add_u32 s{S_MEMOFF}, s{S_MEMOFF}, 7168"); a(f"s_add_u32 s{S_MST}, s{S_MST}, 7168")
    a(f"s_add_u32 s{S_PX}, s{S_PX}, 8192"); a(f"s_add_u32 s{S_PM}, s{S_PM}, 2048")
    a(f"s_add_u32 s{S_BF}, s{S_BF}, {28*16384}"); a(f"s_add_u32 s{S_MF}, s{S_MF}, {28*4096}")
    if FUSED:
        a(f"s_add_u32 s{S_PC}, s{S_PC}, 64"); a(f"s_add_u32 s{S_MC}, s{S_MC}, {MINC()}"); a(f"s_add_u32 s{S_MX}, s{S_MX}, 7168")
    if not EXP.get('bin'): b_check(); b_prefetch()
    stamp(a,8)
    a(f"s_cmp_eq_u32 s{S_FAIL}, 0"); a("s_cbranch_scc1 "+LB("L_vstep"))
    a("s_branch L_fin")

def prefetch_role(a, nsteps=64, ahead=3):
    W=f"s[{S_WS}:{S_WS+3}]"
    if PRESTART: PRESTART()
    a(f"s_sub_u32 s36, s{S_RANK}, 30")
    a(f"s_mov_b32 s{S_STEP}, 0")
    a("v_mov_b32 v9, 0"); a(f"v_mov_b32 v31, s{CK.S_N}" if CK.NONCE else "v_mov_b32 v31, 1")
    a(f"s_cmp_eq_u32 s36, 1"); a("s_cbranch_scc1 L_relay")
    a(f"s_mov_b32 s44, s{S_WAVE}")
    a("v_lshlrev_b32 v7, 7, v1")
    a(f"s_mul_i32 s{S_BF}, s44, {896*128}"); a(f"s_add_u32 s{S_BF}, s{S_BF}, {LY.BFRAG}")
    a(f"s_mov_b32 s{S_XS}, {LY.HFRAG}"); a(f"s_mov_b32 s{S_PX}, {LY.PX}"); a(f"s_mov_b32 s{S_PM}, {LY.PM}")
    a(f"s_mov_b32 s{S_MEMOFF}, {LY.MEM}")
    a("v_mov_b32 v8, 7164")
    a(f"s_mov_b32 s{S_PC}, {(LY.PF if CK.NONCE else LY.PCNT) if FUSED else 0}")
    a(f"s_lshl_b32 s46, s44, 2"); a(f"s_add_u32 s46, s46, {LY.BRF if CK.NONCE else LY.BRDY}")
    a.label("L_pf")
    a(f"s_cmp_lt_u32 s{S_STEP}, {ahead+1}"); a("s_cbranch_scc1 L_pf_go")
    a(f"s_add_u32 s{S_MEMOFF}, s{S_MEMOFF}, 7168")
    a(f"s_mov_b32 s{S_CNT}, 0")
    a.label("L_pf_w")
    a(f"buffer_load_dword v10, v8, {W}, s{S_MEMOFF} offen sc1"); a("s_waitcnt vmcnt(0)")
    a("v_cmp_eq_u32 vcc, -1, v10"); a("s_cbranch_vccz L_pf_go")
    a("s_sleep 4")
    a(f"s_add_u32 s{S_CNT}, s{S_CNT}, 1"); a(f"s_cmp_lt_u32 s{S_CNT}, {POLL_MAX}"); a("s_cbranch_scc1 L_pf_w")
    a("s_branch L_fin")
    a.label("L_pf_go")
    if FUSED and CK.NONCE:
        pass
    elif FUSED:
        a(f"s_mov_b32 s{S_CNT}, 0")
        a.label("L_pf_c")
        a(f"buffer_load_dword v19, v9, {W}, s{S_PC} offen sc1"); a("s_waitcnt vmcnt(0)"); a(f"v_readfirstlane_b32 s{S_T0}, v19"); a("s_nop 3")
        a(f"s_cmp_ge_u32 s{S_T0}, 112"); a("s_cbranch_scc1 L_pf_c_ok")
        a("s_sleep 4"); a(f"s_add_u32 s{S_CNT}, s{S_CNT}, 1"); a(f"s_cmp_lt_u32 s{S_CNT}, {POLL_MAX}"); a("s_cbranch_scc1 L_pf_c")
        a("s_branch L_fin")
        a.label("L_pf_c_ok")
        a(f"s_add_u32 s{S_PC}, s{S_PC}, 128")
    a(f"s_lshl_b32 s{S_T0}, s44, 13"); a(f"s_add_u32 s{S_T0}, s{S_T0}, s{S_XS}"); a(f"buffer_load_dword v17, v7, {W}, s{S_T0} offen")
    a("s_cmp_eq_u32 s44, 0"); a(f"s_cselect_b32 s{S_T0}, s{S_PX}, s{S_PM}")
    a(f"s_mul_i32 s{S_T1}, s{S_STEP}, 7168"); a(f"s_add_u32 s{S_T1}, s{S_T1}, {LY.MEM+7168}"); a("s_cmp_eq_u32 s44, 2"); a(f"s_cselect_b32 s{S_T0}, s{S_T1}, s{S_T0}")
    a(f"buffer_load_dword v18, v7, {W}, s{S_T0} offen sc1")
    a("s_waitcnt vmcnt(0)")
    if FUSED and not CK.NONCE:
        lb=a.newlabel("L_br")
        a(f"s_cmp_eq_u32 s42, 0"); a("s_mov_b64 exec, 1"); a(f"s_cbranch_scc0 {lb}")
        a(f"buffer_store_dword v31, v9, {W}, s46 offen"); a(f"s_branch {lb}_e")
        a.label(lb); a(f"buffer_store_dword v31, v9, {W}, s46 offen sc1")
        a.label(lb+"_e"); a("s_mov_b64 exec, -1"); a("s_add_u32 s46, s46, 64")
    a(f"s_add_u32 s{S_BF}, s{S_BF}, {28*16384}"); a(f"s_add_u32 s{S_XS}, s{S_XS}, 28672"); a(f"s_add_u32 s{S_PX}, s{S_PX}, 8192"); a(f"s_add_u32 s{S_PM}, s{S_PM}, 2048")
    a(f"s_add_u32 s{S_STEP}, s{S_STEP}, 1"); a(f"s_cmp_lt_u32 s{S_STEP}, {nsteps}"); a("s_cbranch_scc1 L_pf")
    a("s_branch L_fin")
    a.label("L_relay")
    if FUSED and CK.NONCE:
        a(f"s_cmp_eq_u32 s{S_WAVE}, 0"); a("s_cbranch_scc0 L_fin")
        a(f"s_mov_b32 s{S_PC}, {LY.PF}"); a(f"s_mov_b32 s46, {LY.BRF}")
        for r in range(28,32): a(f"v_mov_b32 v{r}, s{CK.S_N}")
        a.label("L_bf")
        CK.wait_flags(a, W, S_PC, 112, 20, 22, "v_mov_b32 v20, v1", S_CNT, sleep=2)
        lb=a.newlabel("L_br")
        a(f"s_cmp_eq_u32 s42, 0"); a("s_mov_b64 exec, 1"); a(f"s_cbranch_scc0 {lb}")
        a(f"buffer_store_dwordx4 v[28:31], v9, {W}, s46 offen"); a(f"s_branch {lb}_e")
        a.label(lb); a(f"buffer_store_dwordx4 v[28:31], v9, {W}, s46 offen sc1")
        a.label(lb+"_e"); a("s_mov_b64 exec, -1")
        a(f"s_add_u32 s{S_PC}, s{S_PC}, 512"); a("s_add_u32 s46, s46, 64")
        a(f"s_add_u32 s{S_STEP}, s{S_STEP}, 1"); a(f"s_cmp_lt_u32 s{S_STEP}, {nsteps}"); a("s_cbranch_scc1 L_bf")
        a("s_branch L_fin"); return
    if not FUSED or not EXP.get('relay'):
        a("s_branch L_fin"); return
    a(f"s_mov_b32 s44, s{S_WAVE}")
    a("s_cmp_eq_u32 s44, 3"); a("s_cbranch_scc1 L_rmem")
    NCH=38
    a(f"s_mul_i32 s45, s44, {37*1024}"); a(f"s_add_u32 s{S_MF}, s45, {LY.MFL}"); a(f"s_add_u32 s{S_MST}, s45, {LY.MFRAG}")
    a(f"s_mov_b32 s{S_PC}, {LY.LFLAG}"); a(f"s_mov_b32 s{S_MC}, {LY.MCNT}")
    a("v_lshlrev_b32 v7, 2, v1"); a("v_min_u32 v7, 52, v7")
    a.label("L_rl")
    a(f"s_mov_b32 s{S_CNT}, 0")
    a.label("L_rl_w")
    a(f"buffer_load_dword v10, v7, {W}, s{S_PC} offen sc1"); a("s_waitcnt vmcnt(0)")
    a("v_cmp_eq_u32 vcc, 0, v10"); a("s_cbranch_vccz L_rl_go")
    a("s_sleep 2"); a(f"s_add_u32 s{S_CNT}, s{S_CNT}, 1"); a(f"s_cmp_lt_u32 s{S_CNT}, {POLL_MAX}"); a("s_cbranch_scc1 L_rl_w")
    a("s_branch L_fin")
    a.label("L_rl_go")
    a(f"s_mov_b32 s{S_T0}, s{S_MF}")
    for i in range(NCH):
        a(f"buffer_load_dwordx4 {vr(32+4*i,4)}, v6, {W}, s{S_T0} offen offset:{(i&3)*1024} sc1")
        if (i&3)==3: a(f"s_add_u32 s{S_T0}, s{S_T0}, 4096")
    a(f"s_mov_b32 s{S_T0}, s{S_MST}")
    for i in range(NCH):
        a(f"s_waitcnt vmcnt({NCH-1})")
        a(f"buffer_store_dwordx4 {vr(32+4*i,4)}, v6, {W}, s{S_T0} offen offset:{(i&3)*1024} sc1")
        if (i&3)==3: a(f"s_add_u32 s{S_T0}, s{S_T0}, 4096")
    a("s_waitcnt vmcnt(0)")
    a("s_mov_b64 exec, 1"); a(f"buffer_atomic_add v31, v9, {W}, s{S_MC} offen sc1"); a("s_mov_b64 exec, -1")
    a(f"s_add_u32 s{S_MF}, s{S_MF}, {28*4096}"); a(f"s_add_u32 s{S_MST}, s{S_MST}, {28*4096}"); a(f"s_add_u32 s{S_PC}, s{S_PC}, 64"); a(f"s_add_u32 s{S_MC}, s{S_MC}, 128")
    a(f"s_add_u32 s{S_STEP}, s{S_STEP}, 1"); a(f"s_cmp_lt_u32 s{S_STEP}, {nsteps}"); a("s_cbranch_scc1 L_rl")
    a("s_branch L_fin")
    a.label("L_rmem")
    a(f"s_mov_b32 s{S_MEMOFF}, {LY.MEM+7168}"); a(f"s_mov_b32 s{S_MX}, {LY.MEMX+7168}"); a(f"s_mov_b32 s{S_STEP}, 1")
    a.label("L_rm")
    a(f"s_add_u32 s{S_T1}, s{S_MEMOFF}, 4096")
    loads=[f"buffer_load_dwordx4 {vr(32+4*k,4)}, v6, {W}, s{S_MEMOFF if k<4 else S_T1} offen offset:{(k&3)*1024} sc1" for k in range(7)]
    poll_loop(a, loads, range(32,60), 60, 61, 2)
    a(f"s_add_u32 s{S_T1}, s{S_MX}, 4096")
    for k in range(7): a(f"buffer_store_dwordx4 {vr(32+4*k,4)}, v6, {W}, s{S_MX if k<4 else S_T1} offen offset:{(k&3)*1024} sc1")
    a(f"s_add_u32 s{S_MEMOFF}, s{S_MEMOFF}, 7168"); a(f"s_add_u32 s{S_MX}, s{S_MX}, 7168")
    a(f"s_add_u32 s{S_STEP}, s{S_STEP}, 1"); a(f"s_cmp_lt_u32 s{S_STEP}, 64"); a("s_cbranch_scc0 L_fin")
    a(f"s_cmp_eq_u32 s{S_FAIL}, 0"); a("s_cbranch_scc1 L_rm")
    a("s_branch L_fin")

def gen_rec(timing=True, sleep=0, target_xcc=0):
    a=Asm()
    common_prologue(a, target_xcc, 32 if EXP.get('pf') else 30)
    a(f"s_cmp_ge_u32 s{S_RANK}, 30"); a("s_cbranch_scc1 L_pref")
    a(f"s_cmp_ge_u32 s{S_RANK}, 16"); a("s_cbranch_scc1 L_value")
    global LANEREG
    LANEREG={0:2,1:1,6:0}
    score_role(a, timing, sleep)
    a.label("L_value")
    LANEREG={4:12,7:13,0:14,3:15}
    value_role(a, timing, sleep)
    a.label("L_pref")
    a("s_memtime s[40:41]")
    prefetch_role(a, ahead=EXP.get('ahead',3))
    a.label("L_fin")
    stamp_out(a)
    if timing:
        a("s_memtime s[42:43]"); a("s_waitcnt lgkmcnt(0)")
        a("s_sub_u32 s42, s42, s40")
        a("v_mov_b32 v20, s42"); a(f"v_mov_b32 v21, s{S_FAIL}")
        a(f"s_lshl_b32 s44, s{S_RANK}, 3"); a("s_add_u32 s44, s44, 8"); a("v_mov_b32 v22, s44")
        a("v_cmp_eq_u32 vcc, 0, v4"); a(f"s_and_saveexec_b64 s[{S_EX}:{S_EX+1}], vcc")
        a(f"buffer_store_dwordx2 v[20:21], v22, s[{S_DBG}:{S_DBG+3}], 0 offen")
        a(f"s_mov_b64 exec, s[{S_EX}:{S_EX+1}]")
    a("s_waitcnt vmcnt(0)")
    a.label("L_exit")
    return a.text()
if __name__=="__main__":
    t=gen_rec()
    open("rec_body.s","w").write(t); print(len(t.splitlines()))
```

```python
from common_k import *
from k0 import f2u
def wave_max_u32(a, r, t):
    for ror in (4,2,1):
        a("s_nop 1"); a(f"v_max_u32_dpp v{r}, v{r}, v{r} row_ror:{ror} row_mask:0xf bank_mask:0xf")
    xred(a,"v_max_u32",r,t)
def top2(a, WS, ld=""):
    W=S4(WS)
    a("v_lshlrev_b32 v2, 5, v0"); a(f"s_mov_b32 s23, {LY.R}")
    a(f"buffer_load_dwordx4 v[8:11], v2, {W}, s23 offen {ld}"); a(f"buffer_load_dwordx4 v[12:15], v2, {W}, s23 offen offset:16 {ld}")
    a("v_lshlrev_b32 v3, 3, v0"); a("v_sub_u32 v3, 2047, v3")
    a("s_waitcnt vmcnt(0)")
    for i in range(8):
        r=8+i
        a(f"v_ashrrev_i32 v4, 31, v{r}"); a("v_or_b32 v4, 0x80000000, v4"); a(f"v_xor_b32 v{r}, v{r}, v4")
        a(f"v_and_b32 v{r}, 0xfffff800, v{r}"); a(f"v_subrev_u32 v4, {i}, v3"); a(f"v_or_b32 v{r}, v{r}, v4")
    a("v_lshrrev_b32 v20, 6, v0"); a("v_lshlrev_b32 v20, 2, v20"); a("v_mov_b32 v21, 0")
    for rnd in range(2):
        a("v_max3_u32 v16, v8, v9, v10"); a("v_max3_u32 v16, v16, v11, v12"); a("v_max3_u32 v16, v16, v13, v14"); a("v_max_u32 v16, v16, v15")
        wave_max_u32(a,16,17)
        a(f"ds_write_b32 v20, v16 offset:{rnd*16}"); a("s_waitcnt lgkmcnt(0)"); a("s_barrier")
        a(f"ds_read_b128 v[24:27], v21 offset:{rnd*16}"); a("s_waitcnt lgkmcnt(0)")
        a("v_max3_u32 v16, v24, v25, v26"); a("v_max_u32 v16, v16, v27")
        a("v_and_b32 v18, 0x7ff, v16"); a("v_sub_u32 v18, 2047, v18"); a("s_nop 0"); a(f"v_readfirstlane_b32 s{40+rnd}, v18")
        if rnd==0:
            for i in range(8):
                a(f"v_cmp_ne_u32 vcc, v{8+i}, v16"); a("s_nop 1"); a(f"v_cndmask_b32 v{8+i}, 0, v{8+i}, vcc")
    a("s_nop 3")
K5_LDS=8192
def gen_k5():
    a=Asm()
    a("s_cmp_lt_u32 s2, 112"); a("s_cbranch_scc0 L_end")
    a("v_and_b32 v1, 63, v0"); a("v_lshrrev_b32 v2, 6, v0"); a("s_nop 0"); a("v_readfirstlane_b32 s22, v2")
    srds(a,[(16,'ws'),(8,'wg'),(12,'wu')])
    W=S4(16)
    a("v_and_b32 v30, 7, v0"); a("v_lshrrev_b32 v31, 3, v0")
    a("v_mul_u32_u24 v32, 14, v31"); a("s_movk_i32 s24, 3584"); a("v_mul_lo_u32 v33, v32, s24"); a("v_lshlrev_b32 v34, 2, v30"); a("v_add_u32 v33, v33, v34")
    a("s_lshl_b32 s25, s2, 5")
    for j in range(14):
        a(f"buffer_load_dword v{64+j}, v33, {S4(8)}, s25 offen"); a(f"buffer_load_dword v{80+j}, v33, {S4(12)}, s25 offen"); a("s_add_u32 s25, s25, 3584")
    top2(a,16)
    a("s_cmp_eq_u32 s2, 0"); a("s_cbranch_scc0 L_noidx")
    a("v_mov_b32 v4, s40"); a("v_mov_b32 v5, s41"); a("v_mov_b32 v6, 0"); a(f"s_mov_b32 s26, {LY.MISC}")
    a("s_mov_b64 exec, 1"); a(f"buffer_store_dwordx2 v[4:5], v6, {W}, s26 offen"); a("s_mov_b64 exec, -1")
    a.label("L_noidx")
    a("v_lshlrev_b32 v35, 1, v32")
    a("s_mul_i32 s26, s40, 896"); a(f"s_add_u32 s26, s26, {LY.H2}"); a("s_mul_i32 s27, s41, 896"); a(f"s_add_u32 s27, s27, {LY.H2}")
    for j in range(14):
        a(f"buffer_load_ushort v{96+j}, v35, {W}, s26 offen offset:{2*j}"); a(f"buffer_load_ushort v{112+j}, v35, {W}, s27 offen offset:{2*j}")
    for r in range(40,48): a(f"v_mov_b32 v{r}, 0")
    a("s_waitcnt vmcnt(0)")
    for j in range(14):
        a(f"v_lshlrev_b32 v{96+j}, 16, v{96+j}"); a(f"v_lshlrev_b32 v{112+j}, 16, v{112+j}")
        unpack_lo(a,48,64+j); unpack_hi(a,49,64+j); unpack_lo(a,50,80+j); unpack_hi(a,51,80+j)
        for t,hb in ((0,96),(1,112)):
            for q in range(4): a(f"v_fmac_f32 v{40+4*t+q}, v{48+q}, v{hb+j}")
    for r in range(40,48): xred(a,"v_add_f32",r,52)
    a("v_lshlrev_b32 v53, 5, v30"); a("s_lshl_b32 s28, s22, 8"); a("s_add_u32 s28, s28, 256"); a("v_add_u32 v53, s28, v53")
    a("s_mov_b64 exec, 0xff"); a("ds_write_b128 v53, v[40:43]"); a("ds_write_b128 v53, v[44:47] offset:16"); a("s_mov_b64 exec, -1")
    a("s_waitcnt lgkmcnt(0)"); a("s_barrier")
    a("v_cmp_gt_u32 vcc, 32, v0"); a("s_and_saveexec_b64 s[30:31], vcc"); a("s_cbranch_execz L_fin")
    a("v_lshrrev_b32 v54, 4, v0"); a("v_and_b32 v55, 15, v0"); a("v_lshrrev_b32 v56, 1, v55"); a("v_lshlrev_b32 v56, 3, v56"); a("v_lshlrev_b32 v57, 2, v54"); a("v_add_u32 v56, v56, v57")
    a("v_and_b32 v57, 1, v55"); a("v_add_u32 v56, v56, v57"); a("v_lshlrev_b32 v56, 2, v56"); a("v_add_u32 v56, 256, v56")
    for w in range(4): a(f"ds_read_b32 v{60+w}, v56 offset:{w*256}"); a(f"ds_read_b32 v{64+w}, v56 offset:{w*256+8}")
    a("s_waitcnt lgkmcnt(0)")
    a("v_add_f32 v60, v60, v61"); a("v_add_f32 v62, v62, v63"); a("v_add_f32 v60, v60, v62")
    a("v_add_f32 v64, v64, v65"); a("v_add_f32 v66, v66, v67"); a("v_add_f32 v64, v64, v66")
    def rb(r): a(f"v_cvt_pk_bf16_f32 v{r}, v{r}, v{r}"); a(f"v_lshlrev_b32 v{r}, 16, v{r}")
    rb(60); rb(64)
    a("v_mul_f32 v61, 0xbfb8aa3b, v60"); a("v_exp_f32 v61, v61"); a("s_nop 0"); a("v_add_f32 v61, 1.0, v61"); a("v_rcp_f32 v61, v61"); a("s_nop 0"); a("v_mul_f32 v60, v60, v61")
    rb(60); a("v_mul_f32 v60, v60, v64"); rb(60)
    a("v_mul_u32_u24 v58, 7168, v54"); a("v_lshlrev_b32 v59, 2, v55"); a("v_add_u32 v58, v58, v59"); a("s_lshl_b32 s28, s2, 6"); a(f"s_add_u32 s28, s28, {LY.ACT}")
    a(f"buffer_store_dword v60, v58, {W}, s28 offen")
    a.label("L_fin"); a("s_mov_b64 exec, s[30:31]")
    a.label("L_end"); a("s_waitcnt vmcnt(0)")
    return a.text()
K6_LDS=4096
def gen_k6():
    a=Asm()
    a("s_cmp_lt_u32 s2, 56"); a("s_cbranch_scc0 L_end")
    a("v_and_b32 v1, 63, v0"); a("v_lshrrev_b32 v2, 6, v0"); a("s_nop 0"); a("v_readfirstlane_b32 s22, v2")
    srds(a,[(16,'ws'),(8,'wd'),(12,'out')])
    W=S4(16)
    a("v_and_b32 v30, 3, v0"); a("v_lshrrev_b32 v31, 2, v0")
    a("v_mul_u32_u24 v32, 28, v31"); a("v_mul_u32_u24 v33, 896, v32"); a("v_lshlrev_b32 v34, 2, v30"); a("v_add_u32 v33, v33, v34"); a("s_lshl_b32 s26, s2, 4")
    for j in range(28):
        a(f"buffer_load_dword v{64+j}, v33, {S4(8)}, s26 offen"); a("s_add_u32 s26, s26, 896")
    a("v_lshlrev_b32 v35, 2, v32"); a(f"s_mov_b32 s27, {LY.ACT}"); a(f"s_mov_b32 s28, {LY.ACT+7168}")
    for j in range(7):
        a(f"buffer_load_dwordx4 {vr(96+4*j,4)}, v35, {W}, s27 offen offset:{16*j}"); a(f"buffer_load_dwordx4 {vr(128+4*j,4)}, v35, {W}, s28 offen offset:{16*j}")
    a("v_mov_b32 v6, 0"); a(f"s_mov_b32 s29, {LY.MISC}"); a(f"buffer_load_dwordx2 v[4:5], v6, {W}, s29 offen")
    for r in range(40,44): a(f"v_mov_b32 v{r}, 0")
    a("s_waitcnt vmcnt(0)")
    a("v_readfirstlane_b32 s40, v4"); a("v_readfirstlane_b32 s41, v5")
    for j in range(28):
        unpack_lo(a,48,64+j); unpack_hi(a,49,64+j)
        a(f"v_fmac_f32 v40, v48, v{96+j}"); a(f"v_fmac_f32 v41, v49, v{96+j}"); a(f"v_fmac_f32 v42, v48, v{128+j}"); a(f"v_fmac_f32 v43, v49, v{128+j}")
    for r in range(40,44):
        a("s_nop 1"); a(f"v_add_f32_dpp v{r}, v{r}, v{r} row_ror:4 row_mask:0xf bank_mask:0xf"); xred(a,"v_add_f32",r,52)
    a("v_lshlrev_b32 v53, 4, v30"); a("s_lshl_b32 s30, s22, 6"); a("v_add_u32 v53, s30, v53")
    a("s_mov_b64 exec, 0xf"); a("ds_write_b128 v53, v[40:43]"); a("s_mov_b64 exec, -1")
    a("s_waitcnt lgkmcnt(0)"); a("s_barrier")
    a("v_cmp_gt_u32 vcc, 16, v0"); a("s_and_saveexec_b64 s[32:33], vcc"); a("s_cbranch_execz L_fin")
    a("v_lshrrev_b32 v54, 3, v0"); a("v_and_b32 v55, 7, v0"); a("v_lshrrev_b32 v56, 1, v55"); a("v_lshlrev_b32 v56, 2, v56"); a("v_lshlrev_b32 v57, 1, v54"); a("v_add_u32 v56, v56, v57")
    a("v_and_b32 v57, 1, v55"); a("v_add_u32 v56, v56, v57"); a("v_lshlrev_b32 v56, 2, v56")
    for w in range(4): a(f"ds_read_b32 v{60+w}, v56 offset:{w*64}")
    a("v_mov_b32 v58, s40"); a("v_mov_b32 v59, s41"); a("v_cmp_eq_u32 vcc, 0, v54"); a("s_nop 1"); a("v_cndmask_b32 v58, v59, v58, vcc")
    a("s_lshl_b32 s34, s2, 3"); a("v_add_u32 v59, s34, v55")
    a("s_movk_i32 s35, 448"); a("v_mul_lo_u32 v64, v58, s35"); a("v_add_u32 v64, v64, v59")
    a("v_lshlrev_b32 v65, 2, v64"); a(f"s_mov_b32 s36, {LY.X1}"); a(f"buffer_load_dword v66, v65, {W}, s36 offen")
    a("v_lshlrev_b32 v67, 1, v64"); a(f"s_mov_b32 s37, {LY.H2}"); a(f"buffer_load_ushort v68, v67, {W}, s37 offen")
    a("v_lshlrev_b32 v69, 2, v59"); a(f"s_mov_b32 s38, {LY.MOD+5*448*4}"); a(f"buffer_load_dword v70, v69, {W}, s38 offen")
    a("v_lshlrev_b32 v71, 2, v58"); a(f"s_mov_b32 s39, {LY.R}"); a(f"buffer_load_dword v72, v71, {W}, s39 offen")
    a("s_waitcnt vmcnt(0) lgkmcnt(0)")
    a("v_add_f32 v60, v60, v61"); a("v_add_f32 v62, v62, v63"); a("v_add_f32 v60, v60, v62")
    def rb(r): a(f"v_cvt_pk_bf16_f32 v{r}, v{r}, v{r}"); a(f"v_lshlrev_b32 v{r}, 16, v{r}")
    rb(60)
    a("v_mul_f32 v72, 0xbfb8aa3b, v72"); a("v_exp_f32 v72, v72"); a("s_nop 0"); a("v_add_f32 v72, 1.0, v72"); a("v_rcp_f32 v72, v72"); a("s_nop 0")
    a("v_mul_f32 v60, v60, v72"); rb(60)
    a("v_lshlrev_b32 v68, 16, v68"); a("v_add_f32 v60, v60, v68"); a("v_fmac_f32 v66, v70, v60")
    a("v_cvt_pk_bf16_f32 v66, v66, v66")
    a(f"buffer_store_short v66, v67, {S4(12)}, 0 offen")
    a.label("L_fin"); a("s_mov_b64 exec, s[32:33]")
    a.label("L_end"); a("s_waitcnt vmcnt(0)")
    return a.text()
if __name__=="__main__": print(len(gen_k5().splitlines()),len(gen_k6().splitlines()))


def top2_poll(a, WS, partial=False):
    W=S4(WS)
    a("v_lshlrev_b32 v2, 5, v0"); a(f"s_mov_b32 s23, {LY.R}")
    if partial: a("v_min_u32 v2, 7648, v2")
    poll_data(a, [f"buffer_load_dwordx4 v[8:11], v2, {W}, s23 offen sc1", f"buffer_load_dwordx4 v[12:15], v2, {W}, s23 offen offset:16 sc1"], range(8,16), 4, 5, 36, sleep=4 if partial else 2)
    a("v_lshlrev_b32 v3, 3, v0"); a("v_sub_u32 v3, 2047, v3")
    for i in range(8):
        r=8+i
        a(f"v_ashrrev_i32 v4, 31, v{r}"); a("v_or_b32 v4, 0x80000000, v4"); a(f"v_xor_b32 v{r}, v{r}, v4")
        a(f"v_and_b32 v{r}, 0xfffff800, v{r}"); a(f"v_subrev_u32 v4, {i}, v3"); a(f"v_or_b32 v{r}, v{r}, v4")
    if partial:
        a("v_cmp_gt_u32 vcc, 240, v0"); a("s_nop 1")
        for i in range(8): a(f"v_cndmask_b32 v{8+i}, 0, v{8+i}, vcc")
    a("v_lshrrev_b32 v20, 6, v0"); a("v_lshlrev_b32 v20, 2, v20"); a("v_mov_b32 v21, 0")
    a("s_barrier")
    for rnd in range(2):
        a("v_max3_u32 v16, v8, v9, v10"); a("v_max3_u32 v16, v16, v11, v12"); a("v_max3_u32 v16, v16, v13, v14"); a("v_max_u32 v16, v16, v15")
        wave_max_u32(a,16,17)
        a(f"ds_write_b32 v20, v16 offset:{rnd*16}"); a("s_waitcnt lgkmcnt(0)"); a("s_barrier")
        a(f"ds_read_b128 v[24:27], v21 offset:{rnd*16}"); a("s_waitcnt lgkmcnt(0)")
        a("v_max3_u32 v16, v24, v25, v26"); a("v_max_u32 v16, v16, v27")
        a("v_and_b32 v18, 0x7ff, v16"); a("v_sub_u32 v18, 2047, v18"); a("s_nop 0"); a(f"v_readfirstlane_b32 s{40+rnd}, v18")
        if rnd==0:
            for i in range(8):
                a(f"v_cmp_ne_u32 vcc, v{8+i}, v16"); a("s_nop 1"); a(f"v_cndmask_b32 v{8+i}, 0, v{8+i}, vcc")
    a("s_nop 3")

def gateup_compute(a, WS, sidx, actoff):
    W=S4(WS)
    a("v_lshlrev_b32 v35, 1, v32")
    a("s_mul_i32 s26, s40, 896"); a(f"s_add_u32 s26, s26, {LY.H2}"); a("s_mul_i32 s27, s41, 896"); a(f"s_add_u32 s27, s27, {LY.H2}")
    hl=[]
    for j in range(7):
        hl.append(f"buffer_load_dword v{96+j}, v35, {W}, s26 offen offset:{4*j} sc1"); hl.append(f"buffer_load_dword v{112+j}, v35, {W}, s27 offen offset:{4*j} sc1")
    poll_data(a, hl, list(range(96,103))+list(range(112,119)), 4, 5, 36, sleep=1)
    for r in range(40,48): a(f"v_mov_b32 v{r}, 0")
    for j in range(14):
        unpack_lo(a,48,64+j); unpack_hi(a,49,64+j); unpack_lo(a,50,80+j); unpack_hi(a,51,80+j)
        for t,hb in ((0,96),(1,112)):
            (unpack_lo if j%2==0 else unpack_hi)(a,52,hb+j//2)
            for q in range(4): a(f"v_fmac_f32 v{40+4*t+q}, v{48+q}, v52")
    for r in range(40,48): xred(a,"v_add_f32",r,52)
    a("v_lshlrev_b32 v53, 5, v30"); a("s_lshl_b32 s28, s22, 8"); a("s_add_u32 s28, s28, 256"); a("v_add_u32 v53, s28, v53")
    a("s_mov_b64 exec, 0xff"); a("ds_write_b128 v53, v[40:43]"); a("ds_write_b128 v53, v[44:47] offset:16"); a("s_mov_b64 exec, -1")
    a("s_waitcnt lgkmcnt(0)"); a("s_barrier")
    lf=a.newlabel("L_gf")
    a("v_cmp_gt_u32 vcc, 32, v0"); a("s_and_saveexec_b64 s[30:31], vcc"); a(f"s_cbranch_execz {lf}")
    a("v_lshrrev_b32 v54, 4, v0"); a("v_and_b32 v55, 15, v0"); a("v_lshrrev_b32 v56, 1, v55"); a("v_lshlrev_b32 v56, 3, v56"); a("v_lshlrev_b32 v57, 2, v54"); a("v_add_u32 v56, v56, v57")
    a("v_and_b32 v57, 1, v55"); a("v_add_u32 v56, v56, v57"); a("v_lshlrev_b32 v56, 2, v56"); a("v_add_u32 v56, 256, v56")
    for w in range(4): a(f"ds_read_b32 v{100+w}, v56 offset:{w*256}"); a(f"ds_read_b32 v{104+w}, v56 offset:{w*256+8}")
    a("s_waitcnt lgkmcnt(0)")
    a("v_add_f32 v100, v100, v101"); a("v_add_f32 v102, v102, v103"); a("v_add_f32 v100, v100, v102")
    a("v_add_f32 v104, v104, v105"); a("v_add_f32 v106, v106, v107"); a("v_add_f32 v104, v104, v106")
    def rb(r): a(f"v_cvt_pk_bf16_f32 v{r}, v{r}, v{r}"); a(f"v_lshlrev_b32 v{r}, 16, v{r}")
    rb(100); rb(104)
    a("v_mul_f32 v101, 0xbfb8aa3b, v100"); a("v_exp_f32 v101, v101"); a("s_nop 0"); a("v_add_f32 v101, 1.0, v101"); a("v_rcp_f32 v101, v101"); a("s_nop 0"); a("v_mul_f32 v100, v100, v101")
    rb(100); a("v_mul_f32 v100, v100, v104"); rb(100)
    a("v_mul_u32_u24 v58, 7168, v54"); a("v_lshlrev_b32 v59, 2, v55"); a("v_add_u32 v58, v58, v59"); a(f"s_lshl_b32 s28, s{sidx}, 6"); a(f"s_add_u32 s28, s28, {actoff}")
    a(f"buffer_store_dword v100, v58, {W}, s28 offen sc1")
    a.label(lf); a("s_mov_b64 exec, s[30:31]")

def gateup_job(a, WS, WG, WU, sidx):
    W=S4(WS)
    a("v_and_b32 v30, 7, v0"); a("v_lshrrev_b32 v31, 3, v0")
    a("v_mul_u32_u24 v32, 14, v31"); a("s_movk_i32 s24, 3584"); a("v_mul_lo_u32 v33, v32, s24"); a("v_lshlrev_b32 v34, 2, v30"); a("v_add_u32 v33, v33, v34")
    a(f"s_lshl_b32 s25, s{sidx}, 5")
    for j in range(14):
        a(f"buffer_load_dword v{64+j}, v33, {S4(WG)}, s25 offen"); a(f"buffer_load_dword v{80+j}, v33, {S4(WU)}, s25 offen"); a("s_add_u32 s25, s25, 3584")
    top2_poll(a,WS,partial=True)
    a("s_mov_b32 s54, s40"); a("s_mov_b32 s55, s41")
    gateup_compute(a,WS,sidx,LY.ACT)
    wst(a,4)
    top2_poll(a,WS)
    wst(a,5)
    ld=a.newlabel("L_gd")
    a("s_cmp_eq_u32 s40, s54"); a("s_cselect_b32 s56, 1, 0"); a("s_cmp_eq_u32 s41, s55"); a("s_cselect_b32 s56, s56, 0"); a("s_cmp_eq_u32 s56, 1"); a(f"s_cbranch_scc1 {ld}")
    gateup_compute(a,WS,sidx,LY.ACTB)
    a.label(ld)

def down_compute(a, WS, OUT, sidx, actoff):
    W=S4(WS)
    a("v_lshrrev_b32 v54, 3, v0"); a("v_and_b32 v54, 1, v54"); a("v_and_b32 v55, 7, v0")
    a("v_mov_b32 v58, s40"); a("v_mov_b32 v59, s41"); a("v_cmp_eq_u32 vcc, 0, v54"); a("s_nop 1"); a("v_cndmask_b32 v58, v59, v58, vcc")
    a(f"s_lshl_b32 s34, s{sidx}, 3"); a("v_add_u32 v59, s34, v55")
    a("s_movk_i32 s35, 448"); a("v_mul_lo_u32 v160, v58, s35"); a("v_add_u32 v160, v160, v59")
    a("v_lshlrev_b32 v163, 1, v160"); a("v_and_b32 v161, -4, v163"); a(f"s_mov_b32 s37, {LY.H2}")
    poll_data(a, [f"buffer_load_dword v164, v161, {W}, s37 offen sc1"], [164,164,164], 4, 5, 36, sleep=1)
    a(f"buffer_load_ushort v162, v163, {S4(OUT)}, 0 offen sc1")
    a("v_lshlrev_b32 v165, 2, v59"); a(f"s_mov_b32 s38, {LY.MOD+5*448*4}"); a(f"buffer_load_dword v166, v165, {W}, s38 offen")
    a("v_lshlrev_b32 v167, 2, v58"); a(f"s_mov_b32 s39, {LY.R}"); a(f"buffer_load_dword v168, v167, {W}, s39 offen sc1")
    a("v_lshlrev_b32 v35, 2, v32"); a(f"s_mov_b32 s27, {actoff}"); a(f"s_mov_b32 s28, {actoff+7168}")
    loads=[]
    for j in range(7):
        loads.append(f"buffer_load_dwordx4 {vr(96+4*j,4)}, v35, {W}, s27 offen offset:{16*j} sc1"); loads.append(f"buffer_load_dwordx4 {vr(128+4*j,4)}, v35, {W}, s28 offen offset:{16*j} sc1")
    poll_data(a, loads, list(range(96,124))+list(range(128,156)), 4, 5, 36, sleep=2)
    for r in range(40,44): a(f"v_mov_b32 v{r}, 0")
    for j in range(28):
        unpack_lo(a,48,64+j); unpack_hi(a,49,64+j)
        a(f"v_fmac_f32 v40, v48, v{96+j}"); a(f"v_fmac_f32 v41, v49, v{96+j}"); a(f"v_fmac_f32 v42, v48, v{128+j}"); a(f"v_fmac_f32 v43, v49, v{128+j}")
    for r in range(40,44):
        a("s_nop 1"); a(f"v_add_f32_dpp v{r}, v{r}, v{r} row_ror:4 row_mask:0xf bank_mask:0xf"); xred(a,"v_add_f32",r,52)
    a("v_lshlrev_b32 v53, 4, v30"); a("s_lshl_b32 s30, s22, 6"); a("s_add_u32 s30, s30, 64"); a("v_add_u32 v53, s30, v53")
    a("s_mov_b64 exec, 0xf"); a("ds_write_b128 v53, v[40:43]"); a("s_mov_b64 exec, -1")
    a("s_waitcnt lgkmcnt(0)"); a("s_barrier")
    a("v_lshrrev_b32 v56, 1, v55"); a("v_lshlrev_b32 v56, 2, v56"); a("v_lshlrev_b32 v57, 1, v54"); a("v_add_u32 v56, v56, v57")
    a("v_and_b32 v57, 1, v55"); a("v_add_u32 v56, v56, v57"); a("v_lshlrev_b32 v56, 2, v56"); a("v_add_u32 v56, 64, v56")
    for w in range(4): a(f"ds_read_b32 v{156+w}, v56 offset:{w*64}")
    a("s_waitcnt lgkmcnt(0)")
    a("v_add_f32 v156, v156, v157"); a("v_add_f32 v158, v158, v159"); a("v_add_f32 v156, v156, v158")
    def rb(r): a(f"v_cvt_pk_bf16_f32 v{r}, v{r}, v{r}"); a(f"v_lshlrev_b32 v{r}, 16, v{r}")
    rb(156)
    a("v_mul_f32 v168, 0xbfb8aa3b, v168"); a("v_exp_f32 v168, v168"); a("s_nop 0"); a("v_add_f32 v168, 1.0, v168"); a("v_rcp_f32 v168, v168"); a("s_nop 0")
    a("v_mul_f32 v156, v156, v168"); rb(156)
    a("v_lshlrev_b32 v162, 16, v162"); a("v_fmac_f32 v162, v166, v156")
    a("v_cvt_pk_bf16_f32 v162, v162, v162")

def down_job(a, WS, WD, OUT, sidx):
    W=S4(WS)
    a("v_and_b32 v30, 3, v0"); a("v_lshrrev_b32 v31, 2, v0")
    a("v_mul_u32_u24 v32, 28, v31"); a("v_mul_u32_u24 v33, 896, v32"); a("v_lshlrev_b32 v34, 2, v30"); a("v_add_u32 v33, v33, v34"); a(f"s_lshl_b32 s26, s{sidx}, 4")
    for j in range(28):
        a(f"buffer_load_dword v{64+j}, v33, {S4(WD)}, s26 offen"); a("s_add_u32 s26, s26, 896")
    top2_poll(a,WS,partial=True)
    a("s_mov_b32 s54, s40"); a("s_mov_b32 s55, s41")
    down_compute(a,WS,OUT,sidx,LY.ACT)
    wst(a,5)
    top2_poll(a,WS)
    wst(a,6)
    ld=a.newlabel("L_dd")
    a("s_cmp_eq_u32 s40, s54"); a("s_cselect_b32 s56, 1, 0"); a("s_cmp_eq_u32 s41, s55"); a("s_cselect_b32 s56, s56, 0"); a("s_cmp_eq_u32 s56, 1"); a(f"s_cbranch_scc1 {ld}")
    down_compute(a,WS,OUT,sidx,LY.ACTB)
    a.label(ld)
    lf=a.newlabel("L_df")
    a("v_cmp_gt_u32 vcc, 16, v0"); a("s_and_saveexec_b64 s[32:33], vcc"); a(f"s_cbranch_execz {lf}")
    a(f"buffer_store_short v162, v163, {S4(OUT)}, 0 offen sc1")
    a.label(lf); a("s_mov_b64 exec, s[32:33]")
```

```python
from common_k import *
import common_k as CK
def wait_prod(a,W,seg,vx,vy,so,st,sc):
    if CK.NONCE:
        a(f"s_lshl_b32 s{so}, s{seg}, 9"); a(f"s_add_u32 s{so}, s{so}, {LY.PF}")
        wait_flags(a, W, so, 112, vx, vy, f"v_mov_b32 v{vx}, v1", sc, sleep=8)
    else:
        a(f"v_mov_b32 v{vx}, 0"); a(f"s_lshl_b32 s{so}, s{seg}, 7"); a(f"s_add_u32 s{so}, s{so}, {LY.PCNT}")
        wait_cnt(a, W, so, 112, vy, vx, st, sc)
def wait_m(a,W,seg,vx,vy,so,st,sc):
    if CK.NONCE:
        a(f"s_lshl_b32 s{so}, s{seg}, 11"); a(f"s_add_u32 s{so}, s{so}, {LY.MFF}")
        wait_flags(a, W, so, 14, vx, vy, f"v_mov_b32 v{vx}, v1", sc, sleep=8, stride=7)
    else:
        a(f"v_mov_b32 v{vx}, 0"); a(f"s_lshl_b32 s{so}, s{seg}, 7"); a(f"s_add_u32 s{so}, s{so}, {LY.MCNT}")
        wait_cnt(a, W, so, 14, vy, vx, st, sc, sleep=4)
from k0 import ln_stats, f2u
NEGINF=0xff800000
X1_LDS=28672
def x1_task(a, WS, ld="", st="", fused=False):
    W=S4(WS)
    a("v_and_b32 v2, 15, v1"); a("v_lshrrev_b32 v3, 4, v1")
    a("v_lshlrev_b32 v4, 4, v1")
    a("s_mul_i32 s23, s20, 28672"); a(f"s_add_u32 s23, s23, {LY.HFRAG}"); a("s_mul_i32 s24, s22, 7168"); a("s_add_u32 s23, s23, s24")
    a("s_mov_b32 m0, s24"); a("s_nop 0")
    for i in range(4): a(f"buffer_load_dwordx4 v4, {W}, s23 offen offset:{i*1024} lds")
    a("s_add_u32 s24, s24, 4096"); a("s_add_u32 s23, s23, 4096"); a("s_mov_b32 m0, s24"); a("s_nop 0")
    for i in range(3): a(f"buffer_load_dwordx4 v4, {W}, s23 offen offset:{i*1024} lds")
    if fused:
        wait_prod(a,W,20,11,12,34,35,36)
    a("s_lshl_b32 s25, s21, 2"); a("s_add_u32 s25, s25, s22")
    a("s_lshl_b32 s26, s20, 4"); a("s_add_u32 s26, s26, s25"); a("s_mul_i32 s26, s26, 28672"); a(f"s_add_u32 s26, s26, {LY.TFRAG}")
    TF=32
    for tt in range(2):
        a(f"s_add_u32 s27, s26, {tt*1024}")
        for ks in range(14):
            a(f"buffer_load_dwordx4 {vr(TF+56*tt+4*ks,4)}, v4, {W}, s27 offen offset:{(ks&1)*2048} {ld}")
            if ks&1: a("s_add_u32 s27, s27, 4096")
    MF=144
    a("v_lshlrev_b32 v5, 7, v3"); a("v_and_b32 v6, 7, v2"); a("v_lshlrev_b32 v6, 4, v6"); a("v_add_u32 v5, v5, v6")
    a("s_mul_i32 s28, s20, 7168"); a(f"s_add_u32 s28, s28, {LY.MEMX if fused else LY.MEM}")
    a("s_add_u32 s29, s28, 4096")
    memloads=[f"buffer_load_dwordx4 {vr(MF+4*ks,4)}, v5, {W}, s{28 if ks<8 else 29} offen offset:{(ks*512)%4096} sc1" for ks in range(14)]
    a("v_lshrrev_b32 v7, 2, v2"); a("v_lshlrev_b32 v7, 3, v7"); a("v_and_b32 v8, 3, v2"); a("v_add_u32 v7, v7, v8"); a("v_lshlrev_b32 v7, 4, v7")
    a("v_lshlrev_b32 v8, 9, v3"); a("v_add_u32 v7, v7, v8")
    a("v_lshlrev_b32 v9, 3, v3"); a("v_sub_u32 v9, v9, v2")
    ACC=200
    for r in range(ACC,ACC+24): a(f"v_mov_b32 v{r}, 0")
    a("s_waitcnt vmcnt(0)"); a("s_barrier")
    KB=224
    seq=[(T,ks) for ks in range(14) for T in range(2)]
    def kread(i):
        T,ks=seq[i]; a(f"ds_read_b128 {vr(KB+4*(i%3),4)}, v7 offset:{ks*2048+T*64}")
    kread(0); kread(1)
    for i,(T,ks) in enumerate(seq):
        if i+2<len(seq): kread(i+2)
        a(f"s_waitcnt lgkmcnt({min(2,len(seq)-1-i)})")
        for tt in range(2):
            a(f"v_mfma_f32_16x16x32_bf16 {vr(ACC+12*tt+4*T,4)}, {vr(KB+4*(i%3),4)}, {vr(TF+56*tt+4*ks,4)}, {vr(ACC+12*tt+4*T,4)}")
    wst(a,0)
    poll_data(a, memloads, range(MF,MF+56), 12, 13, 36, sleep=3)
    wst(a,1)
    for ks in range(14):
        for tt in range(2):
            a(f"v_mfma_f32_16x16x32_bf16 {vr(ACC+12*tt+8,4)}, {vr(MF+4*ks,4)}, {vr(TF+56*tt+4*ks,4)}, {vr(ACC+12*tt+8,4)}")
    a.nop(10)
    a(f"v_mov_b32 v10, {NEGINF:#x}")
    a("s_lshl_b32 s30, s20, 1")
    for tt in range(2):
        S=ACC+12*tt
        for T in range(2):
            for i in range(4):
                a(f"v_cmp_lt_i32 vcc, {16*tt-4*T-i}, v9"); a("s_nop 1"); a(f"v_cndmask_b32 v{S+4*T+i}, v{S+4*T+i}, v10, vcc")
        a("v_cmp_lt_u32 vcc, 1, v3"); a("s_nop 1")
        for i in range(4): a(f"v_cndmask_b32 v{S+8+i}, v{S+8+i}, v10, vcc")
        m=236; t=237
        a(f"v_max3_f32 v{m}, v{S}, v{S+1}, v{S+2}")
        for k in range(3,11,2): a(f"v_max3_f32 v{m}, v{m}, v{S+k}, v{S+k+1}")
        a(f"v_max_f32 v{m}, v{m}, v{S+11}")
        xred_g(a,"v_max_f32",m,t)
        for k in range(12): a(f"v_sub_f32 v{S+k}, v{S+k}, v{m}")
        for k in range(12): a(f"v_exp_f32 v{S+k}, v{S+k}")
        a("s_nop 0")
        a(f"v_add_f32 v{m}, v{S}, v{S+1}")
        for k in range(2,12): a(f"v_add_f32 v{m}, v{m}, v{S+k}")
        xred_g(a,"v_add_f32",m,t)
        a(f"v_rcp_f32 v{m}, v{m}"); a("s_nop 0")
        for k in range(12): a(f"v_mul_f32 v{S+k}, v{S+k}, v{m}")
        O=240+ 0
        for z in range(6): a(f"v_cvt_pk_bf16_f32 v{O+z}, v{S+2*z}, v{S+2*z+1}")
        a(f"s_add_u32 s31, s30, {tt}"); a("s_lshl_b32 s32, s31, 4"); a("s_add_u32 s32, s32, s25"); a("s_lshl_b32 s32, s32, 10"); a(f"s_add_u32 s32, s32, {LY.PFX}")
        a(f"buffer_store_dwordx4 {vr(O,4)}, v4, {W}, s32 offen {st}")
        a("s_lshl_b32 s32, s31, 2"); a("s_add_u32 s32, s32, s21"); a("s_lshl_b32 s32, s32, 10"); a(f"s_add_u32 s32, s32, {LY.PFM}")
        a("s_and_b32 s33, s22, 1"); a("s_lshl_b32 s33, s33, 9"); a("s_add_u32 s32, s32, s33"); a("s_lshr_b32 s33, s22, 1"); a("s_lshl_b32 s33, s33, 3"); a("s_add_u32 s32, s32, s33")
        a("s_mov_b32 exec_hi, 0")
        a(f"buffer_store_dwordx2 {vr(O+4,2)}, v4, {W}, s32 offen {st}")
        a("s_mov_b32 exec_hi, -1")
        a("s_nop 1")
def gen_x1():
    a=Asm()
    a("s_cmp_lt_u32 s2, 256"); a("s_cbranch_scc0 L_end")
    a("v_and_b32 v1, 63, v0"); a("v_lshrrev_b32 v2, 6, v0"); a("s_nop 0"); a("v_readfirstlane_b32 s22, v2")
    srds(a,[(16,'ws')])
    a("s_lshr_b32 s20, s2, 2"); a("s_and_b32 s21, s2, 3")
    x1_task(a,16)
    a.label("L_end"); a("s_waitcnt vmcnt(0)")
    return a.text()

X2_LDS=40960
def x2_task(a, WS, XS, ld="", st="", fused=False):
    W=S4(WS)
    a("v_and_b32 v2, 15, v1"); a("v_lshrrev_b32 v3, 4, v1"); a("v_lshlrev_b32 v4, 4, v1")
    if not fused:
        a("s_lshl_b32 s23, s20, 15"); a(f"s_add_u32 s23, s23, {LY.PFX}"); a("s_lshl_b32 s24, s22, 13"); a("s_add_u32 s23, s23, s24")
        for half in range(2):
            a("s_mov_b32 m0, s24"); a("s_nop 0")
            for i in range(4): a(f"buffer_load_dwordx4 v4, {W}, s23 offen offset:{i*1024} lds {ld}")
            a("s_add_u32 s24, s24, 4096"); a("s_add_u32 s23, s23, 4096")
        a("s_lshl_b32 s23, s20, 13"); a(f"s_add_u32 s23, s23, {LY.PFM}"); a("s_lshl_b32 s24, s22, 11"); a("s_add_u32 s23, s23, s24"); a("s_add_u32 s24, s24, 32768")
        a("s_mov_b32 m0, s24"); a("s_nop 0")
        for i in range(2): a(f"buffer_load_dwordx4 v4, {W}, s23 offen offset:{i*1024} lds {ld}")
    a("s_lshl_b32 s25, s21, 2"); a("s_add_u32 s25, s25, s22")
    a("s_mul_i32 s26, s20, 28"); a("s_add_u32 s26, s26, s25")
    a("s_lshl_b32 s27, s26, 14"); a(f"s_add_u32 s27, s27, {LY.BFRAG}")
    AF=32
    if fused:
        a("v_mov_b32 v11, 0"); a("s_lshl_b32 s34, s20, 7"); a(f"s_add_u32 s34, s34, {LY.PCNT}")
        wait_cnt(a, W, 34, 112, 12, 11, 35, 36)
    for h in range(16):
        a(f"buffer_load_dwordx4 {vr(AF+4*h,4)}, v4, {W}, s27 offen offset:{(h&3)*1024} {ld}")
        if (h&3)==3: a("s_add_u32 s27, s27, 4096")
    def mloads():
        a("s_lshl_b32 s27, s26, 12"); a(f"s_add_u32 s27, s27, {LY.MFRAG}")
        for w in range(4): a(f"buffer_load_dwordx4 {vr(AF+64+4*w,4)}, v4, {W}, s27 offen offset:{w*1024} {ld}")
    if not fused: mloads()
    a("v_mul_u32_u24 v5, 896, v2"); a("v_lshlrev_b32 v6, 3, v3"); a("v_add_u32 v5, v5, v6")
    a("s_mul_i32 s28, s20, 28672"); a("s_lshl_b32 s29, s25, 5"); a("s_add_u32 s28, s28, s29")
    a(f"buffer_load_dwordx2 v[120:121], v5, {S4(XS)}, s28 offen"); a(f"s_add_u32 s28, s28, {16*896}"); a(f"buffer_load_dwordx2 v[122:123], v5, {S4(XS)}, s28 offen")
    a("v_lshlrev_b32 v6, 4, v3"); a("s_lshl_b32 s29, s25, 6"); a(f"s_add_u32 s29, s29, {LY.MOD+2*448*4}")
    a(f"buffer_load_dwordx4 v[124:127], v6, {W}, s29 offen")
    ACC=112
    for r in range(ACC,ACC+8): a(f"v_mov_b32 v{r}, 0")
    if fused:
        a("v_lshlrev_b32 v10, 4, v0")
        a("s_lshl_b32 s31, s20, 15"); a(f"s_add_u32 s31, s31, {LY.PFX}"); a("s_add_u32 s32, s31, 16384")
        a("s_lshl_b32 s33, s20, 13"); a(f"s_add_u32 s33, s33, {LY.PFM}")
        PR=148
        a("v_add_u32 v13, 4096, v10"); a("v_add_u32 v14, 8192, v10"); a("v_add_u32 v15, 12288, v10")
        loads=[]
        for k in range(8): loads.append(f"buffer_load_dwordx4 {vr(PR+4*k,4)}, v{[10,13,14,15][k&3]}, {W}, s{31 if k<4 else 32} offen sc1")
        for k in range(2): loads.append(f"buffer_load_dwordx4 {vr(PR+32+4*k,4)}, v{[10,13][k]}, {W}, s33 offen sc1")
        wst(a,0)
        poll_data(a, loads, range(PR,PR+40), 16, 17, 36, sleep=8)
        wst(a,1)
        for k in range(10): a(f"ds_write_b128 v10, {vr(PR+4*k,4)} offset:{k*4096}")
        a("s_lshl_b32 s34, s20, 7"); a(f"s_add_u32 s34, s34, {LY.MCNT}")
        wait_cnt(a, W, 34, 14, 12, 11, 35, 36)
        wst(a,2)
        mloads()
        a("s_waitcnt lgkmcnt(0)")
    a("s_waitcnt vmcnt(0)"); a("s_barrier")
    PB=128
    seq=[(tt,k) for k in range(20) for tt in range(2)]
    def pread(i):
        tt,k=seq[i]; off = tt*16384+k*1024 if k<16 else 32768+tt*4096+(k-16)*1024
        a(f"ds_read_b128 {vr(PB+4*(i%4),4)}, v4 offset:{off}")
    for i in range(3): pread(i)
    for i,(tt,k) in enumerate(seq):
        if i+3<len(seq): pread(i+3)
        a(f"s_waitcnt lgkmcnt({min(3,len(seq)-1-i)})")
        a(f"v_mfma_f32_16x16x32_bf16 {vr(ACC+4*tt,4)}, {vr(AF+4*k,4)}, {vr(PB+4*(i%4),4)}, {vr(ACC+4*tt,4)}")
    a.nop(10)
    a("v_mul_u32_u24 v7, 1792, v2"); a("v_lshlrev_b32 v8, 4, v3"); a("v_add_u32 v7, v7, v8")
    a(f"s_mul_i32 s30, s20, {32*1792}"); a("s_lshl_b32 s29, s25, 6"); a("s_add_u32 s30, s30, s29"); a(f"s_add_u32 s30, s30, {LY.X1}")
    for tt in range(2):
        xr=120+2*tt
        unpack_lo(a,144,xr); unpack_hi(a,145,xr); unpack_lo(a,146,xr+1); unpack_hi(a,147,xr+1)
        for i in range(4): a(f"v_fmac_f32 v{144+i}, v{124+i}, v{ACC+4*tt+i}")
        a(f"buffer_store_dwordx4 v[144:147], v7, {W}, s30 offen {st}")
        a(f"s_add_u32 s30, s30, {16*1792}"); a("s_nop 1")
def gen_x2():
    a=Asm()
    a("s_cmp_lt_u32 s2, 448"); a("s_cbranch_scc0 L_end")
    a("v_and_b32 v1, 63, v0"); a("v_lshrrev_b32 v2, 6, v0"); a("s_nop 0"); a("v_readfirstlane_b32 s22, v2")
    srds(a,[(16,'ws'),(12,'x')])
    a("s_mul_i32 s20, s2, 9363"); a("s_lshr_b32 s20, s20, 16"); a("s_mul_i32 s21, s20, 7"); a("s_sub_u32 s21, s2, s21")
    x2_task(a,16,12)
    a.label("L_end"); a("s_waitcnt vmcnt(0)")
    return a.text()

def x3_task(a, WS, OUT, WR, ld="", st=""):
    W=S4(WS)
    a("v_and_b32 v3, 7, v1"); a("v_lshrrev_b32 v4, 3, v1")
    a("s_lshl_b32 s23, s22, 3"); a("v_add_u32 v5, s23, v3")
    a("v_mul_u32_u24 v6, 1792, v5"); a("v_lshlrev_b32 v7, 5, v4"); a("v_add_u32 v6, v6, v7")
    a(f"s_mul_i32 s24, s20, {32*1792}"); a(f"s_add_u32 s24, s24, {LY.X1}")
    X=64
    for i in range(7):
        a(f"buffer_load_dwordx4 {vr(X+8*i,4)}, v6, {W}, s24 offen offset:{256*i} {ld}"); a(f"buffer_load_dwordx4 {vr(X+8*i+4,4)}, v6, {W}, s24 offen offset:{256*i+16} {ld}")
    a("v_lshlrev_b32 v8, 5, v4")
    SB=120; CB=176; GB=256-0
    a(f"s_mov_b32 s25, {LY.MOD+3*448*4}"); a(f"s_mov_b32 s26, {LY.MOD+4*448*4}"); a(f"s_mov_b32 s27, {LY.MOD+5*448*4}")
    for i in range(7):
        a(f"buffer_load_dwordx4 {vr(SB+8*i,4)}, v8, {W}, s25 offen offset:{256*i}"); a(f"buffer_load_dwordx4 {vr(SB+8*i+4,4)}, v8, {W}, s25 offen offset:{256*i+16}")
        a(f"buffer_load_dwordx4 {vr(CB+8*i,4)}, v8, {W}, s26 offen offset:{256*i}"); a(f"buffer_load_dwordx4 {vr(CB+8*i+4,4)}, v8, {W}, s26 offen offset:{256*i+16}")
    a("v_lshlrev_b32 v9, 4, v4")
    WRr=32
    for i in range(7): a(f"buffer_load_dwordx4 {vr(WRr+4*i,4)}, v9, {S4(WR)}, 0 offen offset:{128*i}")
    a("s_waitcnt vmcnt(35)")
    ln_stats(a,X,56,10,12,13)
    a("s_waitcnt vmcnt(0)")
    for k in range(56):
        a(f"v_add_f32 v{CB+k}, 1.0, v{CB+k}"); a(f"v_mul_f32 v{CB+k}, v{CB+k}, v11"); a(f"v_fmac_f32 v{SB+k}, v{X+k}, v{CB+k}")
    for i in range(7):
        a(f"buffer_load_dwordx4 {vr(CB+8*i,4)}, v8, {W}, s27 offen offset:{256*i}"); a(f"buffer_load_dwordx4 {vr(CB+8*i+4,4)}, v8, {W}, s27 offen offset:{256*i+16}")
    a("v_mul_u32_u24 v17, 896, v5"); a("v_lshlrev_b32 v18, 4, v4"); a("v_add_u32 v17, v17, v18"); a("s_mul_i32 s29, s20, 28672"); a(f"s_add_u32 s28, s29, {LY.H2}")
    for i in range(7):
        t=20+4*(i&1)
        for q in range(4):
            k=8*i+2*q
            a(f"v_cvt_pk_bf16_f32 v{t+q}, v{SB+k}, v{SB+k+1}"); unpack_lo(a,SB+k,t+q); unpack_hi(a,SB+k+1,t+q)
        a(f"buffer_store_dwordx4 {vr(t,4)}, v17, {W}, s28 offen offset:{128*i} {st}")
    a("v_mov_b32 v15, 0")
    for i in range(7):
        for q in range(4):
            unpack_lo(a,14,WRr+4*i+q); a(f"v_fmac_f32 v15, v14, v{SB+8*i+2*q}"); unpack_hi(a,14,WRr+4*i+q); a(f"v_fmac_f32 v15, v14, v{SB+8*i+2*q+1}")
    xred(a,"v_add_f32",15,12)
    a("s_waitcnt vmcnt(7)")
    for k in range(56):
        a(f"v_add_f32 v{X+k}, v{X+k}, v10"); a(f"v_fmac_f32 v{X+k}, v{CB+k}, v{SB+k}")
    for i in range(7):
        for q in range(4): a(f"v_cvt_pk_bf16_f32 v{32+4*i+q}, v{X+8*i+2*q}, v{X+8*i+2*q+1}")
        a(f"buffer_store_dwordx4 {vr(32+4*i,4)}, v17, {S4(OUT)}, s29 offen offset:{128*i} {st}")
    a("v_lshlrev_b32 v16, 2, v5"); a("s_lshl_b32 s28, s20, 7"); a(f"s_add_u32 s28, s28, {LY.R}")
    a("s_waitcnt vmcnt(0)")
    a("s_mov_b64 exec, 0xff"); a(f"buffer_store_dword v15, v16, {W}, s28 offen {st}"); a("s_mov_b64 exec, -1")
def gen_x3():
    a=Asm()
    a("s_cmp_lt_u32 s2, 64"); a("s_cbranch_scc0 L_end")
    a("v_and_b32 v1, 63, v0"); a("v_lshrrev_b32 v2, 6, v0"); a("s_nop 0"); a("v_readfirstlane_b32 s22, v2")
    srds(a,[(16,'ws'),(12,'out'),(8,'wr')])
    a("s_mov_b32 s20, s2")
    x3_task(a,16,12,8)
    a.label("L_end"); a("s_waitcnt vmcnt(0)")
    return a.text()
if __name__=="__main__":
    print(len(gen_x1().splitlines()),len(gen_x2().splitlines()),len(gen_x3().splitlines()))


def x23_task(a, WS, XS, OUT, WR):
    W=S4(WS)
    a("v_and_b32 v2, 15, v1"); a("v_lshrrev_b32 v3, 4, v1"); a("v_lshlrev_b32 v4, 4, v1")
    a("s_lshl_b32 s25, s21, 2"); a("s_add_u32 s25, s25, s22")
    a("s_mul_i32 s26, s20, 28"); a("s_add_u32 s26, s26, s25")
    a("s_lshl_b32 s27, s26, 14"); a(f"s_add_u32 s27, s27, {LY.BFRAG}")
    AF=32
    a("v_mul_u32_u24 v5, 896, v2"); a("v_lshlrev_b32 v6, 3, v3"); a("v_add_u32 v5, v5, v6")
    a("s_mul_i32 s28, s20, 28672"); a("s_lshl_b32 s29, s25, 5"); a("s_add_u32 s28, s28, s29")
    a(f"s_add_u32 s30, s28, {16*896}")
    a(f"buffer_load_dwordx2 v[120:121], v5, {S4(XS)}, s28 offen"); a(f"buffer_load_dwordx2 v[122:123], v5, {S4(XS)}, s30 offen")
    a("v_lshlrev_b32 v6, 4, v3"); a("s_lshl_b32 s29, s25, 6")
    for k,(reg,idx) in enumerate(((124,2),(188,3),(192,4),(196,5))):
        a(f"s_add_u32 s31, s29, {LY.MOD+idx*448*4}"); a(f"buffer_load_dwordx4 {vr(reg,4)}, v6, {W}, s31 offen")
    a("v_lshlrev_b32 v7, 3, v3"); a("s_lshl_b32 s31, s25, 5"); a(f"buffer_load_dwordx2 v[200:201], v7, {S4(WR)}, s31 offen")
    a("v_lshlrev_b32 v8, 2, v1"); a("v_lshlrev_b32 v9, 1, v1")
    a(f"s_mov_b32 s31, {LY.MOD+3*448*4}"); a(f"s_mov_b32 s32, {LY.MOD+4*448*4}")
    for j in range(7):
        a(f"buffer_load_dword v{204+j}, v8, {W}, s31 offen offset:{256*j}"); a(f"buffer_load_dword v{212+j}, v8, {W}, s32 offen offset:{256*j}")
        a(f"buffer_load_ushort v{220+j}, v9, {S4(WR)}, 0 offen offset:{128*j}")
    wait_prod(a,W,20,11,12,34,35,36)
    for h in range(16):
        a(f"buffer_load_dwordx4 {vr(AF+4*h,4)}, v4, {W}, s27 offen offset:{(h&3)*1024} sc1")
        if (h&3)==3: a("s_add_u32 s27, s27, 4096")
    a("v_mov_b32 v228, 0"); a("v_mov_b32 v229, 0")
    for j in range(7):
        a(f"v_lshlrev_b32 v{220+j}, 16, v{220+j}"); a(f"v_fmac_f32 v228, v{204+j}, v{220+j}"); a(f"v_add_f32 v{212+j}, 1.0, v{212+j}"); a(f"v_fmac_f32 v229, v{212+j}, v{220+j}")
    for r in (228,229):
        for ror in (4,2,1):
            a("s_nop 1"); a(f"v_add_f32_dpp v{r}, v{r}, v{r} row_ror:{ror} row_mask:0xf bank_mask:0xf")
        xred(a,"v_add_f32",r,230)
    for i in range(4): a(f"v_add_f32 v{192+i}, 1.0, v{192+i}")
    unpack_lo(a,232,200); unpack_hi(a,233,200); unpack_lo(a,234,201); unpack_hi(a,235,201)
    for i in range(4): a(f"v_mul_f32 v{236+i}, v{192+i}, v{232+i}")
    ACC=112
    for r in range(ACC,ACC+8): a(f"v_mov_b32 v{r}, 0")
    wait_m(a,W,20,11,12,34,35,36)
    a("s_lshl_b32 s27, s26, 12"); a(f"s_add_u32 s27, s27, {LY.MFRAG}")
    for w in range(4): a(f"buffer_load_dwordx4 {vr(AF+64+4*w,4)}, v4, {W}, s27 offen offset:{w*1024} sc1")
    a("v_lshlrev_b32 v10, 4, v0")
    a("s_lshl_b32 s31, s20, 15"); a(f"s_add_u32 s31, s31, {LY.PFX}"); a("s_add_u32 s32, s31, 16384")
    a("s_lshl_b32 s33, s20, 13"); a(f"s_add_u32 s33, s33, {LY.PFM}")
    PR=148
    a("v_add_u32 v13, 4096, v10"); a("v_add_u32 v14, 8192, v10"); a("v_add_u32 v15, 12288, v10")
    loads=[]
    for k in range(8): loads.append(f"buffer_load_dwordx4 {vr(PR+4*k,4)}, v{[10,13,14,15][k&3]}, {W}, s{31 if k<4 else 32} offen sc1")
    for k in range(2): loads.append(f"buffer_load_dwordx4 {vr(PR+32+4*k,4)}, v{[10,13][k]}, {W}, s33 offen sc1")
    wst(a,0)
    poll_data(a, loads, range(PR,PR+40), 16, 17, 36, sleep=2)
    wst(a,1)
    for k in range(10): a(f"ds_write_b128 v10, {vr(PR+4*k,4)} offset:{k*4096}")
    a("s_waitcnt lgkmcnt(0)"); a("s_barrier")
    PB=128
    seq=[(tt,k) for k in range(20) for tt in range(2)]
    def pread(i):
        tt,k=seq[i]; off = tt*16384+k*1024 if k<16 else 32768+tt*4096+(k-16)*1024
        a(f"ds_read_b128 {vr(PB+4*(i%4),4)}, v4 offset:{off}")
    for i in range(3): pread(i)
    for i,(tt,k) in enumerate(seq):
        if i+3<len(seq): pread(i+3)
        a(f"s_waitcnt lgkmcnt({min(3,len(seq)-1-i)})")
        a(f"v_mfma_f32_16x16x32_bf16 {vr(ACC+4*tt,4)}, {vr(AF+4*k,4)}, {vr(PB+4*(i%4),4)}, {vr(ACC+4*tt,4)}")
    a.nop(10)
    X=144; PS=152
    for tt in range(2):
        xr=120+2*tt; x=X+4*tt
        unpack_lo(a,x,xr); unpack_hi(a,x+1,xr); unpack_lo(a,x+2,xr+1); unpack_hi(a,x+3,xr+1)
        for i in range(4): a(f"v_fmac_f32 v{x+i}, v{124+i}, v{ACC+4*tt+i}")
        p=PS+3*tt
        a(f"v_add_f32 v{p}, v{x}, v{x+1}"); a(f"v_add_f32 v{p}, v{p}, v{x+2}"); a(f"v_add_f32 v{p}, v{p}, v{x+3}")
        a(f"v_mul_f32 v{p+1}, v{x}, v{x}");
        for i in range(1,4): a(f"v_fmac_f32 v{p+1}, v{x+i}, v{x+i}")
        a(f"v_mul_f32 v{p+2}, v{x}, v236")
        for i in range(1,4): a(f"v_fmac_f32 v{p+2}, v{x+i}, v{236+i}")
    for r in range(PS,PS+6): xred_g(a,"v_add_f32",r,158)
    LS=41984
    a("v_lshlrev_b32 v16, 4, v2"); a("s_lshl_b32 s35, s22, 9"); a(f"s_add_u32 s35, s35, {LS}"); a("v_add_u32 v16, s35, v16")
    a("v_mov_b32 v159, 0")
    a("s_mov_b64 exec, 0xffff")
    for tt in range(2):
        a(f"v_mov_b32 v160, v{PS+3*tt}"); a(f"v_mov_b32 v161, v{PS+3*tt+1}"); a(f"v_mov_b32 v162, v{PS+3*tt+2}"); a("v_mov_b32 v163, 0")
        a(f"ds_write_b128 v16, v[160:163] offset:{tt*256}")
    a("s_mov_b64 exec, -1")
    a("s_waitcnt lgkmcnt(0)"); a("s_barrier")
    lw=a.newlabel("L_st")
    a("s_cmp_eq_u32 s22, 0"); a(f"s_cbranch_scc0 {lw}")
    a("s_mov_b32 exec_hi, 0")
    a("v_lshlrev_b32 v17, 4, v1"); a(f"v_add_u32 v18, {LS}, v17")
    for w in range(4): a(f"ds_read_b128 {vr(164+4*w,4)}, v18 offset:{w*512}")
    a("s_waitcnt lgkmcnt(0)")
    for i in range(3):
        a(f"v_add_f32 v{164+i}, v{164+i}, v{168+i}"); a(f"v_add_f32 v{172+i}, v{172+i}, v{176+i}"); a(f"v_add_f32 v{164+i}, v{164+i}, v{172+i}")
    a("s_mul_i32 s35, s20, 7"); a("s_add_u32 s35, s35, s21"); a("s_lshl_b32 s35, s35, 9"); a(f"s_add_u32 s35, s35, {LY.STATS}")
    a(f"buffer_store_dwordx4 v[164:167], v17, {W}, s35 offen sc1")
    a("s_mov_b32 exec_hi, -1")
    a.label(lw)
    a("v_lshlrev_b32 v19, 4, v2"); a("v_lshlrev_b32 v21, 9, v3"); a("v_add_u32 v19, v19, v21")
    a("v_add_u32 v22, 2048, v19"); a("v_cmp_eq_u32 vcc, 3, v3"); a("s_nop 1"); a("v_cndmask_b32 v22, v22, v19, vcc")
    a(f"s_mul_i32 s35, s20, {7*512}"); a(f"s_add_u32 s35, s35, {LY.STATS}")
    SG=32
    loads=[f"buffer_load_dwordx4 {vr(SG,4)}, v19, {W}, s35 offen sc1", f"buffer_load_dwordx4 {vr(SG+4,4)}, v19, {W}, s35 offen offset:256 sc1",
           f"buffer_load_dwordx4 {vr(SG+8,4)}, v22, {W}, s35 offen sc1", f"buffer_load_dwordx4 {vr(SG+12,4)}, v22, {W}, s35 offen offset:256 sc1"]
    wst(a,2)
    poll_data(a, loads, [SG+4*k+i for k in range(4) for i in range(3)], 16, 17, 36, sleep=1)
    from k0 import f2u
    a("v_cmp_eq_u32 vcc, 3, v3"); a("s_nop 1")
    for tt in range(2):
        for i in range(3):
            a(f"v_cndmask_b32 v{SG+8+4*tt+i}, v{SG+8+4*tt+i}, 0, vcc")
            a(f"v_add_f32 v{SG+4*tt+i}, v{SG+4*tt+i}, v{SG+8+4*tt+i}")
    for tt in range(2):
        for i in range(3): xred_g(a,"v_add_f32",SG+4*tt+i,23)
    for tt in range(2):
        p1,p2,p3=SG+4*tt,SG+4*tt+1,SG+4*tt+2
        mean=96+4*tt; rstd=mean+1; rr=mean+2
        a(f"v_mul_f32 v{mean}, {f2u(1/448):#x}, v{p1}")
        a(f"v_mul_f32 v{rstd}, v{mean}, v{mean}"); a(f"v_mov_b32 v104, {f2u(1e-5):#x}"); a(f"v_sub_f32 v104, v104, v{rstd}"); a(f"v_fmac_f32 v104, {f2u(1/448):#x}, v{p2}")
        a(f"v_rsq_f32 v{rstd}, v104"); a("s_nop 0")
        a(f"v_fma_f32 v105, -v{mean}, v229, v{p3}"); a(f"v_fma_f32 v{rr}, v105, v{rstd}, v228")
    lr=a.newlabel("L_r")
    a("s_add_u32 s35, s21, s22"); a("s_cmp_eq_u32 s35, 0"); a(f"s_cbranch_scc0 {lr}")
    a("v_lshlrev_b32 v20, 2, v2"); a("s_lshl_b32 s35, s20, 7"); a(f"s_add_u32 s35, s35, {LY.R}")
    a("s_mov_b64 exec, 0xffff"); a(f"buffer_store_dword v98, v20, {W}, s35 offen sc1"); a(f"buffer_store_dword v102, v20, {W}, s35 offen offset:64 sc1"); a("s_mov_b64 exec, -1")
    a.label(lr)
    for tt in range(2):
        x=X+4*tt; mean=96+4*tt; rstd=mean+1; hh=108+4*tt*0
        for i in range(4):
            a(f"v_sub_f32 v{108+i}, v{x+i}, v{mean}"); a(f"v_mul_f32 v{108+i}, v{108+i}, v{rstd}"); a(f"v_fma_f32 v{108+i}, v{108+i}, v{192+i}, v{188+i}")
        H=240+2*tt; O=244+2*tt
        a(f"v_cvt_pk_bf16_f32 v{H}, v108, v109"); a(f"v_cvt_pk_bf16_f32 v{H+1}, v110, v111")
        unpack_lo(a,108,H); unpack_hi(a,109,H); unpack_lo(a,110,H+1); unpack_hi(a,111,H+1)
        for i in range(4): a(f"v_fmac_f32 v{x+i}, v{196+i}, v{108+i}")
        a(f"v_cvt_pk_bf16_f32 v{O}, v{x}, v{x+1}"); a(f"v_cvt_pk_bf16_f32 v{O+1}, v{x+2}, v{x+3}")
    a(f"buffer_store_dwordx2 v[244:245], v5, {S4(OUT)}, s28 offen sc1"); a(f"buffer_store_dwordx2 v[246:247], v5, {S4(OUT)}, s30 offen sc1")
    a("s_waitcnt vmcnt(0)")
    a(f"s_add_u32 s28, s28, {LY.H2}"); a(f"s_add_u32 s30, s30, {LY.H2}")
    a(f"buffer_store_dwordx2 v[240:241], v5, {W}, s28 offen sc1"); a(f"buffer_store_dwordx2 v[242:243], v5, {W}, s30 offen sc1")
```

```python
import os
from common_k import *
from k0 import f2u, SC, ln_stats
import layout as LY
import common_k as CK
LA=0; LW=114688
L_OUT=LW+4*8192
L_CNT=L_OUT+8192
L_MODS=LW
K0_LDS=163840
PITCH=64
REGC=[(LY.MEM+7168,64*7168,-1),(LY.PX,64*16*512,-1),(LY.PM,64*4*512,-1),(LY.CNT,LY.CNTB,0),(LY.MEMX+7168,63*7168,-1)]
REGL=[(LY.PFX,64*2*16*1024,-1),(LY.PFM,64*2*4*1024,-1),(LY.R,8192,-1),(LY.ACT,2*1792*4,-1),(LY.ACTB,2*1792*4,-1),(LY.H2,2048*896,-1),(LY.STATS,64*7*32*16,-1)]
REG=REGC+REGL
def k0_body(a, NM, st, fused, moff):
    NT=os.environ.get('K0NT','')
    ST=bool(os.environ.get('STAMP0'))
    SMAP={0:0,1:1,4:2,5:3,6:4,7:5}
    def stp(k):
        if ST and k in SMAP: a(f's_memrealtime s[{80+2*SMAP[k]}:{81+2*SMAP[k]}]'); a('s_waitcnt lgkmcnt(0)')
    stp(0)
    a("v_and_b32 v1, 63, v0"); a("v_lshrrev_b32 v2, 6, v0"); a("s_nop 0"); a("v_readfirstlane_b32 s22, v2")
    for n,t in (('Wq',60),('Wk',62),('Wv',64),('Wo',66),('ws',68),('wmod',70),('c',72),('mem0',74),('x',76),('dbg',78)): a(f"s_load_dwordx2 s[{t}:{t+1}], s[0:1], {KA[n]}")
    a("s_waitcnt lgkmcnt(0)")
    mk_srd(a,16,'ws',68); mk_srd(a,44,'x',76); mk_srd(a,48,'dbg',78)
    W=S4(16)
    a("s_and_b32 s20, s2, 31"); a("s_lshr_b32 s21, s2, 5")
    a("s_and_b32 s23, s20, 15"); a("s_and_b32 s26, s21, 1"); a("s_lshr_b32 s27, s21, 1")
    a("s_cmp_lt_u32 s20, 16"); a("s_cbranch_scc0 L_isU")
    mk_srd(a,8,'Wq',60); mk_srd(a,12,'Wk',62); a("s_branch L_srd")
    a.label("L_isU"); mk_srd(a,8,'Wv',64); mk_srd(a,12,'Wo',66)
    a.label("L_srd")
    BF=64; T=128
    a("s_lshl_b32 s24, s27, 2"); a("s_add_u32 s24, s24, s22"); a("s_cmp_lt_u32 s24, 14"); a("s_cselect_b32 s25, 1, 0")
    a("v_and_b32 v20, 31, v1"); a("v_lshrrev_b32 v21, 5, v1")
    if fused:
        a(f"v_mov_b32 v3, {L_CNT}"); a("v_mov_b32 v4, 0"); a("v_mov_b32 v5, 0"); a("v_mov_b32 v6, 0"); a("v_mov_b32 v7, 0"); a("ds_write_b128 v3, v[4:7]"); a("s_waitcnt lgkmcnt(0)")
    if fused and CK.NONCE:
        le=a.newlabel("L_ef")
        a("s_cmp_lt_u32 s22, 2"); a(f"s_cbranch_scc0 {le}")
        a("v_lshlrev_b32 v12, 4, v0")
        for r in range(16,20): a(f"v_mov_b32 v{r}, -1")
        for (o,n,val) in REGC:
            if val==0: continue
            n=(n+2047)//2048*2048
            lab=a.newlabel("L_pz")
            a(f"s_lshl_b32 s28, s2, 11"); a(f"s_add_u32 s28, s28, {o}")
            a.label(lab)
            a(f"s_cmp_lt_u32 s28, {o+n}"); a(f"s_cbranch_scc0 {lab}_e")
            a(f"buffer_store_dwordx4 v[16:19], v12, {W}, s28 offen sc1")
            a(f"s_add_u32 s28, s28, {256*2048}"); a(f"s_branch {lab}")
            a.label(lab+"_e")
        a("s_cmp_eq_u32 s2, 100"); a(f"s_cbranch_scc0 {le}")
        mk_srd(a,52,'mem0',74)
        for part in range(4):
            a(f"v_add_u32 v13, {128*part}, v0")
            a("v_cmp_gt_u32 vcc, 448, v13"); a("s_and_saveexec_b64 s[30:31], vcc")
            a("v_and_b32 v14, 7, v13"); a("v_mul_u32_u24 v14, 896, v14"); a("v_lshrrev_b32 v15, 3, v13"); a("v_lshlrev_b32 v15, 4, v15"); a("v_add_u32 v14, v14, v15")
            a(f"buffer_load_dwordx4 v[16:19], v14, {S4(52)}, 0 offen"); a("s_waitcnt vmcnt(0)")
            a("v_lshlrev_b32 v15, 4, v13"); a(f"s_mov_b32 s28, {LY.MEM}"); a(f"buffer_store_dwordx4 v[16:19], v15, {W}, s28 offen sc1")
            a(f"s_mov_b32 s28, {LY.MEMX}"); a(f"buffer_store_dwordx4 v[16:19], v15, {W}, s28 offen sc1"); a("s_nop 1")
            a("s_mov_b64 exec, s[30:31]")
        a.label(le)
    a("s_cmp_eq_u32 s22, 3"); a("s_cbranch_scc0 L_nox")
    a("v_and_b32 v3, 7, v1"); a("v_lshrrev_b32 v4, 3, v1"); a("s_and_b32 s28, s2, 3"); a("s_lshl_b32 s28, s28, 3"); a("v_add_u32 v5, s28, v3")
    a("v_mul_u32_u24 v6, 896, v5"); a("v_lshlrev_b32 v7, 4, v4"); a("v_add_u32 v6, v6, v7"); a("s_lshr_b32 s29, s2, 2"); a("s_mul_i32 s29, s29, 28672")
    for i in range(7): a(f"buffer_load_dwordx4 {ar(4*i,4)}, v6, {S4(44)}, s29 offen offset:{128*i}")
    a.label("L_nox")
    a("s_cmp_ge_u32 s2, 192"); a("s_cbranch_scc0 L_nomod"); a(f"s_cmp_lt_u32 s2, 234"); a("s_cbranch_scc0 L_nomod"); a("s_cmp_ge_u32 s22, 2"); a("s_cbranch_scc0 L_nomod")
    mk_srd(a,56,'wmod',70); mk_srd(a,40,'c',72)
    a("s_sub_u32 s37, s2, 192"); a("s_lshl_b32 s37, s37, 1"); a("s_add_u32 s37, s37, s22"); a("s_sub_u32 s37, s37, 2")
    a("v_and_b32 v30, 3, v1"); a("v_lshrrev_b32 v31, 2, v1"); a("v_mul_u32_u24 v32, 56, v31")
    M0=192
    for j in range(14): a(f"buffer_load_dword v{M0+j}, v32, {S4(40)}, 0 offen offset:{4*j}")
    a("v_mul_u32_u24 v33, 28, v31"); a("s_movk_i32 s38, 5376"); a("v_mul_lo_u32 v33, v33, s38"); a("v_lshlrev_b32 v34, 4, v30"); a("v_add_u32 v33, v33, v34")
    a("s_lshl_b32 s39, s37, 6")
    MW=64
    for j in range(28):
        a(f"buffer_load_dwordx4 {vr(MW+4*j,4)}, v33, {S4(56)}, s39 offen"); a("s_add_u32 s39, s39, 5376")
    a("s_waitcnt vmcnt(28)")
    SV=208
    for j in range(28):
        r=SV+j
        (unpack_lo if j%2==0 else unpack_hi)(a,r,M0+j//2)
        a(f"v_mul_f32 v35, 0xbfb8aa3b, v{r}"); a("v_exp_f32 v35, v35"); a("s_nop 0"); a("v_add_f32 v35, 1.0, v35"); a("v_rcp_f32 v35, v35"); a("s_nop 0")
        a(f"v_mul_f32 v{r}, v{r}, v35"); a(f"v_cvt_pk_bf16_f32 v{r}, v{r}, v{r}"); a(f"v_lshlrev_b32 v{r}, 16, v{r}")
    for r in range(40,48): a(f"v_mov_b32 v{r}, 0")
    for j in range(28):
        a(f"s_waitcnt vmcnt({27-j})")
        for q in range(4):
            a(f"v_lshlrev_b32 v36, 16, v{MW+4*j+q}"); a(f"v_and_b32 v37, 0xffff0000, v{MW+4*j+q}")
            a(f"v_fmac_f32 v{40+2*q}, v36, v{SV+j}"); a(f"v_fmac_f32 v{41+2*q}, v37, v{SV+j}")
    for r in range(40,48):
        a("s_nop 1"); a(f"v_add_f32_dpp v{r}, v{r}, v{r} row_ror:4 row_mask:0xf bank_mask:0xf"); xred(a,"v_add_f32",r,48)
    for r in range(40,48): a(f"v_cvt_pk_bf16_f32 v{r}, v{r}, v{r}"); a(f"v_lshlrev_b32 v{r}, 16, v{r}")
    a("v_lshlrev_b32 v50, 5, v30"); a("s_lshl_b32 s38, s37, 7"); a(f"s_add_u32 s38, s38, {LY.MOD}")
    a("s_mov_b64 exec, 0xf"); a(f"buffer_store_dwordx4 v[40:43], v50, {W}, s38 offen sc1"); a(f"buffer_store_dwordx4 v[44:47], v50, {W}, s38 offen offset:16 sc1"); a("s_mov_b64 exec, -1")
    a("s_waitcnt vmcnt(0)")
    if fused and CK.NONCE:
        get_nonce(a, S4(48), 56, 38, 40)
        a("s_lshl_b32 s38, s37, 2"); a(f"s_add_u32 s38, s38, {LY.MODF}"); set_flag(a, W, 38, 53, 54)
    else:
        a("s_mov_b64 exec, 1"); a("v_mov_b32 v53, 1"); a("v_mov_b32 v54, 0"); a(f"s_mov_b32 s38, {LY.MODC}"); a(f"buffer_atomic_add v53, v54, {W if fused else S4(48)}, "+("s38" if fused else "0")+" offen sc1"); a("s_mov_b64 exec, -1")
    a.label("L_nomod")
    a("s_cmp_eq_u32 s25, 0"); a("s_cbranch_scc1 L_noB0")
    a("s_cmp_lt_u32 s20, 16"); a("s_cbranch_scc0 L_BU0")
    a("v_lshlrev_b32 v22, 13, v20"); a("v_lshlrev_b32 v23, 4, v21"); a("v_add_u32 v22, v22, v23")
    a("s_lshl_b32 s35, s24, 18"); a("s_lshl_b32 s33, s23, 9"); a("s_add_u32 s35, s35, s33")
    for kk in range(16): a(f"buffer_load_dwordx4 {vr(BF+4*kk,4)}, v22, {S4(12)}, s35 offen offset:{kk*32} {NT}")
    a("s_branch L_noB0")
    a.label("L_BU0")
    a("v_lshrrev_b32 v24, 2, v1"); a("v_and_b32 v25, 3, v1")
    a("v_mul_u32_u24 v26, 896, v24"); a("v_lshlrev_b32 v27, 4, v25"); a("v_add_u32 v26, v26, v27")
    a(f"v_mul_u32_u24 v28, {PITCH}, v24"); a("v_add_u32 v28, v28, v27"); a(f"s_mul_i32 s36, s22, 8192"); a(f"s_add_u32 s36, s36, {LW}"); a("v_add_u32 v28, s36, v28")
    a(f"s_mul_i32 s35, s23, {256*896}"); a("s_lshl_b32 s33, s24, 6"); a("s_add_u32 s35, s35, s33")
    for i in range(16):
        a(f"buffer_load_dwordx4 {vr(T+4*i,4)}, v26, {S4(12)}, s35 offen {NT}"); a(f"s_add_u32 s35, s35, {16*896}")
    a.label("L_noB0")
    a("s_lshr_b32 s28, s22, 1"); a("s_lshl_b32 s28, s28, 5"); a("s_and_b32 s29, s22, 1"); a("s_lshl_b32 s30, s29, 1"); a("s_add_u32 s28, s28, s30")
    a("s_lshl_b32 s29, s29, 3")
    for jj in range(4):
        a(f"v_add_u32 v24, {8*(jj&1)+4*(jj>>1)}, v21"); a("v_add_u32 v24, s28, v24"); a("v_lshlrev_b32 v24, 13, v24")
        a(f"v_add_u32 v25, {2*jj}, v21"); a("v_add_u32 v25, s29, v25"); a("v_xor_b32 v25, v25, v20"); a("v_lshlrev_b32 v25, 4, v25"); a(f"v_add_u32 v{8+jj}, v24, v25")
    for i in range(7):
        a(f"s_lshl_b32 s28, s27, 1"); a(f"s_add_u32 s28, s28, {i}"); a("s_cmp_ge_u32 s28, 7"); a("s_cselect_b32 s29, 7, 0"); a("s_sub_u32 s28, s28, s29")
        a(f"s_lshl_b32 s{52+i}, s28, 6")
        a("s_mul_i32 s29, s26, 7"); a("s_add_u32 s28, s28, s29")
        a("s_lshr_b32 s29, s28, 1"); a("s_lshl_b32 s29, s29, 6"); a("s_and_b32 s30, s28, 1"); a("s_lshl_b32 s30, s30, 4"); a("s_add_u32 s29, s29, s30")
        a("s_lshl_b32 s29, s29, 13"); a("s_lshl_b32 s30, s23, 9"); a("s_add_u32 s32, s29, s30")
        a("s_lshl_b32 s31, s22, 12"); a(f"s_add_u32 s31, s31, {LA+i*16384}")
        ld=a.newlabel("L_da")
        a("s_cmp_eq_u32 s25, 0"); a(f"s_cbranch_scc1 {ld}")
        for jj in range(4):
            a("s_mov_b32 m0, s31"); a("s_add_u32 s31, s31, 1024")
            a(f"buffer_load_dwordx4 v{8+jj}, {S4(8)}, s32 offen {NT} lds")
        a("s_cmp_eq_u32 s27, 3"); a(f"s_cbranch_scc0 {ld}")
        a("s_add_u32 s31, s31, 4096"); a(f"s_add_u32 s32, s32, {32*8192}")
        for jj in range(4):
            a("s_mov_b32 m0, s31"); a("s_add_u32 s31, s31, 1024")
            a(f"buffer_load_dwordx4 v{8+jj}, {S4(8)}, s32 offen {NT} lds")
        a.label(ld)
    stp(1)
    a("v_lshlrev_b32 v12, 4, v0")
    nfill=0
    FILLMAX=0
    for (o,n,val) in REG:
        n=(n+4095)//4096*4096; FILLMAX+= (n//4096+255)//256
    a("s_cmp_eq_u32 s25, 0"); a("s_cbranch_scc1 L_noB"); a("s_cmp_lt_u32 s20, 16"); a("s_cbranch_scc1 L_noB")
    a("v_and_b32 v24, 15, v1"); a("v_lshrrev_b32 v25, 2, v24"); a("v_lshlrev_b32 v27, 3, v21"); a("v_add_u32 v25, v25, v27")
    a(f"v_mul_u32_u24 v29, {PITCH}, v25"); a("v_and_b32 v25, 3, v24"); a("v_lshlrev_b32 v25, 3, v25"); a("v_add_u32 v29, v29, v25")
    a("v_bfe_u32 v25, v1, 4, 1"); a("v_lshlrev_b32 v25, 5, v25"); a("v_add_u32 v29, v29, v25"); a("v_add_u32 v29, s36, v29")
    for half in range(2):
        for i in range(8):
            lq=a.newlabel("L_uw")
            a("s_cmp_eq_u32 s27, 3"); a(f"s_cbranch_scc1 {lq}"); a(f"s_waitcnt vmcnt({28+15-(half*8+i)})"); a(f"s_branch {lq}_e")
            a.label(lq); a(f"s_waitcnt vmcnt({min(63,56+15-(half*8+i))})"); a.label(lq+"_e")
            a(f"ds_write_b128 v28, {vr(T+4*(half*8+i),4)} offset:{i*16*PITCH}")
        a("s_waitcnt lgkmcnt(0)")
        for k8 in range(8):
            kk=half*8+k8
            a(f"ds_read_b64_tr_b16 {vr(BF+4*kk,2)}, v29 offset:{16*k8*PITCH}"); a(f"ds_read_b64_tr_b16 {vr(BF+4*kk+2,2)}, v29 offset:{(16*k8+4)*PITCH}")
        a("s_waitcnt lgkmcnt(0)")
    a.label("L_noB")
    a("v_and_b32 v22, 15, v20"); a("v_lshlrev_b32 v23, 9, v20")
    for k8 in range(8):
        a(f"v_add_u32 v24, {2*k8}, v21"); a("v_xor_b32 v24, v24, v22"); a("v_lshlrev_b32 v24, 4, v24"); a(f"v_add_u32 v{32+k8}, v23, v24")
    a("s_cmp_lt_u32 s20, 16"); a(f"s_cselect_b32 s38, {f2u(SC):#x}, 1.0"); a("s_cselect_b32 s39, 0, 7168")
    a("s_mul_i32 s33, s23, 448"); a("s_add_u32 s39, s39, s33"); a("s_lshl_b32 s33, s24, 5"); a("s_add_u32 s39, s39, s33"); a("s_mul_i32 s39, s39, 896"); a(f"s_add_u32 s39, s39, {LY.WP}")
    a("s_mul_i32 s33, s26, 448"); a("s_add_u32 s39, s39, s33")
    a("s_lshl_b32 s34, s22, 11"); a(f"s_add_u32 s34, s34, {L_OUT}")
    a("v_lshlrev_b32 v56, 6, v20"); a("v_lshlrev_b32 v24, 5, v21"); a("v_add_u32 v56, v56, v24"); a("v_add_u32 v56, s34, v56")
    a("v_lshlrev_b32 v57, 4, v1"); a("v_add_u32 v57, s34, v57")
    a("v_lshrrev_b32 v58, 2, v1"); a("v_mul_u32_u24 v58, 896, v58"); a("v_and_b32 v24, 3, v1"); a("v_lshlrev_b32 v24, 4, v24"); a("v_add_u32 v58, v58, v24")
    ACC=[128,144]; AB=40; PK=160; RB=168
    nst=0
    def epilogue(i):
        o=[]; ac=ACC[i&1]
        for r in range(0,16,2): o.append(f"v_pk_mul_f32 {vr(ac+r,2)}, {vr(ac+r,2)}, s[38:39] op_sel_hi:[1,0]")
        for r in range(8): o.append(f"v_cvt_pk_bf16_f32 v{PK+r}, v{ac+2*r}, v{ac+2*r+1}")
        o.append(f"ds_write_b128 v56, {vr(PK,4)}"); o.append(f"ds_write_b128 v56, {vr(PK+4,4)} offset:16")
        for r in range(16): o.append(f"v_mov_b32 v{ac+r}, 0")
        return o
    def epilogue2(i):
        return [f"ds_read_b128 {vr(RB,4)}, v57", f"ds_read_b128 {vr(RB+4,4)}, v57 offset:1024", "s_waitcnt lgkmcnt(0)",
                f"s_add_u32 s40, s39, s{52+i}", f"s_add_u32 s41, s40, {16*896}",
                f"buffer_store_dwordx4 {vr(RB,4)}, v58, {W}, s40 offen {st}", f"buffer_store_dwordx4 {vr(RB+4,4)}, v58, {W}, s41 offen {st}"]
    for r in range(128,160): a(f"v_mov_b32 v{r}, 0")
    a("s_cmp_eq_u32 s25, 0"); a("s_cbranch_scc1 L_idle")
    AD=[32,176]
    for k in range(8): a(f"v_add_u32 v{176+k}, 16384, v{32+k}")
    lds=[]
    def issue(tag, ins): a(ins); lds.append(tag)
    def need(tag):
        idx=len(lds)-1-lds[::-1].index(tag); n=len(lds)-1-idx
        a(f"s_waitcnt lgkmcnt({min(n,15)})")
    flat=[(i,n) for i in range(7) for n in range(16)]
    nstores=[0]
    def sync_tile(i):
        lq=a.newlabel("L_sw")
        a("s_cmp_eq_u32 s27, 3"); a(f"s_cbranch_scc1 {lq}"); a(f"s_waitcnt vmcnt({4*(6-i)+nstores[0]})"); a(f"s_branch {lq}_e")
        a.label(lq); a(f"s_waitcnt vmcnt({min(63,8*(6-i)+nstores[0])})"); a.label(lq+"_e")
        a("s_barrier")
    def rd(q):
        i,n=flat[q]
        issue(("r",q), f"ds_read_b128 {vr(AB+4*(q%4),4)}, v{AD[i&1]+(n&7)} offset:{(n>>3)*256}")
    sync_tile(0); stp(4)
    for q in range(3): rd(q)
    pend=[]
    for q,(i,n) in enumerate(flat):
        if q+3<len(flat):
            i3,n3=flat[q+3]
            if n3==0: sync_tile(i3)
            rd(q+3)
            if n3==15 and i3+2<=6:
                for k in range(8): pend.append(("i", f"v_add_u32 v{AD[i3&1]+k}, 32768, v{AD[i3&1]+k}"))
        need(("r",q))
        a(f"v_mfma_f32_32x32x16_bf16 {vr(ACC[i&1],16)}, {vr(AB+4*(q%4),4)}, {vr(BF+4*n,4)}, {vr(ACC[i&1],16)}")
        if n==4 and i>0:
            j=i-1; ac=ACC[j&1]
            for r in range(0,16,2): pend.append(("i", f"v_pk_mul_f32 {vr(ac+r,2)}, {vr(ac+r,2)}, s[38:39] op_sel_hi:[1,0]"))
            for r in range(8): pend.append(("i", f"v_cvt_pk_bf16_f32 v{PK+r}, v{ac+2*r}, v{ac+2*r+1}"))
            pend.append(("l",("w",j,0), f"ds_write_b128 v56, {vr(PK,4)}")); pend.append(("l",("w",j,1), f"ds_write_b128 v56, {vr(PK+4,4)} offset:16"))
            for r in range(16): pend.append(("i", f"v_mov_b32 v{ac+r}, 0"))
            pend.append(("l",("b",j,0), f"ds_read_b128 {vr(RB,4)}, v57")); pend.append(("l",("b",j,1), f"ds_read_b128 {vr(RB+4,4)}, v57 offset:1024"))
            pend.append(("st",j))
        k=0
        while pend and k<3:
            it=pend[0]
            if it[0]=="st":
                if n<2 and False: break
                pend.pop(0); j=it[1]
                need(("b",j,1))
                a(f"s_add_u32 s40, s39, s{52+j}"); a(f"s_add_u32 s41, s40, {16*896}")
                a(f"buffer_store_dwordx4 {vr(RB,4)}, v58, {W}, s40 offen {st}"); a(f"buffer_store_dwordx4 {vr(RB+4,4)}, v58, {W}, s41 offen {st}")
                nstores[0]+=2; k=3
            elif it[0]=="l": pend.pop(0); issue(it[1],it[2]); k+=1
            else: pend.pop(0); a(it[1]); k+=1
    while pend:
        it=pend.pop(0)
        if it[0]=="st":
            j=it[1]; need(("b",j,1)); a(f"s_add_u32 s40, s39, s{52+j}"); a(f"s_add_u32 s41, s40, {16*896}")
            a(f"buffer_store_dwordx4 {vr(RB,4)}, v58, {W}, s40 offen {st}"); a(f"buffer_store_dwordx4 {vr(RB+4,4)}, v58, {W}, s41 offen {st}")
        elif it[0]=="l": issue(it[1],it[2])
        else: a(it[1])
    stp(5)
    a.nop(16)
    for x in epilogue(6): a(x)
    for x in epilogue2(6): a(x)
    stp(6)
    if fused:
        lg=a.newlabel("L_gw")
        a("s_waitcnt vmcnt(0)")
        a(f"v_mov_b32 v3, {L_CNT}"); a("v_mov_b32 v4, 1"); a("s_mov_b64 exec, 1"); a("ds_add_rtn_u32 v5, v3, v4"); a("s_waitcnt lgkmcnt(0)"); a("s_mov_b64 exec, -1")
        a("v_readfirstlane_b32 s28, v5"); a("s_cmp_eq_u32 s27, 3"); a("s_cselect_b32 s29, 1, 3"); a("s_cmp_eq_u32 s28, s29"); a(f"s_cbranch_scc0 {lg}")
        if CK.NONCE:
            get_nonce(a, S4(48), 6, 30, 40)
            a("s_lshl_b32 s28, s20, 3"); a("s_add_u32 s28, s28, s21"); a("s_lshl_b32 s28, s28, 2"); a(f"s_add_u32 s28, s28, {LY.GWF}"); set_flag(a, W, 28, 4, 3)
        else:
            a("s_lshl_b32 s28, s20, 7"); a(f"s_add_u32 s28, s28, {LY.GWC}"); a("v_mov_b32 v3, 0"); a("s_mov_b64 exec, 1"); a(f"buffer_atomic_add v4, v3, {W}, s28 offen sc1"); a("s_mov_b64 exec, -1")
        a.label(lg)
    a("s_branch L_ln")
    a.label("L_idle")
    for i in range(7): a("s_barrier")
    a.label("L_ln")
    a("s_cmp_eq_u32 s22, 3"); a("s_cbranch_scc0 L_fill")
    if fused and CK.NONCE:
        get_nonce(a, S4(48), 6, 30, 40)
        a(f"s_mov_b32 s33, {LY.MODF}"); wait_flags(a, W, 33, NM, 9, 10, "v_mov_b32 v9, v1", 30, sleep=2)
    else:
        a("v_mov_b32 v9, 0"); a("s_mov_b32 s30, 0")
        a.label("L_wm")
        a(f"s_mov_b32 s33, {LY.MODC}"); a(f"buffer_load_dword v10, v9, {W if fused else S4(48)}, "+("s33" if fused else "0")+" offen sc1"); a("s_waitcnt vmcnt(0)"); a("v_readfirstlane_b32 s31, v10"); a("s_nop 3")
        a(f"s_cmp_ge_u32 s31, {NM}"); a("s_cbranch_scc1 L_wm_ok"); a("s_sleep 2"); a("s_add_u32 s30, s30, 1"); a(f"s_cmp_lt_u32 s30, {POLL_MAX}"); a("s_cbranch_scc1 L_wm")
        a.label("L_wm_ok")
    a("v_and_b32 v3, 7, v1"); a("v_lshrrev_b32 v4, 3, v1"); a("s_and_b32 s28, s2, 3"); a("s_lshl_b32 s28, s28, 3"); a("v_add_u32 v5, s28, v3")
    a("s_lshr_b32 s29, s2, 2"); a("s_mul_i32 s29, s29, 28672")
    a("v_lshlrev_b32 v8, 5, v4"); a(f"s_mov_b32 s31, {LY.MOD}"); a(f"s_mov_b32 s32, {LY.MOD+448*4}")
    for i in range(7):
        a(f"buffer_load_dwordx4 {vr(128+8*i,4)}, v8, {W}, s31 offen offset:{256*i} sc1"); a(f"buffer_load_dwordx4 {vr(128+8*i+4,4)}, v8, {W}, s31 offen offset:{256*i+16} sc1")
        a(f"buffer_load_dwordx4 {vr(192+8*i,4)}, v8, {W}, s32 offen offset:{256*i} sc1"); a(f"buffer_load_dwordx4 {vr(192+8*i+4,4)}, v8, {W}, s32 offen offset:{256*i+16} sc1")
    X=64
    for i in range(7):
        for q in range(4):
            a(f"v_accvgpr_read_b32 v{32+4*i+q}, a{4*i+q}")
    for i in range(7):
        for q in range(4): unpack_lo(a,X+8*i+2*q,32+4*i+q); unpack_hi(a,X+8*i+2*q+1,32+4*i+q)
    ln_stats(a,X,56,10,12,13)
    a("s_waitcnt vmcnt(0)")
    for k in range(56):
        a(f"v_mul_f32 v{X+k}, v{X+k}, v11"); a(f"v_add_f32 v{192+k}, 1.0, v{192+k}"); a(f"v_fma_f32 v{X+k}, v{X+k}, v{192+k}, v{128+k}")
    for i in range(7):
        for q in range(4): a(f"v_cvt_pk_bf16_f32 v{32+4*i+q}, v{X+8*i+2*q}, v{X+8*i+2*q+1}")
    a("v_lshlrev_b32 v14, 9, v4"); a("v_lshlrev_b32 v15, 4, v5"); a("v_add_u32 v14, v14, v15")
    a(f"s_add_u32 s33, s29, {LY.HFRAG}")
    for i in range(7): a(f"buffer_store_dwordx4 {vr(32+4*i,4)}, v14, {W}, s33 offen {st}"); a("s_add_u32 s33, s33, 4096")
    a("v_lshrrev_b32 v16, 2, v4"); a("v_lshlrev_b32 v16, 9, v16"); a("v_bfe_u32 v17, v4, 1, 1"); a("v_lshlrev_b32 v17, 11, v17"); a("v_add_u32 v16, v16, v17")
    a("v_and_b32 v17, 1, v4"); a("v_lshlrev_b32 v18, 10, v17"); a("v_add_u32 v16, v16, v18"); a("v_add_u32 v16, v16, v15")
    a("v_cmp_eq_u32 vcc, 1, v17")
    a(f"s_add_u32 s33, s29, {LY.HPERM}")
    for i in range(7):
        d=32+4*i; t=64+8*i
        a(f"v_cndmask_b32 v{t}, v{d+2}, v{d}, vcc"); a(f"v_cndmask_b32 v{t+1}, v{d+3}, v{d+1}, vcc")
        a(f"v_cndmask_b32 v{t+2}, v{d}, v{d+2}, vcc"); a(f"v_cndmask_b32 v{t+3}, v{d+1}, v{d+3}, vcc")
        a(f"v_mov_b32_dpp v{t+4}, v{t} row_ror:8 row_mask:0xf bank_mask:0xf"); a(f"v_mov_b32_dpp v{t+5}, v{t+1} row_ror:8 row_mask:0xf bank_mask:0xf")
        a(f"v_cndmask_b32 v{d}, v{t+2}, v{t+4}, vcc"); a(f"v_cndmask_b32 v{d+1}, v{t+4}, v{t+2}, vcc")
        a(f"v_cndmask_b32 v{d+2}, v{t+3}, v{t+5}, vcc"); a(f"v_cndmask_b32 v{d+3}, v{t+5}, v{t+3}, vcc")
    for i in range(7):
        a(f"buffer_store_dwordx4 {vr(32+4*i,4)}, v16, {W}, s33 offen {st}"); a("s_add_u32 s33, s33, 4096")
    a.label("L_fill")
    a("v_lshlrev_b32 v12, 4, v0")
    def fills(regs):
        for (o,n,val) in regs:
            n=(n+4095)//4096*4096
            lab=a.newlabel("L_pz")
            for r in range(16,20): a(f"v_mov_b32 v{r}, {val}")
            a(f"s_lshl_b32 s28, s2, 12"); a(f"s_add_u32 s28, s28, {o}")
            a.label(lab)
            a(f"s_cmp_lt_u32 s28, {o+n}"); a(f"s_cbranch_scc0 {lab}_e")
            a(f"buffer_store_dwordx4 v[16:19], v12, {W}, s28 offen {st}")
            a(f"s_add_u32 s28, s28, {256*4096}"); a(f"s_branch {lab}")
            a.label(lab+"_e"); a("s_nop 1")
    def signal(ldsoff, dbgoff):
        lg=a.newlabel("L_sg")
        a("s_waitcnt vmcnt(0)")
        a(f"v_mov_b32 v3, {L_CNT+ldsoff}"); a("v_mov_b32 v4, 1"); a("s_mov_b64 exec, 1"); a("ds_add_rtn_u32 v5, v3, v4"); a("s_waitcnt lgkmcnt(0)"); a("s_mov_b64 exec, -1")
        a("v_readfirstlane_b32 s28, v5"); a("s_nop 3"); a("s_cmp_eq_u32 s28, 3"); a(f"s_cbranch_scc0 {lg}")
        a("s_and_b32 s28, s2, 7"); a("s_lshl_b32 s28, s28, 7"); a(f"s_add_u32 s28, s28, {LY.LNCC}"); a("v_mov_b32 v3, 0"); a("s_mov_b64 exec, 1"); a(f"buffer_atomic_add v4, v3, {W}, s28 offen sc1"); a("s_mov_b64 exec, -1")
        a.label(lg)
    if not fused:
        fills(REGC)
    def mem0():
        a("s_cmp_eq_u32 s2, 100"); a("s_cbranch_scc0 L_nomem0")
        mk_srd(a,52,'mem0',74)
        for half in range(2):
            a(f"v_add_u32 v13, {256*half}, v0")
            a("v_cmp_gt_u32 vcc, 448, v13"); a("s_and_saveexec_b64 s[24:25], vcc")
            a("v_and_b32 v14, 7, v13"); a("v_mul_u32_u24 v14, 896, v14"); a("v_lshrrev_b32 v15, 3, v13"); a("v_lshlrev_b32 v15, 4, v15"); a("v_add_u32 v14, v14, v15")
            a(f"buffer_load_dwordx4 v[16:19], v14, {S4(52)}, 0 offen"); a("s_waitcnt vmcnt(0)")
            a("v_lshlrev_b32 v15, 4, v13"); a(f"s_mov_b32 s28, {LY.MEM}"); a(f"buffer_store_dwordx4 v[16:19], v15, {W}, s28 offen {st}")
            a(f"s_mov_b32 s28, {LY.MEMX}"); a(f"buffer_store_dwordx4 v[16:19], v15, {W}, s28 offen {st}"); a("s_nop 1")
            a("s_mov_b64 exec, s[24:25]")
        a.label("L_nomem0")
    if not fused:
        mem0(); fills(REGL)
    else:
        lg=a.newlabel("L_ls")
        a("s_cmp_eq_u32 s22, 3"); a(f"s_cbranch_scc0 {lg}")
        a("s_waitcnt vmcnt(0)")
        if CK.NONCE:
            a("s_lshl_b32 s28, s2, 2"); a(f"s_add_u32 s28, s28, {LY.LNF}"); set_flag(a, W, 28, 4, 3)
        else:
            a("s_and_b32 s28, s2, 7"); a("s_lshl_b32 s28, s28, 7"); a(f"s_add_u32 s28, s28, {LY.LNCC}"); a("v_mov_b32 v3, 0"); a("v_mov_b32 v4, 1"); a("s_mov_b64 exec, 1"); a(f"buffer_atomic_add v4, v3, {W}, s28 offen sc1"); a("s_mov_b64 exec, -1")
        a.label(lg)
    if not fused: a("s_waitcnt vmcnt(0)")
    stp(7)
    if ST:
        for k in range(6): a(f"v_mov_b32 v{20+k}, s{80+2*k}")
        a("v_mov_b32 v26, s22"); a("v_mov_b32 v27, s25")
        a("s_lshl_b32 s28, s2, 2"); a("s_add_u32 s28, s28, s22"); a("s_lshl_b32 s28, s28, 5"); a(f"s_add_u32 s28, s28, {LY.DBGS+(1<<19)+(1<<18)}"); a("v_mov_b32 v30, 0"); a("s_mov_b64 exec, 1")
        a(f"buffer_store_dwordx4 v[20:23], v30, {W}, s28 offen"); a(f"buffer_store_dwordx4 v[24:27], v30, {W}, s28 offen offset:16"); a("s_mov_b64 exec, -1"); a("s_waitcnt vmcnt(0)")
def gen_k0():
    a=Asm()
    a("s_cmp_lt_u32 s2, 256"); a("s_cbranch_scc0 L_end")
    k0_body(a,84,"",False,0)
    a.label("L_end")
    return a.text()
if __name__=="__main__": print(len(gen_k0().splitlines()))

def gen_init():
    a=Asm()
    a("s_cmp_lt_u32 s2, 256"); a("s_cbranch_scc0 L_end")
    srds(a,[(16,'ws'),(52,'mem0')])
    W=S4(16)
    a("v_lshlrev_b32 v12, 4, v0")
    for (o,n,val) in REG:
        n=(n+4095)//4096*4096
        lab=a.newlabel("L_pz")
        for r in range(16,20): a(f"v_mov_b32 v{r}, {val}")
        a(f"s_lshl_b32 s28, s2, 12"); a(f"s_add_u32 s28, s28, {o}")
        a.label(lab)
        a(f"s_cmp_lt_u32 s28, {o+n}"); a(f"s_cbranch_scc0 {lab}_e")
        a(f"buffer_store_dwordx4 v[16:19], v12, {W}, s28 offen")
        a(f"s_add_u32 s28, s28, {256*4096}"); a(f"s_branch {lab}")
        a.label(lab+"_e"); a("s_nop 1")
    a("s_cmp_eq_u32 s2, 255"); a("s_cbranch_scc0 L_end")
    for half in range(2):
        a(f"v_add_u32 v13, {256*half}, v0")
        a("v_cmp_gt_u32 vcc, 448, v13"); a("s_and_saveexec_b64 s[24:25], vcc")
        a("v_and_b32 v14, 7, v13"); a("v_mul_u32_u24 v14, 896, v14"); a("v_lshrrev_b32 v15, 3, v13"); a("v_lshlrev_b32 v15, 4, v15"); a("v_add_u32 v14, v14, v15")
        a(f"buffer_load_dwordx4 v[16:19], v14, {S4(52)}, 0 offen"); a("s_waitcnt vmcnt(0)")
        a("v_lshlrev_b32 v15, 4, v13"); a(f"s_mov_b32 s28, {LY.MEM}"); a(f"buffer_store_dwordx4 v[16:19], v15, {W}, s28 offen")
        a(f"s_mov_b32 s28, {LY.MEMX}"); a(f"buffer_store_dwordx4 v[16:19], v15, {W}, s28 offen"); a("s_nop 1")
        a("s_mov_b64 exec, s[24:25]")
    a.label("L_end"); a("s_waitcnt vmcnt(0)")
    return a.text()
```

```python
from asmlib import *
import layout as LY
import common_k as CK

WS_BYTES = 268435456
OOB = 0x20000000
S_WS=4; S_DBG=8; S_WAVE=12; S_RANK=13; S_STEP=14; S_MEMOFF=15
S_XCC=20; S_CNT=21; S_FAIL=22; S_EX=24
S_PX=26; S_PM=27; S_XS=28; S_BF=29; S_MF=30; S_MST=31
S_T0=32; S_T1=33; S_T2=34; S_T3=35
POLL_MAX=400000
L_MEM=0; L_STAG=8192; L_SB=15360; L_XS=20480
L_RED=8192; L_U=16384
L_RANK=150000
LDS_BYTES=150016+64

STAMP=False
EXP={}
FUSED=False
SLOW=False
TAG=''
def XST(): return 'sc1' if SLOW else ''
def LB(n): return n+TAG
S_PC=37; S_MC=38; S_MX=39
LANEREG={}
PRESTART=None
VALREGS=(12,13,14,15)
def stamp(a,k):
    if STAMP=='lane':
        if k in LANEREG:
            a("s_memrealtime s[50:51]"); a("s_waitcnt lgkmcnt(0)"); a(f"s_mov_b32 m0, s{S_STEP}"); a("s_nop 0"); a(f"v_writelane_b32 v{LANEREG[k]}, s50, m0")
        return
    if STAMP=='abs':
        lab=a.newlabel("L_as")
        a(f"s_cmp_eq_u32 s{S_STEP}, 30"); a(f"s_cbranch_scc0 {lab}")
        a("s_memrealtime s[50:51]"); a("s_waitcnt lgkmcnt(0)"); a(f"s_mov_b32 s{60+k}, s50")
        a.label(lab); return
    if not STAMP: return
    a("s_memtime s[50:51]"); a("s_waitcnt lgkmcnt(0)")
    a("s_sub_u32 s52, s50, s53"); a(f"s_add_u32 s{60+k}, s{60+k}, s52"); a("s_mov_b32 s53, s50")
def stamp_init(a):
    if STAMP=='lane': return
    if not STAMP: return
    for k in range(16): a(f"s_mov_b32 s{60+k}, 0")
    a("s_memtime s[50:51]"); a("s_waitcnt lgkmcnt(0)"); a("s_mov_b32 s53, s50")
def stamp_out(a):
    if STAMP=='lane':
        a(f"s_lshl_b32 s52, s{S_RANK}, 2"); a(f"s_add_u32 s52, s52, s{S_WAVE}"); a("s_lshl_b32 s52, s52, 10"); a(f"s_add_u32 s52, s52, {LY.DBGS}")
        a("v_lshrrev_b32 v99, 2, v6")
        lab=a.newlabel("L_so")
        a(f"s_cmp_ge_u32 s{S_RANK}, 16"); a(f"s_cbranch_scc1 {lab}")
        for i,r in enumerate((2,1,0,0)): a(f"buffer_store_dword v{r}, v99, s[{S_WS}:{S_WS+3}], s52 offen offset:{256*i}")
        a(f"s_branch {lab}_e")
        a.label(lab)
        for i,r in enumerate(VALREGS): a(f"buffer_store_dword v{r}, v99, s[{S_WS}:{S_WS+3}], s52 offen offset:{256*i}")
        a.label(lab+"_e")
        return
    if not STAMP: return
    a(f"s_lshl_b32 s52, s{S_RANK}, 2"); a(f"s_add_u32 s52, s52, s{S_WAVE}"); a("s_lshl_b32 s52, s52, 6"); a(f"s_add_u32 s52, s52, {LY.MISC}")
    for k in range(16): a(f"v_mov_b32 v{100+k}, s{60+k}")
    a("v_mov_b32 v99, 0")
    a("v_cmp_eq_u32 vcc, 0, v1"); a(f"s_and_saveexec_b64 s[{S_EX}:{S_EX+1}], vcc")
    for k in range(4): a(f"buffer_store_dwordx4 v[{100+4*k}:{103+4*k}], v99, s[{S_WS}:{S_WS+3}], s52 offen offset:{16*k}")
    a(f"s_mov_b64 exec, s[{S_EX}:{S_EX+1}]")

def MINC(): return 2048 if CK.NONCE else 128
def MSIG(W,so): return (f"buffer_store_dword v0, v1, {W}, s{so} offen sc1" if CK.NONCE else f"buffer_atomic_add v0, v1, {W}, s{so} offen sc1")
def srd(a, d, b, n):
    a(f"s_mov_b32 s{d}, s{b}"); a(f"s_and_b32 s{d+1}, s{b+1}, 0xffff"); a(f"s_mov_b32 s{d+2}, {n}"); a(f"s_mov_b32 s{d+3}, 0x20000")

def chk_poison(a, regs, t0, t1):
    regs=list(regs)
    a(f"v_max3_u32 v{t0}, v{regs[0]}, v{regs[1]}, v{regs[2]}")
    rest=regs[3:]
    use=[t1,t0]; first=True
    if len(rest)>=3:
        a(f"v_max3_u32 v{t1}, v{rest[0]}, v{rest[1]}, v{rest[2]}"); rest=rest[3:]
        cur=[t0,t1]; k=0
        while len(rest)>=2:
            a(f"v_max3_u32 v{cur[k]}, v{cur[k]}, v{rest[0]}, v{rest[1]}"); rest=rest[2:]; k^=1
        if rest: a(f"v_max3_u32 v{t0}, v{t0}, v{t1}, v{rest[0]}")
        else: a(f"v_max_u32 v{t0}, v{t0}, v{t1}")
    else:
        for r in rest: a(f"v_max_u32 v{t0}, v{t0}, v{r}")
    a(f"v_cmp_eq_u32 vcc, -1, v{t0}")

def poll_loop(a, loads, regs, t0, t1, sleep=0):
    lab=a.newlabel("L_poll"); ok=lab+"_ok"
    a(f"s_mov_b32 s{S_CNT}, 0")
    a.label(lab)
    for l in loads: a(l)
    a("s_waitcnt vmcnt(0)")
    chk_poison(a, regs, t0, t1)
    a(f"s_cbranch_vccz {ok}")
    if sleep: a(f"s_sleep {sleep}")
    a(f"s_add_u32 s{S_CNT}, s{S_CNT}, 1")
    a(f"s_cmp_lt_u32 s{S_CNT}, {POLL_MAX}")
    a(f"s_cbranch_scc1 {lab}")
    a(f"s_mov_b32 s{S_FAIL}, 1")
    a.label(ok)
    if STAMP is True: a(f"s_add_u32 s{72 if len(loads)==2 else 73}, s{72 if len(loads)==2 else 73}, s{S_CNT}")

def poll2(a, mkloads, sets, nregs, t0, t1, cont, gap):
    lab=a.newlabel("L_p2"); done=lab+"_done"
    n=len(mkloads(sets[0]))
    a(f"s_mov_b32 s{S_CNT}, 0")
    for l in mkloads(sets[0]): a(l)
    if gap: a(f"s_sleep {gap}")
    for l in mkloads(sets[1]): a(l)
    a.label(lab)
    for i in range(2):
        a(f"s_waitcnt vmcnt({n})")
        chk_poison(a, range(sets[i],sets[i]+nregs), t0, t1)
        a(f"s_cbranch_vccz {lab}_ok{i}")
        for l in mkloads(sets[i]): a(l)
    a(f"s_add_u32 s{S_CNT}, s{S_CNT}, 1")
    a(f"s_cmp_lt_u32 s{S_CNT}, {POLL_MAX}")
    a(f"s_cbranch_scc1 {lab}")
    a(f"s_mov_b32 s{S_FAIL}, 1")
    a.label(f"{lab}_ok0"); cont(sets[0]); a(f"s_branch {done}")
    a.label(f"{lab}_ok1"); cont(sets[1])
    a.label(done)

def mem_share2(a, PA, PB, t0, t1, gap):
    W=f"s[{S_WS}:{S_WS+3}]"
    def mk(b): return [f"buffer_load_dwordx4 {vr(b,4)}, v4, {W}, s{S_MEMOFF} offen sc1", f"buffer_load_dwordx4 {vr(b+4,4)}, v5, {W}, s{S_MEMOFF} offen sc1"]
    def cont(b):
        stamp(a,0)
        a(f"ds_write_b128 v4, {vr(b,4)} offset:{L_MEM}")
        a(f"ds_write_b128 v4, {vr(b+4,4)} offset:{L_MEM+4096}")
    poll2(a, mk, [PA,PB], 8, t0, t1, cont, gap)
    a("s_waitcnt lgkmcnt(0)")
    a("s_barrier")
    stamp(a,1)

def mem_share(a, P0, t0, t1, sleep=0):
    poll_loop(a, [f"buffer_load_dwordx4 {vr(P0,4)}, v4, s[{S_WS}:{S_WS+3}], s{S_MEMOFF} offen sc1",
                  f"buffer_load_dwordx4 {vr(P0+4,4)}, v5, s[{S_WS}:{S_WS+3}], s{S_MEMOFF} offen sc1"],
              range(P0,P0+8), t0, t1, sleep)
    stamp(a,0)
    a(f"ds_write_b128 v4, {vr(P0,4)} offset:{L_MEM}")
    a(f"ds_write_b128 v4, {vr(P0+4,4)} offset:{L_MEM+4096}")
    a("s_waitcnt lgkmcnt(0)")
    a("s_barrier")
    stamp(a,1)

def lane_consts(a):
    a("v_lshlrev_b32 v4, 4, v0")
    a("v_add_u32 v5, 4096, v4")
    a(f"v_mov_b32 v2, {OOB}")
    a("v_cmp_gt_u32 vcc, 192, v0")
    a("s_nop 1")
    a("v_cndmask_b32 v5, v2, v5, vcc")
    a("v_lshlrev_b32 v6, 4, v1")
    a("v_and_b32 v2, 8, v1"); a("v_cmp_eq_u32 vcc, 0, v2")
    a("v_mov_b32 v3, 0xeeee"); a("v_mov_b32 v2, 0x4444"); a("s_nop 0")
    a("v_cndmask_b32 v3, v3, v2, vcc")

def common_prologue(a, target_xcc=0, nteam=30):
    a("s_load_dwordx2 s[16:17], s[0:1], 128")
    a("s_load_dwordx2 s[18:19], s[0:1], 120")
    a(f"s_getreg_b32 s{S_XCC}, hwreg(HW_REG_XCC_ID)")
    a(f"s_and_b32 s{S_XCC}, s{S_XCC}, 15")
    a("v_lshrrev_b32 v2, 6, v0")
    a("v_and_b32 v1, 63, v0")
    a("s_waitcnt lgkmcnt(0)")
    srd(a, S_WS, 16, WS_BYTES)
    srd(a, S_DBG, 18, 256)
    a(f"v_readfirstlane_b32 s{S_WAVE}, v2")
    a(f"s_cmp_lt_u32 s2, 256"); a("s_cbranch_scc0 L_exit")
    a(f"s_cmp_eq_u32 s{S_XCC}, {target_xcc}"); a("s_cbranch_scc0 L_exit")
    a(f"s_cmp_eq_u32 s{S_WAVE}, 0"); a("s_cbranch_scc0 L_norank")
    a("v_cmp_eq_u32 vcc, 0, v0"); a(f"s_and_saveexec_b64 s[{S_EX}:{S_EX+1}], vcc")
    a("v_mov_b32 v4, 0"); a("v_mov_b32 v5, 1")
    a(f"buffer_atomic_add v5, v4, s[{S_DBG}:{S_DBG+3}], 0 offen sc0")
    a("s_waitcnt vmcnt(0)")
    a(f"v_mov_b32 v6, {L_RANK}"); a("ds_write_b32 v6, v5"); a("s_waitcnt lgkmcnt(0)")
    a(f"s_mov_b64 exec, s[{S_EX}:{S_EX+1}]")
    a.label("L_norank")
    a("s_barrier")
    a(f"v_mov_b32 v6, {L_RANK}"); a("ds_read_b32 v5, v6"); a("s_waitcnt lgkmcnt(0)")
    a("s_nop 0")
    a(f"v_readfirstlane_b32 s{S_RANK}, v5")
    a(f"s_cmp_lt_u32 s{S_RANK}, {nteam}"); a("s_cbranch_scc0 L_exit")
    a(f"s_mov_b32 s{S_FAIL}, 0")
    lane_consts(a)

def gfrag(fi):
    return ar(8*fi,8) if fi<32 else vr(120+8*(fi-32),8)
def gfrag_half(fi,hh):
    return ar(8*fi+4*hh,4) if fi<32 else vr(120+8*(fi-32)+4*hh,4)

def score_role(a, timing=False, sleep=0, nsteps=63):
    MS=16; ACC=44; BJ=72
    W=f"s[{S_WS}:{S_WS+3}]"
    a("v_and_b32 v16, 15, v1")
    a("v_lshrrev_b32 v17, 4, v1")
    a("v_and_b32 v18, 12, v16"); a("v_and_b32 v19, 1, v16"); a("v_lshlrev_b32 v19, 1, v19")
    a("v_bfe_u32 v20, v16, 1, 1"); a("v_or_b32 v18, v18, v19"); a("v_or_b32 v18, v18, v20")
    a("v_mul_u32_u24 v21, 896, v18"); a("v_lshlrev_b32 v22, 5, v17"); a("v_add_u32 v21, v21, v22")
    a(f"s_mul_i32 s{S_T0}, s{S_RANK}, {448*896}")
    a(f"s_mul_i32 s{S_T1}, s{S_WAVE}, {7*16*896}")
    a(f"s_add_u32 s{S_T0}, s{S_T0}, s{S_T1}")
    a(f"s_add_u32 s{S_T0}, s{S_T0}, {LY.WP}")
    n=0
    for t in range(7):
        for ks in range(7):
            fi=t*7+ks
            for hh in range(2):
                a(f"buffer_load_dwordx4 {gfrag_half(fi,hh)}, v21, {W}, s{S_T0} offen offset:{ks*128+hh*16}")
                n+=1
                if n%32==0: a("s_waitcnt vmcnt(24)")
        a(f"s_add_u32 s{S_T0}, s{S_T0}, {16*896}")
    a("v_lshlrev_b32 v7, 4, v16")
    a("v_and_b32 v22, 1, v17"); a("v_lshlrev_b32 v22, 3, v22"); a("v_add_u32 v7, v7, v22")
    a(f"s_mul_i32 s{S_T1}, s{S_WAVE}, {7*256}"); a(f"s_add_u32 s{S_T1}, s{S_T1}, {L_STAG}")
    a(f"v_add_u32 v8, s{S_T1}, v7")
    a("v_lshrrev_b32 v22, 5, v1"); a("v_lshlrev_b32 v22, 8, v22"); a("v_add_u32 v7, v8, v22")
    a("v_lshlrev_b32 v9, 8, v17"); a("v_lshlrev_b32 v22, 3, v16"); a("v_add_u32 v9, v9, v22"); a(f"v_add_u32 v9, {L_STAG}, v9")
    a("v_lshlrev_b32 v10, 9, v17"); a("v_lshlrev_b32 v22, 4, v16"); a("v_add_u32 v10, v10, v22")
    a(f"s_lshl_b32 s{S_T1}, s{S_WAVE}, 8"); a(f"s_add_u32 s{S_T1}, s{S_T1}, {L_XS}"); a(f"v_add_u32 v10, s{S_T1}, v10")
    a("v_lshlrev_b32 v23, 7, v17"); a("v_and_b32 v22, 7, v16"); a("v_lshlrev_b32 v22, 4, v22"); a("v_add_u32 v23, v23, v22")
    if L_MEM: a(f"v_add_u32 v23, {L_MEM}, v23")
    a(f"s_cmp_eq_u32 s{S_WAVE}, 2"); a("s_cselect_b64 vcc, -1, 0"); a("s_nop 1"); a("v_cndmask_b32 v10, v10, v23, vcc")
    a("v_and_b32 v22, 1, v17"); a("v_lshlrev_b32 v22, 2, v22"); a("v_lshrrev_b32 v23, 5, v1"); a("v_add_u32 v22, v22, v23")
    a("v_mul_u32_u24 v11, 192, v22"); a("v_lshlrev_b32 v22, 2, v16"); a("v_add_u32 v11, v11, v22")
    a(f"s_lshl_b32 s{S_T1}, s{S_WAVE}, 6"); a(f"s_add_u32 s{S_T1}, s{S_T1}, {L_SB}"); a(f"v_add_u32 v11, s{S_T1}, v11")
    a("v_and_b32 v22, 7, v1"); a("v_lshrrev_b32 v23, 3, v1")
    a("v_mul_u32_u24 v12, 192, v23"); a(f"v_add_u32 v12, {L_SB}, v12")
    a("v_lshlrev_b32 v24, 2, v22"); a("v_add_u32 v13, v12, v24"); a("v_add_u32 v13, 128, v13")
    a("v_lshlrev_b32 v24, 4, v22"); a("v_add_u32 v12, v12, v24")
    a("v_lshrrev_b32 v24, 1, v22"); a("v_lshlrev_b32 v24, 3, v24"); a("v_add_u32 v24, v24, v23"); a("v_lshlrev_b32 v14, 4, v24")
    a("v_and_b32 v24, 1, v22"); a("v_lshlrev_b32 v24, 3, v24"); a("v_add_u32 v14, v14, v24")
    a("v_lshlrev_b32 v15, 4, v23"); a("v_lshlrev_b32 v24, 1, v22"); a("v_add_u32 v15, v15, v24")
    a(f"s_mov_b32 s{S_STEP}, 0")
    a(f"s_mov_b32 s{S_MEMOFF}, {LY.MEM}")
    a(f"s_lshl_b32 s{S_PX}, s{S_RANK}, 9"); a(f"s_add_u32 s{S_PX}, s{S_PX}, {LY.PX}")
    a(f"s_lshl_b32 s{S_PM}, s{S_RANK}, 7"); a(f"s_add_u32 s{S_PM}, s{S_PM}, {LY.PM}")
    a(f"s_mov_b32 s{S_XS}, {LY.HFRAG}")
    def xs_dma(nw):
        a(f"s_mul_i32 s{S_T0}, s{S_WAVE}, {7*1024}")
        a(f"s_add_u32 s{S_T1}, s{S_T0}, s{S_XS}")
        a(f"s_add_u32 s{S_T0}, s{S_T0}, {L_XS}")
        a(f"s_mov_b32 m0, s{S_T0}"); a("s_nop 0")
        for i in range(4): a(f"buffer_load_dwordx4 v6, {W}, s{S_T1} offen offset:{i*1024} lds")
        a(f"s_add_u32 s{S_T0}, s{S_T0}, 4096"); a(f"s_add_u32 s{S_T1}, s{S_T1}, 4096")
        a(f"s_mov_b32 m0, s{S_T0}"); a("s_nop 0")
        for i in range(3): a(f"buffer_load_dwordx4 v6, {W}, s{S_T1} offen offset:{i*1024} lds")
    if PRESTART:
        a("s_waitcnt vmcnt(0)"); PRESTART()
    xs_dma(4)
    a("s_waitcnt vmcnt(0)")
    if timing: a("s_memtime s[40:41]")
    stamp_init(a)
    if STAMP=='lane': a("s_memtime s[86:87]"); a("s_memrealtime s[84:85]"); a("s_waitcnt lgkmcnt(0)")
    a.label(LB("L_sstep"))
    for r in range(ACC,ACC+28): a(f"v_mov_b32 v{r}, 0")
    if EXP.get('preA'): a(f"s_sleep {EXP['preA']}")
    ND=EXP.get('dir',0)
    if ND:
        W_=f"s[{S_WS}:{S_WS+3}]"
        loads=[f"buffer_load_dwordx4 {vr(72,4)}, v4, {W_}, s{S_MEMOFF} offen sc1", f"buffer_load_dwordx4 {vr(76,4)}, v5, {W_}, s{S_MEMOFF} offen sc1"]
        loads+=[f"buffer_load_dwordx4 {vr(MS+4*k,4)}, v6, {W_}, s{S_MEMOFF} offen offset:{k*1024} sc1" for k in range(ND)]
        poll_loop(a, loads, list(range(72,80))+list(range(MS,MS+4*ND)), 80, 81, sleep)
        stamp(a,0)
        a(f"ds_write_b128 v4, {vr(72,4)} offset:{L_MEM}"); a(f"ds_write_b128 v4, {vr(76,4)} offset:{L_MEM+4096}")
        for t in range(7): a(f"v_smfmac_f32_16x16x64_bf16 {vr(ACC+4*t,4)}, {vr(MS,4)}, {gfrag(t*7)}, v3")
        a("s_waitcnt lgkmcnt(0)"); a("s_barrier")
        stamp(a,1)
    elif EXP.get('p2A'): mem_share2(a, 72, 84, 80, 81, EXP.get('gapA',2))
    else: mem_share(a, 72, 80, 81, sleep)
    for ks in range(ND,7): a(f"ds_read_b128 {vr(MS+4*ks,4)}, v6 offset:{L_MEM+ks*1024}")
    order=[]
    if ND==2: order+=[(t,1) for t in range(7)]
    k0_=ND if ND else 0
    order+=[(t,ks) for t in range(5) for ks in range(k0_,7)]
    for ks in range(k0_,7): order+= [(5,ks),(6,ks)]
    mains=[]; seen=set()
    for i,(t,ks) in enumerate(order):
        m=f"v_smfmac_f32_16x16x64_bf16 {vr(ACC+4*t,4)}, {vr(MS+4*ks,4)}, {gfrag(t*7+ks)}, v3"
        if ks>=ND and ks not in seen:
            seen.add(ks); m=f"s_waitcnt lgkmcnt({6-ks})\n"+m
        mains.append(m)
    lastidx={}
    for i,(t,ks) in enumerate(order): lastidx[t]=i
    firstfree=max(i for i,(t,ks) in enumerate(order) if t==0)+1
    T0=112+0
    def post_pair(ta,tb,tmp):
        o=[]
        for i in range(4): o.append(f"v_permlane32_swap_b32 v{ACC+4*ta+i}, v{ACC+4*tb+i}")
        for i in range(4): o.append(f"v_add_f32 v{ACC+4*ta+i}, v{ACC+4*ta+i}, v{ACC+4*tb+i}")
        o.append(f"v_cvt_pk_bf16_f32 v{ACC+4*tb}, v{ACC+4*ta}, v{ACC+4*ta+1}")
        o.append(f"v_cvt_pk_bf16_f32 v{ACC+4*tb+1}, v{ACC+4*ta+2}, v{ACC+4*ta+3}")
        o.append(f"ds_write_b64 v7, {vr(ACC+4*tb,2)} offset:{ta*256}")
        return o
    def post_single(t, tmp):
        o=[]
        for i in range(4): o.append(f"v_mov_b32 v{tmp+i}, v{ACC+4*t+i}")
        o.append("s_nop 0")
        for i in range(4): o.append(f"v_permlane32_swap_b32 v{ACC+4*t+i}, v{tmp+i}")
        for i in range(4): o.append(f"v_add_f32 v{ACC+4*t+i}, v{ACC+4*t+i}, v{tmp+i}")
        o.append(f"v_cvt_pk_bf16_f32 v{tmp}, v{ACC+4*t}, v{ACC+4*t+1}")
        o.append(f"v_cvt_pk_bf16_f32 v{tmp+1}, v{ACC+4*t+2}, v{ACC+4*t+3}")
        o.append(f"ds_write_b64 v8, {vr(tmp,2)} offset:{t*256}")
        return o
    fill=[]
    for x in post_pair(0,1,None): fill.append((lastidx[1]+9,x))
    for x in post_pair(2,3,None): fill.append((lastidx[3]+9,x))
    for x in post_single(4, ACC+0): fill.append((lastidx[4]+9,x))
    return_fill=fill
    lab2=a.newlabel("L_t2"); labj=a.newlabel("L_tj")
    a(f"s_cmp_eq_u32 s{S_WAVE}, 2"); a(f"s_cbranch_scc1 {lab2}")
    for variant in (0,1):
        if variant==1: a.label(lab2)
        pre=[(firstfree,"s_waitcnt vmcnt(0)")]
        pstep=2 if not ND else 1
        for ks in range(6):
            if variant==0:
                pre.append((firstfree+1+pstep*ks, f"ds_read_b128 {vr(BJ+8*ks,4)}, v10 offset:{ks*4096}"))
                pre.append((firstfree+1+pstep*ks, f"ds_read_b128 {vr(BJ+8*ks+4,4)}, v10 offset:{ks*4096+2048}"))
            else:
                pre.append((firstfree+1+pstep*ks, f"ds_read_b128 {vr(BJ+8*ks,4)}, v10 offset:{ks*1024}"))
                pre.append((firstfree+1+pstep*ks, f"ds_read_b128 {vr(BJ+8*ks+4,4)}, v10 offset:{ks*1024+512}"))
        if EXP.get('nopre'): pre=[]
        if EXP.get('nofill'):
            rest=interleave(a, mains, pre);
            for _,x in fill: a(x)
        else:
            rest=interleave(a, mains, pre+fill, per_gap=EXP.get('per_gap',3))
            for _,x in rest: a(x)
        stamp(a,2)
        for i in range(4): a(f"v_mov_b32 v{ACC+8+i}, 0")
        if variant==0:
            a(f"ds_read_b128 {vr(ACC,4)}, v10 offset:{6*4096}"); a(f"ds_read_b128 {vr(ACC+4,4)}, v10 offset:{6*4096+2048}")
        else:
            a(f"ds_read_b128 {vr(ACC,4)}, v10 offset:{6*1024}"); a(f"ds_read_b128 {vr(ACC+4,4)}, v10 offset:{6*1024+512}")
        a.nop(2)
        for x in post_pair(5,6,None): a(x)
        a("s_waitcnt lgkmcnt(0)")
        a("s_barrier")
        stamp(a,3)
        if variant==0:
            a(f"s_cmp_eq_u32 s{S_WAVE}, 3"); a("s_cbranch_scc1 "+LB("L_s_w3"))
            a(f"s_branch {labj}")
    a.label(labj)
    for ks in range(7):
        a(f"ds_read_b64_tr_b16 {vr(MS+4*ks,2)}, v9 offset:{ks*1024}")
        a(f"ds_read_b64_tr_b16 {vr(MS+4*ks+2,2)}, v9 offset:{ks*1024+128}")
    for ks in range(7):
        a(f"s_waitcnt lgkmcnt({min(15,2*(6-ks))})")
        b = vr(BJ+8*ks,8) if ks<6 else vr(ACC,8)
        a(f"v_smfmac_f32_16x16x64_bf16 {vr(ACC+8,4)}, {vr(MS+4*ks,4)}, {b}, v3")
    a.nop(8)
    S=ACC+8
    a(f"v_permlane32_swap_b32 v{S}, v{S+1}"); a(f"v_permlane32_swap_b32 v{S+2}, v{S+3}")
    a(f"v_add_f32 v{S}, v{S}, v{S+1}"); a(f"v_add_f32 v{S+2}, v{S+2}, v{S+3}")
    a(f"ds_write_b32 v11, v{S}"); a(f"ds_write_b32 v11, v{S+2} offset:{2*192}")
    a("s_waitcnt lgkmcnt(0)")
    stamp(a,4)
    a("s_barrier")
    stamp(a,5)
    a("s_branch "+LB("L_s_after"))
    a.label(LB("L_s_w3"))
    a("s_barrier")
    stamp(a,5)
    X=72
    a(f"ds_read_b128 {vr(X,4)}, v12"); a(f"ds_read_b32 v{X+4}, v13")
    a("s_waitcnt lgkmcnt(0)")
    a(f"v_max3_f32 v{X+5}, v{X}, v{X+1}, v{X+2}"); a(f"v_max3_f32 v{X+5}, v{X+5}, v{X+3}, v{X+4}")
    def xred(op, r, t):
        a("s_nop 1"); a(f"{op}_dpp v{r}, v{r}, v{r} quad_perm:[1,0,3,2] row_mask:0xf bank_mask:0xf")
        a("s_nop 1"); a(f"{op}_dpp v{r}, v{r}, v{r} quad_perm:[2,3,0,1] row_mask:0xf bank_mask:0xf")
        a("s_nop 1"); a(f"{op}_dpp v{r}, v{r}, v{r} row_half_mirror row_mask:0xf bank_mask:0xf")
    xred("v_max_f32", X+5, X+6)
    for i in range(5): a(f"v_sub_f32 v{X+i}, v{X+i}, v{X+5}")
    for i in range(5): a(f"v_exp_f32 v{X+i}, v{X+i}")
    a("s_nop 0")
    a(f"v_add_f32 v{X+5}, v{X}, v{X+1}"); a(f"v_add_f32 v{X+6}, v{X+2}, v{X+3}"); a(f"v_add_f32 v{X+5}, v{X+5}, v{X+4}"); a(f"v_add_f32 v{X+5}, v{X+5}, v{X+6}")
    xred("v_add_f32", X+5, X+6)
    a(f"v_rcp_f32 v{X+5}, v{X+5}"); a("s_nop 0")
    for i in range(5): a(f"v_mul_f32 v{X+i}, v{X+i}, v{X+5}")
    a(f"v_cvt_pk_bf16_f32 v{X+8}, v{X}, v{X+1}"); a(f"v_cvt_pk_bf16_f32 v{X+9}, v{X+2}, v{X+3}")
    a(f"v_mov_b32_dpp v{X+6}, v{X+4} quad_perm:[1,0,3,2] row_mask:0xf bank_mask:0xf")
    a(f"buffer_store_dwordx2 {vr(X+8,2)}, v14, {W}, s{S_PX} offen {XST()}")
    a(f"v_cvt_pk_bf16_f32 v{X+7}, v{X+4}, v{X+6}")
    a("s_mov_b32 exec_lo, 0x55555555"); a("s_mov_b32 exec_hi, 0x55555555")
    a(f"buffer_store_dword v{X+7}, v15, {W}, s{S_PM} offen {XST()}")
    a("s_mov_b64 exec, -1")
    stamp(a,6)
    a.label(LB("L_s_after"))
    a("s_barrier")
    a(f"s_add_u32 s{S_STEP}, s{S_STEP}, 1")
    a(f"s_add_u32 s{S_MEMOFF}, s{S_MEMOFF}, 7168")
    a(f"s_add_u32 s{S_PX}, s{S_PX}, 8192"); a(f"s_add_u32 s{S_PM}, s{S_PM}, 2048"); a(f"s_add_u32 s{S_XS}, s{S_XS}, 28672")
    a(f"s_cmp_lt_u32 s{S_STEP}, {nsteps}"); a("s_cbranch_scc0 L_fin")
    xs_dma(4)
    stamp(a,7)
    a(f"s_cmp_eq_u32 s{S_FAIL}, 0"); a("s_cbranch_scc1 "+LB("L_sstep"))
    a("s_branch L_fin")

def ufrag(fi):
    if fi<32: return ar(8*fi,8)
    if fi<40: return vr(192+8*(fi-32),8)
    return None
def value_role(a, timing=False, sleep=0, nsteps=64):
    MS=16; ACC=44; UT=76; BF=100; PP=132; MF=152; OA=160; PR=168
    W=f"s[{S_WS}:{S_WS+3}]"
    S_J=36
    a(f"s_sub_u32 s{S_J}, s{S_RANK}, 16")
    a("v_and_b32 v16, 15, v1"); a("v_lshrrev_b32 v17, 4, v1")
    a("v_mul_u32_u24 v21, 896, v16"); a("v_lshlrev_b32 v22, 5, v17"); a("v_add_u32 v21, v21, v22")
    for a2 in range(4):
        for ct in range(2):
            a(f"s_lshl_b32 s{S_T0}, s{S_WAVE}, 2"); a(f"s_add_u32 s{S_T0}, s{S_T0}, {a2}")
            a(f"s_mul_i32 s{S_T0}, s{S_T0}, 448"); a(f"s_lshl_b32 s{S_T1}, s{S_J}, 5"); a(f"s_add_u32 s{S_T0}, s{S_T0}, s{S_T1}")
            a(f"s_add_u32 s{S_T0}, s{S_T0}, {7168+16*ct}"); a(f"s_mul_i32 s{S_T0}, s{S_T0}, 896"); a(f"s_add_u32 s{S_T0}, s{S_T0}, {LY.WP}")
            for ks in range(7):
                fi=(a2*2+ct)*7+ks
                if fi<40:
                    for hh in range(2):
                        dst = ar(8*fi+4*hh,4) if fi<32 else vr(192+8*(fi-32)+4*hh,4)
                        a(f"buffer_load_dwordx4 {dst}, v21, {W}, s{S_T0} offen offset:{ks*128+hh*16}")
                else:
                    for hh in range(2):
                        a(f"s_lshl_b32 s{S_T1}, s{S_WAVE}, 15"); a(f"s_add_u32 s{S_T1}, s{S_T1}, {L_U+(fi-40)*2048+hh*1024}")
                        a(f"s_mov_b32 m0, s{S_T1}"); a(f"s_add_u32 s{S_T2}, s{S_T0}, {ks*128+hh*16}")
                        a(f"buffer_load_dwordx4 v21, {W}, s{S_T2} offen lds")
            a("s_waitcnt vmcnt(30)")
    a(f"s_lshl_b32 s{S_T1}, s{S_WAVE}, 15"); a(f"s_add_u32 s{S_T1}, s{S_T1}, {L_U}"); a(f"v_add_u32 v7, s{S_T1}, v6")
    a("v_lshlrev_b32 v8, 3, v17"); a("v_and_b32 v22, 7, v16"); a("v_add_u32 v8, v8, v22"); a("v_lshlrev_b32 v8, 4, v8")
    a("v_lshrrev_b32 v22, 3, v16"); a("v_lshlrev_b32 v22, 9, v22"); a("v_add_u32 v8, v8, v22")
    a(f"s_lshl_b32 s{S_T1}, s{S_WAVE}, 11"); a(f"s_add_u32 s{S_T1}, s{S_T1}, {L_RED}"); a(f"v_add_u32 v9, s{S_T1}, v6")
    a(f"s_lshl_b32 s{S_T1}, s{S_WAVE}, 10"); a(f"s_add_u32 s{S_T1}, s{S_T1}, {L_RED}"); a(f"v_add_u32 v10, s{S_T1}, v6")
    a("v_lshrrev_b32 v22, 1, v17"); a("v_lshlrev_b32 v11, 7, v22"); a("v_and_b32 v22, 7, v16"); a("v_lshlrev_b32 v22, 4, v22"); a("v_add_u32 v11, v11, v22")
    a("v_and_b32 v22, 1, v17"); a("v_lshlrev_b32 v22, 3, v22"); a("v_add_u32 v11, v11, v22")
    a(f"s_mov_b32 s{S_STEP}, 0"); a(f"s_mov_b32 s{S_MEMOFF}, {LY.MEM}")
    a(f"s_lshl_b32 s{S_PX}, s{S_WAVE}, 11"); a(f"s_add_u32 s{S_PX}, s{S_PX}, {LY.PX}")
    a(f"s_lshl_b32 s{S_PM}, s{S_WAVE}, 9"); a(f"s_add_u32 s{S_PM}, s{S_PM}, {LY.PM}")
    a("v_lshrrev_b32 v22, 3, v16"); a("v_lshlrev_b32 v22, 8, v22"); a("v_add_u32 v187, v11, v22")
    a(f"s_lshl_b32 s{S_BF}, s{S_J}, 15"); a(f"s_lshl_b32 s{S_T1}, s{S_WAVE}, 12"); a(f"s_add_u32 s{S_BF}, s{S_BF}, s{S_T1}"); a(f"s_add_u32 s{S_BF}, s{S_BF}, {LY.BFRAG}")
    a(f"s_lshl_b32 s{S_MF}, s{S_J}, 13"); a(f"s_lshl_b32 s{S_T1}, s{S_WAVE}, 10"); a(f"s_add_u32 s{S_MF}, s{S_MF}, s{S_T1}"); a(f"s_add_u32 s{S_MF}, s{S_MF}, {LY.MFRAG}")
    a(f"s_lshl_b32 s{S_T0}, s{S_J}, 1"); a(f"s_add_u32 s{S_T0}, s{S_T0}, s{S_WAVE}")
    a(f"s_lshl_b32 s{S_MST}, s{S_T0}, 8"); a(f"s_add_u32 s{S_MST}, s{S_MST}, {LY.MEM+7168}")
    if FUSED:
        for r in (12,13,14,15,1): a(f"v_mov_b32 v{r}, 0")
        a(f"s_mov_b32 s{S_PC}, {LY.BRF if CK.NONCE else LY.BRDY}")
        if CK.NONCE:
            a(f"s_lshl_b32 s{S_MC}, s{S_J}, 7"); a(f"s_add_u32 s{S_MC}, s{S_MC}, {LY.MFF}"); a(f"v_mov_b32 v0, s{CK.S_N}")
        else:
            a(f"s_mov_b32 s{S_MC}, {LY.MCNT}"); a("v_mov_b32 v0, 1")
        a(f"s_add_u32 s{S_MX}, s{S_MST}, {LY.MEMX-LY.MEM}")
    def b_prefetch():
        for ct in range(2):
            a(f"s_add_u32 s{S_T0}, s{S_BF}, {ct*16384}")
            for a2 in range(4):
                a(f"buffer_load_dwordx4 {vr(BF+4*(a2*2+ct),4)}, v6, {W}, s{S_T0} offen offset:{a2*1024}")
        if EXP.get('warmP'):
            for a2 in range(4): a(f"buffer_load_dwordx4 {vr(PP+4*a2,4)}, v8, {W}, s{S_PX} offen offset:{a2*512} sc1")
            a(f"buffer_load_dwordx4 {vr(PP+16,4)}, v8, {W}, s{S_PM} offen sc1")
    def mf_store(off):
        fl="sc1" if FUSED else ""
        a(f"s_add_u32 s{S_T1}, s{S_MF}, {off}"); a(f"s_add_u32 s{S_T0}, s{S_MF}, {(off+4096)&0xffffffff}")
        a(f"buffer_store_dwordx4 {vr(MF,4)}, v6, {W}, s{S_T1} offen {fl}")
        a(f"buffer_store_dwordx4 {vr(MF+4,4)}, v6, {W}, s{S_T0} offen {fl}")
    def b_check():
        if FUSED:
            lp=a.newlabel("L_pc")
            def chk():
                if CK.NONCE:
                    a(f"v_xor_b32 v2, v0, v12"); a("v_xor_b32 v182, v0, v13"); a("v_or_b32 v2, v2, v182"); a("v_xor_b32 v182, v0, v14"); a("v_or_b32 v2, v2, v182"); a("v_xor_b32 v182, v0, v15"); a("v_or_b32 v2, v2, v182")
                    a("s_nop 0"); a(f"v_readfirstlane_b32 s{S_T0}, v2"); a("s_nop 3"); a(f"s_cmp_eq_u32 s{S_T0}, 0"); a(f"s_cbranch_scc1 {lp}_ok")
                else:
                    a("v_and_b32 v2, v12, v13"); a("v_and_b32 v2, v2, v14"); a("v_and_b32 v2, v2, v15"); a("s_nop 0"); a(f"v_readfirstlane_b32 s{S_T0}, v2"); a("s_nop 3")
                    a(f"s_cmp_eq_u32 s{S_T0}, 1"); a(f"s_cbranch_scc1 {lp}_ok")
            chk()
            a(f"s_mov_b32 s{S_CNT}, 0")
            a.label(lp)
            a(f"buffer_load_dwordx4 v[12:15], v1, {W}, s{S_PC} offen sc1"); a("s_waitcnt vmcnt(0)")
            chk()
            a("s_sleep 1"); a(f"s_add_u32 s{S_CNT}, s{S_CNT}, 1"); a(f"s_cmp_lt_u32 s{S_CNT}, {POLL_MAX}"); a(f"s_cbranch_scc1 {lp}")
            a(f"s_mov_b32 s{S_FAIL}, 1")
            a.label(lp+"_ok")
    if PRESTART:
        a("s_waitcnt vmcnt(0)"); PRESTART()
    b_check(); b_prefetch()
    for r in range(ACC,ACC+32): a(f"v_mov_b32 v{r}, 0")
    a("s_waitcnt vmcnt(0)")
    if timing: a("s_memtime s[40:41]")
    stamp_init(a)
    def zero_acc():
        for r in range(ACC,ACC+32): a(f"v_mov_b32 v{r}, 0")
        for r in range(OA,OA+8): a(f"v_mov_b32 v{r}, 0")
    _tiles=[(a2,ct) for a2 in range(4) for ct in range(2)]
    _seq=[((a2*2+ct),ks) for (a2,ct) in _tiles for ks in range(7)]
    _lds=[x for x in _seq if x[0]*7+x[1]>=40]
    a.label(LB("L_vstep"))
    if EXP.get('upre',1):
        for k in range(3):
            fi=_lds[k][0]*7+_lds[k][1]
            a(f"ds_read_b128 {vr(UT+8*k,4)}, v7 offset:{(fi-40)*2048}"); a(f"ds_read_b128 {vr(UT+8*k+4,4)}, v7 offset:{(fi-40)*2048+1024}")
    if EXP.get('p2V'): mem_share2(a, PR, PP, 178, 179, EXP.get('gapA',2))
    else: mem_share(a, PR, 178, 179, sleep)
    for ks in range(7): a(f"ds_read_b128 {vr(MS+4*ks,4)}, v6 offset:{L_MEM+ks*1024}")
    if EXP.get('skew'):
        lk=a.newlabel("L_sk"); n=EXP['skew']
        for w in range(1,4):
            a(f"s_cmp_lt_u32 s{S_WAVE}, {w}"); a(f"s_cbranch_scc1 {lk}"); a.nop(n)
        a.label(lk)
    if EXP.get('bin'): b_check(); a(f"s_add_u32 s{S_T2}, s{S_BF}, 16384")
    a(f"s_add_u32 s{S_T3}, s{S_PC}, 64")
    def store_window_a():
        l0=a.newlabel("L_sw")
        a(f"s_cmp_eq_u32 s{S_STEP}, 0"); a(f"s_cbranch_scc1 {l0}")
        mf_store(-28*4096 & 0xffffffff)
        a.label(l0)
    def store_window_b():
        if not FUSED: return
        lx=a.newlabel("L_mx")
        a(f"s_cmp_eq_u32 s{S_STEP}, 0"); a(f"s_cbranch_scc1 {lx}")
        a(f"s_cmp_lt_u32 s{S_WAVE}, 2"); a(f"s_cbranch_scc0 {lx}")
        a(f"s_sub_u32 s{S_T0}, s{S_MX}, 7168")
        a("s_mov_b32 exec_lo, 0x00ff00ff"); a("s_mov_b32 exec_hi, 0x00ff00ff")
        a(f"buffer_store_dwordx2 v[180:181], v11, {W}, s{S_T0} offen sc1"); a("s_mov_b64 exec, -1"); a("s_nop 3")
        a.label(lx)
    def store_window_c():
        if not FUSED: return
        lm=a.newlabel("L_mc")
        a(f"s_cmp_ge_u32 s{S_STEP}, 2"); a(f"s_cbranch_scc0 {lm}")
        a(f"s_cmp_eq_u32 s{S_WAVE}, 3"); a(f"s_cbranch_scc0 {lm}")
        a(f"s_sub_u32 s{S_T0}, s{S_MC}, {2*MINC()}"); a("s_mov_b64 exec, 1")
        a(MSIG(W,S_T0)); a("s_mov_b64 exec, -1"); a("s_nop 3")
        a.label(lm)
    def post_pair(ct,pr):
        ta=(2*pr)*2+ct; tb=(2*pr+1)*2+ct; o=[]
        for i in range(4): o.append(f"v_permlane32_swap_b32 v{ACC+4*ta+i}, v{ACC+4*tb+i}")
        for i in range(4): o.append(f"v_add_f32 v{ACC+4*ta+i}, v{ACC+4*ta+i}, v{ACC+4*tb+i}")
        o.append(f"v_cvt_pk_bf16_f32 v{MF+4*ct+2*pr}, v{ACC+4*ta}, v{ACC+4*ta+1}")
        o.append(f"v_cvt_pk_bf16_f32 v{MF+4*ct+2*pr+1}, v{ACC+4*ta+2}, v{ACC+4*ta+3}")
        return o
    tiles=[(a2,ct) for a2 in range(4) for ct in range(2)]
    seq=[]
    for (a2,ct) in tiles:
        for ks in range(7): seq.append(((a2*2+ct), ks))
    regseq=[x for x in seq if x[0]*7+x[1]<40]; ldsseq=[x for x in seq if x[0]*7+x[1]>=40]
    order=regseq[:7]; r=regseq[7:]; l=ldsseq[:]
    while r or l:
        for _ in range(2):
            if r: order.append(r.pop(0))
        if l: order.append(l.pop(0))
    ldsidx=[i for i,x in enumerate(order) if x[0]*7+x[1]>=40]
    last={}
    for i,(t,ks) in enumerate(order): last[t]=i
    early=post_pair(0,0)+post_pair(1,0)
    epos=max(last[0],last[1],last[2],last[3])+9
    calls={2:store_window_a, 4:store_window_b, 5:store_window_c} if not (EXP.get('stA') or EXP.get('stP') or EXP.get('stL')) else {}
    if EXP.get('stL'):
        p0=EXP['stL']; calls={p0:store_window_a, p0+2:store_window_b, p0+3:store_window_c}
    bfill={}
    if EXP.get('bin'):
        pos=EXP.get('bpos',8); stp=EXP.get('bstep',2)
        for ct in range(2):
            for a2 in range(4):
                bfill[pos]=f"buffer_load_dwordx4 {vr(BF+4*(a2*2+ct),4)}, v6, {W}, s{S_BF if ct==0 else S_T2} offen offset:{a2*1024}"; pos+=stp
        if FUSED: bfill[pos]=f"buffer_load_dwordx4 v[12:15], v1, {W}, s{S_T3} offen sc1"
    elif FUSED: bfill[EXP.get('rpos',20)]=f"buffer_load_dwordx4 v[12:15], v1, {W}, s{S_T3} offen sc1"
    def ldsread(k):
        t,ks=order[ldsidx[k]]; fi=t*7+ks
        return [f"ds_read_b128 {vr(UT+8*(k%3),4)}, v7 offset:{(fi-40)*2048}", f"ds_read_b128 {vr(UT+8*(k%3)+4,4)}, v7 offset:{(fi-40)*2048+1024}"]
    issued=0
    for i,(t,ks) in enumerate(order):
        fi=t*7+ks
        b = ufrag(fi) if fi<40 else vr(UT+8*(ldsidx.index(i)%3),8)
        if i<7: a(f"s_waitcnt lgkmcnt({6-i})")
        if fi>=40 and not EXP.get('x_nolds'):
            k=ldsidx.index(i)
            a(f"s_waitcnt lgkmcnt({2*(issued-1-k)})")
        a(f"v_smfmac_f32_16x16x64_bf16 {vr(ACC+4*t,4)}, {vr(MS+4*ks,4)}, {b}, v3")
        if i in calls and not EXP.get('x_novm'): calls[i]()
        if i in bfill and not EXP.get('x_nob'): a(bfill[i])
        if i==6:
            if not EXP.get('upre',1):
                for k in range(3):
                    for x in ldsread(k): a(x)
            issued=3
        if fi>=40 and not EXP.get('x_nolds'):
            k=ldsidx.index(i)
            if issued<len(ldsidx) and issued==k+3:
                for x in ldsread(issued): a(x)
                issued+=1
        if i>=epos:
            for _ in range(3):
                if early: a(early.pop(0))
    stamp(a,2)
    for x in early: a(x)
    a.nop(8)
    for x in post_pair(0,1)+post_pair(1,1): a(x)
    a(f"s_cmp_eq_u32 s{S_STEP}, {nsteps-1}"); a("s_cbranch_scc0 "+LB("L_v_cont"))
    mf_store(0)
    if FUSED:
        a("s_waitcnt vmcnt(0)"); a("s_barrier")
        a(f"s_cmp_eq_u32 s{S_WAVE}, 0"); a("s_cbranch_scc0 L_fin")
        a(f"s_sub_u32 s{S_T0}, s{S_MC}, {MINC()}"); a("s_mov_b64 exec, 1")
        a(MSIG(W,S_T0)); a(MSIG(W,S_MC)); a("s_mov_b64 exec, -1")
    a("s_branch L_fin")
    a.label(LB("L_v_cont"))
    if EXP.get('stP'):
        pass
    if EXP.get('p2B'):
        for r in range(OA,OA+8): a(f"v_mov_b32 v{r}, 0")
    else: zero_acc()
    stamp(a,3)
    def mk(b): return [f"buffer_load_dwordx4 {vr(b,4)}, v8, {W}, s{S_PX} offen sc1", f"buffer_load_dwordx4 {vr(b+4,4)}, v8, {W}, s{S_PX} offen offset:1024 sc1",
                       f"buffer_load_dwordx2 {vr(b+8,2)}, v187, {W}, s{S_PM} offen sc1"]
    if EXP.get('preB'): a(f"s_sleep {EXP['preB']}")
    Y=PP+10
    def pw(b):
        stamp(a,4)
        dpp=lambda d,sr_: a(f"v_mov_b32_dpp v{d}, v{sr_} row_ror:8 row_mask:0xf bank_mask:0xf")
        def mm(ct,A,B): a(f"v_mfma_f32_16x16x32_bf16 {vr(OA+4*ct,4)}, {A}, {B}, {vr(OA+4*ct,4)}")
        mm(0,vr(BF+4*(0*2+0),4),vr(b,4));
        for i in range(3): dpp(Y+i,b+i)
        mm(1,vr(BF+4*(0*2+1),4),vr(b,4))
        dpp(Y+3,b+3); dpp(Y+4,b+4); dpp(Y+5,b+5)
        mm(0,vr(BF+4*(2*2+0),4),vr(b+4,4))
        dpp(Y+6,b+6); dpp(Y+7,b+7); a(f"v_mov_b32 v188, v{b+8}")
        mm(1,vr(BF+4*(2*2+1),4),vr(b+4,4))
        a(f"v_mov_b32 v189, v{b+9}"); dpp(190,b+8); dpp(191,b+9)
        mm(0,vr(BF+4*(1*2+0),4),vr(Y,4)); mm(1,vr(BF+4*(1*2+1),4),vr(Y,4))
        mm(0,vr(BF+4*(3*2+0),4),vr(Y+4,4)); mm(1,vr(BF+4*(3*2+1),4),vr(Y+4,4))
        mm(0,vr(MF,4),"v[188:191]"); mm(1,vr(MF+4,4),"v[188:191]")
    if EXP.get('p2B'):
        poll2(a, mk, [PP, ACC], 10, 176, 177, pw, EXP.get('gapB',2))
    else:
        poll_loop(a, mk(PP), range(PP,PP+10), 176, 177, sleep)
        pw(PP)
    a.nop(8)
    a(f"ds_write_b128 v9, {vr(OA,4)}"); a(f"ds_write_b128 v9, {vr(OA+4,4)} offset:1024")
    a("s_waitcnt lgkmcnt(0)")
    stamp(a,5)
    a("s_barrier")
    stamp(a,6)
    a(f"s_cmp_lt_u32 s{S_WAVE}, 2"); a("s_cbranch_scc0 "+LB("L_v_nored"))
    RT=UT
    for w in range(4): a(f"ds_read_b128 {vr(RT+4*w,4)}, v10 offset:{w*2048}")
    a("s_waitcnt lgkmcnt(2)")
    for i in (0,2): a(f"v_pk_add_f32 {vr(RT+i,2)}, {vr(RT+i,2)}, {vr(RT+4+i,2)}")
    a("s_waitcnt lgkmcnt(0)")
    for i in (0,2): a(f"v_pk_add_f32 {vr(RT+8+i,2)}, {vr(RT+8+i,2)}, {vr(RT+12+i,2)}")
    for i in (0,2): a(f"v_pk_add_f32 {vr(RT+i,2)}, {vr(RT+i,2)}, {vr(RT+8+i,2)}")
    a(f"v_cvt_pk_bf16_f32 v180, v{RT}, v{RT+1}"); a(f"v_cvt_pk_bf16_f32 v181, v{RT+2}, v{RT+3}")
    a("s_mov_b32 exec_lo, 0x00ff00ff"); a("s_mov_b32 exec_hi, 0x00ff00ff")
    a(f"buffer_store_dwordx2 v[180:181], v11, {W}, s{S_MST} offen {XST()}")
    if FUSED and not EXP.get('stA'):
        le=a.newlabel("L_mxe")
        a(f"s_cmp_eq_u32 s{S_STEP}, {nsteps-2}"); a(f"s_cbranch_scc0 {le}")
        a(f"buffer_store_dwordx2 v[180:181], v11, {W}, s{S_MX} offen sc1")
        a.label(le)
    a("s_mov_b64 exec, -1")
    a.label(LB("L_v_nored"))
    stamp(a,7)
    a("s_barrier")
    if EXP.get('p2B'):
        a("s_waitcnt vmcnt(1)")
        for r in range(ACC,ACC+32): a(f"v_mov_b32 v{r}, 0")
    a(f"s_add_u32 s{S_STEP}, s{S_STEP}, 1")
    a(f"s_add_u32 s{S_MEMOFF}, s{S_MEMOFF}, 7168"); a(f"s_add_u32 s{S_MST}, s{S_MST}, 7168")
    a(f"s_add_u32 s{S_PX}, s{S_PX}, 8192"); a(f"s_add_u32 s{S_PM}, s{S_PM}, 2048")
    a(f"s_add_u32 s{S_BF}, s{S_BF}, {28*16384}"); a(f"s_add_u32 s{S_MF}, s{S_MF}, {28*4096}")
    if FUSED:
        a(f"s_add_u32 s{S_PC}, s{S_PC}, 64"); a(f"s_add_u32 s{S_MC}, s{S_MC}, {MINC()}"); a(f"s_add_u32 s{S_MX}, s{S_MX}, 7168")
    if EXP.get('stA'):
        mf_store(-28*4096 & 0xffffffff)
        if FUSED:
            lx=a.newlabel("L_mx")
            a(f"s_cmp_lt_u32 s{S_WAVE}, 2"); a(f"s_cbranch_scc0 {lx}")
            a(f"s_sub_u32 s{S_T0}, s{S_MX}, 7168")
            a("s_mov_b32 exec_lo, 0x00ff00ff"); a("s_mov_b32 exec_hi, 0x00ff00ff")
            a(f"buffer_store_dwordx2 v[180:181], v11, {W}, s{S_T0} offen sc1"); a("s_mov_b64 exec, -1")
            a.label(lx)
            lm=a.newlabel("L_mc")
            a(f"s_cmp_ge_u32 s{S_STEP}, 2"); a(f"s_cbranch_scc0 {lm}")
            a(f"s_cmp_eq_u32 s{S_WAVE}, 3"); a(f"s_cbranch_scc0 {lm}")
            a(f"s_sub_u32 s{S_T0}, s{S_MC}, {2*MINC()}"); a("s_mov_b64 exec, 1")
            a(MSIG(W,S_T0)); a("s_mov_b64 exec, -1")
            a.label(lm)
    if not EXP.get('bin'): b_check(); b_prefetch()
    stamp(a,8)
    a(f"s_cmp_eq_u32 s{S_FAIL}, 0"); a("s_cbranch_scc1 "+LB("L_vstep"))
    a("s_branch L_fin")

def prefetch_role(a, nsteps=64, ahead=3):
    W=f"s[{S_WS}:{S_WS+3}]"
    if PRESTART: PRESTART()
    a(f"s_sub_u32 s36, s{S_RANK}, 30")
    a(f"s_mov_b32 s{S_STEP}, 0")
    a("v_mov_b32 v9, 0"); a(f"v_mov_b32 v31, s{CK.S_N}" if CK.NONCE else "v_mov_b32 v31, 1")
    a(f"s_cmp_eq_u32 s36, 1"); a("s_cbranch_scc1 L_relay")
    a(f"s_mov_b32 s44, s{S_WAVE}")
    a("v_lshlrev_b32 v7, 7, v1")
    a(f"s_mul_i32 s{S_BF}, s44, {896*128}"); a(f"s_add_u32 s{S_BF}, s{S_BF}, {LY.BFRAG}")
    a(f"s_mov_b32 s{S_XS}, {LY.HFRAG}"); a(f"s_mov_b32 s{S_PX}, {LY.PX}"); a(f"s_mov_b32 s{S_PM}, {LY.PM}")
    a(f"s_mov_b32 s{S_MEMOFF}, {LY.MEM}")
    a("v_mov_b32 v8, 7164")
    a(f"s_mov_b32 s{S_PC}, {(LY.PF if CK.NONCE else LY.PCNT) if FUSED else 0}")
    a(f"s_lshl_b32 s46, s44, 2"); a(f"s_add_u32 s46, s46, {LY.BRF if CK.NONCE else LY.BRDY}")
    a.label("L_pf")
    a(f"s_cmp_lt_u32 s{S_STEP}, {ahead+1}"); a("s_cbranch_scc1 L_pf_go")
    a(f"s_add_u32 s{S_MEMOFF}, s{S_MEMOFF}, 7168")
    a(f"s_mov_b32 s{S_CNT}, 0")
    a.label("L_pf_w")
    a(f"buffer_load_dword v10, v8, {W}, s{S_MEMOFF} offen sc1"); a("s_waitcnt vmcnt(0)")
    a("v_cmp_eq_u32 vcc, -1, v10"); a("s_cbranch_vccz L_pf_go")
    a("s_sleep 4")
    a(f"s_add_u32 s{S_CNT}, s{S_CNT}, 1"); a(f"s_cmp_lt_u32 s{S_CNT}, {POLL_MAX}"); a("s_cbranch_scc1 L_pf_w")
    a("s_branch L_fin")
    a.label("L_pf_go")
    if FUSED and CK.NONCE:
        pass
    elif FUSED:
        a(f"s_mov_b32 s{S_CNT}, 0")
        a.label("L_pf_c")
        a(f"buffer_load_dword v19, v9, {W}, s{S_PC} offen sc1"); a("s_waitcnt vmcnt(0)"); a(f"v_readfirstlane_b32 s{S_T0}, v19"); a("s_nop 3")
        a(f"s_cmp_ge_u32 s{S_T0}, 112"); a("s_cbranch_scc1 L_pf_c_ok")
        a("s_sleep 4"); a(f"s_add_u32 s{S_CNT}, s{S_CNT}, 1"); a(f"s_cmp_lt_u32 s{S_CNT}, {POLL_MAX}"); a("s_cbranch_scc1 L_pf_c")
        a("s_branch L_fin")
        a.label("L_pf_c_ok")
        a(f"s_add_u32 s{S_PC}, s{S_PC}, 128")
    a(f"s_lshl_b32 s{S_T0}, s44, 13"); a(f"s_add_u32 s{S_T0}, s{S_T0}, s{S_XS}"); a(f"buffer_load_dword v17, v7, {W}, s{S_T0} offen")
    a("s_cmp_eq_u32 s44, 0"); a(f"s_cselect_b32 s{S_T0}, s{S_PX}, s{S_PM}")
    a(f"s_mul_i32 s{S_T1}, s{S_STEP}, 7168"); a(f"s_add_u32 s{S_T1}, s{S_T1}, {LY.MEM+7168}"); a("s_cmp_eq_u32 s44, 2"); a(f"s_cselect_b32 s{S_T0}, s{S_T1}, s{S_T0}")
    a(f"buffer_load_dword v18, v7, {W}, s{S_T0} offen sc1")
    a("s_waitcnt vmcnt(0)")
    if FUSED and not CK.NONCE:
        lb=a.newlabel("L_br")
        a(f"s_cmp_eq_u32 s42, 0"); a("s_mov_b64 exec, 1"); a(f"s_cbranch_scc0 {lb}")
        a(f"buffer_store_dword v31, v9, {W}, s46 offen"); a(f"s_branch {lb}_e")
        a.label(lb); a(f"buffer_store_dword v31, v9, {W}, s46 offen sc1")
        a.label(lb+"_e"); a("s_mov_b64 exec, -1"); a("s_add_u32 s46, s46, 64")
    a(f"s_add_u32 s{S_BF}, s{S_BF}, {28*16384}"); a(f"s_add_u32 s{S_XS}, s{S_XS}, 28672"); a(f"s_add_u32 s{S_PX}, s{S_PX}, 8192"); a(f"s_add_u32 s{S_PM}, s{S_PM}, 2048")
    a(f"s_add_u32 s{S_STEP}, s{S_STEP}, 1"); a(f"s_cmp_lt_u32 s{S_STEP}, {nsteps}"); a("s_cbranch_scc1 L_pf")
    a("s_branch L_fin")
    a.label("L_relay")
    if FUSED and CK.NONCE:
        a(f"s_cmp_eq_u32 s{S_WAVE}, 0"); a("s_cbranch_scc0 L_fin")
        a(f"s_mov_b32 s{S_PC}, {LY.PF}"); a(f"s_mov_b32 s46, {LY.BRF}")
        for r in range(28,32): a(f"v_mov_b32 v{r}, s{CK.S_N}")
        a.label("L_bf")
        CK.wait_flags(a, W, S_PC, 112, 20, 22, "v_mov_b32 v20, v1", S_CNT, sleep=2)
        lb=a.newlabel("L_br")
        a(f"s_cmp_eq_u32 s42, 0"); a("s_mov_b64 exec, 1"); a(f"s_cbranch_scc0 {lb}")
        a(f"buffer_store_dwordx4 v[28:31], v9, {W}, s46 offen"); a(f"s_branch {lb}_e")
        a.label(lb); a(f"buffer_store_dwordx4 v[28:31], v9, {W}, s46 offen sc1")
        a.label(lb+"_e"); a("s_mov_b64 exec, -1")
        a(f"s_add_u32 s{S_PC}, s{S_PC}, 512"); a("s_add_u32 s46, s46, 64")
        a(f"s_add_u32 s{S_STEP}, s{S_STEP}, 1"); a(f"s_cmp_lt_u32 s{S_STEP}, {nsteps}"); a("s_cbranch_scc1 L_bf")
        a("s_branch L_fin"); return
    if not FUSED or not EXP.get('relay'):
        a("s_branch L_fin"); return
    a(f"s_mov_b32 s44, s{S_WAVE}")
    a("s_cmp_eq_u32 s44, 3"); a("s_cbranch_scc1 L_rmem")
    NCH=38
    a(f"s_mul_i32 s45, s44, {37*1024}"); a(f"s_add_u32 s{S_MF}, s45, {LY.MFL}"); a(f"s_add_u32 s{S_MST}, s45, {LY.MFRAG}")
    a(f"s_mov_b32 s{S_PC}, {LY.LFLAG}"); a(f"s_mov_b32 s{S_MC}, {LY.MCNT}")
    a("v_lshlrev_b32 v7, 2, v1"); a("v_min_u32 v7, 52, v7")
    a.label("L_rl")
    a(f"s_mov_b32 s{S_CNT}, 0")
    a.label("L_rl_w")
    a(f"buffer_load_dword v10, v7, {W}, s{S_PC} offen sc1"); a("s_waitcnt vmcnt(0)")
    a("v_cmp_eq_u32 vcc, 0, v10"); a("s_cbranch_vccz L_rl_go")
    a("s_sleep 2"); a(f"s_add_u32 s{S_CNT}, s{S_CNT}, 1"); a(f"s_cmp_lt_u32 s{S_CNT}, {POLL_MAX}"); a("s_cbranch_scc1 L_rl_w")
    a("s_branch L_fin")
    a.label("L_rl_go")
    a(f"s_mov_b32 s{S_T0}, s{S_MF}")
    for i in range(NCH):
        a(f"buffer_load_dwordx4 {vr(32+4*i,4)}, v6, {W}, s{S_T0} offen offset:{(i&3)*1024} sc1")
        if (i&3)==3: a(f"s_add_u32 s{S_T0}, s{S_T0}, 4096")
    a(f"s_mov_b32 s{S_T0}, s{S_MST}")
    for i in range(NCH):
        a(f"s_waitcnt vmcnt({NCH-1})")
        a(f"buffer_store_dwordx4 {vr(32+4*i,4)}, v6, {W}, s{S_T0} offen offset:{(i&3)*1024} sc1")
        if (i&3)==3: a(f"s_add_u32 s{S_T0}, s{S_T0}, 4096")
    a("s_waitcnt vmcnt(0)")
    a("s_mov_b64 exec, 1"); a(f"buffer_atomic_add v31, v9, {W}, s{S_MC} offen sc1"); a("s_mov_b64 exec, -1")
    a(f"s_add_u32 s{S_MF}, s{S_MF}, {28*4096}"); a(f"s_add_u32 s{S_MST}, s{S_MST}, {28*4096}"); a(f"s_add_u32 s{S_PC}, s{S_PC}, 64"); a(f"s_add_u32 s{S_MC}, s{S_MC}, 128")
    a(f"s_add_u32 s{S_STEP}, s{S_STEP}, 1"); a(f"s_cmp_lt_u32 s{S_STEP}, {nsteps}"); a("s_cbranch_scc1 L_rl")
    a("s_branch L_fin")
    a.label("L_rmem")
    a(f"s_mov_b32 s{S_MEMOFF}, {LY.MEM+7168}"); a(f"s_mov_b32 s{S_MX}, {LY.MEMX+7168}"); a(f"s_mov_b32 s{S_STEP}, 1")
    a.label("L_rm")
    a(f"s_add_u32 s{S_T1}, s{S_MEMOFF}, 4096")
    loads=[f"buffer_load_dwordx4 {vr(32+4*k,4)}, v6, {W}, s{S_MEMOFF if k<4 else S_T1} offen offset:{(k&3)*1024} sc1" for k in range(7)]
    poll_loop(a, loads, range(32,60), 60, 61, 2)
    a(f"s_add_u32 s{S_T1}, s{S_MX}, 4096")
    for k in range(7): a(f"buffer_store_dwordx4 {vr(32+4*k,4)}, v6, {W}, s{S_MX if k<4 else S_T1} offen offset:{(k&3)*1024} sc1")
    a(f"s_add_u32 s{S_MEMOFF}, s{S_MEMOFF}, 7168"); a(f"s_add_u32 s{S_MX}, s{S_MX}, 7168")
    a(f"s_add_u32 s{S_STEP}, s{S_STEP}, 1"); a(f"s_cmp_lt_u32 s{S_STEP}, 64"); a("s_cbranch_scc0 L_fin")
    a(f"s_cmp_eq_u32 s{S_FAIL}, 0"); a("s_cbranch_scc1 L_rm")
    a("s_branch L_fin")

def gen_rec(timing=True, sleep=0, target_xcc=0):
    a=Asm()
    common_prologue(a, target_xcc, 32 if EXP.get('pf') else 30)
    a(f"s_cmp_ge_u32 s{S_RANK}, 30"); a("s_cbranch_scc1 L_pref")
    a(f"s_cmp_ge_u32 s{S_RANK}, 16"); a("s_cbranch_scc1 L_value")
    global LANEREG
    LANEREG={0:2,1:1,6:0}
    score_role(a, timing, sleep)
    a.label("L_value")
    LANEREG={4:12,7:13,0:14,3:15}
    value_role(a, timing, sleep)
    a.label("L_pref")
    a("s_memtime s[40:41]")
    prefetch_role(a, ahead=EXP.get('ahead',3))
    a.label("L_fin")
    stamp_out(a)
    if timing:
        a("s_memtime s[42:43]"); a("s_waitcnt lgkmcnt(0)")
        a("s_sub_u32 s42, s42, s40")
        a("v_mov_b32 v20, s42"); a(f"v_mov_b32 v21, s{S_FAIL}")
        a(f"s_lshl_b32 s44, s{S_RANK}, 3"); a("s_add_u32 s44, s44, 8"); a("v_mov_b32 v22, s44")
        a("v_cmp_eq_u32 vcc, 0, v4"); a(f"s_and_saveexec_b64 s[{S_EX}:{S_EX+1}], vcc")
        a(f"buffer_store_dwordx2 v[20:21], v22, s[{S_DBG}:{S_DBG+3}], 0 offen")
        a(f"s_mov_b64 exec, s[{S_EX}:{S_EX+1}]")
    a("s_waitcnt vmcnt(0)")
    a.label("L_exit")
    return a.text()
if __name__=="__main__":
    t=gen_rec()
    open("rec_body.s","w").write(t); print(len(t.splitlines()))
```

```python
from asmlib import *
import layout as LY
WS_BYTES = 268435456
KA = dict(x=0, mem0=8, Wq=16, Wk=24, Wv=32, Wo=40, seg=48, Bx=56, wr=64, wg=72, wu=80, wd=88, c=96, wmod=104, out=112, dbg=120, ws=128)
SZ = dict(x=1835008, mem0=7168, Wq=3670016, Wk=3670016, Wv=3670016, Wo=3670016, wr=896, wg=1605632, wu=1605632, wd=1605632, c=896, wmod=2408448, out=1835008, dbg=256, ws=WS_BYTES)
def load_srd(a, d, name, tmp):
    a(f"s_load_dwordx2 s[{tmp}:{tmp+1}], s[0:1], {KA[name]}")
def mk_srd(a, d, name, tmp):
    a(f"s_mov_b32 s{d}, s{tmp}"); a(f"s_and_b32 s{d+1}, s{tmp+1}, 0xffff"); a(f"s_mov_b32 s{d+2}, {SZ[name]}"); a(f"s_mov_b32 s{d+3}, 0x20000")
def srds(a, spec, tmp0=60):
    for i,(d,n) in enumerate(spec): load_srd(a,d,n,tmp0+2*i)
    a("s_waitcnt lgkmcnt(0)")
    for i,(d,n) in enumerate(spec): mk_srd(a,d,n,tmp0+2*i)
def S4(d): return f"s[{d}:{d+3}]"
def xred(a, op, r, t):
    a("s_nop 1"); a(f"{op}_dpp v{r}, v{r}, v{r} row_ror:8 row_mask:0xf bank_mask:0xf")
    a(f"v_mov_b32 v{t}, v{r}"); a("s_nop 1"); a(f"v_permlane16_swap_b32 v{r}, v{t}"); a(f"{op} v{r}, v{r}, v{t}")
    a(f"v_mov_b32 v{t}, v{r}"); a("s_nop 1"); a(f"v_permlane32_swap_b32 v{r}, v{t}"); a(f"{op} v{r}, v{r}, v{t}")
def xred_g(a, op, r, t):
    a(f"v_mov_b32 v{t}, v{r}"); a("s_nop 1"); a(f"v_permlane16_swap_b32 v{r}, v{t}"); a(f"{op} v{r}, v{r}, v{t}")
    a(f"v_mov_b32 v{t}, v{r}"); a("s_nop 1"); a(f"v_permlane32_swap_b32 v{r}, v{t}"); a(f"{op} v{r}, v{r}, v{t}")
def unpack_lo(a, dst, src): a(f"v_lshlrev_b32 v{dst}, 16, v{src}")
def unpack_hi(a, dst, src): a(f"v_and_b32 v{dst}, 0xffff0000, v{src}")
POLL_MAX=400000
def wait_cnt(a, W, soff, target, v, vz, st, sc, sleep=8):
    lp=a.newlabel("L_wc")
    a(f"s_mov_b32 s{sc}, 0")
    a.label(lp)
    a(f"buffer_load_dword v{v}, v{vz}, {W}, s{soff} offen sc1"); a("s_waitcnt vmcnt(0)"); a(f"v_readfirstlane_b32 s{st}, v{v}"); a("s_nop 3")
    a(f"s_cmp_ge_u32 s{st}, {target}"); a(f"s_cbranch_scc1 {lp}_ok")
    a(f"s_sleep {sleep}"); a(f"s_add_u32 s{sc}, s{sc}, 1"); a(f"s_cmp_lt_u32 s{sc}, {POLL_MAX}"); a(f"s_cbranch_scc1 {lp}")
    a.label(lp+"_ok")
def chk_poison(a, regs, t0, t1):
    regs=list(regs)
    a(f"v_max3_u32 v{t0}, v{regs[0]}, v{regs[1]}, v{regs[2]}")
    rest=regs[3:]
    if len(rest)>=3:
        a(f"v_max3_u32 v{t1}, v{rest[0]}, v{rest[1]}, v{rest[2]}"); rest=rest[3:]
        cur=[t0,t1]; k=0
        while len(rest)>=2:
            a(f"v_max3_u32 v{cur[k]}, v{cur[k]}, v{rest[0]}, v{rest[1]}"); rest=rest[2:]; k^=1
        if rest: a(f"v_max3_u32 v{t0}, v{t0}, v{t1}, v{rest[0]}")
        else: a(f"v_max_u32 v{t0}, v{t0}, v{t1}")
    else:
        for r in rest: a(f"v_max_u32 v{t0}, v{t0}, v{r}")
    a(f"v_cmp_eq_u32 vcc, -1, v{t0}")
def poll_data(a, loads, regs, t0, t1, sc, sleep=8):
    lab=a.newlabel("L_pd")
    a(f"s_mov_b32 s{sc}, 0")
    a.label(lab)
    for l in loads: a(l)
    a("s_waitcnt vmcnt(0)")
    chk_poison(a, regs, t0, t1)
    a(f"s_cbranch_vccz {lab}_ok")
    a(f"s_sleep {sleep}"); a(f"s_add_u32 s{sc}, s{sc}, 1"); a(f"s_cmp_lt_u32 s{sc}, {POLL_MAX}"); a(f"s_cbranch_scc1 {lab}")
    a.label(lab+"_ok")

import os
def wst(a,k):
    if os.environ.get('STAMP'): a(f"s_memrealtime s[{80+2*k}:{81+2*k}]"); a("s_waitcnt lgkmcnt(0)")

NONCE=False
S_N=97
def wait_flags(a, W, soff, nwords, vx, vy, lanesrc, sc, sleep=4, stride=None):
    lab=a.newlabel("L_wf")
    per = 1 if nwords<=64 else (2 if nwords<=128 else 4)
    nl=(nwords+per-1)//per
    a(lanesrc); a(f"v_min_u32 v{vx}, {nl-1}, v{vx}"); a(f"v_lshlrev_b32 v{vx}, {stride if stride else (2 if per==1 else (3 if per==2 else 4))}, v{vx}")
    a(f"s_mov_b32 s{sc}, 0")
    a.label(lab)
    op={1:"buffer_load_dword",2:"buffer_load_dwordx2",4:"buffer_load_dwordx4"}[per]
    a(f"{op} {vr(vy,per)}, v{vx}, {W}, s{soff} offen sc1"); a("s_waitcnt vmcnt(0)")
    for i in range(per): a(f"v_xor_b32 v{vy+i}, s{S_N}, v{vy+i}")
    for i in range(1,per): a(f"v_or_b32 v{vy}, v{vy}, v{vy+i}")
    a(f"v_cmp_ne_u32 vcc, 0, v{vy}"); a(f"s_cbranch_vccz {lab}_ok")
    a(f"s_sleep {sleep}"); a(f"s_add_u32 s{sc}, s{sc}, 1"); a(f"s_cmp_lt_u32 s{sc}, {POLL_MAX}"); a(f"s_cbranch_scc1 {lab}")
    a.label(lab+"_ok")
def set_flag(a, W, soff, vd, vz):
    a(f"v_mov_b32 v{vd}, s{S_N}"); a(f"v_mov_b32 v{vz}, 0"); a("s_mov_b64 exec, 1")
    a(f"buffer_store_dword v{vd}, v{vz}, {W}, s{soff} offen sc1"); a("s_mov_b64 exec, -1")
def get_nonce(a, DBG, v0_, sc, st):
    lab=a.newlabel("L_gn")
    a(f"v_mov_b32 v{v0_+2}, 0"); a(f"s_mov_b32 s{sc}, 0")
    a.label(lab)
    a(f"buffer_load_dwordx2 {vr(v0_,2)}, v{v0_+2}, {DBG}, 0 offen sc1"); a("s_waitcnt vmcnt(0)")
    a(f"v_readfirstlane_b32 s{st}, v{v0_}"); a(f"v_readfirstlane_b32 s{S_N}, v{v0_+1}"); a("s_nop 3")
    a(f"s_and_b32 s{st+1}, s{st}, s{S_N}"); a(f"s_and_b32 s{st+1}, s{st+1}, 0x80808080"); a(f"s_cmp_eq_u32 s{st+1}, 0x80808080"); a(f"s_cbranch_scc1 {lab}_ok")
    a("s_sleep 1"); a(f"s_add_u32 s{sc}, s{sc}, 1"); a(f"s_cmp_lt_u32 s{sc}, {POLL_MAX}"); a(f"s_cbranch_scc1 {lab}")
    a.label(lab+"_ok")
    a(f"s_lshr_b32 s{st}, s{st}, 3"); a(f"s_and_b32 s{st}, s{st}, 0x0f0f0f0f"); a(f"s_lshl_b32 s{S_N}, s{S_N}, 1"); a(f"s_and_b32 s{S_N}, s{S_N}, 0xf0f0f0f0")
    a(f"s_or_b32 s{S_N}, s{S_N}, s{st}"); a(f"s_or_b32 s{S_N}, s{S_N}, 0x100"); a(f"s_and_b32 s{S_N}, s{S_N}, 0xfffffdff")

def nonce_try(a, DBG, vlo, v0_, sc, st):
    lab=a.newlabel("L_nt")
    a(f"v_readfirstlane_b32 s{st}, v{vlo}"); a(f"v_readfirstlane_b32 s{S_N}, v{vlo+1}"); a("s_nop 3")
    a(f"s_and_b32 s{st+1}, s{st}, s{S_N}"); a(f"s_and_b32 s{st+1}, s{st+1}, 0x80808080"); a(f"s_cmp_eq_u32 s{st+1}, 0x80808080"); a(f"s_cbranch_scc0 {lab}_p")
    a(f"s_lshr_b32 s{st}, s{st}, 3"); a(f"s_and_b32 s{st}, s{st}, 0x0f0f0f0f"); a(f"s_lshl_b32 s{S_N}, s{S_N}, 1"); a(f"s_and_b32 s{S_N}, s{S_N}, 0xf0f0f0f0")
    a(f"s_or_b32 s{S_N}, s{S_N}, s{st}"); a(f"s_or_b32 s{S_N}, s{S_N}, 0x100"); a(f"s_and_b32 s{S_N}, s{S_N}, 0xfffffdff"); a(f"s_branch {lab}_e")
    a.label(lab+"_p")
    get_nonce(a, DBG, v0_, sc, st)
    a.label(lab+"_e")
```

```python
import os
from common_k import *
from k0 import f2u, SC, ln_stats
import layout as LY
import common_k as CK
LA=0; LW=114688
L_OUT=LW+4*8192
L_CNT=L_OUT+8192
L_MODS=LW
K0_LDS=163840
PITCH=64
REGC=[(LY.MEM+7168,64*7168,-1),(LY.PX,64*16*512,-1),(LY.PM,64*4*512,-1),(LY.CNT,LY.CNTB,0),(LY.MEMX+7168,63*7168,-1)]
REGL=[(LY.PFX,64*2*16*1024,-1),(LY.PFM,64*2*4*1024,-1),(LY.R,8192,-1),(LY.ACT,2*1792*4,-1),(LY.ACTB,2*1792*4,-1),(LY.H2,2048*896,-1),(LY.STATS,64*7*32*16,-1)]
REG=REGC+REGL
def k0_body(a, NM, st, fused, moff):
    NT=os.environ.get('K0NT','')
    ST=bool(os.environ.get('STAMP0'))
    SMAP={0:0,1:1,4:2,5:3,6:4,7:5}
    def stp(k):
        if ST and k in SMAP: a(f's_memrealtime s[{80+2*SMAP[k]}:{81+2*SMAP[k]}]'); a('s_waitcnt lgkmcnt(0)')
    stp(0)
    a("v_and_b32 v1, 63, v0"); a("v_lshrrev_b32 v2, 6, v0"); a("s_nop 0"); a("v_readfirstlane_b32 s22, v2")
    for n,t in (('Wq',60),('Wk',62),('Wv',64),('Wo',66),('ws',68),('wmod',70),('c',72),('mem0',74),('x',76),('dbg',78)): a(f"s_load_dwordx2 s[{t}:{t+1}], s[0:1], {KA[n]}")
    a("s_waitcnt lgkmcnt(0)")
    mk_srd(a,16,'ws',68); mk_srd(a,44,'x',76); mk_srd(a,48,'dbg',78)
    W=S4(16)
    a("s_and_b32 s20, s2, 31"); a("s_lshr_b32 s21, s2, 5")
    a("s_and_b32 s23, s20, 15"); a("s_and_b32 s26, s21, 1"); a("s_lshr_b32 s27, s21, 1")
    a("s_cmp_lt_u32 s20, 16"); a("s_cbranch_scc0 L_isU")
    mk_srd(a,8,'Wq',60); mk_srd(a,12,'Wk',62); a("s_branch L_srd")
    a.label("L_isU"); mk_srd(a,8,'Wv',64); mk_srd(a,12,'Wo',66)
    a.label("L_srd")
    BF=64; T=128
    a("s_lshl_b32 s24, s27, 2"); a("s_add_u32 s24, s24, s22"); a("s_cmp_lt_u32 s24, 14"); a("s_cselect_b32 s25, 1, 0")
    a("v_and_b32 v20, 31, v1"); a("v_lshrrev_b32 v21, 5, v1")
    if fused:
        a(f"v_mov_b32 v3, {L_CNT}"); a("v_mov_b32 v4, 0"); a("v_mov_b32 v5, 0"); a("v_mov_b32 v6, 0"); a("v_mov_b32 v7, 0"); a("ds_write_b128 v3, v[4:7]"); a("s_waitcnt lgkmcnt(0)"); a("s_barrier")
    if fused and CK.NONCE:
        le=a.newlabel("L_ef")
        a("s_cmp_lt_u32 s22, 2"); a(f"s_cbranch_scc0 {le}")
        a("v_lshlrev_b32 v12, 4, v0")
        for r in range(16,20): a(f"v_mov_b32 v{r}, -1")
        for (o,n,val) in REGC:
            if val==0: continue
            n=(n+2047)//2048*2048
            lab=a.newlabel("L_pz")
            a(f"s_lshl_b32 s28, s2, 11"); a(f"s_add_u32 s28, s28, {o}")
            a.label(lab)
            a(f"s_cmp_lt_u32 s28, {o+n}"); a(f"s_cbranch_scc0 {lab}_e")
            a(f"buffer_store_dwordx4 v[16:19], v12, {W}, s28 offen sc1")
            a(f"s_add_u32 s28, s28, {256*2048}"); a(f"s_branch {lab}")
            a.label(lab+"_e")
        a("s_cmp_eq_u32 s2, 100"); a(f"s_cbranch_scc0 {le}")
        mk_srd(a,52,'mem0',74)
        for part in range(4):
            a(f"v_add_u32 v13, {128*part}, v0")
            a("v_cmp_gt_u32 vcc, 448, v13"); a("s_and_saveexec_b64 s[30:31], vcc")
            a("v_and_b32 v14, 7, v13"); a("v_mul_u32_u24 v14, 896, v14"); a("v_lshrrev_b32 v15, 3, v13"); a("v_lshlrev_b32 v15, 4, v15"); a("v_add_u32 v14, v14, v15")
            a(f"buffer_load_dwordx4 v[16:19], v14, {S4(52)}, 0 offen"); a("s_waitcnt vmcnt(0)")
            a("v_lshlrev_b32 v15, 4, v13"); a(f"s_mov_b32 s28, {LY.MEM}"); a(f"buffer_store_dwordx4 v[16:19], v15, {W}, s28 offen sc1")
            a(f"s_mov_b32 s28, {LY.MEMX}"); a(f"buffer_store_dwordx4 v[16:19], v15, {W}, s28 offen sc1"); a("s_nop 1")
            a("s_mov_b64 exec, s[30:31]")
        a.label(le)
    a("s_cmp_eq_u32 s22, 3"); a("s_cbranch_scc0 L_nox")
    a("v_and_b32 v3, 7, v1"); a("v_lshrrev_b32 v4, 3, v1"); a("s_and_b32 s28, s2, 3"); a("s_lshl_b32 s28, s28, 3"); a("v_add_u32 v5, s28, v3")
    a("v_mul_u32_u24 v6, 896, v5"); a("v_lshlrev_b32 v7, 4, v4"); a("v_add_u32 v6, v6, v7"); a("s_lshr_b32 s29, s2, 2"); a("s_mul_i32 s29, s29, 28672")
    for i in range(7): a(f"buffer_load_dwordx4 {ar(4*i,4)}, v6, {S4(44)}, s29 offen offset:{128*i}")
    a.label("L_nox")
    a("s_cmp_ge_u32 s2, 192"); a("s_cbranch_scc0 L_nomod"); a(f"s_cmp_lt_u32 s2, 234"); a("s_cbranch_scc0 L_nomod"); a("s_cmp_ge_u32 s22, 2"); a("s_cbranch_scc0 L_nomod")
    mk_srd(a,56,'wmod',70); mk_srd(a,40,'c',72)
    a("s_sub_u32 s37, s2, 192"); a("s_lshl_b32 s37, s37, 1"); a("s_add_u32 s37, s37, s22"); a("s_sub_u32 s37, s37, 2")
    a("v_and_b32 v30, 3, v1"); a("v_lshrrev_b32 v31, 2, v1"); a("v_mul_u32_u24 v32, 56, v31")
    M0=192
    for j in range(14): a(f"buffer_load_dword v{M0+j}, v32, {S4(40)}, 0 offen offset:{4*j}")
    a("v_mul_u32_u24 v33, 28, v31"); a("s_movk_i32 s38, 5376"); a("v_mul_lo_u32 v33, v33, s38"); a("v_lshlrev_b32 v34, 4, v30"); a("v_add_u32 v33, v33, v34")
    a("s_lshl_b32 s39, s37, 6")
    MW=64
    for j in range(28):
        a(f"buffer_load_dwordx4 {vr(MW+4*j,4)}, v33, {S4(56)}, s39 offen"); a("s_add_u32 s39, s39, 5376")
    a("s_waitcnt vmcnt(28)")
    SV=208
    for j in range(28):
        r=SV+j
        (unpack_lo if j%2==0 else unpack_hi)(a,r,M0+j//2)
        a(f"v_mul_f32 v35, 0xbfb8aa3b, v{r}"); a("v_exp_f32 v35, v35"); a("s_nop 0"); a("v_add_f32 v35, 1.0, v35"); a("v_rcp_f32 v35, v35"); a("s_nop 0")
        a(f"v_mul_f32 v{r}, v{r}, v35"); a(f"v_cvt_pk_bf16_f32 v{r}, v{r}, v{r}"); a(f"v_lshlrev_b32 v{r}, 16, v{r}")
    for r in range(40,48): a(f"v_mov_b32 v{r}, 0")
    for j in range(28):
        a(f"s_waitcnt vmcnt({27-j})")
        for q in range(4):
            a(f"v_lshlrev_b32 v36, 16, v{MW+4*j+q}"); a(f"v_and_b32 v37, 0xffff0000, v{MW+4*j+q}")
            a(f"v_fmac_f32 v{40+2*q}, v36, v{SV+j}"); a(f"v_fmac_f32 v{41+2*q}, v37, v{SV+j}")
    for r in range(40,48):
        a("s_nop 1"); a(f"v_add_f32_dpp v{r}, v{r}, v{r} row_ror:4 row_mask:0xf bank_mask:0xf"); xred(a,"v_add_f32",r,48)
    for r in range(40,48): a(f"v_cvt_pk_bf16_f32 v{r}, v{r}, v{r}"); a(f"v_lshlrev_b32 v{r}, 16, v{r}")
    a("v_lshlrev_b32 v50, 5, v30"); a("s_lshl_b32 s38, s37, 7"); a(f"s_add_u32 s38, s38, {LY.MOD}")
    a("s_mov_b64 exec, 0xf"); a(f"buffer_store_dwordx4 v[40:43], v50, {W}, s38 offen sc1"); a(f"buffer_store_dwordx4 v[44:47], v50, {W}, s38 offen offset:16 sc1"); a("s_mov_b64 exec, -1")
    a("s_waitcnt vmcnt(0)")
    if fused and CK.NONCE:
        lq=a.newlabel("L_mq")
        a(f"v_mov_b32 v53, {L_CNT+12}"); a("v_mov_b32 v54, 1"); a("s_mov_b64 exec, 1"); a("ds_add_rtn_u32 v55, v53, v54"); a("s_waitcnt lgkmcnt(0)"); a("s_mov_b64 exec, -1")
        a("v_readfirstlane_b32 s38, v55"); a("s_nop 3"); a("s_cmp_eq_u32 s38, 1"); a(f"s_cbranch_scc0 {lq}")
        get_nonce(a, S4(48), 56, 38, 40)
        a("s_lshr_b32 s38, s37, 1"); a("s_lshl_b32 s38, s38, 7"); a(f"s_add_u32 s38, s38, {LY.MODF}"); set_flag(a, W, 38, 53, 54)
        a.label(lq)
    else:
        a("s_mov_b64 exec, 1"); a("v_mov_b32 v53, 1"); a("v_mov_b32 v54, 0"); a(f"s_mov_b32 s38, {LY.MODC}"); a(f"buffer_atomic_add v53, v54, {W if fused else S4(48)}, "+("s38" if fused else "0")+" offen sc1"); a("s_mov_b64 exec, -1")
    a.label("L_nomod")
    a("s_cmp_eq_u32 s25, 0"); a("s_cbranch_scc1 L_noB0")
    a("s_cmp_lt_u32 s20, 16"); a("s_cbranch_scc0 L_BU0")
    a("v_lshlrev_b32 v22, 13, v20"); a("v_lshlrev_b32 v23, 4, v21"); a("v_add_u32 v22, v22, v23")
    a("s_lshl_b32 s35, s24, 18"); a("s_lshl_b32 s33, s23, 9"); a("s_add_u32 s35, s35, s33")
    for kk in range(16): a(f"buffer_load_dwordx4 {vr(BF+4*kk,4)}, v22, {S4(12)}, s35 offen offset:{kk*32} {NT}")
    a("s_branch L_noB0")
    a.label("L_BU0")
    a("v_lshrrev_b32 v24, 2, v1"); a("v_and_b32 v25, 3, v1")
    a("v_mul_u32_u24 v26, 896, v24"); a("v_lshlrev_b32 v27, 4, v25"); a("v_add_u32 v26, v26, v27")
    a(f"v_mul_u32_u24 v28, {PITCH}, v24"); a("v_add_u32 v28, v28, v27"); a(f"s_mul_i32 s36, s22, 8192"); a(f"s_add_u32 s36, s36, {LW}"); a("v_add_u32 v28, s36, v28")
    a(f"s_mul_i32 s35, s23, {256*896}"); a("s_lshl_b32 s33, s24, 6"); a("s_add_u32 s35, s35, s33")
    for i in range(16):
        a(f"buffer_load_dwordx4 {vr(T+4*i,4)}, v26, {S4(12)}, s35 offen {NT}"); a(f"s_add_u32 s35, s35, {16*896}")
    a.label("L_noB0")
    a("s_lshr_b32 s28, s22, 1"); a("s_lshl_b32 s28, s28, 5"); a("s_and_b32 s29, s22, 1"); a("s_lshl_b32 s30, s29, 1"); a("s_add_u32 s28, s28, s30")
    a("s_lshl_b32 s29, s29, 3")
    for jj in range(4):
        a(f"v_add_u32 v24, {8*(jj&1)+4*(jj>>1)}, v21"); a("v_add_u32 v24, s28, v24"); a("v_lshlrev_b32 v24, 13, v24")
        a(f"v_add_u32 v25, {2*jj}, v21"); a("v_add_u32 v25, s29, v25"); a("v_xor_b32 v25, v25, v20"); a("v_lshlrev_b32 v25, 4, v25"); a(f"v_add_u32 v{8+jj}, v24, v25")
    for i in range(7):
        a(f"s_lshl_b32 s28, s27, 1"); a(f"s_add_u32 s28, s28, {i}"); a("s_cmp_ge_u32 s28, 7"); a("s_cselect_b32 s29, 7, 0"); a("s_sub_u32 s28, s28, s29")
        a(f"s_lshl_b32 s{52+i}, s28, 6")
        a("s_mul_i32 s29, s26, 7"); a("s_add_u32 s28, s28, s29")
        a("s_lshr_b32 s29, s28, 1"); a("s_lshl_b32 s29, s29, 6"); a("s_and_b32 s30, s28, 1"); a("s_lshl_b32 s30, s30, 4"); a("s_add_u32 s29, s29, s30")
        a("s_lshl_b32 s29, s29, 13"); a("s_lshl_b32 s30, s23, 9"); a("s_add_u32 s32, s29, s30")
        a("s_lshl_b32 s31, s22, 12"); a(f"s_add_u32 s31, s31, {LA+i*16384}")
        ld=a.newlabel("L_da")
        a("s_cmp_eq_u32 s25, 0"); a(f"s_cbranch_scc1 {ld}")
        for jj in range(4):
            a("s_mov_b32 m0, s31"); a("s_add_u32 s31, s31, 1024")
            a(f"buffer_load_dwordx4 v{8+jj}, {S4(8)}, s32 offen {NT} lds")
        a("s_cmp_eq_u32 s27, 3"); a(f"s_cbranch_scc0 {ld}")
        a("s_add_u32 s31, s31, 4096"); a(f"s_add_u32 s32, s32, {32*8192}")
        for jj in range(4):
            a("s_mov_b32 m0, s31"); a("s_add_u32 s31, s31, 1024")
            a(f"buffer_load_dwordx4 v{8+jj}, {S4(8)}, s32 offen {NT} lds")
        a.label(ld)
    stp(1)
    a("v_lshlrev_b32 v12, 4, v0")
    nfill=0
    FILLMAX=0
    for (o,n,val) in REG:
        n=(n+4095)//4096*4096; FILLMAX+= (n//4096+255)//256
    a("s_cmp_eq_u32 s25, 0"); a("s_cbranch_scc1 L_noB"); a("s_cmp_lt_u32 s20, 16"); a("s_cbranch_scc1 L_noB")
    a("v_and_b32 v24, 15, v1"); a("v_lshrrev_b32 v25, 2, v24"); a("v_lshlrev_b32 v27, 3, v21"); a("v_add_u32 v25, v25, v27")
    a(f"v_mul_u32_u24 v29, {PITCH}, v25"); a("v_and_b32 v25, 3, v24"); a("v_lshlrev_b32 v25, 3, v25"); a("v_add_u32 v29, v29, v25")
    a("v_bfe_u32 v25, v1, 4, 1"); a("v_lshlrev_b32 v25, 5, v25"); a("v_add_u32 v29, v29, v25"); a("v_add_u32 v29, s36, v29")
    for half in range(2):
        for i in range(8):
            lq=a.newlabel("L_uw")
            a("s_cmp_eq_u32 s27, 3"); a(f"s_cbranch_scc1 {lq}"); a(f"s_waitcnt vmcnt({28+15-(half*8+i)})"); a(f"s_branch {lq}_e")
            a.label(lq); a(f"s_waitcnt vmcnt({min(63,56+15-(half*8+i))})"); a.label(lq+"_e")
            a(f"ds_write_b128 v28, {vr(T+4*(half*8+i),4)} offset:{i*16*PITCH}")
        a("s_waitcnt lgkmcnt(0)")
        for k8 in range(8):
            kk=half*8+k8
            a(f"ds_read_b64_tr_b16 {vr(BF+4*kk,2)}, v29 offset:{16*k8*PITCH}"); a(f"ds_read_b64_tr_b16 {vr(BF+4*kk+2,2)}, v29 offset:{(16*k8+4)*PITCH}")
        a("s_waitcnt lgkmcnt(0)")
    a.label("L_noB")
    a("v_and_b32 v22, 15, v20"); a("v_lshlrev_b32 v23, 9, v20")
    for k8 in range(8):
        a(f"v_add_u32 v24, {2*k8}, v21"); a("v_xor_b32 v24, v24, v22"); a("v_lshlrev_b32 v24, 4, v24"); a(f"v_add_u32 v{32+k8}, v23, v24")
    a("s_cmp_lt_u32 s20, 16"); a(f"s_cselect_b32 s38, {f2u(SC):#x}, 1.0"); a("s_cselect_b32 s39, 0, 7168")
    a("s_mul_i32 s33, s23, 448"); a("s_add_u32 s39, s39, s33"); a("s_lshl_b32 s33, s24, 5"); a("s_add_u32 s39, s39, s33"); a("s_mul_i32 s39, s39, 896"); a(f"s_add_u32 s39, s39, {LY.WP}")
    a("s_mul_i32 s33, s26, 448"); a("s_add_u32 s39, s39, s33")
    a("s_lshl_b32 s34, s22, 11"); a(f"s_add_u32 s34, s34, {L_OUT}")
    a("v_lshlrev_b32 v56, 6, v20"); a("v_lshlrev_b32 v24, 5, v21"); a("v_add_u32 v56, v56, v24"); a("v_add_u32 v56, s34, v56")
    a("v_lshlrev_b32 v57, 4, v1"); a("v_add_u32 v57, s34, v57")
    a("v_lshrrev_b32 v58, 2, v1"); a("v_mul_u32_u24 v58, 896, v58"); a("v_and_b32 v24, 3, v1"); a("v_lshlrev_b32 v24, 4, v24"); a("v_add_u32 v58, v58, v24")
    ACC=[128,144]; AB=40; PK=160; RB=168
    nst=0
    def epilogue(i):
        o=[]; ac=ACC[i&1]
        for r in range(0,16,2): o.append(f"v_pk_mul_f32 {vr(ac+r,2)}, {vr(ac+r,2)}, s[38:39] op_sel_hi:[1,0]")
        for r in range(8): o.append(f"v_cvt_pk_bf16_f32 v{PK+r}, v{ac+2*r}, v{ac+2*r+1}")
        o.append(f"ds_write_b128 v56, {vr(PK,4)}"); o.append(f"ds_write_b128 v56, {vr(PK+4,4)} offset:16")
        for r in range(16): o.append(f"v_mov_b32 v{ac+r}, 0")
        return o
    def epilogue2(i):
        return [f"ds_read_b128 {vr(RB,4)}, v57", f"ds_read_b128 {vr(RB+4,4)}, v57 offset:1024", "s_waitcnt lgkmcnt(0)",
                f"s_add_u32 s40, s39, s{52+i}", f"s_add_u32 s41, s40, {16*896}",
                f"buffer_store_dwordx4 {vr(RB,4)}, v58, {W}, s40 offen {st}", f"buffer_store_dwordx4 {vr(RB+4,4)}, v58, {W}, s41 offen {st}"]
    for r in range(128,160): a(f"v_mov_b32 v{r}, 0")
    a("s_cmp_eq_u32 s25, 0"); a("s_cbranch_scc1 L_idle")
    AD=[32,176]
    for k in range(8): a(f"v_add_u32 v{176+k}, 16384, v{32+k}")
    lds=[]
    def issue(tag, ins): a(ins); lds.append(tag)
    def need(tag):
        idx=len(lds)-1-lds[::-1].index(tag); n=len(lds)-1-idx
        a(f"s_waitcnt lgkmcnt({min(n,15)})")
    flat=[(i,n) for i in range(7) for n in range(16)]
    nstores=[0]
    def sync_tile(i):
        lq=a.newlabel("L_sw")
        a("s_cmp_eq_u32 s27, 3"); a(f"s_cbranch_scc1 {lq}"); a(f"s_waitcnt vmcnt({4*(6-i)+nstores[0]})"); a(f"s_branch {lq}_e")
        a.label(lq); a(f"s_waitcnt vmcnt({min(63,8*(6-i)+nstores[0])})"); a.label(lq+"_e")
        a("s_barrier")
    def rd(q):
        i,n=flat[q]
        issue(("r",q), f"ds_read_b128 {vr(AB+4*(q%4),4)}, v{AD[i&1]+(n&7)} offset:{(n>>3)*256}")
    sync_tile(0); stp(4)
    for q in range(3): rd(q)
    pend=[]
    for q,(i,n) in enumerate(flat):
        if q+3<len(flat):
            i3,n3=flat[q+3]
            if n3==0: sync_tile(i3)
            rd(q+3)
            if n3==15 and i3+2<=6:
                for k in range(8): pend.append(("i", f"v_add_u32 v{AD[i3&1]+k}, 32768, v{AD[i3&1]+k}"))
        need(("r",q))
        a(f"v_mfma_f32_32x32x16_bf16 {vr(ACC[i&1],16)}, {vr(AB+4*(q%4),4)}, {vr(BF+4*n,4)}, {vr(ACC[i&1],16)}")
        if n==4 and i>0:
            j=i-1; ac=ACC[j&1]
            for r in range(0,16,2): pend.append(("i", f"v_pk_mul_f32 {vr(ac+r,2)}, {vr(ac+r,2)}, s[38:39] op_sel_hi:[1,0]"))
            for r in range(8): pend.append(("i", f"v_cvt_pk_bf16_f32 v{PK+r}, v{ac+2*r}, v{ac+2*r+1}"))
            pend.append(("l",("w",j,0), f"ds_write_b128 v56, {vr(PK,4)}")); pend.append(("l",("w",j,1), f"ds_write_b128 v56, {vr(PK+4,4)} offset:16"))
            for r in range(16): pend.append(("i", f"v_mov_b32 v{ac+r}, 0"))
            pend.append(("l",("b",j,0), f"ds_read_b128 {vr(RB,4)}, v57")); pend.append(("l",("b",j,1), f"ds_read_b128 {vr(RB+4,4)}, v57 offset:1024"))
            pend.append(("st",j))
        k=0
        while pend and k<3:
            it=pend[0]
            if it[0]=="st":
                if n<2 and False: break
                pend.pop(0); j=it[1]
                need(("b",j,1))
                a(f"s_add_u32 s40, s39, s{52+j}"); a(f"s_add_u32 s41, s40, {16*896}")
                a(f"buffer_store_dwordx4 {vr(RB,4)}, v58, {W}, s40 offen {st}"); a(f"buffer_store_dwordx4 {vr(RB+4,4)}, v58, {W}, s41 offen {st}")
                nstores[0]+=2; k=3
            elif it[0]=="l": pend.pop(0); issue(it[1],it[2]); k+=1
            else: pend.pop(0); a(it[1]); k+=1
    while pend:
        it=pend.pop(0)
        if it[0]=="st":
            j=it[1]; need(("b",j,1)); a(f"s_add_u32 s40, s39, s{52+j}"); a(f"s_add_u32 s41, s40, {16*896}")
            a(f"buffer_store_dwordx4 {vr(RB,4)}, v58, {W}, s40 offen {st}"); a(f"buffer_store_dwordx4 {vr(RB+4,4)}, v58, {W}, s41 offen {st}")
        elif it[0]=="l": issue(it[1],it[2])
        else: a(it[1])
    stp(5)
    a.nop(16)
    for x in epilogue(6): a(x)
    for x in epilogue2(6): a(x)
    stp(6)
    if fused:
        lg=a.newlabel("L_gw")
        a("s_waitcnt vmcnt(0)")
        a(f"v_mov_b32 v3, {L_CNT}"); a("v_mov_b32 v4, 1"); a("s_mov_b64 exec, 1"); a("ds_add_rtn_u32 v5, v3, v4"); a("s_waitcnt lgkmcnt(0)"); a("s_mov_b64 exec, -1")
        a("v_readfirstlane_b32 s28, v5"); a("s_cmp_eq_u32 s27, 3"); a("s_cselect_b32 s29, 1, 3"); a("s_cmp_eq_u32 s28, s29"); a(f"s_cbranch_scc0 {lg}")
        if CK.NONCE:
            get_nonce(a, S4(48), 6, 30, 40)
            a("s_lshl_b32 s28, s20, 3"); a("s_add_u32 s28, s28, s21"); a("s_lshl_b32 s28, s28, 2"); a(f"s_add_u32 s28, s28, {LY.GWF}"); set_flag(a, W, 28, 4, 3)
        else:
            a("s_lshl_b32 s28, s20, 7"); a(f"s_add_u32 s28, s28, {LY.GWC}"); a("v_mov_b32 v3, 0"); a("s_mov_b64 exec, 1"); a(f"buffer_atomic_add v4, v3, {W}, s28 offen sc1"); a("s_mov_b64 exec, -1")
        a.label(lg)
    a("s_branch L_ln")
    a.label("L_idle")
    for i in range(7): a("s_barrier")
    a.label("L_ln")
    if True:
        a("s_cmp_eq_u32 s22, 3"); a("s_cbranch_scc0 L_fill")
        if fused and CK.NONCE:
            get_nonce(a, S4(48), 6, 30, 40)
            a(f"s_mov_b32 s33, {LY.MODF}"); wait_flags(a, W, 33, 42, 9, 10, "v_mov_b32 v9, v1", 30, sleep=4, stride=7)
        else:
            a("v_mov_b32 v9, 0"); a("s_mov_b32 s30, 0")
            a.label("L_wm")
            a(f"s_mov_b32 s33, {LY.MODC}"); a(f"buffer_load_dword v10, v9, {W if fused else S4(48)}, "+("s33" if fused else "0")+" offen sc1"); a("s_waitcnt vmcnt(0)"); a("v_readfirstlane_b32 s31, v10"); a("s_nop 3")
            a(f"s_cmp_ge_u32 s31, {NM}"); a("s_cbranch_scc1 L_wm_ok"); a("s_sleep 2"); a("s_add_u32 s30, s30, 1"); a(f"s_cmp_lt_u32 s30, {POLL_MAX}"); a("s_cbranch_scc1 L_wm")
            a.label("L_wm_ok")
        a("v_and_b32 v3, 7, v1"); a("v_lshrrev_b32 v4, 3, v1"); a("s_and_b32 s28, s2, 3"); a("s_lshl_b32 s28, s28, 3"); a("v_add_u32 v5, s28, v3")
        a("s_lshr_b32 s29, s2, 2"); a("s_mul_i32 s29, s29, 28672")
        a("v_lshlrev_b32 v8, 5, v4"); a(f"s_mov_b32 s31, {LY.MOD}"); a(f"s_mov_b32 s32, {LY.MOD+448*4}")
        for i in range(7):
            a(f"buffer_load_dwordx4 {vr(128+8*i,4)}, v8, {W}, s31 offen offset:{256*i} sc1"); a(f"buffer_load_dwordx4 {vr(128+8*i+4,4)}, v8, {W}, s31 offen offset:{256*i+16} sc1")
            a(f"buffer_load_dwordx4 {vr(192+8*i,4)}, v8, {W}, s32 offen offset:{256*i} sc1"); a(f"buffer_load_dwordx4 {vr(192+8*i+4,4)}, v8, {W}, s32 offen offset:{256*i+16} sc1")
        X=64
        for i in range(7):
            for q in range(4):
                a(f"v_accvgpr_read_b32 v{32+4*i+q}, a{4*i+q}")
        for i in range(7):
            for q in range(4): unpack_lo(a,X+8*i+2*q,32+4*i+q); unpack_hi(a,X+8*i+2*q+1,32+4*i+q)
        ln_stats(a,X,56,10,12,13)
        a("s_waitcnt vmcnt(0)")
        for k in range(56):
            a(f"v_mul_f32 v{X+k}, v{X+k}, v11"); a(f"v_add_f32 v{192+k}, 1.0, v{192+k}"); a(f"v_fma_f32 v{X+k}, v{X+k}, v{192+k}, v{128+k}")
        for i in range(7):
            for q in range(4): a(f"v_cvt_pk_bf16_f32 v{32+4*i+q}, v{X+8*i+2*q}, v{X+8*i+2*q+1}")
        a("v_lshlrev_b32 v14, 9, v4"); a("v_lshlrev_b32 v15, 4, v5"); a("v_add_u32 v14, v14, v15")
        a(f"s_add_u32 s33, s29, {LY.HFRAG}")
        for i in range(7): a(f"buffer_store_dwordx4 {vr(32+4*i,4)}, v14, {W}, s33 offen {st}"); a("s_add_u32 s33, s33, 4096")
        a("v_lshrrev_b32 v16, 2, v4"); a("v_lshlrev_b32 v16, 9, v16"); a("v_bfe_u32 v17, v4, 1, 1"); a("v_lshlrev_b32 v17, 11, v17"); a("v_add_u32 v16, v16, v17")
        a("v_and_b32 v17, 1, v4"); a("v_lshlrev_b32 v18, 10, v17"); a("v_add_u32 v16, v16, v18"); a("v_add_u32 v16, v16, v15")
        a("v_cmp_eq_u32 vcc, 1, v17")
        a(f"s_add_u32 s33, s29, {LY.HPERM}")
        for i in range(7):
            d=32+4*i; t=64+8*i
            a(f"v_cndmask_b32 v{t}, v{d+2}, v{d}, vcc"); a(f"v_cndmask_b32 v{t+1}, v{d+3}, v{d+1}, vcc")
            a(f"v_cndmask_b32 v{t+2}, v{d}, v{d+2}, vcc"); a(f"v_cndmask_b32 v{t+3}, v{d+1}, v{d+3}, vcc")
            a(f"v_mov_b32_dpp v{t+4}, v{t} row_ror:8 row_mask:0xf bank_mask:0xf"); a(f"v_mov_b32_dpp v{t+5}, v{t+1} row_ror:8 row_mask:0xf bank_mask:0xf")
            a(f"v_cndmask_b32 v{d}, v{t+2}, v{t+4}, vcc"); a(f"v_cndmask_b32 v{d+1}, v{t+4}, v{t+2}, vcc")
            a(f"v_cndmask_b32 v{d+2}, v{t+3}, v{t+5}, vcc"); a(f"v_cndmask_b32 v{d+3}, v{t+5}, v{t+3}, vcc")
        for i in range(7):
            a(f"buffer_store_dwordx4 {vr(32+4*i,4)}, v16, {W}, s33 offen {st}"); a("s_add_u32 s33, s33, 4096")
    a.label("L_fill")
    a("v_lshlrev_b32 v12, 4, v0")
    def fills(regs):
        for (o,n,val) in regs:
            n=(n+4095)//4096*4096
            lab=a.newlabel("L_pz")
            for r in range(16,20): a(f"v_mov_b32 v{r}, {val}")
            a(f"s_lshl_b32 s28, s2, 12"); a(f"s_add_u32 s28, s28, {o}")
            a.label(lab)
            a(f"s_cmp_lt_u32 s28, {o+n}"); a(f"s_cbranch_scc0 {lab}_e")
            a(f"buffer_store_dwordx4 v[16:19], v12, {W}, s28 offen {st}")
            a(f"s_add_u32 s28, s28, {256*4096}"); a(f"s_branch {lab}")
            a.label(lab+"_e"); a("s_nop 1")
    def signal(ldsoff, dbgoff):
        lg=a.newlabel("L_sg")
        a("s_waitcnt vmcnt(0)")
        a(f"v_mov_b32 v3, {L_CNT+ldsoff}"); a("v_mov_b32 v4, 1"); a("s_mov_b64 exec, 1"); a("ds_add_rtn_u32 v5, v3, v4"); a("s_waitcnt lgkmcnt(0)"); a("s_mov_b64 exec, -1")
        a("v_readfirstlane_b32 s28, v5"); a("s_nop 3"); a("s_cmp_eq_u32 s28, 3"); a(f"s_cbranch_scc0 {lg}")
        a("s_and_b32 s28, s2, 7"); a("s_lshl_b32 s28, s28, 7"); a(f"s_add_u32 s28, s28, {LY.LNCC}"); a("v_mov_b32 v3, 0"); a("s_mov_b64 exec, 1"); a(f"buffer_atomic_add v4, v3, {W}, s28 offen sc1"); a("s_mov_b64 exec, -1")
        a.label(lg)
    if not fused:
        fills(REGC)
    def mem0():
        a("s_cmp_eq_u32 s2, 100"); a("s_cbranch_scc0 L_nomem0")
        mk_srd(a,52,'mem0',74)
        for half in range(2):
            a(f"v_add_u32 v13, {256*half}, v0")
            a("v_cmp_gt_u32 vcc, 448, v13"); a("s_and_saveexec_b64 s[24:25], vcc")
            a("v_and_b32 v14, 7, v13"); a("v_mul_u32_u24 v14, 896, v14"); a("v_lshrrev_b32 v15, 3, v13"); a("v_lshlrev_b32 v15, 4, v15"); a("v_add_u32 v14, v14, v15")
            a(f"buffer_load_dwordx4 v[16:19], v14, {S4(52)}, 0 offen"); a("s_waitcnt vmcnt(0)")
            a("v_lshlrev_b32 v15, 4, v13"); a(f"s_mov_b32 s28, {LY.MEM}"); a(f"buffer_store_dwordx4 v[16:19], v15, {W}, s28 offen {st}")
            a(f"s_mov_b32 s28, {LY.MEMX}"); a(f"buffer_store_dwordx4 v[16:19], v15, {W}, s28 offen {st}"); a("s_nop 1")
            a("s_mov_b64 exec, s[24:25]")
        a.label("L_nomem0")
    if not fused:
        mem0(); fills(REGL)
    else:
        if True:
            lg=a.newlabel("L_ls")
            a("s_cmp_eq_u32 s22, 3"); a(f"s_cbranch_scc0 {lg}")
            a("s_waitcnt vmcnt(0)")
            if CK.NONCE:
                a("s_lshl_b32 s28, s2, 2"); a(f"s_add_u32 s28, s28, {LY.LNF}"); set_flag(a, W, 28, 4, 3)
            else:
                a("s_and_b32 s28, s2, 7"); a("s_lshl_b32 s28, s28, 7"); a(f"s_add_u32 s28, s28, {LY.LNCC}"); a("v_mov_b32 v3, 0"); a("v_mov_b32 v4, 1"); a("s_mov_b64 exec, 1"); a(f"buffer_atomic_add v4, v3, {W}, s28 offen sc1"); a("s_mov_b64 exec, -1")
            a.label(lg)
    if not fused: a("s_waitcnt vmcnt(0)")
    stp(7)
    if ST:
        for k in range(6): a(f"v_mov_b32 v{20+k}, s{80+2*k}")
        a("v_mov_b32 v26, s22"); a("v_mov_b32 v27, s25")
        a("s_lshl_b32 s28, s2, 2"); a("s_add_u32 s28, s28, s22"); a("s_lshl_b32 s28, s28, 5"); a(f"s_add_u32 s28, s28, {LY.DBGS+(1<<19)+(1<<18)}"); a("v_mov_b32 v30, 0"); a("s_mov_b64 exec, 1")
        a(f"buffer_store_dwordx4 v[20:23], v30, {W}, s28 offen"); a(f"buffer_store_dwordx4 v[24:27], v30, {W}, s28 offen offset:16"); a("s_mov_b64 exec, -1"); a("s_waitcnt vmcnt(0)")
def gen_k0():
    a=Asm()
    a("s_cmp_lt_u32 s2, 256"); a("s_cbranch_scc0 L_end")
    k0_body(a,84,"",False,0)
    a.label("L_end")
    return a.text()
if __name__=="__main__": print(len(gen_k0().splitlines()))

def gen_init():
    a=Asm()
    a("s_cmp_lt_u32 s2, 256"); a("s_cbranch_scc0 L_end")
    srds(a,[(16,'ws'),(52,'mem0')])
    W=S4(16)
    a("v_lshlrev_b32 v12, 4, v0")
    for (o,n,val) in REG:
        n=(n+4095)//4096*4096
        lab=a.newlabel("L_pz")
        for r in range(16,20): a(f"v_mov_b32 v{r}, {val}")
        a(f"s_lshl_b32 s28, s2, 12"); a(f"s_add_u32 s28, s28, {o}")
        a.label(lab)
        a(f"s_cmp_lt_u32 s28, {o+n}"); a(f"s_cbranch_scc0 {lab}_e")
        a(f"buffer_store_dwordx4 v[16:19], v12, {W}, s28 offen")
        a(f"s_add_u32 s28, s28, {256*4096}"); a(f"s_branch {lab}")
        a.label(lab+"_e"); a("s_nop 1")
    a("s_cmp_eq_u32 s2, 255"); a("s_cbranch_scc0 L_end")
    for half in range(2):
        a(f"v_add_u32 v13, {256*half}, v0")
        a("v_cmp_gt_u32 vcc, 448, v13"); a("s_and_saveexec_b64 s[24:25], vcc")
        a("v_and_b32 v14, 7, v13"); a("v_mul_u32_u24 v14, 896, v14"); a("v_lshrrev_b32 v15, 3, v13"); a("v_lshlrev_b32 v15, 4, v15"); a("v_add_u32 v14, v14, v15")
        a(f"buffer_load_dwordx4 v[16:19], v14, {S4(52)}, 0 offen"); a("s_waitcnt vmcnt(0)")
        a("v_lshlrev_b32 v15, 4, v13"); a(f"s_mov_b32 s28, {LY.MEM}"); a(f"buffer_store_dwordx4 v[16:19], v15, {W}, s28 offen")
        a(f"s_mov_b32 s28, {LY.MEMX}"); a(f"buffer_store_dwordx4 v[16:19], v15, {W}, s28 offen"); a("s_nop 1")
        a("s_mov_b64 exec, s[24:25]")
    a.label("L_end"); a("s_waitcnt vmcnt(0)")
    return a.text()

def ln_part(a, W, NM, st):
    a(f"s_mov_b32 s33, {LY.MODF}"); wait_flags(a, W, 33, NM, 9, 10, "v_mov_b32 v9, v1", 30, sleep=2)
    a("v_and_b32 v3, 7, v1"); a("v_lshrrev_b32 v4, 3, v1"); a("s_and_b32 s28, s2, 3"); a("s_lshl_b32 s28, s28, 3"); a("v_add_u32 v5, s28, v3")
    a("s_lshr_b32 s29, s2, 2"); a("s_mul_i32 s29, s29, 28672")
    a("v_lshlrev_b32 v8, 5, v4"); a(f"s_mov_b32 s31, {LY.MOD}"); a(f"s_mov_b32 s32, {LY.MOD+448*4}")
    for i in range(7):
        a(f"buffer_load_dwordx4 {vr(128+8*i,4)}, v8, {W}, s31 offen offset:{256*i} sc1"); a(f"buffer_load_dwordx4 {vr(128+8*i+4,4)}, v8, {W}, s31 offen offset:{256*i+16} sc1")
        a(f"buffer_load_dwordx4 {vr(192+8*i,4)}, v8, {W}, s32 offen offset:{256*i} sc1"); a(f"buffer_load_dwordx4 {vr(192+8*i+4,4)}, v8, {W}, s32 offen offset:{256*i+16} sc1")
    X=64
    for i in range(7):
        for q in range(4):
            a(f"v_accvgpr_read_b32 v{32+4*i+q}, a{4*i+q}")
    for i in range(7):
        for q in range(4): unpack_lo(a,X+8*i+2*q,32+4*i+q); unpack_hi(a,X+8*i+2*q+1,32+4*i+q)
    ln_stats(a,X,56,10,12,13)
    a("s_waitcnt vmcnt(0)")
    for k in range(56):
        a(f"v_mul_f32 v{X+k}, v{X+k}, v11"); a(f"v_add_f32 v{192+k}, 1.0, v{192+k}"); a(f"v_fma_f32 v{X+k}, v{X+k}, v{192+k}, v{128+k}")
    for i in range(7):
        for q in range(4): a(f"v_cvt_pk_bf16_f32 v{32+4*i+q}, v{X+8*i+2*q}, v{X+8*i+2*q+1}")
    a("v_lshlrev_b32 v14, 9, v4"); a("v_lshlrev_b32 v15, 4, v5"); a("v_add_u32 v14, v14, v15")
    a(f"s_add_u32 s33, s29, {LY.HFRAG}")
    for i in range(7): a(f"buffer_store_dwordx4 {vr(32+4*i,4)}, v14, {W}, s33 offen {st}"); a("s_add_u32 s33, s33, 4096")
    a("v_lshrrev_b32 v16, 2, v4"); a("v_lshlrev_b32 v16, 9, v16"); a("v_bfe_u32 v17, v4, 1, 1"); a("v_lshlrev_b32 v17, 11, v17"); a("v_add_u32 v16, v16, v17")
    a("v_and_b32 v17, 1, v4"); a("v_lshlrev_b32 v18, 10, v17"); a("v_add_u32 v16, v16, v18"); a("v_add_u32 v16, v16, v15")
    a("v_cmp_eq_u32 vcc, 1, v17")
    a(f"s_add_u32 s33, s29, {LY.HPERM}")
    for i in range(7):
        d=32+4*i; t=64+8*i
        a(f"v_cndmask_b32 v{t}, v{d+2}, v{d}, vcc"); a(f"v_cndmask_b32 v{t+1}, v{d+3}, v{d+1}, vcc")
        a(f"v_cndmask_b32 v{t+2}, v{d}, v{d+2}, vcc"); a(f"v_cndmask_b32 v{t+3}, v{d+1}, v{d+3}, vcc")
        a(f"v_mov_b32_dpp v{t+4}, v{t} row_ror:8 row_mask:0xf bank_mask:0xf"); a(f"v_mov_b32_dpp v{t+5}, v{t+1} row_ror:8 row_mask:0xf bank_mask:0xf")
        a(f"v_cndmask_b32 v{d}, v{t+2}, v{t+4}, vcc"); a(f"v_cndmask_b32 v{d+1}, v{t+4}, v{t+2}, vcc")
        a(f"v_cndmask_b32 v{d+2}, v{t+3}, v{t+5}, vcc"); a(f"v_cndmask_b32 v{d+3}, v{t+5}, v{t+3}, vcc")
    for i in range(7):
        a(f"buffer_store_dwordx4 {vr(32+4*i,4)}, v16, {W}, s33 offen {st}"); a("s_add_u32 s33, s33, 4096")
    a("s_waitcnt vmcnt(0)")
    a("s_lshl_b32 s28, s2, 2"); a(f"s_add_u32 s28, s28, {LY.LNF}"); set_flag(a, W, 28, 4, 3)
```

```python
import os
from common_k import *
from k0 import f2u, SC, ln_stats
import layout as LY
LA=0; LW=114688; L_OUT=LW+4*8192; L_CNT=L_OUT+8192
PITCH=64
REGC=[(LY.MEM+7168,64*7168,-1),(LY.PX,64*16*512,-1),(LY.PM,64*4*512,-1),(LY.MEMX+7168,63*7168,-1)]
REGL=[(LY.PFX,64*2*16*1024,-1),(LY.PFM,64*2*4*1024,-1),(LY.R,8192,-1),(LY.ACT,2*1792*4,-1),(LY.ACTB,2*1792*4,-1),(LY.H2,2048*896,-1),(LY.STATS,64*7*32*16,-1)]
WS=16; DBG=48
def kst(a,k):
    if os.environ.get('STAMP0'): a(f's_memrealtime s[{80+2*k}:{81+2*k}]'); a('s_waitcnt lgkmcnt(0)')
def kout(a,kind):
    if not os.environ.get('STAMP0'): return
    W=S4(WS)
    for k in range(6): a(f'v_mov_b32 v{20+k}, s{80+2*k}')
    a('v_mov_b32 v26, s22'); a(f'v_mov_b32 v27, {kind}')
    a('s_lshl_b32 s28, s2, 2'); a('s_add_u32 s28, s28, s22'); a('s_lshl_b32 s28, s28, 5'); a(f's_add_u32 s28, s28, {LY.DBGS+(1<<19)+(1<<18)}'); a('v_mov_b32 v30, 0'); a('s_mov_b64 exec, 1')
    a(f'buffer_store_dwordx4 v[20:23], v30, {W}, s28 offen'); a(f'buffer_store_dwordx4 v[24:27], v30, {W}, s28 offen offset:16'); a('s_mov_b64 exec, -1')
def setup(a):
    a("v_and_b32 v1, 63, v0"); a("v_lshrrev_b32 v2, 6, v0"); a("s_nop 0"); a("v_readfirstlane_b32 s22, v2")
    for n,t in (('Wq',60),('Wk',62),('Wv',64),('Wo',66),('ws',68),('wmod',70),('c',72),('mem0',74),('x',76),('dbg',78)): a(f"s_load_dwordx2 s[{t}:{t+1}], s[0:1], {KA[n]}")
    a("s_waitcnt lgkmcnt(0)")
    mk_srd(a,WS,'ws',68); mk_srd(a,44,'x',76); mk_srd(a,DBG,'dbg',78)
    a(f"v_mov_b32 v3, {L_CNT}"); a("v_mov_b32 v4, 0"); a("v_mov_b32 v5, 0"); a("v_mov_b32 v6, 0"); a("v_mov_b32 v7, 0"); a("ds_write_b128 v3, v[4:7]"); a("s_waitcnt lgkmcnt(0)"); a("s_barrier")

def gemm_phase(a, ph, sj, first):
    W=S4(WS); st="sc1"; tag=f"q{ph}"
    L=lambda n: a.newlabel(n)
    a(f"s_mul_i32 s23, s{sj}, 4682"); a("s_lshr_b32 s23, s23, 16")
    a("s_mul_i32 s21, s23, 14"); a(f"s_sub_u32 s21, s{sj}, s21")
    a("s_and_b32 s26, s21, 1"); a("s_lshr_b32 s27, s21, 1")
    a("s_and_b32 s24, s22, 1"); a("s_lshl_b32 s28, s27, 1"); a("s_add_u32 s24, s24, s28")
    if ph==0: mk_srd(a,8,'Wq',60); mk_srd(a,12,'Wk',62)
    else: mk_srd(a,8,'Wv',64); mk_srd(a,12,'Wo',66)
    BF=64; T=192
    a("v_and_b32 v20, 31, v1"); a("v_lshrrev_b32 v21, 5, v1")
    if ph==0:
        a("v_lshlrev_b32 v22, 13, v20"); a("v_lshlrev_b32 v23, 4, v21"); a("v_add_u32 v22, v22, v23")
        a("s_lshl_b32 s35, s24, 18"); a("s_lshl_b32 s33, s23, 9"); a("s_add_u32 s35, s35, s33")
        for kk in range(16): a(f"buffer_load_dwordx4 {vr(BF+4*kk,4)}, v22, {S4(12)}, s35 offen offset:{kk*32}")
    else:
        a("v_lshrrev_b32 v24, 2, v1"); a("v_and_b32 v25, 3, v1")
        a("v_mul_u32_u24 v26, 896, v24"); a("v_lshlrev_b32 v27, 4, v25"); a("v_add_u32 v26, v26, v27")
        a(f"v_mul_u32_u24 v28, {PITCH}, v24"); a("v_add_u32 v28, v28, v27"); a("s_lshl_b32 s36, s22, 13"); a(f"s_add_u32 s36, s36, {LW}"); a("v_add_u32 v28, s36, v28")
        a(f"s_mul_i32 s35, s23, {256*896}"); a("s_lshl_b32 s33, s24, 6"); a("s_add_u32 s35, s35, s33")
        for i in range(16):
            a(f"buffer_load_dwordx4 {vr(T+4*i,4)}, v26, {S4(12)}, s35 offen"); a(f"s_add_u32 s35, s35, {16*896}")
    a("s_lshr_b32 s28, s22, 1"); a("s_lshl_b32 s28, s28, 5"); a("s_and_b32 s29, s22, 1"); a("s_lshl_b32 s30, s29, 1"); a("s_add_u32 s28, s28, s30"); a("s_lshl_b32 s29, s29, 3")
    for jj in range(4):
        a(f"v_add_u32 v24, {8*(jj&1)+4*(jj>>1)}, v21"); a("v_add_u32 v24, s28, v24"); a("v_lshlrev_b32 v24, 13, v24")
        a(f"v_add_u32 v25, {2*jj}, v21"); a("v_add_u32 v25, s29, v25"); a("v_xor_b32 v25, v25, v20"); a("v_lshlrev_b32 v25, 4, v25"); a(f"v_add_u32 v{8+jj}, v24, v25")
    rounds=[(0,4),(1,5),(2,6),(3,)]
    for rr in rounds:
        for p in rr:
            a("s_mul_i32 s28, s26, 7"); a(f"s_add_u32 s28, s28, {p}")
            a("s_lshr_b32 s29, s28, 1"); a("s_lshl_b32 s29, s29, 6"); a("s_and_b32 s30, s28, 1"); a("s_lshl_b32 s30, s30, 4"); a("s_add_u32 s29, s29, s30")
            a("s_lshl_b32 s29, s29, 13"); a("s_lshl_b32 s30, s23, 9"); a("s_add_u32 s32, s29, s30")
            a("s_lshl_b32 s31, s22, 12"); a(f"s_add_u32 s31, s31, {LA+p*16384}")
            for jj in range(4):
                a("s_mov_b32 m0, s31"); a("s_add_u32 s31, s31, 1024")
                a(f"buffer_load_dwordx4 v{8+jj}, {S4(8)}, s32 offen lds")
    NDMA=28
    if first:
        a("v_mov_b32 v14, 0"); a(f"buffer_load_dwordx2 v[12:13], v14, {S4(DBG)}, 0 offen sc1")
    if not first:
        a("s_waitcnt vmcnt(44)")
        lg=L("L_gf")
        nonce_try(a, S4(DBG), 12, 16, 30, 40)
        a(f"v_mov_b32 v3, {L_CNT}"); a("v_mov_b32 v4, 1"); a("s_mov_b64 exec, 1"); a("ds_add_rtn_u32 v5, v3, v4"); a("s_waitcnt lgkmcnt(0)"); a("s_mov_b64 exec, -1")
        a("v_readfirstlane_b32 s28, v5"); a("s_nop 3"); a("s_cmp_eq_u32 s28, 3"); a(f"s_cbranch_scc0 {lg}")
        a(f"s_lshl_b32 s28, s{sj}, 2"); a(f"s_add_u32 s28, s28, {LY.GWF+1024*(1-ph)}"); set_flag(a, W, 28, 4, 3)
        a.label(lg)
        l7=L("L_ln3")
        a("s_cmp_eq_u32 s22, 3"); a(f"s_cbranch_scc0 {l7}")
        worker_ln(a, sj)
        a.label(l7)
        kst(a,3)
    if ph==1:
        a("v_and_b32 v24, 15, v1"); a("v_lshrrev_b32 v25, 2, v24"); a("v_lshlrev_b32 v27, 3, v21"); a("v_add_u32 v25, v25, v27")
        a(f"v_mul_u32_u24 v29, {PITCH}, v25"); a("v_and_b32 v25, 3, v24"); a("v_lshlrev_b32 v25, 3, v25"); a("v_add_u32 v29, v29, v25")
        a("v_bfe_u32 v25, v1, 4, 1"); a("v_lshlrev_b32 v25, 5, v25"); a("v_add_u32 v29, v29, v25"); a("v_add_u32 v29, s36, v29")
        for half in range(2):
            for i in range(8):
                a(f"s_waitcnt vmcnt({NDMA+(1 if first else 0)+15-(half*8+i)})")
                a(f"ds_write_b128 v28, {vr(T+4*(half*8+i),4)} offset:{i*16*PITCH}")
            a("s_waitcnt lgkmcnt(0)")
            for k8 in range(8):
                kk=half*8+k8
                a(f"ds_read_b64_tr_b16 {vr(BF+4*kk,2)}, v29 offset:{16*k8*PITCH}"); a(f"ds_read_b64_tr_b16 {vr(BF+4*kk+2,2)}, v29 offset:{(16*k8+4)*PITCH}")
            a("s_waitcnt lgkmcnt(0)")
        NEXTRA=1
    a("v_and_b32 v22, 15, v20"); a("v_lshlrev_b32 v23, 9, v20")
    a("s_lshr_b32 s28, s22, 1"); a("s_lshl_b32 s28, s28, 16")
    for k8 in range(8):
        a(f"v_add_u32 v24, {2*k8}, v21"); a("v_xor_b32 v24, v24, v22"); a("v_lshlrev_b32 v24, 4, v24"); a(f"v_add_u32 v{32+k8}, v23, v24"); a(f"v_add_u32 v{32+k8}, s28, v{32+k8}")
        a(f"v_add_u32 v{176+k8}, 16384, v{32+k8}")
    a(f"s_mov_b32 s38, {f2u(SC) if ph==0 else f2u(1.0):#x}")
    a("s_mul_i32 s39, s23, 448"); a(f"s_add_u32 s39, s39, {7168*ph}"); a("s_lshl_b32 s33, s24, 5"); a("s_add_u32 s39, s39, s33"); a("s_mul_i32 s39, s39, 896"); a(f"s_add_u32 s39, s39, {LY.WP}")
    a("s_mul_i32 s33, s26, 448"); a("s_add_u32 s39, s39, s33"); a("s_lshr_b32 s33, s22, 1"); a("s_lshl_b32 s33, s33, 8"); a("s_add_u32 s39, s39, s33")
    a("s_lshl_b32 s34, s22, 11"); a(f"s_add_u32 s34, s34, {L_OUT}")
    a("v_lshlrev_b32 v56, 6, v20"); a("v_lshlrev_b32 v24, 5, v21"); a("v_add_u32 v56, v56, v24"); a("v_add_u32 v56, s34, v56")
    a("v_lshlrev_b32 v57, 4, v1"); a("v_add_u32 v57, s34, v57")
    a("v_lshrrev_b32 v58, 2, v1"); a("v_mul_u32_u24 v58, 896, v58"); a("v_and_b32 v24, 3, v1"); a("v_lshlrev_b32 v24, 4, v24"); a("v_add_u32 v58, v58, v24")
    ACC=[128,144]; AB=40; PK=160; RB=168; AD=[32,176]
    for r in range(128,160): a(f"v_mov_b32 v{r}, 0")
    young=[21,13,5,1] if first else [20,12,4,0]
    lj=L("L_gj"); l1=L("L_g1")
    a("s_cmp_ge_u32 s22, 2"); a(f"s_cbranch_scc1 {l1}")
    for nt_ in (4,3):
        if nt_==3: a.label(l1)
        lds=[]
        def issue(tag_, ins): a(ins); lds.append(tag_)
        def need(tag_):
            idx=len(lds)-1-lds[::-1].index(tag_); a(f"s_waitcnt lgkmcnt({min(len(lds)-1-idx,15)})")
        flat=[(i,n) for i in range(nt_) for n in range(16)]
        nst=[0]
        def sync(r):
            a(f"s_waitcnt vmcnt({young[r]+nst[0]})"); a("s_barrier")
        def rd(q):
            i,n=flat[q]; issue(("r",q), f"ds_read_b128 {vr(AB+4*(q%4),4)}, v{AD[i&1]+(n&7)} offset:{(n>>3)*256}")
        def st_(j):
            need(("b",j,1)); a(f"s_add_u32 s40, s39, {j*64}"); a(f"s_add_u32 s41, s40, {16*896}")
            a(f"buffer_store_dwordx4 {vr(RB,4)}, v58, {W}, s40 offen {st}"); a(f"buffer_store_dwordx4 {vr(RB+4,4)}, v58, {W}, s41 offen {st}"); nst[0]+=2
        def epi(j):
            ac=ACC[j&1]; o=[]
            for r in range(0,16,2): o.append(("i", f"v_pk_mul_f32 {vr(ac+r,2)}, {vr(ac+r,2)}, s[38:39] op_sel_hi:[1,0]"))
            for r in range(8): o.append(("i", f"v_cvt_pk_bf16_f32 v{PK+r}, v{ac+2*r}, v{ac+2*r+1}"))
            o.append(("l",("w",j,0), f"ds_write_b128 v56, {vr(PK,4)}")); o.append(("l",("w",j,1), f"ds_write_b128 v56, {vr(PK+4,4)} offset:16"))
            for r in range(16): o.append(("i", f"v_mov_b32 v{ac+r}, 0"))
            o.append(("l",("b",j,0), f"ds_read_b128 {vr(RB,4)}, v57")); o.append(("l",("b",j,1), f"ds_read_b128 {vr(RB+4,4)}, v57 offset:1024"))
            o.append(("st",j)); return o
        sync(0)
        for q in range(3): rd(q)
        pend=[]
        def pop():
            it=pend.pop(0)
            if it[0]=="st": st_(it[1]); return 3
            if it[0]=="l": issue(it[1],it[2]); return 1
            a(it[1]); return 1
        for q,(i,n) in enumerate(flat):
            if q+3<len(flat):
                i3,n3=flat[q+3]
                if n3==0: sync(i3)
                rd(q+3)
                if n3==15 and i3+2<nt_:
                    for k in range(8): pend.append(("i", f"v_add_u32 v{AD[i3&1]+k}, 32768, v{AD[i3&1]+k}"))
            need(("r",q))
            a(f"v_mfma_f32_32x32x16_bf16 {vr(ACC[i&1],16)}, {vr(AB+4*(q%4),4)}, {vr(BF+4*n,4)}, {vr(ACC[i&1],16)}")
            if n==4 and i>0: pend+=epi(i-1)
            k=0
            while pend and k<3: k+=pop()
        while pend: pop()
        if nt_==3: sync(3)
        a.nop(16)
        pend=epi(nt_-1)
        while pend: pop()
        if nt_==4: a(f"s_branch {lj}")
    a.label(lj)

def worker_k0(a, sj):
    W=S4(WS)
    kst(a,0)
    a("v_lshlrev_b32 v12, 4, v0")
    for r in range(16,20): a(f"v_mov_b32 v{r}, -1")
    for (o,n,val) in REGC:
        n=(n+4095)//4096*4096; lab=a.newlabel("L_pz")
        a(f"s_lshl_b32 s28, s{sj}, 12"); a(f"s_add_u32 s28, s28, {o}")
        a.label(lab); a(f"s_cmp_lt_u32 s28, {o+n}"); a(f"s_cbranch_scc0 {lab}_e")
        a(f"buffer_store_dwordx4 v[16:19], v12, {W}, s28 offen sc1"); a(f"s_add_u32 s28, s28, {224*4096}"); a(f"s_branch {lab}"); a.label(lab+"_e")
    lm=a.newlabel("L_m0")
    a(f"s_cmp_eq_u32 s{sj}, 100"); a(f"s_cbranch_scc0 {lm}")
    mk_srd(a,52,'mem0',74)
    for part in range(2):
        a(f"v_add_u32 v13, {256*part}, v0"); a("v_cmp_gt_u32 vcc, 448, v13"); a("s_and_saveexec_b64 s[30:31], vcc")
        a("v_and_b32 v14, 7, v13"); a("v_mul_u32_u24 v14, 896, v14"); a("v_lshrrev_b32 v15, 3, v13"); a("v_lshlrev_b32 v15, 4, v15"); a("v_add_u32 v14, v14, v15")
        a(f"buffer_load_dwordx4 v[16:19], v14, {S4(52)}, 0 offen"); a("s_waitcnt vmcnt(0)")
        a("v_lshlrev_b32 v15, 4, v13"); a(f"s_mov_b32 s28, {LY.MEM}"); a(f"buffer_store_dwordx4 v[16:19], v15, {W}, s28 offen sc1")
        a(f"s_mov_b32 s28, {LY.MEMX}"); a(f"buffer_store_dwordx4 v[16:19], v15, {W}, s28 offen sc1"); a("s_nop 1"); a("s_mov_b64 exec, s[30:31]")
    a.label(lm)
    l3=a.newlabel("L_x3")
    a("s_cmp_eq_u32 s22, 3"); a(f"s_cbranch_scc0 {l3}"); worker_ln_prefetch_x(a, sj); a.label(l3)
    kst(a,1)
    gemm_phase(a,1,sj,True)
    kst(a,2)
    l6=a.newlabel("L_s3")
    a("s_cmp_eq_u32 s22, 3"); a(f"s_cbranch_scc0 {l6}"); worker_ln_stats(a); a.label(l6)
    a("s_barrier")
    l4=a.newlabel("L_m3")
    a("s_cmp_eq_u32 s22, 3"); a(f"s_cbranch_scc0 {l4}"); worker_ln_loads(a); a.label(l4)
    gemm_phase(a,0,sj,False)
    a("s_barrier")
    kst(a,4)
    lg=a.newlabel("L_uf")
    a("s_waitcnt vmcnt(0)")
    a(f"v_mov_b32 v3, {L_CNT+4}"); a("v_mov_b32 v4, 1"); a("s_mov_b64 exec, 1"); a("ds_add_rtn_u32 v5, v3, v4"); a("s_waitcnt lgkmcnt(0)"); a("s_mov_b64 exec, -1")
    a("v_readfirstlane_b32 s28, v5"); a("s_nop 3"); a("s_cmp_eq_u32 s28, 3"); a(f"s_cbranch_scc0 {lg}")
    a(f"s_lshl_b32 s28, s{sj}, 2"); a(f"s_add_u32 s28, s28, {LY.GWF}"); set_flag(a, W, 28, 4, 3)
    a.label(lg)
    a("v_lshlrev_b32 v249, 2, v1"); a(f"buffer_load_dword v250, v249, {S4(DBG)}, 0 offen sc1")
    kst(a,5); kout(a,0)

def mod_job(a, W, stw, SW=56, SC_=40, mid=None, extra=0):
    mk_srd(a,SW,'wmod',70); mk_srd(a,SC_,'c',72)
    a("v_and_b32 v30, 3, v1"); a("v_lshrrev_b32 v31, 2, v1"); a("v_mul_u32_u24 v32, 56, v31")
    M0=192; MW=64; SV=208
    for j in range(14): a(f"buffer_load_dword v{M0+j}, v32, {S4(SC_)}, 0 offen offset:{4*j}")
    a("v_mul_u32_u24 v33, 28, v31"); a("s_movk_i32 s38, 5376"); a("v_mul_lo_u32 v33, v33, s38"); a("v_lshlrev_b32 v34, 4, v30"); a("v_add_u32 v33, v33, v34")
    a(f"s_lshl_b32 s39, s{stw}, 6")
    for j in range(28):
        a(f"buffer_load_dwordx4 {vr(MW+4*j,4)}, v33, {S4(SW)}, s39 offen"); a("s_add_u32 s39, s39, 5376")
    if mid: mid()
    a(f"s_waitcnt vmcnt({28+extra})")
    for j in range(28):
        r=SV+j
        (unpack_lo if j%2==0 else unpack_hi)(a,r,M0+j//2)
        a(f"v_mul_f32 v35, 0xbfb8aa3b, v{r}"); a("v_exp_f32 v35, v35"); a("s_nop 0"); a("v_add_f32 v35, 1.0, v35"); a("v_rcp_f32 v35, v35"); a("s_nop 0")
        a(f"v_mul_f32 v{r}, v{r}, v35"); a(f"v_cvt_pk_bf16_f32 v{r}, v{r}, v{r}"); a(f"v_lshlrev_b32 v{r}, 16, v{r}")
    for r in range(40,48): a(f"v_mov_b32 v{r}, 0")
    for j in range(28):
        a(f"s_waitcnt vmcnt({27-j+extra})")
        for q in range(4):
            a(f"v_lshlrev_b32 v36, 16, v{MW+4*j+q}"); a(f"v_and_b32 v37, 0xffff0000, v{MW+4*j+q}")
            a(f"v_fmac_f32 v{40+2*q}, v36, v{SV+j}"); a(f"v_fmac_f32 v{41+2*q}, v37, v{SV+j}")
    for r in range(40,48):
        a("s_nop 1"); a(f"v_add_f32_dpp v{r}, v{r}, v{r} row_ror:4 row_mask:0xf bank_mask:0xf"); xred(a,"v_add_f32",r,48)
    for r in range(40,48): a(f"v_cvt_pk_bf16_f32 v{r}, v{r}, v{r}"); a(f"v_lshlrev_b32 v{r}, 16, v{r}")
    a("v_lshlrev_b32 v50, 5, v30"); a(f"s_lshl_b32 s38, s{stw}, 7"); a(f"s_add_u32 s38, s38, {LY.MOD}")
    a("s_mov_b64 exec, 0xf"); a(f"buffer_store_dwordx4 v[40:43], v50, {W}, s38 offen sc1"); a(f"buffer_store_dwordx4 v[44:47], v50, {W}, s38 offen offset:16 sc1"); a("s_mov_b64 exec, -1")
    a("s_waitcnt vmcnt(0)")

def ln_job(a, W, sjob, xr, SA, CA, O=lambda i: 24+4*i, MR=20, RS=21, flag=True):
    if not callable(CA):
        CA0=CA; CA=lambda k: CA0+k
    a("v_and_b32 v3, 7, v1"); a("v_lshrrev_b32 v4, 3, v1")
    a(f"s_and_b32 s29, s{sjob}, 3"); a("s_lshl_b32 s29, s29, 3"); a("v_add_u32 v5, s29, v3"); a(f"s_lshr_b32 s29, s{sjob}, 2"); a("s_mul_i32 s29, s29, 28672")
    for i in range(7):
        for q in range(4):
            src=xr+4*i+q; k=8*i+2*q
            unpack_lo(a,12,src); unpack_hi(a,13,src)
            a(f"v_fma_f32 v12, v12, v{RS}, -v{MR}"); a(f"v_fma_f32 v13, v13, v{RS}, -v{MR}")
            a(f"v_fma_f32 v12, v12, v{CA(k)}, v{SA+k}"); a(f"v_fma_f32 v13, v13, v{CA(k+1)}, v{SA+k+1}")
            a(f"v_cvt_pk_bf16_f32 v{52+q}, v12, v13")
        for q in range(4): a(f"v_mov_b32 v{O(i)+q}, v{52+q}")
    a("v_lshlrev_b32 v14, 9, v4"); a("v_lshlrev_b32 v15, 4, v5"); a("v_add_u32 v14, v14, v15")
    a(f"s_add_u32 s33, s29, {LY.HFRAG}")
    for i in range(7): a(f"buffer_store_dwordx4 {vr(O(i),4)}, v14, {W}, s33 offen sc1"); a("s_add_u32 s33, s33, 4096")
    a("v_lshrrev_b32 v16, 2, v4"); a("v_lshlrev_b32 v16, 9, v16"); a("v_bfe_u32 v17, v4, 1, 1"); a("v_lshlrev_b32 v17, 11, v17"); a("v_add_u32 v16, v16, v17")
    a("v_and_b32 v17, 1, v4"); a("v_lshlrev_b32 v18, 10, v17"); a("v_add_u32 v16, v16, v18"); a("v_add_u32 v16, v16, v15")
    a("v_cmp_eq_u32 vcc, 1, v17"); a(f"s_add_u32 s33, s29, {LY.HPERM}"); a("s_nop 1")
    for i in range(7):
        d=O(i); o=xr+4*i; t=52
        a(f"v_cndmask_b32 v{t}, v{d+2}, v{d}, vcc"); a(f"v_cndmask_b32 v{t+1}, v{d+3}, v{d+1}, vcc")
        a(f"v_cndmask_b32 v{t+2}, v{d}, v{d+2}, vcc"); a(f"v_cndmask_b32 v{t+3}, v{d+1}, v{d+3}, vcc")
        a(f"v_mov_b32_dpp v{t+4}, v{t} row_ror:8 row_mask:0xf bank_mask:0xf"); a(f"v_mov_b32_dpp v{t+5}, v{t+1} row_ror:8 row_mask:0xf bank_mask:0xf")
        a(f"v_cndmask_b32 v{o}, v{t+2}, v{t+4}, vcc"); a(f"v_cndmask_b32 v{o+1}, v{t+4}, v{t+2}, vcc")
        a(f"v_cndmask_b32 v{o+2}, v{t+3}, v{t+5}, vcc"); a(f"v_cndmask_b32 v{o+3}, v{t+5}, v{t+3}, vcc")
    for i in range(7): a(f"buffer_store_dwordx4 {vr(xr+4*i,4)}, v16, {W}, s33 offen sc1"); a("s_add_u32 s33, s33, 4096")
    a("s_waitcnt vmcnt(0)")
    a(f"s_lshl_b32 s28, s{sjob}, 2"); a(f"s_add_u32 s28, s28, {LY.LNF}"); set_flag(a, W, 28, 4, 3)

def ln_stats_from(a, xr, MR=20, RS=21):
    X=64
    for i in range(7):
        for q in range(4): unpack_lo(a,X+8*i+2*q,xr+4*i+q); unpack_hi(a,X+8*i+2*q+1,xr+4*i+q)
    ln_stats(a,X,56,10,12,13)
    a(f"v_mul_f32 v{MR}, v10, v11"); a(f"v_mov_b32 v{RS}, v11")

def x_loads(a, sjob, dst):
    a("v_and_b32 v3, 7, v1"); a("v_lshrrev_b32 v4, 3, v1")
    a(f"s_and_b32 s29, s{sjob}, 3"); a("s_lshl_b32 s29, s29, 3"); a("v_add_u32 v5, s29, v3")
    a("v_mul_u32_u24 v6, 896, v5"); a("v_lshlrev_b32 v7, 4, v4"); a("v_add_u32 v6, v6, v7"); a(f"s_lshr_b32 s29, s{sjob}, 2"); a("s_mul_i32 s29, s29, 28672")
    for i in range(7): a(f"buffer_load_dwordx4 {dst(i)}, v6, {S4(44)}, s29 offen offset:{128*i}")

def team_k0(a, stw):
    W=S4(WS)
    kst(a,0)
    lx=a.newlabel("L_nx"); lm=a.newlabel("L_nm")
    a(f"s_lshr_b32 s95, s{stw}, 2"); a("s_add_u32 s95, s95, 224")
    a(f"s_cmp_lt_u32 s{stw}, 112"); a(f"s_cbranch_scc0 {lx}")
    mk_srd(a,56,'wmod',70); mk_srd(a,40,'c',72)
    a("v_mul_u32_u24 v32, 14, v1")
    for j in range(7): a(f"buffer_load_ushort v{40+j}, v32, {S4(40)}, 0 offen offset:{2*j}")
    a("v_mul_u32_u24 v33, 7, v1"); a("s_movk_i32 s38, 5376"); a("v_mul_lo_u32 v33, v33, s38"); a(f"s_lshl_b32 s39, s{stw}, 4")
    for j in range(7):
        a(f"buffer_load_dwordx4 {vr(64+4*j,4)}, v33, {S4(56)}, s39 offen"); a("s_add_u32 s39, s39, 5376")
    a("s_waitcnt vmcnt(7)")
    for j in range(7):
        r=40+j
        a(f"v_lshlrev_b32 v{r}, 16, v{r}")
        a(f"v_mul_f32 v35, 0xbfb8aa3b, v{r}"); a("v_exp_f32 v35, v35"); a("s_nop 0"); a("v_add_f32 v35, 1.0, v35"); a("v_rcp_f32 v35, v35"); a("s_nop 0")
        a(f"v_mul_f32 v{r}, v{r}, v35"); a(f"v_cvt_pk_bf16_f32 v{r}, v{r}, v{r}"); a(f"v_lshlrev_b32 v{r}, 16, v{r}")
    for r in range(48,56): a(f"v_mov_b32 v{r}, 0")
    for j in range(7):
        a(f"s_waitcnt vmcnt({6-j})")
        for q in range(4):
            a(f"v_lshlrev_b32 v36, 16, v{64+4*j+q}"); a(f"v_and_b32 v37, 0xffff0000, v{64+4*j+q}")
            a(f"v_fmac_f32 v{48+2*q}, v36, v{40+j}"); a(f"v_fmac_f32 v{49+2*q}, v37, v{40+j}")
    for ror in (1,2,4,8):
        a("s_nop 1")
        for r in range(48,56): a(f"v_add_f32_dpp v{r}, v{r}, v{r} row_ror:{ror} row_mask:0xf bank_mask:0xf")
    for sw in ("v_permlane16_swap_b32","v_permlane32_swap_b32"):
        for r in range(48,56): a(f"v_mov_b32 v{r+8}, v{r}")
        a("s_nop 1")
        for r in range(48,56): a(f"{sw} v{r}, v{r+8}")
        for r in range(48,56): a(f"v_add_f32 v{r}, v{r}, v{r+8}")
    for r in range(48,56): a(f"v_cvt_pk_bf16_f32 v{r}, v{r}, v{r}"); a(f"v_lshlrev_b32 v{r}, 16, v{r}")
    a("v_mov_b32 v34, 0"); a(f"s_lshl_b32 s38, s{stw}, 5"); a(f"s_add_u32 s38, s38, {LY.MOD}")
    a("s_mov_b64 exec, 1"); a(f"buffer_store_dwordx4 v[48:51], v34, {W}, s38 offen sc1"); a(f"buffer_store_dwordx4 v[52:55], v34, {W}, s38 offen offset:16 sc1"); a("s_mov_b64 exec, -1")
    a.label(lx)
    lw=a.newlabel("L_tw0")
    a("s_cmp_eq_u32 s22, 0"); a(f"s_cbranch_scc0 {lw}")
    x_loads(a, 95, lambda i: vr(128+4*i,4))
    a.label(lw)
    a("v_lshlrev_b32 v249, 2, v1"); a(f"buffer_load_dword v250, v249, {S4(DBG)}, 0 offen sc1")
    a("s_waitcnt vmcnt(0)")
    get_nonce(a, S4(DBG), 56, 38, 40)
    lg=a.newlabel("L_mf")
    a(f"v_mov_b32 v3, {L_CNT+8}"); a("v_mov_b32 v4, 1"); a("s_mov_b64 exec, 1"); a("ds_add_rtn_u32 v5, v3, v4"); a("s_waitcnt lgkmcnt(0)"); a("s_mov_b64 exec, -1")
    a("v_readfirstlane_b32 s28, v5"); a("s_nop 3"); a("s_cmp_eq_u32 s28, 3"); a(f"s_cbranch_scc0 {lg}")
    a(f"s_lshr_b32 s38, s{stw}, 2"); a("s_lshl_b32 s38, s38, 7"); a(f"s_add_u32 s38, s38, {LY.MODF}"); set_flag(a, W, 38, 53, 54)
    a.label(lg)
    kst(a,1)
    le=a.newlabel("L_tle")
    a("s_cmp_eq_u32 s22, 0"); a(f"s_cbranch_scc0 {le}")
    ln_stats_from(a, 128)
    a(f"s_mov_b32 s33, {LY.MODF}"); wait_flags(a, W, 33, 28, 9, 10, "v_mov_b32 v9, v1", 30, sleep=2, stride=7)
    kst(a,2)
    SA=64; CA=192
    a("v_lshrrev_b32 v4, 3, v1"); a("v_lshlrev_b32 v8, 5, v4"); a(f"s_mov_b32 s31, {LY.MOD}"); a(f"s_mov_b32 s32, {LY.MOD+448*4}")
    for i in range(7):
        a(f"buffer_load_dwordx4 {vr(SA+8*i,4)}, v8, {W}, s31 offen offset:{256*i} sc1"); a(f"buffer_load_dwordx4 {vr(SA+8*i+4,4)}, v8, {W}, s31 offen offset:{256*i+16} sc1")
        a(f"buffer_load_dwordx4 {vr(CA+8*i,4)}, v8, {W}, s32 offen offset:{256*i} sc1"); a(f"buffer_load_dwordx4 {vr(CA+8*i+4,4)}, v8, {W}, s32 offen offset:{256*i+16} sc1")
    a("s_waitcnt vmcnt(0)")
    kst(a,3)
    for k in range(56): a(f"v_add_f32 v{CA+k}, 1.0, v{CA+k}")
    ln_job(a, W, 95, 128, SA, CA, O=lambda i: 64+8*i)
    a.label(le)
    kst(a,4); kst(a,5); kout(a,1)

def worker_ln_prefetch_x(a, sj):
    x_loads(a, sj, lambda i: ar(4*i,4))
CAW=lambda k: (156+k) if k<36 else (32+k-36)
def worker_ln_stats(a):
    a("v_accvgpr_write_b32 a141, v12"); a("v_accvgpr_write_b32 a142, v13")
    for i in range(28): a(f"v_accvgpr_read_b32 v{128+i}, a{i}")
    ln_stats_from(a, 128, 30, 31)
    a("v_accvgpr_read_b32 v12, a141"); a("v_accvgpr_read_b32 v13, a142")
def worker_ln_loads(a):
    W=S4(WS)
    a("v_min_u32 v9, 27, v1"); a("v_lshlrev_b32 v9, 7, v9"); a(f"s_mov_b32 s33, {LY.MODF}")
    a(f"buffer_load_dword v19, v9, {W}, s33 offen sc1")
    a("v_lshrrev_b32 v4, 3, v1"); a("v_lshlrev_b32 v7, 5, v4"); a(f"s_mov_b32 s31, {LY.MOD}"); a(f"s_mov_b32 s32, {LY.MOD+448*4}")
    for i in range(7):
        a(f"buffer_load_dwordx4 {vr(192+8*i,4)}, v7, {W}, s31 offen offset:{256*i} sc1"); a(f"buffer_load_dwordx4 {vr(192+8*i+4,4)}, v7, {W}, s31 offen offset:{256*i+16} sc1")
        a(f"buffer_load_dwordx4 {vr(CAW(8*i),4)}, v7, {W}, s32 offen offset:{256*i} sc1"); a(f"buffer_load_dwordx4 {vr(CAW(8*i+4),4)}, v7, {W}, s32 offen offset:{256*i+16} sc1")
def worker_ln(a, sj):
    W=S4(WS)
    lo=a.newlabel("L_lo")
    a(f"v_cmp_ne_u32 vcc, s{S_N}, v19"); a(f"s_cbranch_vccz {lo}_e")
    a(f"s_mov_b32 s33, {LY.MODF}"); wait_flags(a, W, 33, 28, 9, 16, "v_mov_b32 v9, v1", 30, sleep=2, stride=7)
    a("v_lshrrev_b32 v4, 3, v1"); a("v_lshlrev_b32 v7, 5, v4"); a(f"s_mov_b32 s31, {LY.MOD}"); a(f"s_mov_b32 s32, {LY.MOD+448*4}")
    for i in range(7):
        a(f"buffer_load_dwordx4 {vr(192+8*i,4)}, v7, {W}, s31 offen offset:{256*i} sc1"); a(f"buffer_load_dwordx4 {vr(192+8*i+4,4)}, v7, {W}, s31 offen offset:{256*i+16} sc1")
        a(f"buffer_load_dwordx4 {vr(CAW(8*i),4)}, v7, {W}, s32 offen offset:{256*i} sc1"); a(f"buffer_load_dwordx4 {vr(CAW(8*i+4),4)}, v7, {W}, s32 offen offset:{256*i+16} sc1")
    a("s_waitcnt vmcnt(0)")
    a.label(lo+"_e")
    for i in range(28): a(f"v_accvgpr_read_b32 v{128+i}, a{i}")
    for k in range(56): a(f"v_add_f32 v{CAW(k)}, 1.0, v{CAW(k)}")
    ln_job(a, W, sj, 128, 192, CAW, O=lambda i: 192+8*i, MR=30, RS=31)
```

```python
import os
from common_k import *
L_H0=0; L_H1=28672
K1_LDS=2*28672
def producer(a, WS, st="", nseg=32, flags=False, pre_dma=None):
    W=S4(WS)
    wst(a,4)
    a("s_and_b32 s21, s20, 1")
    a("s_lshr_b32 s23, s20, 1"); a("s_lshl_b32 s23, s23, 2"); a("s_add_u32 s23, s23, s22")
    a("v_and_b32 v2, 31, v1"); a("v_lshrrev_b32 v3, 5, v1")
    a("v_and_b32 v4, 0x13, v2"); a("v_bfe_u32 v5, v2, 2, 1"); a("v_lshlrev_b32 v5, 3, v5"); a("v_or_b32 v4, v4, v5")
    a("v_bfe_u32 v5, v2, 3, 1"); a("v_lshlrev_b32 v5, 2, v5"); a("v_or_b32 v4, v4, v5")
    a("s_cmp_lt_u32 s23, 224"); a("s_cselect_b64 vcc, -1, 0"); a("s_cselect_b32 s24, 1, 0")
    a("s_nop 1")
    a("v_cndmask_b32 v6, v2, v4, vcc")
    a("v_cndmask_b32 v7, v4, v2, vcc")
    a("v_mul_u32_u24 v6, 896, v6"); a("v_lshlrev_b32 v5, 4, v3"); a("v_add_u32 v6, v6, v5")
    a(f"s_mul_i32 s25, s23, {32*896}"); a(f"s_add_u32 s25, s25, {LY.WP}")
    WR=32
    for kk in range(28): a(f"buffer_load_dwordx4 {vr(WR+4*kk,4)}, v6, {W}, s25 offen offset:{kk*32}")
    a("v_lshlrev_b32 v8, 9, v3"); a("v_lshlrev_b32 v5, 4, v7"); a("v_add_u32 v8, v8, v5")
    a("v_lshrrev_b32 v10, 4, v2"); a("v_and_b32 v11, 15, v2"); a("v_lshlrev_b32 v12, 4, v3"); a("v_add_u32 v11, v11, v12"); a("v_lshlrev_b32 v11, 4, v11")
    a("v_lshlrev_b32 v12, 10, v10"); a("v_lshlrev_b32 v13, 14, v10"); a("v_cndmask_b32 v12, v13, v12, vcc"); a("v_add_u32 v9, v11, v12")
    a("s_cmp_lt_u32 s23, 224"); a("s_cselect_b32 s28, 0, 224"); a("s_sub_u32 s28, s23, s28")
    a("s_mul_i32 s29, s28, 4682"); a("s_lshr_b32 s29, s29, 16")
    a("s_mul_i32 s30, s29, 14"); a("s_sub_u32 s30, s28, s30")
    lT=a.newlabel("L_pT"); lJ=a.newlabel("L_pJ")
    a(f"s_cmp_eq_u32 s24, 1"); a(f"s_cbranch_scc1 {lT}")
    a("s_lshl_b32 s26, s30, 15"); a("s_lshl_b32 s31, s29, 10"); a("s_add_u32 s26, s26, s31"); a(f"s_add_u32 s26, s26, {LY.BFRAG}"); a(f"s_mov_b32 s27, {28*16384}")
    a(f"s_branch {lJ}")
    a.label(lT)
    a("s_mul_i32 s26, s29, 28672"); a("s_lshl_b32 s31, s30, 11"); a("s_add_u32 s26, s26, s31"); a(f"s_add_u32 s26, s26, {LY.TFRAG}"); a(f"s_mov_b32 s27, {16*28672}")
    a.label(lJ)
    a("s_mul_i32 s31, s21, s27"); a("s_add_u32 s26, s26, s31"); a("s_lshl_b32 s27, s27, 1")
    a("v_lshlrev_b32 v14, 4, v1")
    a(f"s_mul_i32 s32, s21, 28672"); a(f"s_mul_i32 s31, s22, 7168"); a("s_add_u32 s32, s32, s31"); a(f"s_add_u32 s32, s32, {LY.HPERM}")
    a("s_mov_b32 s33, s31")
    a("s_mov_b32 s34, 0")
    def dma():
        a("s_add_u32 s35, s33, s34"); a("s_mov_b32 m0, s35"); a("s_nop 0")
        for i in range(4): a(f"buffer_load_dwordx4 v14, {W}, s32 offen offset:{i*1024} lds")
        a("s_add_u32 s35, s35, 4096"); a("s_add_u32 s36, s32, 4096"); a("s_mov_b32 m0, s35"); a("s_nop 0")
        for i in range(3): a(f"buffer_load_dwordx4 v14, {W}, s36 offen offset:{i*1024} lds")
        a(f"s_add_u32 s32, s32, {2*28672}")
    if pre_dma: pre_dma()
    dma()
    if flags:
        import common_k as CK
        if CK.NONCE:
            a(f"v_mov_b32 v16, s{S_N}"); a("v_mov_b32 v17, 0"); a("s_lshl_b32 s38, s21, 9"); a("s_lshr_b32 s39, s20, 1"); a("s_lshl_b32 s39, s39, 2"); a("s_add_u32 s38, s38, s39"); a(f"s_add_u32 s38, s38, {LY.PF}")
        else:
            a("v_mov_b32 v16, 1"); a("v_mov_b32 v17, 0"); a("s_lshl_b32 s38, s21, 7"); a(f"s_add_u32 s38, s38, {LY.PCNT}")
        PST=(lambda: f"buffer_store_dword v16, v17, {W}, s38 offen sc1") if CK.NONCE else (lambda: f"buffer_atomic_add v16, v17, {W}, s38 offen sc1")
        PINC=1024 if CK.NONCE else 256
    a("s_mov_b32 s37, 0")
    ACC=144; TB=160; OUT=176
    lab=a.newlabel("L_pl")
    a("s_waitcnt vmcnt(0)")
    wst(a,5)
    a.label(lab)
    if flags:
        le=a.newlabel("L_pe1")
        a("s_sub_u32 s39, s37, 1"); a("s_cmp_lt_u32 s39, 2"); a(f"s_cbranch_scc0 {le}"); a("s_waitcnt vmcnt(0)")
        a.label(le)
    a("s_waitcnt vmcnt(2)")
    a("s_barrier")
    if flags:
        lf=a.newlabel("L_pf")
        a("s_cmp_eq_u32 s37, 0"); a(f"s_cbranch_scc1 {lf}"); a("s_cmp_eq_u32 s37, 3"); a(f"s_cbranch_scc1 {lf}"); a("s_cmp_eq_u32 s22, 0"); a(f"s_cbranch_scc0 {lf}")
        a("s_mov_b64 exec, 1"); a(PST()); a("s_mov_b64 exec, -1"); a(f"s_add_u32 s38, s38, {PINC}")
        if os.environ.get('STAMP'):
            a("s_cmp_eq_u32 s37, 1"); a(f"s_cbranch_scc0 {lf}"); wst(a,6)
        a.label(lf)
    a(f"v_add_u32 v15, s34, v8")
    a("s_xor_b32 s34, s34, 28672")
    l2=a.newlabel("L_pn")
    a(f"s_cmp_lt_u32 s37, {nseg-1}"); a(f"s_cbranch_scc0 {l2}")
    dma()
    a.label(l2)
    for r in range(ACC,ACC+16): a(f"v_mov_b32 v{r}, 0")
    for variant in (1,0):
        lv=a.newlabel("L_pv")
        if variant==1: a(f"s_cmp_eq_u32 s24, 1"); a(f"s_cbranch_scc0 {lv}_b")
        else: a.label(f"{prev}_b")
        for k in range(2): a(f"ds_read_b128 {vr(TB+4*k,4)}, v15 offset:{k*1024}")
        for kk in range(28):
            if kk+2<28: a(f"ds_read_b128 {vr(TB+4*((kk+2)%3),4)}, v15 offset:{(kk+2)*1024}")
            a(f"s_waitcnt lgkmcnt({min(2,27-kk)})")
            t=vr(TB+4*(kk%3),4); w=vr(WR+4*kk,4)
            x,y=(w,t) if variant==1 else (t,w)
            a(f"v_mfma_f32_32x32x16_bf16 {vr(ACC,16)}, {x}, {y}, {vr(ACC,16)}")
        if variant==1: a(f"s_branch {lv}_j"); prev=lv; jl=lv
    a.label(f"{jl}_j")
    a.nop(16)
    for r in range(8): a(f"v_cvt_pk_bf16_f32 v{OUT+r}, v{ACC+2*r}, v{ACC+2*r+1}")
    a(f"buffer_store_dwordx4 {vr(OUT,4)}, v9, {W}, s26 offen {st}"); a(f"buffer_store_dwordx4 {vr(OUT+4,4)}, v9, {W}, s26 offen offset:512 {st}")
    a("s_add_u32 s26, s26, s27")
    a("s_add_u32 s37, s37, 1"); a(f"s_cmp_lt_u32 s37, {nseg}"); a(f"s_cbranch_scc1 {lab}")
    if flags:
        a("s_waitcnt vmcnt(0)"); a("s_barrier")
        lf=a.newlabel("L_pe")
        a("s_cmp_eq_u32 s22, 0"); a(f"s_cbranch_scc0 {lf}")
        a("s_mov_b64 exec, 1"); a(PST()); a(f"s_add_u32 s38, s38, {PINC}"); a(PST()); a("s_mov_b64 exec, -1")
        a.label(lf)
def gen_k1():
    a=Asm()
    a("s_cmp_lt_u32 s2, 224"); a("s_cbranch_scc0 L_end")
    a("v_and_b32 v1, 63, v0"); a("v_lshrrev_b32 v2, 6, v0"); a("s_nop 0"); a("v_readfirstlane_b32 s22, v2")
    srds(a,[(16,'ws')])
    a("s_mov_b32 s20, s2")
    producer(a,16)
    a.label("L_end"); a("s_waitcnt vmcnt(0)")
    return a.text()
```

```python
import os
from common_k import *
import rec, k1, xf, tail, k0n, k0p, k0q
import common_k as CK
from rec import S_WS,S_DBG,S_WAVE,S_RANK,S_XCC,S_FAIL,S_EX,L_RANK
TEAM_XCC=int(os.environ.get("TEAMX","0"))
S_MODE=42
def dispatch(a, fk0=False):
    a("s_cmp_lt_u32 s2, 256"); a("s_cbranch_scc0 L_exit")
    if fk0:
        a("s_load_dwordx2 s[18:19], s[0:1], 128")
        a(f"s_getreg_b32 s{S_XCC}, hwreg(HW_REG_XCC_ID)"); a(f"s_and_b32 s98, s{S_XCC}, 7")
        a("s_waitcnt lgkmcnt(0)")
        rec.srd(a, 92, 18, WS_BYTES)
        a("s_lshl_b32 s96, s98, 7"); a(f"s_add_u32 s96, s96, {LY.RCNT}")
        a("v_mov_b32 v254, s96"); a("v_mov_b32 v255, 1")
        a("v_cmp_eq_u32 vcc, 0, v0"); a("s_and_saveexec_b64 s[96:97], vcc")
        lz=a.newlabel("L_ra"); a(f"s_cbranch_execz {lz}")
        a("buffer_atomic_add v255, v254, s[92:95], 0 offen sc0 sc1")
        a.label(lz); a("s_mov_b64 exec, s[96:97]")
        k0p.k0_body(a, 84, os.environ.get("K0ST","sc1"), True, 76)
        a("s_waitcnt vmcnt(0)"); a("s_barrier")
        a(f"s_mov_b32 s{S_XCC}, s98")
    a("s_load_dwordx2 s[16:17], s[0:1], 128")
    if not fk0: a(f"s_getreg_b32 s{S_XCC}, hwreg(HW_REG_XCC_ID)"); a(f"s_and_b32 s{S_XCC}, s{S_XCC}, 7")
    a("v_lshrrev_b32 v2, 6, v0"); a("v_and_b32 v1, 63, v0")
    a("s_waitcnt lgkmcnt(0)")
    rec.srd(a, S_WS, 16, WS_BYTES)
    a(f"v_readfirstlane_b32 s{S_WAVE}, v2"); a("s_nop 3")
    D=f"s[{S_WS}:{S_WS+3}]"
    a(f"s_cmp_eq_u32 s{S_WAVE}, 0"); a("s_cbranch_scc0 L_norank")
    if fk0:
        a("v_readfirstlane_b32 s24, v255")
        a(f"s_mov_b32 s23, {LY.RCNT}"); a("v_and_b32 v7, 7, v1"); a("v_lshlrev_b32 v7, 7, v7")
    else:
        a(f"s_mov_b32 s23, {LY.RCNT}")
        a(f"s_lshl_b32 s24, s{S_XCC}, 7"); a("v_mov_b32 v4, s24"); a("v_mov_b32 v5, 1")
        a("s_mov_b64 exec, 1")
        a(f"buffer_atomic_add v5, v4, {D}, s23 offen sc0 sc1"); a("s_waitcnt vmcnt(0)")
        a("s_mov_b64 exec, -1")
        a("v_readfirstlane_b32 s24, v5")
        a("v_and_b32 v7, 7, v1"); a("v_lshlrev_b32 v7, 7, v7")
    a("s_mov_b32 s21, 0")
    a.label("L_dw")
    a(f"buffer_load_dword v9, v7, {D}, s23 offen sc1"); a("s_waitcnt vmcnt(0)")
    for x in range(8): a(f"v_readlane_b32 s{60+x}, v9, {x}")
    a("s_nop 3")
    a(f"s_cmp_eq_u32 s{S_XCC}, {TEAM_XCC}"); a("s_cbranch_scc0 L_dsum")
    a(f"s_cmp_ge_u32 s{60+TEAM_XCC}, 32"); a("s_cbranch_scc0 L_dsum")
    a("s_cmp_lt_u32 s24, 32"); a("s_cbranch_scc0 L_dsum")
    a("s_mov_b32 s28, 0"); a("s_mov_b32 s29, s24"); a("s_branch L_dteam")
    a.label("L_dsum")
    a("s_add_u32 s25, s60, s61")
    for x in range(2,8): a(f"s_add_u32 s25, s25, s{60+x}")
    a("s_cmp_ge_u32 s25, 256"); a("s_cbranch_scc1 L_dall")
    a("s_sleep 2"); a("s_add_u32 s21, s21, 1"); a(f"s_cmp_lt_u32 s21, {POLL_MAX}"); a("s_cbranch_scc1 L_dw")
    a.label("L_dall")
    a(f"s_cmp_ge_u32 s{60+TEAM_XCC}, 32"); a("s_cselect_b32 s28, 0, 1")
    order=[TEAM_XCC]+[x for x in range(8) if x!=TEAM_XCC]
    a("s_mov_b32 s26, 0"); a("s_mov_b32 s27, 0")
    for x in order:
        a(f"s_cmp_eq_u32 s{S_XCC}, {x}"); a("s_cselect_b32 s27, s26, s27"); a(f"s_add_u32 s26, s26, s{60+x}")
    a("s_add_u32 s27, s27, s24")
    a("s_mov_b32 s30, 32")
    a("s_cmp_lt_u32 s27, s30"); a("s_cbranch_scc0 L_dwork")
    a("s_mov_b32 s29, s27"); a("s_branch L_dteam")
    a.label("L_dwork")
    a("s_sub_u32 s29, s27, s30"); a("s_add_u32 s29, s29, 64")
    a.label("L_dteam")
    a("v_mov_b32 v12, s29"); a("v_mov_b32 v13, s28"); a(f"v_mov_b32 v6, {L_RANK}"); a("ds_write_b64 v6, v[12:13]"); a("s_waitcnt lgkmcnt(0)")
    a.label("L_norank")
    a("s_barrier")
    a(f"v_mov_b32 v6, {L_RANK}"); a("ds_read_b64 v[4:5], v6"); a("s_waitcnt lgkmcnt(0)"); a("s_nop 0")
    a(f"v_readfirstlane_b32 s{S_RANK}, v4"); a(f"v_readfirstlane_b32 s{S_MODE}, v5"); a("s_nop 3")
    a(f"s_mov_b32 s{S_FAIL}, 0")


def dispatch_nonce(a):
    a("s_cmp_lt_u32 s2, 256"); a("s_cbranch_scc0 L_exit")
    a("s_load_dwordx2 s[18:19], s[0:1], 120"); a("s_load_dwordx2 s[90:91], s[0:1], 128")
    a(f"s_getreg_b32 s98, hwreg(HW_REG_XCC_ID)"); a("s_and_b32 s98, s98, 7")
    a("s_memrealtime s[96:97]")
    a("s_waitcnt lgkmcnt(0)")
    a("s_mov_b32 s92, s90"); a("s_and_b32 s93, s91, 0xffff"); a(f"s_mov_b32 s94, {WS_BYTES}"); a("s_mov_b32 s95, 0x20000")
    rec.srd(a, 8, 18, 256)
    a("s_lshr_b32 s96, s96, 2"); a("s_add_u32 s96, s96, s2"); a("s_and_b32 s96, s96, 15"); a("s_lshl_b32 s96, s96, 3"); a("s_or_b32 s96, s96, s98"); a("s_or_b32 s96, s96, 0x80")
    a("v_mov_b32 v254, s2"); a("v_mov_b32 v255, s96")
    a("v_cmp_eq_u32 vcc, 0, v0"); a("s_and_saveexec_b64 s[96:97], vcc")
    lz=a.newlabel("L_ra"); a(f"s_cbranch_execz {lz}")
    a("buffer_store_byte v255, v254, s[8:11], 0 offen sc1")
    a.label(lz); a("s_mov_b64 exec, s[96:97]")
    k0p.k0_body(a, 84, "sc1", True, 76)
    a("s_waitcnt vmcnt(0)"); a("s_barrier")
    a("s_load_dwordx2 s[16:17], s[0:1], 128"); a("s_load_dwordx2 s[18:19], s[0:1], 120")
    a("v_lshrrev_b32 v2, 6, v0"); a("v_and_b32 v1, 63, v0")
    a("s_waitcnt lgkmcnt(0)")
    rec.srd(a, S_WS, 16, WS_BYTES); rec.srd(a, S_DBG, 18, 256)
    a(f"v_readfirstlane_b32 s{S_WAVE}, v2"); a(f"s_mov_b32 s{S_XCC}, s98")
    get_nonce(a, f"s[{S_DBG}:{S_DBG+3}]", 8, 21, 24)
    a("v_lshlrev_b32 v7, 2, v1"); a("s_mov_b32 s21, 0")
    a.label("L_dw")
    a(f"buffer_load_dword v9, v7, s[{S_DBG}:{S_DBG+3}], 0 offen sc1"); a("s_waitcnt vmcnt(0)")
    a("v_and_b32 v10, 0x80808080, v9"); a("v_cmp_ne_u32 vcc, 0x80808080, v10"); a("s_cbranch_vccz L_dall")
    a("s_sleep 1"); a("s_add_u32 s21, s21, 1"); a(f"s_cmp_lt_u32 s21, {POLL_MAX}"); a("s_cbranch_scc1 L_dw")
    a.label("L_dall")
    for j in range(4):
        a(f"v_bfe_u32 v10, v9, {8*j}, 3"); a(f"v_cmp_eq_u32 s[{60+2*j}:{61+2*j}], {TEAM_XCC}, v10")
    a("s_nop 3")
    a("s_mov_b32 s24, 0")
    a("s_mov_b32 s25, 0")
    a("s_lshr_b32 s26, s2, 2"); a("s_and_b32 s27, s2, 3")
    a("s_bfm_b64 s[70:71], s26, 0")
    for j in range(4):
        a(f"s_bcnt1_i32_b64 s28, s[{60+2*j}:{61+2*j}]"); a("s_add_u32 s24, s24, s28")
        a(f"s_and_b64 s[72:73], s[{60+2*j}:{61+2*j}], s[70:71]"); a("s_bcnt1_i32_b64 s28, s[72:73]"); a("s_add_u32 s25, s25, s28")
        a(f"s_lshr_b64 s[72:73], s[{60+2*j}:{61+2*j}], s26"); a("s_and_b32 s28, s72, 1"); a(f"s_cmp_gt_u32 s27, {j}"); a("s_cselect_b32 s28, s28, 0"); a("s_add_u32 s25, s25, s28")
    a("s_cmp_ge_u32 s24, 32"); a("s_cselect_b32 s28, 0, 1")
    a("s_cmp_eq_u32 s28, 0"); a("s_cbranch_scc0 L_dslow")
    a(f"s_cmp_eq_u32 s{S_XCC}, {TEAM_XCC}"); a("s_cselect_b32 s30, 1, 0"); a("s_cmp_lt_u32 s25, 32"); a("s_cselect_b32 s30, s30, 0")
    a("s_min_u32 s31, s25, 32")
    a("s_cmp_eq_u32 s30, 1"); a("s_cbranch_scc0 L_dw2")
    a(f"s_mov_b32 s{S_RANK}, s25"); a("s_branch L_dfin")
    a.label("L_dw2")
    a("s_sub_u32 s29, s2, s31"); a(f"s_add_u32 s{S_RANK}, s29, 64"); a("s_branch L_dfin")
    a.label("L_dslow")
    a("s_cmp_lt_u32 s2, 32"); a("s_cbranch_scc0 L_ds2")
    a(f"s_mov_b32 s{S_RANK}, s2"); a("s_branch L_dfin")
    a.label("L_ds2")
    a(f"s_add_u32 s{S_RANK}, s2, 32")
    a.label("L_dfin")
    a(f"s_mov_b32 s{S_MODE}, s28"); a(f"s_mov_b32 s{S_FAIL}, 0")

def dispatch_v5(a):
    a("s_cmp_lt_u32 s2, 256"); a("s_cbranch_scc0 L_exit")
    a("s_load_dwordx2 s[18:19], s[0:1], 120")
    a(f"s_getreg_b32 s98, hwreg(HW_REG_XCC_ID)"); a("s_and_b32 s98, s98, 7")
    a("s_memrealtime s[96:97]")
    a("s_waitcnt lgkmcnt(0)")
    rec.srd(a, 8, 18, 256)
    a("s_lshr_b32 s96, s96, 2"); a("s_add_u32 s96, s96, s2"); a("s_and_b32 s96, s96, 15"); a("s_lshl_b32 s96, s96, 3"); a("s_or_b32 s96, s96, s98"); a("s_or_b32 s96, s96, 0x80")
    a("v_mov_b32 v254, s2"); a("v_mov_b32 v255, s96")
    a("v_cmp_eq_u32 vcc, 0, v0"); a("s_and_saveexec_b64 s[96:97], vcc")
    lz=a.newlabel("L_ra"); a(f"s_cbranch_execz {lz}")
    a("buffer_store_byte v255, v254, s[8:11], 0 offen sc1")
    a.label(lz); a("s_mov_b64 exec, s[96:97]")
    a("s_lshr_b32 s95, s2, 3")
    a(f"s_cmp_eq_u32 s98, {TEAM_XCC}"); a("s_cselect_b32 s92, 1, 0")
    a(f"s_cmp_gt_u32 s98, {TEAM_XCC}"); a("s_cselect_b32 s93, 1, 0"); a("s_sub_u32 s93, s98, s93"); a("s_lshl_b32 s93, s93, 5"); a("s_add_u32 s93, s93, s95")
    a("s_cmp_ge_u32 s93, 224"); a("s_cselect_b32 s93, 223, s93")
    a("s_cmp_eq_u32 s92, 1"); a("s_cselect_b32 s93, s95, s93")
    a("s_mov_b32 s94, 0")
    a.label("L_k0")
    k0q.setup(a)
    a("s_cmp_eq_u32 s92, 1"); a("s_cbranch_scc1 L_k0t")
    k0q.worker_k0(a, 93)
    a("s_branch L_k0e")
    a.label("L_k0t")
    a("s_lshl_b32 s99, s93, 2"); a("s_add_u32 s99, s99, s22")
    k0q.team_k0(a, 99)
    a.label("L_k0e")
    a("s_waitcnt vmcnt(0)")
    a("s_load_dwordx2 s[16:17], s[0:1], 128"); a("s_load_dwordx2 s[18:19], s[0:1], 120")
    a("v_lshrrev_b32 v2, 6, v0"); a("v_and_b32 v1, 63, v0")
    a("s_waitcnt lgkmcnt(0)")
    rec.srd(a, S_WS, 16, WS_BYTES); rec.srd(a, S_DBG, 18, 256)
    a(f"v_readfirstlane_b32 s{S_WAVE}, v2"); a(f"s_mov_b32 s{S_XCC}, s98")
    a("v_lshlrev_b32 v7, 2, v1"); a("s_mov_b32 s21, 0")
    a("v_mov_b32 v9, v250"); a("v_and_b32 v10, 0x80808080, v9"); a("v_cmp_ne_u32 vcc, 0x80808080, v10"); a("s_cbranch_vccz L_dall"); a("s_branch L_dw")
    a.label("L_dw")
    a(f"buffer_load_dword v9, v7, s[{S_DBG}:{S_DBG+3}], 0 offen sc1"); a("s_waitcnt vmcnt(0)")
    a("v_and_b32 v10, 0x80808080, v9"); a("v_cmp_ne_u32 vcc, 0x80808080, v10"); a("s_cbranch_vccz L_dall")
    a("s_sleep 1"); a("s_add_u32 s21, s21, 1"); a(f"s_cmp_lt_u32 s21, {POLL_MAX}"); a("s_cbranch_scc1 L_dw")
    a.label("L_dall")
    for j in range(4):
        a(f"v_bfe_u32 v10, v9, {8*j}, 3"); a(f"v_cmp_eq_u32 s[{60+2*j}:{61+2*j}], {TEAM_XCC}, v10")
    a("v_mov_b32 v11, 0")
    for j in range(4):
        a(f"v_bfe_u32 v10, v9, {8*j}, 3"); a("v_mov_b32 v12, 1"); a("v_lshlrev_b32 v12, v10, v12"); a("v_or_b32 v11, v11, v12")
    a("s_nop 1"); a("v_or_b32_dpp v11, v11, v11 quad_perm:[1,0,3,2] row_mask:0xf bank_mask:0xf")
    a("v_cmp_ne_u32 vcc, 0xff, v11"); a("s_nop 3"); a("s_cmp_eq_u64 vcc, 0"); a("s_cselect_b32 s74, 1, 0")
    a("s_mov_b32 s24, 0"); a("s_mov_b32 s25, 0")
    a("s_lshr_b32 s26, s2, 2"); a("s_and_b32 s27, s2, 3")
    a("s_bfm_b64 s[70:71], s26, 0")
    for j in range(4):
        a(f"s_bcnt1_i32_b64 s28, s[{60+2*j}:{61+2*j}]"); a("s_add_u32 s24, s24, s28")
        a(f"s_and_b64 s[72:73], s[{60+2*j}:{61+2*j}], s[70:71]"); a("s_bcnt1_i32_b64 s28, s[72:73]"); a("s_add_u32 s25, s25, s28")
        a(f"s_lshr_b64 s[72:73], s[{60+2*j}:{61+2*j}], s26"); a("s_and_b32 s28, s72, 1"); a(f"s_cmp_gt_u32 s27, {j}"); a("s_cselect_b32 s28, s28, 0"); a("s_add_u32 s25, s25, s28")
    a("s_cmp_ge_u32 s24, 32"); a("s_cselect_b32 s28, 0, 1")
    a("s_cmp_eq_u32 s28, 0"); a("s_cbranch_scc0 L_dslow")
    a(f"s_cmp_eq_u32 s{S_XCC}, {TEAM_XCC}"); a("s_cselect_b32 s30, 1, 0"); a("s_cmp_lt_u32 s25, 32"); a("s_cselect_b32 s30, s30, 0")
    a("s_min_u32 s31, s25, 32")
    a("s_cmp_eq_u32 s30, 1"); a("s_cbranch_scc0 L_dw2")
    a(f"s_mov_b32 s{S_RANK}, s25"); a("s_branch L_dfin")
    a.label("L_dw2")
    a("s_sub_u32 s29, s2, s31"); a(f"s_add_u32 s{S_RANK}, s29, 64"); a("s_branch L_dfin")
    a.label("L_dslow")
    a("s_cmp_lt_u32 s2, 32"); a("s_cbranch_scc0 L_ds2")
    a(f"s_mov_b32 s{S_RANK}, s2"); a("s_branch L_dfin")
    a.label("L_ds2")
    a(f"s_add_u32 s{S_RANK}, s2, 32")
    a.label("L_dfin")
    a(f"s_mov_b32 s{S_MODE}, s28"); a(f"s_mov_b32 s{S_FAIL}, 0")
    a("s_cmp_eq_u32 s94, 0"); a("s_cbranch_scc0 L_dgo")
    a("s_cmp_eq_u32 s28, 0"); a("s_cselect_b32 s74, s74, 0")
    if os.environ.get("FORCEREDO"): a("s_mov_b32 s74, 0")
    a("s_cmp_eq_u32 s74, 1"); a("s_cbranch_scc1 L_dgo")
    a("s_mov_b32 s94, 1")
    a(f"s_cmp_lt_u32 s{S_RANK}, 64"); a("s_cselect_b32 s92, 1, 0"); a(f"s_sub_u32 s93, s{S_RANK}, 64"); a("s_cmp_eq_u32 s92, 1"); a(f"s_cselect_b32 s93, s{S_RANK}, s93")
    a("s_barrier"); a("s_branch L_k0")
    a.label("L_dgo")

def wait_lines(a, base, nlines, target, t=(7,9), from6=False, soff=None):
    lab=a.newlabel("L_wd"); x,y=t
    if from6: a(f"v_lshrrev_b32 v{x}, 4, v6")
    else: a(f"v_mov_b32 v{x}, v1")
    a(f"v_min_u32 v{x}, {nlines-1}, v{x}"); a(f"v_lshlrev_b32 v{x}, 7, v{x}"); a("s_mov_b32 s21, 0")
    if soff is None: a(f"s_mov_b32 s99, {base}"); so="s99"
    else: so=f"s{soff}"
    a.label(lab)
    a(f"buffer_load_dword v{y}, v{x}, s[92:95], {so} offen sc1"); a("s_waitcnt vmcnt(0)")
    a(f"v_cmp_gt_u32 vcc, {target}, v{y}"); a(f"s_cbranch_vccz {lab}_ok")
    a("s_sleep 2"); a("s_add_u32 s21, s21, 1"); a(f"s_cmp_lt_u32 s21, {POLL_MAX}"); a(f"s_cbranch_scc1 {lab}")
    a.label(lab+"_ok")

FK0=False
V5=False
def worker(a):
    a(f"s_sub_u32 s41, s{S_RANK}, 64"); a(f"s_mov_b32 s22, s{S_WAVE}"); a("s_mov_b32 s78, s41")
    a("s_cmp_lt_u32 s41, 224"); a("s_cbranch_scc0 L_exit")
    srds(a,[(16,'ws'),(12,'x'),(44,'out'),(48,'wr')], tmp0=60)
    if CK.NONCE:
        if V5:
            for e in (0,3):
                a("s_lshr_b32 s34, s41, 1"); a("s_lshl_b32 s34, s34, 2"); a(f"s_add_u32 s34, s34, {e}"); a("s_mul_i32 s34, s34, 4682"); a("s_lshr_b32 s34, s34, 16")
                a("s_mul_i32 s35, s34, 56"); a("s_cmp_ge_u32 s34, 16"); a(f"s_cselect_b32 s34, {1024-16*56}, 0"); a("s_add_u32 s34, s34, s35"); a(f"s_add_u32 s34, s34, {LY.GWF}")
                wait_flags(a, S4(16), 34, 14, 7, 8, "v_mov_b32 v7, v1", 21, sleep=2)
        else:
            lw0=a.newlabel("L_w0")
            a("s_cmp_eq_u32 s22, 0"); a(f"s_cbranch_scc0 {lw0}")
            a(f"s_mov_b32 s34, {LY.GWF}"); wait_flags(a, S4(16), 34, 256, 7, 8, "v_mov_b32 v7, v1", 21, sleep=6)
            a(f"s_mov_b32 s34, {LY.LNF}"); wait_flags(a, S4(16), 34, 256, 7, 8, "v_mov_b32 v7, v1", 21, sleep=6)
            a.label(lw0); a("s_barrier")
        def late_fills():
            a("v_lshlrev_b32 v12, 4, v0")
            for r in range(16,20): a(f"v_mov_b32 v{r}, -1")
            for (o,n,val) in (k0q.REGL if V5 else k0p.REGL):
                n=(n+4095)//4096*4096
                lab=a.newlabel("L_lf")
                a(f"s_lshl_b32 s28, s41, 12"); a(f"s_add_u32 s28, s28, {o}")
                a.label(lab)
                a(f"s_cmp_lt_u32 s28, {o+n}"); a(f"s_cbranch_scc0 {lab}_e")
                a(f"buffer_store_dwordx4 v[16:19], v12, {S4(16)}, s28 offen sc1")
                a(f"s_add_u32 s28, s28, {224*4096}"); a(f"s_branch {lab}")
                a.label(lab+"_e")
            a("s_nop 1")
        if not V5: late_fills()
    elif FK0: wait_lines(a,LY.GWC,32,8); wait_lines(a,LY.LNCC,8,32)
    a("s_mov_b32 s20, s41")
    def pre_dma():
        a(f"s_mov_b32 s39, {LY.LNF}"); wait_flags(a, S4(16), 39, 256, 20, 24, "v_mov_b32 v20, v1", 40, sleep=2)
    k1.producer(a,16,st="sc1",flags=True, pre_dma=(pre_dma if (CK.NONCE and V5) else None))
    if CK.NONCE and V5:
        late_fills(); a("s_waitcnt vmcnt(0)"); a("s_barrier")
    if CK.NONCE and V5:
        lq=a.newlabel("L_lm")
        a("s_cmp_lt_u32 s41, 56"); a(f"s_cbranch_scc0 {lq}"); a("s_cmp_eq_u32 s22, 0"); a(f"s_cbranch_scc0 {lq}")
        a("s_mov_b32 s100, s70"); a("s_mov_b32 s101, s72")
        a("s_load_dwordx2 s[70:71], s[0:1], 104"); a("s_load_dwordx2 s[72:73], s[0:1], 96"); a("s_waitcnt lgkmcnt(0)")
        a("s_add_u32 s79, s41, 28"); a("v_and_b32 v1, 63, v0")
        k0q.mod_job(a, S4(16), 79, SW=60, SC_=64)
        a("s_mov_b32 s70, s100"); a("s_mov_b32 s72, s101")
        a.label(lq)
        a("s_barrier")
    if CK.NONCE:
        lf=a.newlabel("L_ff")
        a("s_cmp_eq_u32 s22, 0"); a(f"s_cbranch_scc0 {lf}")
        a("s_lshl_b32 s28, s41, 2"); a(f"s_add_u32 s28, s28, {LY.FILLF}"); set_flag(a, S4(16), 28, 16, 17)
        a.label(lf)
        a(f"s_mov_b32 s34, {LY.FILLF}"); wait_flags(a, S4(16), 34, 224, 7, 8, "v_mov_b32 v7, v1", 21)
    if rec.STAMP=='lane': a("s_memrealtime s[74:75]"); a("s_waitcnt lgkmcnt(0)")
    a("s_mov_b32 s40, s41")
    a.label("L_task")
    a("s_cmp_lt_u32 s40, 704"); a("s_cbranch_scc0 L_wdone")
    a("s_barrier")
    a("s_mul_i32 s20, s40, 5958"); a("s_lshr_b32 s20, s20, 16"); a("s_mul_i32 s21, s20, 11"); a("s_sub_u32 s21, s40, s21")
    a("s_cmp_lt_u32 s21, 4"); a("s_cbranch_scc0 L_tx2")
    xf.x1_task(a,16,ld="sc1",st="sc1",fused=True)
    a("s_branch L_tnext")
    a.label("L_tx2")
    a("s_sub_u32 s21, s21, 4")
    xf.x23_task(a,16,12,44,48)
    a.label("L_tnext")
    a("s_waitcnt vmcnt(0)")
    wst(a,3)
    a("s_add_u32 s40, s40, 224"); a("s_branch L_task")
    a.label("L_wdone")
    a("s_barrier")
    a("s_cmp_ge_u32 s41, 32"); a("s_cbranch_scc0 L_tdone"); a("s_cmp_lt_u32 s41, 200"); a("s_cbranch_scc0 L_tdone")
    srds(a,[(8,'wg'),(12,'wu'),(48,'wd')], tmp0=60)
    a("s_cmp_lt_u32 s41, 144"); a("s_cbranch_scc0 L_tdown")
    a("s_sub_u32 s43, s41, 32")
    tail.gateup_job(a,16,8,12,43)
    a("s_branch L_tdone")
    a.label("L_tdown")
    a("s_sub_u32 s43, s41, 144")
    tail.down_job(a,16,48,44,43)
    a.label("L_tdone")

def gen_main(timing=False, fk0=False):
    a=Asm()
    rec.FUSED=True
    global FK0
    FK0=fk0
    if rec.STAMP=='lane': a("s_memrealtime s[100:101]")
    if CK.NONCE and V5: dispatch_v5(a)
    elif CK.NONCE: dispatch_nonce(a)
    else: dispatch(a, fk0)
    if rec.STAMP=='lane': a("s_memrealtime s[72:73]"); a("s_waitcnt lgkmcnt(0)"); a("s_mov_b32 s70, s100")
    a(f"s_cmp_ge_u32 s{S_RANK}, 64"); a("s_cbranch_scc1 L_worker")
    if CK.NONCE:
        W4=f"s[{S_WS}:{S_WS+3}]"
        lw=a.newlabel("L_tw")
        a(f"s_cmp_lt_u32 s{S_RANK}, 16"); a(f"s_cbranch_scc0 {lw}")
        if V5:
            a(f"s_mul_i32 s99, s{S_RANK}, 56"); a(f"s_add_u32 s99, s99, {LY.GWF}")
            wait_flags(a, W4, 99, 14, 8, 10, "v_mov_b32 v8, v1", 21, sleep=1)
        else:
            a(f"s_lshl_b32 s99, s{S_RANK}, 5"); a(f"s_add_u32 s99, s99, {LY.GWF}")
            wait_flags(a, W4, 99, 8, 8, 10, "v_mov_b32 v8, v1", 21, sleep=1)
        a(f"s_branch {lw}_e")
        a.label(lw)
        if V5:
            a(f"s_mov_b32 s99, {LY.GWF+1024}"); wait_flags(a, W4, 99, 224, 8, 12, "v_mov_b32 v8, v1", 21, sleep=1)
        else:
            a(f"s_mov_b32 s99, {LY.GWF+512}"); wait_flags(a, W4, 99, 128, 8, 10, "v_mov_b32 v8, v1", 21, sleep=1)
        a.label(lw+"_e")
        rec.lane_consts(a)
        def pre():
            if V5:
                a(f"s_mov_b32 s99, {LY.GWF+1024}"); wait_flags(a, W4, 99, 224, 80, 84, "v_lshrrev_b32 v80, 4, v6", 21, sleep=2)
            else:
                a(f"s_mov_b32 s99, {LY.GWF}"); wait_flags(a, W4, 99, 256, 80, 84, "v_lshrrev_b32 v80, 4, v6", 21, sleep=1)
            a(f"s_mov_b32 s99, {LY.LNF}"); wait_flags(a, W4, 99, 256, 80, 84, "v_lshrrev_b32 v80, 4, v6", 21, sleep=1)
        rec.PRESTART=pre
    else:
        if fk0:
            lw=a.newlabel("L_tw")
            a(f"s_cmp_lt_u32 s{S_RANK}, 16"); a(f"s_cbranch_scc0 {lw}")
            a(f"s_lshl_b32 s99, s{S_RANK}, 7"); a(f"s_add_u32 s99, s99, {LY.GWC}")
            wait_lines(a,0,1,8,soff=99)
            a(f"s_branch {lw}_e")
            a.label(lw)
            wait_lines(a,LY.GWC+16*128,16,8)
            a.label(lw+"_e")
        rec.lane_consts(a)
        rec.PRESTART=(lambda: wait_lines(a,LY.LNCC,8,32,(80,81),True)) if fk0 else None
    a(f"s_cmp_ge_u32 s{S_RANK}, 30"); a("s_cbranch_scc1 L_pref")
    a(f"s_cmp_eq_u32 s{S_MODE}, 0"); a("s_cbranch_scc0 L_slowteam")
    for slow in (False,True):
        rec.SLOW=slow; rec.TAG="_s" if slow else "_f"
        if slow: a.label("L_slowteam")
        a(f"s_cmp_ge_u32 s{S_RANK}, 16"); a(f"s_cbranch_scc1 L_value{rec.TAG}")
        rec.LANEREG={0:2,1:1,6:0}
        rec.score_role(a, timing, 0)
        a.label(f"L_value{rec.TAG}")
        rec.LANEREG={4:184,7:185,int(os.environ.get("VST","1")):186}; rec.VALREGS=(184,185,186,186)
        rec.value_role(a, timing, 0)
    rec.SLOW=False; rec.TAG=""
    a.label("L_pref")
    rec.prefetch_role(a, ahead=rec.EXP.get('ahead',3))
    a.label("L_worker")
    worker(a)
    if rec.STAMP=='lane': a("s_branch L_wfin")
    a.label("L_fin")
    if rec.STAMP=='lane':
        a(f"s_cmp_ge_u32 s{S_RANK}, 30"); a("s_cbranch_scc1 L_wfin")
        a("s_memtime s[88:89]"); a("s_memrealtime s[90:91]"); a("s_waitcnt lgkmcnt(0)")
        rec.stamp_out(a)
    a.label("L_wfin")
    if rec.STAMP=='lane':
        a("s_memrealtime s[76:77]"); a("s_waitcnt lgkmcnt(0)")
        a("v_mov_b32 v20, s70"); a("v_mov_b32 v21, s72"); a("v_mov_b32 v22, s74"); a("v_mov_b32 v23, s76"); a(f"v_mov_b32 v24, s{S_RANK}"); a(f"v_mov_b32 v25, s{S_XCC}")
        for k in range(8): a(f"v_mov_b32 v{32+k}, s{80+2*k}")
        a("v_mov_b32 v40, s78"); a("v_mov_b32 v41, s43"); a("v_mov_b32 v42, s40")
        a("s_lshl_b32 s53, s2, 6"); a(f"s_add_u32 s53, s53, {LY.DBGS+(1<<19)+65536}"); a("v_mov_b32 v26, 0"); a("s_mov_b64 exec, 1")
        a(f"buffer_store_dwordx4 v[32:35], v26, s[{S_WS}:{S_WS+3}], s53 offen"); a(f"buffer_store_dwordx4 v[36:39], v26, s[{S_WS}:{S_WS+3}], s53 offen offset:16"); a(f"buffer_store_dwordx4 v[40:43], v26, s[{S_WS}:{S_WS+3}], s53 offen offset:32")
        a("s_mov_b64 exec, -1")
        a("s_lshl_b32 s52, s2, 5"); a(f"s_add_u32 s52, s52, {LY.DBGS+(1<<19)}"); a("v_mov_b32 v26, 0")
        a("s_mov_b64 exec, 1")
        a(f"buffer_store_dwordx4 v[20:23], v26, s[{S_WS}:{S_WS+3}], s52 offen"); a(f"buffer_store_dwordx2 v[24:25], v26, s[{S_WS}:{S_WS+3}], s52 offen offset:16")
        a("s_mov_b64 exec, -1")
    a("s_waitcnt vmcnt(0)")
    a.label("L_exit")
    rec.FUSED=False
    return a.text()
if __name__=="__main__":
    rec.EXP={'warmP':1,'maskP':1,'p2B':1,'pf':1}
    print(len(gen_main().splitlines()))
```

```python
from asmlib import *
import layout as LY
import common_k as CK

WS_BYTES = 268435456
OOB = 0x20000000
S_WS=4; S_DBG=8; S_WAVE=12; S_RANK=13; S_STEP=14; S_MEMOFF=15
S_XCC=20; S_CNT=21; S_FAIL=22; S_EX=24
S_PX=26; S_PM=27; S_XS=28; S_BF=29; S_MF=30; S_MST=31
S_T0=32; S_T1=33; S_T2=34; S_T3=35
POLL_MAX=400000
L_MEM=0; L_STAG=8192; L_SB=15360; L_XS=20480
L_RED=8192; L_U=16384
L_RANK=150000
LDS_BYTES=150016+64

STAMP=False
EXP={}
FUSED=False
SLOW=False
TAG=''
def XST(): return 'sc1' if SLOW else ''
def LB(n): return n+TAG
S_PC=37; S_MC=38; S_MX=39
S_K=54; S_KS=55; S_O=56
def adapt_sleep(a):
    lab=a.newlabel('L_as')
    a(f's_mov_b32 s{S_T3}, s{S_K}')
    a.label(lab)
    a(f's_cmp_eq_u32 s{S_T3}, 0'); a(f's_cbranch_scc1 {lab}_e'); a('s_sleep 1'); a(f's_sub_u32 s{S_T3}, s{S_T3}, 1'); a(f's_branch {lab}')
    a.label(lab+'_e')
def adapt_update(a, kmax):
    lab=a.newlabel('L_au')
    a(f's_cmp_eq_u32 s{S_O}, 1'); a(f's_cbranch_scc1 {lab}_e')
    a(f's_cmp_eq_u32 s{S_O}, 0'); a(f's_cbranch_scc1 {lab}_s')
    a(f's_add_u32 s{S_K}, s{S_K}, 1'); a(f's_min_u32 s{S_K}, s{S_K}, {kmax}'); a(f's_mov_b32 s{S_KS}, 0'); a(f's_branch {lab}_e')
    a.label(lab+'_s')
    a(f's_add_u32 s{S_KS}, s{S_KS}, 1'); a(f's_cmp_ge_u32 s{S_KS}, {EXP.get("streak",3)}'); a(f's_cbranch_scc0 {lab}_e')
    a(f's_mov_b32 s{S_KS}, 0'); a(f's_cmp_eq_u32 s{S_K}, 0'); a(f's_cbranch_scc1 {lab}_e'); a(f's_sub_u32 s{S_K}, s{S_K}, 1')
    a.label(lab+'_e')
LANEREG={}
PRESTART=None
VALREGS=(12,13,14,15)
def stamp(a,k):
    if STAMP=='lane':
        if k in LANEREG:
            a("s_memrealtime s[50:51]"); a("s_waitcnt lgkmcnt(0)"); a(f"s_mov_b32 m0, s{S_STEP}"); a("s_nop 0"); a(f"v_writelane_b32 v{LANEREG[k]}, s50, m0")
        return
    if STAMP=='abs':
        lab=a.newlabel("L_as")
        a(f"s_cmp_eq_u32 s{S_STEP}, 30"); a(f"s_cbranch_scc0 {lab}")
        a("s_memrealtime s[50:51]"); a("s_waitcnt lgkmcnt(0)"); a(f"s_mov_b32 s{60+k}, s50")
        a.label(lab); return
    if not STAMP: return
    a("s_memtime s[50:51]"); a("s_waitcnt lgkmcnt(0)")
    a("s_sub_u32 s52, s50, s53"); a(f"s_add_u32 s{60+k}, s{60+k}, s52"); a("s_mov_b32 s53, s50")
def stamp_init(a):
    if STAMP=='lane': return
    if not STAMP: return
    for k in range(16): a(f"s_mov_b32 s{60+k}, 0")
    a("s_memtime s[50:51]"); a("s_waitcnt lgkmcnt(0)"); a("s_mov_b32 s53, s50")
def stamp_out(a):
    if STAMP=='lane':
        a(f"s_lshl_b32 s52, s{S_RANK}, 2"); a(f"s_add_u32 s52, s52, s{S_WAVE}"); a("s_lshl_b32 s52, s52, 10"); a(f"s_add_u32 s52, s52, {LY.DBGS}")
        a("v_lshrrev_b32 v99, 2, v6")
        lab=a.newlabel("L_so")
        a(f"s_cmp_ge_u32 s{S_RANK}, 16"); a(f"s_cbranch_scc1 {lab}")
        for i,r in enumerate((2,1,0,0)): a(f"buffer_store_dword v{r}, v99, s[{S_WS}:{S_WS+3}], s52 offen offset:{256*i}")
        a(f"s_branch {lab}_e")
        a.label(lab)
        for i,r in enumerate(VALREGS): a(f"buffer_store_dword v{r}, v99, s[{S_WS}:{S_WS+3}], s52 offen offset:{256*i}")
        a.label(lab+"_e")
        return
    if not STAMP: return
    a(f"s_lshl_b32 s52, s{S_RANK}, 2"); a(f"s_add_u32 s52, s52, s{S_WAVE}"); a("s_lshl_b32 s52, s52, 6"); a(f"s_add_u32 s52, s52, {LY.MISC}")
    for k in range(16): a(f"v_mov_b32 v{100+k}, s{60+k}")
    a("v_mov_b32 v99, 0")
    a("v_cmp_eq_u32 vcc, 0, v1"); a(f"s_and_saveexec_b64 s[{S_EX}:{S_EX+1}], vcc")
    for k in range(4): a(f"buffer_store_dwordx4 v[{100+4*k}:{103+4*k}], v99, s[{S_WS}:{S_WS+3}], s52 offen offset:{16*k}")
    a(f"s_mov_b64 exec, s[{S_EX}:{S_EX+1}]")

def MINC(): return 2048 if CK.NONCE else 128
def MSIG(W,so): return (f"buffer_store_dword v0, v1, {W}, s{so} offen sc1" if CK.NONCE else f"buffer_atomic_add v0, v1, {W}, s{so} offen sc1")
def srd(a, d, b, n):
    a(f"s_mov_b32 s{d}, s{b}"); a(f"s_and_b32 s{d+1}, s{b+1}, 0xffff"); a(f"s_mov_b32 s{d+2}, {n}"); a(f"s_mov_b32 s{d+3}, 0x20000")

def chk_poison(a, regs, t0, t1):
    regs=list(regs)
    a(f"v_max3_u32 v{t0}, v{regs[0]}, v{regs[1]}, v{regs[2]}")
    rest=regs[3:]
    use=[t1,t0]; first=True
    if len(rest)>=3:
        a(f"v_max3_u32 v{t1}, v{rest[0]}, v{rest[1]}, v{rest[2]}"); rest=rest[3:]
        cur=[t0,t1]; k=0
        while len(rest)>=2:
            a(f"v_max3_u32 v{cur[k]}, v{cur[k]}, v{rest[0]}, v{rest[1]}"); rest=rest[2:]; k^=1
        if rest: a(f"v_max3_u32 v{t0}, v{t0}, v{t1}, v{rest[0]}")
        else: a(f"v_max_u32 v{t0}, v{t0}, v{t1}")
    else:
        for r in rest: a(f"v_max_u32 v{t0}, v{t0}, v{r}")
    a(f"v_cmp_eq_u32 vcc, -1, v{t0}")

def poll_loop(a, loads, regs, t0, t1, sleep=0):
    lab=a.newlabel("L_poll"); ok=lab+"_ok"
    a(f"s_mov_b32 s{S_CNT}, 0")
    a.label(lab)
    for l in loads: a(l)
    a("s_waitcnt vmcnt(0)")
    chk_poison(a, regs, t0, t1)
    a(f"s_cbranch_vccz {ok}")
    if sleep: a(f"s_sleep {sleep}")
    a(f"s_add_u32 s{S_CNT}, s{S_CNT}, 1")
    a(f"s_cmp_lt_u32 s{S_CNT}, {POLL_MAX}")
    a(f"s_cbranch_scc1 {lab}")
    a(f"s_mov_b32 s{S_FAIL}, 1")
    a.label(ok)
    if STAMP is True: a(f"s_add_u32 s{72 if len(loads)==2 else 73}, s{72 if len(loads)==2 else 73}, s{S_CNT}")

def poll2(a, mkloads, sets, nregs, t0, t1, cont, gap):
    lab=a.newlabel("L_p2"); done=lab+"_done"
    n=len(mkloads(sets[0]))
    a(f"s_mov_b32 s{S_CNT}, 0")
    for l in mkloads(sets[0]): a(l)
    if gap: a(f"s_sleep {gap}")
    for l in mkloads(sets[1]): a(l)
    a.label(lab)
    for i in range(2):
        a(f"s_waitcnt vmcnt({n})")
        chk_poison(a, range(sets[i],sets[i]+nregs), t0, t1)
        a(f"s_cbranch_vccz {lab}_ok{i}")
        for l in mkloads(sets[i]): a(l)
    a(f"s_add_u32 s{S_CNT}, s{S_CNT}, 1")
    a(f"s_cmp_lt_u32 s{S_CNT}, {POLL_MAX}")
    a(f"s_cbranch_scc1 {lab}")
    a(f"s_mov_b32 s{S_FAIL}, 1")
    a.label(f"{lab}_ok0")
    if EXP.get('adapt'): a(f"s_lshl_b32 s{S_O}, s{S_CNT}, 1")
    cont(sets[0]); a(f"s_branch {done}")
    a.label(f"{lab}_ok1")
    if EXP.get('adapt'): a(f"s_lshl_b32 s{S_O}, s{S_CNT}, 1"); a(f"s_or_b32 s{S_O}, s{S_O}, 1")
    cont(sets[1])
    a.label(done)

def mem_share2(a, PA, PB, t0, t1, gap):
    W=f"s[{S_WS}:{S_WS+3}]"
    def mk(b): return [f"buffer_load_dwordx4 {vr(b,4)}, v4, {W}, s{S_MEMOFF} offen sc1", f"buffer_load_dwordx4 {vr(b+4,4)}, v5, {W}, s{S_MEMOFF} offen sc1"]
    def cont(b):
        stamp(a,0)
        a(f"ds_write_b128 v4, {vr(b,4)} offset:{L_MEM}")
        a(f"ds_write_b128 v4, {vr(b+4,4)} offset:{L_MEM+4096}")
    poll2(a, mk, [PA,PB], 8, t0, t1, cont, gap)
    a("s_waitcnt lgkmcnt(0)")
    a("s_barrier")
    stamp(a,1)

def mem_share(a, P0, t0, t1, sleep=0):
    poll_loop(a, [f"buffer_load_dwordx4 {vr(P0,4)}, v4, s[{S_WS}:{S_WS+3}], s{S_MEMOFF} offen sc1",
                  f"buffer_load_dwordx4 {vr(P0+4,4)}, v5, s[{S_WS}:{S_WS+3}], s{S_MEMOFF} offen sc1"],
              range(P0,P0+8), t0, t1, sleep)
    stamp(a,0)
    a(f"ds_write_b128 v4, {vr(P0,4)} offset:{L_MEM}")
    a(f"ds_write_b128 v4, {vr(P0+4,4)} offset:{L_MEM+4096}")
    a("s_waitcnt lgkmcnt(0)")
    a("s_barrier")
    stamp(a,1)

def lane_consts(a):
    a("v_lshlrev_b32 v4, 4, v0")
    a("v_add_u32 v5, 4096, v4")
    a(f"v_mov_b32 v2, {OOB}")
    a("v_cmp_gt_u32 vcc, 192, v0")
    a("s_nop 1")
    a("v_cndmask_b32 v5, v2, v5, vcc")
    a("v_lshlrev_b32 v6, 4, v1")
    a("v_and_b32 v2, 8, v1"); a("v_cmp_eq_u32 vcc, 0, v2")
    a("v_mov_b32 v3, 0xeeee"); a("v_mov_b32 v2, 0x4444"); a("s_nop 0")
    a("v_cndmask_b32 v3, v3, v2, vcc")

def common_prologue(a, target_xcc=0, nteam=30):
    a("s_load_dwordx2 s[16:17], s[0:1], 128")
    a("s_load_dwordx2 s[18:19], s[0:1], 120")
    a(f"s_getreg_b32 s{S_XCC}, hwreg(HW_REG_XCC_ID)")
    a(f"s_and_b32 s{S_XCC}, s{S_XCC}, 15")
    a("v_lshrrev_b32 v2, 6, v0")
    a("v_and_b32 v1, 63, v0")
    a("s_waitcnt lgkmcnt(0)")
    srd(a, S_WS, 16, WS_BYTES)
    srd(a, S_DBG, 18, 256)
    a(f"v_readfirstlane_b32 s{S_WAVE}, v2")
    a(f"s_cmp_lt_u32 s2, 256"); a("s_cbranch_scc0 L_exit")
    a(f"s_cmp_eq_u32 s{S_XCC}, {target_xcc}"); a("s_cbranch_scc0 L_exit")
    a(f"s_cmp_eq_u32 s{S_WAVE}, 0"); a("s_cbranch_scc0 L_norank")
    a("v_cmp_eq_u32 vcc, 0, v0"); a(f"s_and_saveexec_b64 s[{S_EX}:{S_EX+1}], vcc")
    a("v_mov_b32 v4, 0"); a("v_mov_b32 v5, 1")
    a(f"buffer_atomic_add v5, v4, s[{S_DBG}:{S_DBG+3}], 0 offen sc0")
    a("s_waitcnt vmcnt(0)")
    a(f"v_mov_b32 v6, {L_RANK}"); a("ds_write_b32 v6, v5"); a("s_waitcnt lgkmcnt(0)")
    a(f"s_mov_b64 exec, s[{S_EX}:{S_EX+1}]")
    a.label("L_norank")
    a("s_barrier")
    a(f"v_mov_b32 v6, {L_RANK}"); a("ds_read_b32 v5, v6"); a("s_waitcnt lgkmcnt(0)")
    a("s_nop 0")
    a(f"v_readfirstlane_b32 s{S_RANK}, v5")
    a(f"s_cmp_lt_u32 s{S_RANK}, {nteam}"); a("s_cbranch_scc0 L_exit")
    a(f"s_mov_b32 s{S_FAIL}, 0")
    lane_consts(a)

def gfrag(fi):
    return ar(8*fi,8) if fi<32 else vr(120+8*(fi-32),8)
def gfrag_half(fi,hh):
    return ar(8*fi+4*hh,4) if fi<32 else vr(120+8*(fi-32)+4*hh,4)

def score_role(a, timing=False, sleep=0, nsteps=63):
    MS=16; ACC=44; BJ=72
    W=f"s[{S_WS}:{S_WS+3}]"
    a("v_and_b32 v16, 15, v1")
    a("v_lshrrev_b32 v17, 4, v1")
    a("v_and_b32 v18, 12, v16"); a("v_and_b32 v19, 1, v16"); a("v_lshlrev_b32 v19, 1, v19")
    a("v_bfe_u32 v20, v16, 1, 1"); a("v_or_b32 v18, v18, v19"); a("v_or_b32 v18, v18, v20")
    a("v_mul_u32_u24 v21, 896, v18"); a("v_lshlrev_b32 v22, 5, v17"); a("v_add_u32 v21, v21, v22")
    a(f"s_mul_i32 s{S_T0}, s{S_RANK}, {448*896}")
    a(f"s_mul_i32 s{S_T1}, s{S_WAVE}, {7*16*896}")
    a(f"s_add_u32 s{S_T0}, s{S_T0}, s{S_T1}")
    a(f"s_add_u32 s{S_T0}, s{S_T0}, {LY.WP}")
    n=0
    for t in range(7):
        for ks in range(7):
            fi=t*7+ks
            for hh in range(2):
                a(f"buffer_load_dwordx4 {gfrag_half(fi,hh)}, v21, {W}, s{S_T0} offen offset:{ks*128+hh*16}")
                n+=1
                if n%32==0: a("s_waitcnt vmcnt(24)")
        a(f"s_add_u32 s{S_T0}, s{S_T0}, {16*896}")
    a("v_lshlrev_b32 v7, 4, v16")
    a("v_and_b32 v22, 1, v17"); a("v_lshlrev_b32 v22, 3, v22"); a("v_add_u32 v7, v7, v22")
    a(f"s_mul_i32 s{S_T1}, s{S_WAVE}, {7*256}"); a(f"s_add_u32 s{S_T1}, s{S_T1}, {L_STAG}")
    a(f"v_add_u32 v8, s{S_T1}, v7")
    a("v_lshrrev_b32 v22, 5, v1"); a("v_lshlrev_b32 v22, 8, v22"); a("v_add_u32 v7, v8, v22")
    a("v_lshlrev_b32 v9, 8, v17"); a("v_lshlrev_b32 v22, 3, v16"); a("v_add_u32 v9, v9, v22"); a(f"v_add_u32 v9, {L_STAG}, v9")
    a("v_lshlrev_b32 v10, 9, v17"); a("v_lshlrev_b32 v22, 4, v16"); a("v_add_u32 v10, v10, v22")
    a(f"s_lshl_b32 s{S_T1}, s{S_WAVE}, 8"); a(f"s_add_u32 s{S_T1}, s{S_T1}, {L_XS}"); a(f"v_add_u32 v10, s{S_T1}, v10")
    a("v_lshlrev_b32 v23, 7, v17"); a("v_and_b32 v22, 7, v16"); a("v_lshlrev_b32 v22, 4, v22"); a("v_add_u32 v23, v23, v22")
    if L_MEM: a(f"v_add_u32 v23, {L_MEM}, v23")
    a(f"s_cmp_eq_u32 s{S_WAVE}, 2"); a("s_cselect_b64 vcc, -1, 0"); a("s_nop 1"); a("v_cndmask_b32 v10, v10, v23, vcc")
    a("v_and_b32 v22, 1, v17"); a("v_lshlrev_b32 v22, 2, v22"); a("v_lshrrev_b32 v23, 5, v1"); a("v_add_u32 v22, v22, v23")
    a("v_mul_u32_u24 v11, 192, v22"); a("v_lshlrev_b32 v22, 2, v16"); a("v_add_u32 v11, v11, v22")
    a(f"s_lshl_b32 s{S_T1}, s{S_WAVE}, 6"); a(f"s_add_u32 s{S_T1}, s{S_T1}, {L_SB}"); a(f"v_add_u32 v11, s{S_T1}, v11")
    a("v_and_b32 v22, 7, v1"); a("v_lshrrev_b32 v23, 3, v1")
    a("v_mul_u32_u24 v12, 192, v23"); a(f"v_add_u32 v12, {L_SB}, v12")
    a("v_lshlrev_b32 v24, 2, v22"); a("v_add_u32 v13, v12, v24"); a("v_add_u32 v13, 128, v13")
    a("v_lshlrev_b32 v24, 4, v22"); a("v_add_u32 v12, v12, v24")
    a("v_lshrrev_b32 v24, 1, v22"); a("v_lshlrev_b32 v24, 3, v24"); a("v_add_u32 v24, v24, v23"); a("v_lshlrev_b32 v14, 4, v24")
    a("v_and_b32 v24, 1, v22"); a("v_lshlrev_b32 v24, 3, v24"); a("v_add_u32 v14, v14, v24")
    a("v_lshlrev_b32 v15, 4, v23"); a("v_lshlrev_b32 v24, 1, v22"); a("v_add_u32 v15, v15, v24")
    a(f"s_mov_b32 s{S_STEP}, 0")
    a(f"s_mov_b32 s{S_MEMOFF}, {LY.MEM}")
    a(f"s_lshl_b32 s{S_PX}, s{S_RANK}, 9"); a(f"s_add_u32 s{S_PX}, s{S_PX}, {LY.PX}")
    a(f"s_lshl_b32 s{S_PM}, s{S_RANK}, 7"); a(f"s_add_u32 s{S_PM}, s{S_PM}, {LY.PM}")
    a(f"s_mov_b32 s{S_XS}, {LY.HFRAG}")
    def xs_dma(nw):
        a(f"s_mul_i32 s{S_T0}, s{S_WAVE}, {7*1024}")
        a(f"s_add_u32 s{S_T1}, s{S_T0}, s{S_XS}")
        a(f"s_add_u32 s{S_T0}, s{S_T0}, {L_XS}")
        a(f"s_mov_b32 m0, s{S_T0}"); a("s_nop 0")
        for i in range(4): a(f"buffer_load_dwordx4 v6, {W}, s{S_T1} offen offset:{i*1024} lds")
        a(f"s_add_u32 s{S_T0}, s{S_T0}, 4096"); a(f"s_add_u32 s{S_T1}, s{S_T1}, 4096")
        a(f"s_mov_b32 m0, s{S_T0}"); a("s_nop 0")
        for i in range(3): a(f"buffer_load_dwordx4 v6, {W}, s{S_T1} offen offset:{i*1024} lds")
    if PRESTART:
        a("s_waitcnt vmcnt(0)"); PRESTART()
    xs_dma(4)
    a("s_waitcnt vmcnt(0)")
    if timing: a("s_memtime s[40:41]")
    stamp_init(a)
    if EXP.get('adapt'): a(f"s_mov_b32 s{S_K}, {EXP.get('preA',0)}"); a(f"s_mov_b32 s{S_KS}, 0"); a(f"s_mov_b32 s{S_O}, 1")
    if STAMP=='lane': a("s_memtime s[86:87]"); a("s_memrealtime s[84:85]"); a("s_waitcnt lgkmcnt(0)")
    a.label(LB("L_sstep"))
    for r in range(ACC,ACC+28): a(f"v_mov_b32 v{r}, 0")
    if EXP.get('adapt'): adapt_sleep(a)
    elif EXP.get('preA'): a(f"s_sleep {EXP['preA']}")
    ND=EXP.get('dir',0)
    if ND:
        W_=f"s[{S_WS}:{S_WS+3}]"
        loads=[f"buffer_load_dwordx4 {vr(72,4)}, v4, {W_}, s{S_MEMOFF} offen sc1", f"buffer_load_dwordx4 {vr(76,4)}, v5, {W_}, s{S_MEMOFF} offen sc1"]
        loads+=[f"buffer_load_dwordx4 {vr(MS+4*k,4)}, v6, {W_}, s{S_MEMOFF} offen offset:{k*1024} sc1" for k in range(ND)]
        poll_loop(a, loads, list(range(72,80))+list(range(MS,MS+4*ND)), 80, 81, sleep)
        stamp(a,0)
        a(f"ds_write_b128 v4, {vr(72,4)} offset:{L_MEM}"); a(f"ds_write_b128 v4, {vr(76,4)} offset:{L_MEM+4096}")
        for t in range(7): a(f"v_smfmac_f32_16x16x64_bf16 {vr(ACC+4*t,4)}, {vr(MS,4)}, {gfrag(t*7)}, v3")
        a("s_waitcnt lgkmcnt(0)"); a("s_barrier")
        stamp(a,1)
    elif EXP.get('p2A'): mem_share2(a, 72, 84, 80, 81, EXP.get('gapA',2))
    else: mem_share(a, 72, 80, 81, sleep)
    for ks in range(ND,7): a(f"ds_read_b128 {vr(MS+4*ks,4)}, v6 offset:{L_MEM+ks*1024}")
    order=[]
    if ND==2: order+=[(t,1) for t in range(7)]
    k0_=ND if ND else 0
    order+=[(t,ks) for t in range(5) for ks in range(k0_,7)]
    for ks in range(k0_,7): order+= [(5,ks),(6,ks)]
    mains=[]; seen=set()
    for i,(t,ks) in enumerate(order):
        m=f"v_smfmac_f32_16x16x64_bf16 {vr(ACC+4*t,4)}, {vr(MS+4*ks,4)}, {gfrag(t*7+ks)}, v3"
        if ks>=ND and ks not in seen:
            seen.add(ks); m=f"s_waitcnt lgkmcnt({6-ks})\n"+m
        mains.append(m)
    lastidx={}
    for i,(t,ks) in enumerate(order): lastidx[t]=i
    firstfree=max(i for i,(t,ks) in enumerate(order) if t==0)+1
    T0=112+0
    def post_pair(ta,tb,tmp):
        o=[]
        for i in range(4): o.append(f"v_permlane32_swap_b32 v{ACC+4*ta+i}, v{ACC+4*tb+i}")
        for i in range(4): o.append(f"v_add_f32 v{ACC+4*ta+i}, v{ACC+4*ta+i}, v{ACC+4*tb+i}")
        o.append(f"v_cvt_pk_bf16_f32 v{ACC+4*tb}, v{ACC+4*ta}, v{ACC+4*ta+1}")
        o.append(f"v_cvt_pk_bf16_f32 v{ACC+4*tb+1}, v{ACC+4*ta+2}, v{ACC+4*ta+3}")
        o.append(f"ds_write_b64 v7, {vr(ACC+4*tb,2)} offset:{ta*256}")
        return o
    def post_single(t, tmp):
        o=[]
        for i in range(4): o.append(f"v_mov_b32 v{tmp+i}, v{ACC+4*t+i}")
        o.append("s_nop 0")
        for i in range(4): o.append(f"v_permlane32_swap_b32 v{ACC+4*t+i}, v{tmp+i}")
        for i in range(4): o.append(f"v_add_f32 v{ACC+4*t+i}, v{ACC+4*t+i}, v{tmp+i}")
        o.append(f"v_cvt_pk_bf16_f32 v{tmp}, v{ACC+4*t}, v{ACC+4*t+1}")
        o.append(f"v_cvt_pk_bf16_f32 v{tmp+1}, v{ACC+4*t+2}, v{ACC+4*t+3}")
        o.append(f"ds_write_b64 v8, {vr(tmp,2)} offset:{t*256}")
        return o
    fill=[]
    for x in post_pair(0,1,None): fill.append((lastidx[1]+9,x))
    for x in post_pair(2,3,None): fill.append((lastidx[3]+9,x))
    for x in post_single(4, ACC+0): fill.append((lastidx[4]+9,x))
    return_fill=fill
    lab2=a.newlabel("L_t2"); labj=a.newlabel("L_tj")
    a(f"s_cmp_eq_u32 s{S_WAVE}, 2"); a(f"s_cbranch_scc1 {lab2}")
    for variant in (0,1):
        if variant==1: a.label(lab2)
        pre=[(firstfree,"s_waitcnt vmcnt(0)")]
        pstep=2 if not ND else 1
        for ks in range(6):
            if variant==0:
                pre.append((firstfree+1+pstep*ks, f"ds_read_b128 {vr(BJ+8*ks,4)}, v10 offset:{ks*4096}"))
                pre.append((firstfree+1+pstep*ks, f"ds_read_b128 {vr(BJ+8*ks+4,4)}, v10 offset:{ks*4096+2048}"))
            else:
                pre.append((firstfree+1+pstep*ks, f"ds_read_b128 {vr(BJ+8*ks,4)}, v10 offset:{ks*1024}"))
                pre.append((firstfree+1+pstep*ks, f"ds_read_b128 {vr(BJ+8*ks+4,4)}, v10 offset:{ks*1024+512}"))
        if EXP.get('nopre'): pre=[]
        if EXP.get('nofill'):
            rest=interleave(a, mains, pre);
            for _,x in fill: a(x)
        else:
            rest=interleave(a, mains, pre+fill, per_gap=EXP.get('per_gap',3))
            for _,x in rest: a(x)
        stamp(a,2)
        for i in range(4): a(f"v_mov_b32 v{ACC+8+i}, 0")
        if variant==0:
            a(f"ds_read_b128 {vr(ACC,4)}, v10 offset:{6*4096}"); a(f"ds_read_b128 {vr(ACC+4,4)}, v10 offset:{6*4096+2048}")
        else:
            a(f"ds_read_b128 {vr(ACC,4)}, v10 offset:{6*1024}"); a(f"ds_read_b128 {vr(ACC+4,4)}, v10 offset:{6*1024+512}")
        a.nop(2)
        for x in post_pair(5,6,None): a(x)
        a("s_waitcnt lgkmcnt(0)")
        a("s_barrier")
        stamp(a,3)
        if variant==0:
            a(f"s_cmp_eq_u32 s{S_WAVE}, 3"); a("s_cbranch_scc1 "+LB("L_s_w3"))
            a(f"s_branch {labj}")
    a.label(labj)
    for ks in range(7):
        a(f"ds_read_b64_tr_b16 {vr(MS+4*ks,2)}, v9 offset:{ks*1024}")
        a(f"ds_read_b64_tr_b16 {vr(MS+4*ks+2,2)}, v9 offset:{ks*1024+128}")
    for ks in range(7):
        a(f"s_waitcnt lgkmcnt({min(15,2*(6-ks))})")
        b = vr(BJ+8*ks,8) if ks<6 else vr(ACC,8)
        a(f"v_smfmac_f32_16x16x64_bf16 {vr(ACC+8,4)}, {vr(MS+4*ks,4)}, {b}, v3")
    a.nop(8)
    S=ACC+8
    a(f"v_permlane32_swap_b32 v{S}, v{S+1}"); a(f"v_permlane32_swap_b32 v{S+2}, v{S+3}")
    a(f"v_add_f32 v{S}, v{S}, v{S+1}"); a(f"v_add_f32 v{S+2}, v{S+2}, v{S+3}")
    a(f"ds_write_b32 v11, v{S}"); a(f"ds_write_b32 v11, v{S+2} offset:{2*192}")
    a("s_waitcnt lgkmcnt(0)")
    stamp(a,4)
    a("s_barrier")
    stamp(a,5)
    a("s_branch "+LB("L_s_after"))
    a.label(LB("L_s_w3"))
    a("s_barrier")
    stamp(a,5)
    X=72
    a(f"ds_read_b128 {vr(X,4)}, v12"); a(f"ds_read_b32 v{X+4}, v13")
    a("s_waitcnt lgkmcnt(0)")
    a(f"v_max3_f32 v{X+5}, v{X}, v{X+1}, v{X+2}"); a(f"v_max3_f32 v{X+5}, v{X+5}, v{X+3}, v{X+4}")
    def xred(op, r, t):
        a("s_nop 1"); a(f"{op}_dpp v{r}, v{r}, v{r} quad_perm:[1,0,3,2] row_mask:0xf bank_mask:0xf")
        a("s_nop 1"); a(f"{op}_dpp v{r}, v{r}, v{r} quad_perm:[2,3,0,1] row_mask:0xf bank_mask:0xf")
        a("s_nop 1"); a(f"{op}_dpp v{r}, v{r}, v{r} row_half_mirror row_mask:0xf bank_mask:0xf")
    xred("v_max_f32", X+5, X+6)
    for i in range(5): a(f"v_sub_f32 v{X+i}, v{X+i}, v{X+5}")
    for i in range(5): a(f"v_exp_f32 v{X+i}, v{X+i}")
    a("s_nop 0")
    a(f"v_add_f32 v{X+5}, v{X}, v{X+1}"); a(f"v_add_f32 v{X+6}, v{X+2}, v{X+3}"); a(f"v_add_f32 v{X+5}, v{X+5}, v{X+4}"); a(f"v_add_f32 v{X+5}, v{X+5}, v{X+6}")
    xred("v_add_f32", X+5, X+6)
    a(f"v_rcp_f32 v{X+5}, v{X+5}"); a("s_nop 0")
    for i in range(5): a(f"v_mul_f32 v{X+i}, v{X+i}, v{X+5}")
    a(f"v_cvt_pk_bf16_f32 v{X+8}, v{X}, v{X+1}"); a(f"v_cvt_pk_bf16_f32 v{X+9}, v{X+2}, v{X+3}")
    a(f"v_mov_b32_dpp v{X+6}, v{X+4} quad_perm:[1,0,3,2] row_mask:0xf bank_mask:0xf")
    a(f"buffer_store_dwordx2 {vr(X+8,2)}, v14, {W}, s{S_PX} offen {XST()}")
    a(f"v_cvt_pk_bf16_f32 v{X+7}, v{X+4}, v{X+6}")
    a("s_mov_b32 exec_lo, 0x55555555"); a("s_mov_b32 exec_hi, 0x55555555")
    a(f"buffer_store_dword v{X+7}, v15, {W}, s{S_PM} offen {XST()}")
    a("s_mov_b64 exec, -1")
    stamp(a,6)
    a.label(LB("L_s_after"))
    a("s_barrier")
    if EXP.get('adapt'): adapt_update(a, 30)
    a(f"s_add_u32 s{S_STEP}, s{S_STEP}, 1")
    a(f"s_add_u32 s{S_MEMOFF}, s{S_MEMOFF}, 7168")
    a(f"s_add_u32 s{S_PX}, s{S_PX}, 8192"); a(f"s_add_u32 s{S_PM}, s{S_PM}, 2048"); a(f"s_add_u32 s{S_XS}, s{S_XS}, 28672")
    a(f"s_cmp_lt_u32 s{S_STEP}, {nsteps}"); a("s_cbranch_scc0 L_fin")
    xs_dma(4)
    stamp(a,7)
    a(f"s_cmp_eq_u32 s{S_FAIL}, 0"); a("s_cbranch_scc1 "+LB("L_sstep"))
    a("s_branch L_fin")

def ufrag(fi):
    if fi<32: return ar(8*fi,8)
    if fi<40: return vr(192+8*(fi-32),8)
    return None
def value_role(a, timing=False, sleep=0, nsteps=64):
    MS=16; ACC=44; UT=76; BF=100; PP=132; MF=152; OA=160; PR=168
    W=f"s[{S_WS}:{S_WS+3}]"
    S_J=36
    a(f"s_sub_u32 s{S_J}, s{S_RANK}, 16")
    a("v_and_b32 v16, 15, v1"); a("v_lshrrev_b32 v17, 4, v1")
    a("v_mul_u32_u24 v21, 896, v16"); a("v_lshlrev_b32 v22, 5, v17"); a("v_add_u32 v21, v21, v22")
    for a2 in range(4):
        for ct in range(2):
            a(f"s_lshl_b32 s{S_T0}, s{S_WAVE}, 2"); a(f"s_add_u32 s{S_T0}, s{S_T0}, {a2}")
            a(f"s_mul_i32 s{S_T0}, s{S_T0}, 448"); a(f"s_lshl_b32 s{S_T1}, s{S_J}, 5"); a(f"s_add_u32 s{S_T0}, s{S_T0}, s{S_T1}")
            a(f"s_add_u32 s{S_T0}, s{S_T0}, {7168+16*ct}"); a(f"s_mul_i32 s{S_T0}, s{S_T0}, 896"); a(f"s_add_u32 s{S_T0}, s{S_T0}, {LY.WP}")
            for ks in range(7):
                fi=(a2*2+ct)*7+ks
                if fi<40:
                    for hh in range(2):
                        dst = ar(8*fi+4*hh,4) if fi<32 else vr(192+8*(fi-32)+4*hh,4)
                        a(f"buffer_load_dwordx4 {dst}, v21, {W}, s{S_T0} offen offset:{ks*128+hh*16}")
                else:
                    for hh in range(2):
                        a(f"s_lshl_b32 s{S_T1}, s{S_WAVE}, 15"); a(f"s_add_u32 s{S_T1}, s{S_T1}, {L_U+(fi-40)*2048+hh*1024}")
                        a(f"s_mov_b32 m0, s{S_T1}"); a(f"s_add_u32 s{S_T2}, s{S_T0}, {ks*128+hh*16}")
                        a(f"buffer_load_dwordx4 v21, {W}, s{S_T2} offen lds")
            a("s_waitcnt vmcnt(30)")
    a(f"s_lshl_b32 s{S_T1}, s{S_WAVE}, 15"); a(f"s_add_u32 s{S_T1}, s{S_T1}, {L_U}"); a(f"v_add_u32 v7, s{S_T1}, v6")
    a("v_lshlrev_b32 v8, 3, v17"); a("v_and_b32 v22, 7, v16"); a("v_add_u32 v8, v8, v22"); a("v_lshlrev_b32 v8, 4, v8")
    a("v_lshrrev_b32 v22, 3, v16"); a("v_lshlrev_b32 v22, 9, v22"); a("v_add_u32 v8, v8, v22")
    a(f"s_lshl_b32 s{S_T1}, s{S_WAVE}, 11"); a(f"s_add_u32 s{S_T1}, s{S_T1}, {L_RED}"); a(f"v_add_u32 v9, s{S_T1}, v6")
    a(f"s_lshl_b32 s{S_T1}, s{S_WAVE}, 10"); a(f"s_add_u32 s{S_T1}, s{S_T1}, {L_RED}"); a(f"v_add_u32 v10, s{S_T1}, v6")
    a("v_lshrrev_b32 v22, 1, v17"); a("v_lshlrev_b32 v11, 7, v22"); a("v_and_b32 v22, 7, v16"); a("v_lshlrev_b32 v22, 4, v22"); a("v_add_u32 v11, v11, v22")
    a("v_and_b32 v22, 1, v17"); a("v_lshlrev_b32 v22, 3, v22"); a("v_add_u32 v11, v11, v22")
    a(f"s_mov_b32 s{S_STEP}, 0"); a(f"s_mov_b32 s{S_MEMOFF}, {LY.MEM}")
    a(f"s_lshl_b32 s{S_PX}, s{S_WAVE}, 11"); a(f"s_add_u32 s{S_PX}, s{S_PX}, {LY.PX}")
    a(f"s_lshl_b32 s{S_PM}, s{S_WAVE}, 9"); a(f"s_add_u32 s{S_PM}, s{S_PM}, {LY.PM}")
    a("v_lshrrev_b32 v22, 3, v16"); a("v_lshlrev_b32 v22, 8, v22"); a("v_add_u32 v187, v11, v22")
    a(f"s_lshl_b32 s{S_BF}, s{S_J}, 15"); a(f"s_lshl_b32 s{S_T1}, s{S_WAVE}, 12"); a(f"s_add_u32 s{S_BF}, s{S_BF}, s{S_T1}"); a(f"s_add_u32 s{S_BF}, s{S_BF}, {LY.BFRAG}")
    a(f"s_lshl_b32 s{S_MF}, s{S_J}, 13"); a(f"s_lshl_b32 s{S_T1}, s{S_WAVE}, 10"); a(f"s_add_u32 s{S_MF}, s{S_MF}, s{S_T1}"); a(f"s_add_u32 s{S_MF}, s{S_MF}, {LY.MFRAG}")
    a(f"s_lshl_b32 s{S_T0}, s{S_J}, 1"); a(f"s_add_u32 s{S_T0}, s{S_T0}, s{S_WAVE}")
    a(f"s_lshl_b32 s{S_MST}, s{S_T0}, 8"); a(f"s_add_u32 s{S_MST}, s{S_MST}, {LY.MEM+7168}")
    if FUSED:
        for r in (12,13,14,15,1): a(f"v_mov_b32 v{r}, 0")
        a(f"s_mov_b32 s{S_PC}, {LY.BRF if CK.NONCE else LY.BRDY}")
        if CK.NONCE:
            a(f"s_lshl_b32 s{S_MC}, s{S_J}, 7"); a(f"s_add_u32 s{S_MC}, s{S_MC}, {LY.MFF}"); a(f"v_mov_b32 v0, s{CK.S_N}")
        else:
            a(f"s_mov_b32 s{S_MC}, {LY.MCNT}"); a("v_mov_b32 v0, 1")
        a(f"s_add_u32 s{S_MX}, s{S_MST}, {LY.MEMX-LY.MEM}")
    def b_prefetch():
        for ct in range(2):
            a(f"s_add_u32 s{S_T0}, s{S_BF}, {ct*16384}")
            for a2 in range(4):
                a(f"buffer_load_dwordx4 {vr(BF+4*(a2*2+ct),4)}, v6, {W}, s{S_T0} offen offset:{a2*1024}")
        if EXP.get('warmP'):
            for a2 in range(4): a(f"buffer_load_dwordx4 {vr(PP+4*a2,4)}, v8, {W}, s{S_PX} offen offset:{a2*512} sc1")
            a(f"buffer_load_dwordx4 {vr(PP+16,4)}, v8, {W}, s{S_PM} offen sc1")
    def mf_store(off):
        fl="sc1" if FUSED else ""
        a(f"s_add_u32 s{S_T1}, s{S_MF}, {off}"); a(f"s_add_u32 s{S_T0}, s{S_MF}, {(off+4096)&0xffffffff}")
        a(f"buffer_store_dwordx4 {vr(MF,4)}, v6, {W}, s{S_T1} offen {fl}")
        a(f"buffer_store_dwordx4 {vr(MF+4,4)}, v6, {W}, s{S_T0} offen {fl}")
    def b_check():
        if FUSED:
            lp=a.newlabel("L_pc")
            def chk():
                if CK.NONCE:
                    a(f"v_xor_b32 v2, v0, v12"); a("v_xor_b32 v182, v0, v13"); a("v_or_b32 v2, v2, v182"); a("v_xor_b32 v182, v0, v14"); a("v_or_b32 v2, v2, v182"); a("v_xor_b32 v182, v0, v15"); a("v_or_b32 v2, v2, v182")
                    a("s_nop 0"); a(f"v_readfirstlane_b32 s{S_T0}, v2"); a("s_nop 3"); a(f"s_cmp_eq_u32 s{S_T0}, 0"); a(f"s_cbranch_scc1 {lp}_ok")
                else:
                    a("v_and_b32 v2, v12, v13"); a("v_and_b32 v2, v2, v14"); a("v_and_b32 v2, v2, v15"); a("s_nop 0"); a(f"v_readfirstlane_b32 s{S_T0}, v2"); a("s_nop 3")
                    a(f"s_cmp_eq_u32 s{S_T0}, 1"); a(f"s_cbranch_scc1 {lp}_ok")
            chk()
            a(f"s_mov_b32 s{S_CNT}, 0")
            a.label(lp)
            a(f"buffer_load_dwordx4 v[12:15], v1, {W}, s{S_PC} offen sc1"); a("s_waitcnt vmcnt(0)")
            chk()
            a("s_sleep 1"); a(f"s_add_u32 s{S_CNT}, s{S_CNT}, 1"); a(f"s_cmp_lt_u32 s{S_CNT}, {POLL_MAX}"); a(f"s_cbranch_scc1 {lp}")
            a(f"s_mov_b32 s{S_FAIL}, 1")
            a.label(lp+"_ok")
    if PRESTART:
        a("s_waitcnt vmcnt(0)"); PRESTART()
    b_check(); b_prefetch()
    for r in range(ACC,ACC+32): a(f"v_mov_b32 v{r}, 0")
    a("s_waitcnt vmcnt(0)")
    if timing: a("s_memtime s[40:41]")
    stamp_init(a)
    def zero_acc():
        for r in range(ACC,ACC+32): a(f"v_mov_b32 v{r}, 0")
        for r in range(OA,OA+8): a(f"v_mov_b32 v{r}, 0")
    if EXP.get('adapt'): a(f"s_mov_b32 s{S_K}, {EXP.get('preB',0)}"); a(f"s_mov_b32 s{S_KS}, 0"); a(f"s_mov_b32 s{S_O}, 1")
    _tiles=[(a2,ct) for a2 in range(4) for ct in range(2)]
    _seq=[((a2*2+ct),ks) for (a2,ct) in _tiles for ks in range(7)]
    _lds=[x for t in (6,7,5) for x in _seq if x[0]==t and x[0]*7+x[1]>=40]
    a.label(LB("L_vstep"))
    if EXP.get('upre',1):
        for k in range(3):
            fi=_lds[k][0]*7+_lds[k][1]
            a(f"ds_read_b128 {vr(UT+8*k,4)}, v7 offset:{(fi-40)*2048}"); a(f"ds_read_b128 {vr(UT+8*k+4,4)}, v7 offset:{(fi-40)*2048+1024}")
    if EXP.get('p2V'): mem_share2(a, PR, PP, 178, 179, EXP.get('gapA',2))
    else: mem_share(a, PR, 178, 179, sleep)
    for ks in range(7): a(f"ds_read_b128 {vr(MS+4*ks,4)}, v6 offset:{L_MEM+ks*1024}")
    if EXP.get('skew'):
        lk=a.newlabel("L_sk"); n=EXP['skew']
        for w in range(1,4):
            a(f"s_cmp_lt_u32 s{S_WAVE}, {w}"); a(f"s_cbranch_scc1 {lk}"); a.nop(n)
        a.label(lk)
    if EXP.get('bin'):
        if not EXP.get('bsplit'): b_check()
        a(f"s_add_u32 s{S_T2}, s{S_BF}, 16384")
    a(f"s_add_u32 s{S_T3}, s{S_PC}, 64")
    def store_window_a():
        l0=a.newlabel("L_sw")
        a(f"s_cmp_eq_u32 s{S_STEP}, 0"); a(f"s_cbranch_scc1 {l0}")
        mf_store(-28*4096 & 0xffffffff)
        a.label(l0)
    def store_window_b():
        if not FUSED: return
        lx=a.newlabel("L_mx")
        a(f"s_cmp_eq_u32 s{S_STEP}, 0"); a(f"s_cbranch_scc1 {lx}")
        a(f"s_cmp_lt_u32 s{S_WAVE}, 2"); a(f"s_cbranch_scc0 {lx}")
        a(f"s_sub_u32 s{S_T0}, s{S_MX}, 7168")
        a("s_mov_b32 exec_lo, 0x00ff00ff"); a("s_mov_b32 exec_hi, 0x00ff00ff")
        a(f"buffer_store_dwordx2 v[180:181], v11, {W}, s{S_T0} offen sc1"); a("s_mov_b64 exec, -1"); a("s_nop 3")
        a.label(lx)
    def store_window_c():
        if not FUSED: return
        lm=a.newlabel("L_mc")
        a(f"s_cmp_ge_u32 s{S_STEP}, 2"); a(f"s_cbranch_scc0 {lm}")
        a(f"s_cmp_eq_u32 s{S_WAVE}, 3"); a(f"s_cbranch_scc0 {lm}")
        a(f"s_sub_u32 s{S_T0}, s{S_MC}, {2*MINC()}"); a("s_mov_b64 exec, 1")
        a(MSIG(W,S_T0)); a("s_mov_b64 exec, -1"); a("s_nop 3")
        a.label(lm)
    def post_pair(ct,pr):
        ta=(2*pr)*2+ct; tb=(2*pr+1)*2+ct; o=[]
        for i in range(4): o.append(f"v_permlane32_swap_b32 v{ACC+4*ta+i}, v{ACC+4*tb+i}")
        for i in range(4): o.append(f"v_add_f32 v{ACC+4*ta+i}, v{ACC+4*ta+i}, v{ACC+4*tb+i}")
        o.append(f"v_cvt_pk_bf16_f32 v{MF+4*ct+2*pr}, v{ACC+4*ta}, v{ACC+4*ta+1}")
        o.append(f"v_cvt_pk_bf16_f32 v{MF+4*ct+2*pr+1}, v{ACC+4*ta+2}, v{ACC+4*ta+3}")
        return o
    tiles=[(a2,ct) for a2 in range(4) for ct in range(2)]
    seq=[]
    for (a2,ct) in tiles:
        for ks in range(7): seq.append(((a2*2+ct), ks))
    regseq=[x for x in seq if x[0]*7+x[1]<40]; ldsseq=[x for x in seq if x[0]*7+x[1]>=40]
    regseq=[x for t in (0,2,4,1,3,5) for x in regseq if x[0]==t]
    ldsseq=[x for t in (6,7,5) for x in ldsseq if x[0]==t]
    order=regseq[:7]; r=regseq[7:]; l=ldsseq[:]
    pat=EXP.get('mpat',2)
    while r or l:
        for _ in range(pat):
            if r: order.append(r.pop(0))
        if l: order.append(l.pop(0))
    ldsidx=[i for i,x in enumerate(order) if x[0]*7+x[1]>=40]
    last={}
    for i,(t,ks) in enumerate(order): last[t]=i
    cand=[((0,2),(0,0)),((1,3),(1,0)),((4,6),(0,1)),((5,7),(1,1))]
    cand=[(max(last[p[0]],last[p[1]])+9,cp) for p,cp in cand]
    cand.sort()
    early=[]; latep=[]
    for pos_,cp in cand:
        if pos_<=len(order)-4: early+=[(pos_,x) for x in post_pair(*cp)]
        else: latep+=post_pair(*cp)
    calls={2:store_window_a, 4:store_window_b, 5:store_window_c} if not (EXP.get('stA') or EXP.get('stP') or EXP.get('stL')) else {}
    if EXP.get('stL'):
        p0=EXP['stL']; calls={p0:store_window_a, p0+2:store_window_b, p0+3:store_window_c}
    bfill={}
    if EXP.get('bin'):
        pos=EXP.get('bpos',8); stp=EXP.get('bstep',2)
        for ct in ((1,) if EXP.get('bsplit') else (0,1)):
            for a2 in range(4):
                bfill[pos]=f"buffer_load_dwordx4 {vr(BF+4*(a2*2+ct),4)}, v6, {W}, s{S_BF if ct==0 else S_T2} offen offset:{a2*1024}"; pos+=stp
        if FUSED: bfill[pos]=f"buffer_load_dwordx4 v[12:15], v1, {W}, s{S_T3} offen sc1"
    elif FUSED: bfill[EXP.get('rpos',20)]=f"buffer_load_dwordx4 v[12:15], v1, {W}, s{S_T3} offen sc1"
    def ldsread(k):
        t,ks=order[ldsidx[k]]; fi=t*7+ks
        return [f"ds_read_b128 {vr(UT+8*(k%3),4)}, v7 offset:{(fi-40)*2048}", f"ds_read_b128 {vr(UT+8*(k%3)+4,4)}, v7 offset:{(fi-40)*2048+1024}"]
    issued=0
    for i,(t,ks) in enumerate(order):
        fi=t*7+ks
        b = ufrag(fi) if fi<40 else vr(UT+8*(ldsidx.index(i)%3),8)
        if i<7: a(f"s_waitcnt lgkmcnt({6-i})")
        if fi>=40 and not EXP.get('x_nolds'):
            k=ldsidx.index(i)
            a(f"s_waitcnt lgkmcnt({2*(issued-1-k)})")
        a(f"v_smfmac_f32_16x16x64_bf16 {vr(ACC+4*t,4)}, {vr(MS+4*ks,4)}, {b}, v3")
        if i in calls and not EXP.get('x_novm'): calls[i]()
        if i in bfill and not EXP.get('x_nob'): a(bfill[i])
        if i==6:
            if not EXP.get('upre',1):
                for k in range(3):
                    for x in ldsread(k): a(x)
            issued=3
        if fi>=40 and not EXP.get('x_nolds'):
            k=ldsidx.index(i)
            if issued<len(ldsidx) and issued==k+3:
                for x in ldsread(issued): a(x)
                issued+=1
        for _ in range(3):
            if early and early[0][0]<=i: a(early.pop(0)[1])
    stamp(a,2)
    for _,x in early: a(x)
    a.nop(8)
    for x in latep: a(x)
    a(f"s_cmp_eq_u32 s{S_STEP}, {nsteps-1}"); a("s_cbranch_scc0 "+LB("L_v_cont"))
    mf_store(0)
    if FUSED:
        a("s_waitcnt vmcnt(0)"); a("s_barrier")
        a(f"s_cmp_eq_u32 s{S_WAVE}, 0"); a("s_cbranch_scc0 L_fin")
        a(f"s_sub_u32 s{S_T0}, s{S_MC}, {MINC()}"); a("s_mov_b64 exec, 1")
        a(MSIG(W,S_T0)); a(MSIG(W,S_MC)); a("s_mov_b64 exec, -1")
    a("s_branch L_fin")
    a.label(LB("L_v_cont"))
    if EXP.get('stP'):
        pass
    if not EXP.get('p2B'):
        for r in range(ACC,ACC+32): a(f"v_mov_b32 v{r}, 0")
    stamp(a,3)
    def mk(b): return [f"buffer_load_dwordx4 {vr(b,4)}, v8, {W}, s{S_PX} offen sc1", f"buffer_load_dwordx4 {vr(b+4,4)}, v8, {W}, s{S_PX} offen offset:1024 sc1",
                       f"buffer_load_dwordx2 {vr(b+8,2)}, v187, {W}, s{S_PM} offen sc1"]
    if EXP.get('adapt'): adapt_sleep(a)
    elif EXP.get('preB'): a(f"s_sleep {EXP['preB']}")
    Y=PP+10
    def pw(b):
        stamp(a,4)
        dpp=lambda d,sr_: a(f"v_mov_b32_dpp v{d}, v{sr_} row_ror:8 row_mask:0xf bank_mask:0xf")
        first={0:True,1:True}
        def mm(ct,A,B):
            c = "0" if first[ct] else vr(OA+4*ct,4); first[ct]=False
            a(f"v_mfma_f32_16x16x32_bf16 {vr(OA+4*ct,4)}, {A}, {B}, {c}")
        mm(0,vr(BF+4*(0*2+0),4),vr(b,4));
        for i in range(3): dpp(Y+i,b+i)
        mm(1,vr(BF+4*(0*2+1),4),vr(b,4))
        dpp(Y+3,b+3); dpp(Y+4,b+4); dpp(Y+5,b+5)
        mm(0,vr(BF+4*(2*2+0),4),vr(b+4,4))
        dpp(Y+6,b+6); dpp(Y+7,b+7); a(f"v_mov_b32 v188, v{b+8}")
        mm(1,vr(BF+4*(2*2+1),4),vr(b+4,4))
        a(f"v_mov_b32 v189, v{b+9}"); dpp(190,b+8); dpp(191,b+9)
        mm(0,vr(BF+4*(1*2+0),4),vr(Y,4)); mm(1,vr(BF+4*(1*2+1),4),vr(Y,4))
        mm(0,vr(BF+4*(3*2+0),4),vr(Y+4,4)); mm(1,vr(BF+4*(3*2+1),4),vr(Y+4,4))
        mm(0,vr(MF,4),"v[188:191]"); mm(1,vr(MF+4,4),"v[188:191]")
    if EXP.get('p2B'):
        poll2(a, mk, [PP, ACC], 10, 176, 177, pw, EXP.get('gapB',2))
    else:
        poll_loop(a, mk(PP), range(PP,PP+10), 176, 177, sleep)
        pw(PP)
    a.nop(8)
    a(f"ds_write_b128 v9, {vr(OA,4)}"); a(f"ds_write_b128 v9, {vr(OA+4,4)} offset:1024")
    a("s_waitcnt lgkmcnt(0)")
    stamp(a,5)
    a("s_barrier")
    stamp(a,6)
    a(f"s_cmp_lt_u32 s{S_WAVE}, 2"); a("s_cbranch_scc0 "+LB("L_v_nored"))
    RT=UT
    for w in range(4): a(f"ds_read_b128 {vr(RT+4*w,4)}, v10 offset:{w*2048}")
    a("s_waitcnt lgkmcnt(2)")
    for i in (0,2): a(f"v_pk_add_f32 {vr(RT+i,2)}, {vr(RT+i,2)}, {vr(RT+4+i,2)}")
    a("s_waitcnt lgkmcnt(0)")
    for i in (0,2): a(f"v_pk_add_f32 {vr(RT+8+i,2)}, {vr(RT+8+i,2)}, {vr(RT+12+i,2)}")
    for i in (0,2): a(f"v_pk_add_f32 {vr(RT+i,2)}, {vr(RT+i,2)}, {vr(RT+8+i,2)}")
    a(f"v_cvt_pk_bf16_f32 v180, v{RT}, v{RT+1}"); a(f"v_cvt_pk_bf16_f32 v181, v{RT+2}, v{RT+3}")
    a("s_mov_b32 exec_lo, 0x00ff00ff"); a("s_mov_b32 exec_hi, 0x00ff00ff")
    a(f"buffer_store_dwordx2 v[180:181], v11, {W}, s{S_MST} offen {XST()}")
    if FUSED and not EXP.get('stA'):
        le=a.newlabel("L_mxe")
        a(f"s_cmp_eq_u32 s{S_STEP}, {nsteps-2}"); a(f"s_cbranch_scc0 {le}")
        a(f"buffer_store_dwordx2 v[180:181], v11, {W}, s{S_MX} offen sc1")
        a.label(le)
    a("s_mov_b64 exec, -1")
    a.label(LB("L_v_nored"))
    stamp(a,7)
    a("s_barrier")
    if EXP.get('adapt'): adapt_update(a, 12)
    if EXP.get('p2B'):
        lv=a.newlabel("L_vw")
        a(f"s_cmp_lt_u32 s{S_WAVE}, 2"); a(f"s_cbranch_scc1 {lv}"); a("s_waitcnt vmcnt(0)"); a(f"s_branch {lv}_e")
        a.label(lv)
        a("s_waitcnt vmcnt(1)")
        a.label(lv+"_e")
        for r in range(ACC,ACC+32): a(f"v_mov_b32 v{r}, 0")
    a(f"s_add_u32 s{S_STEP}, s{S_STEP}, 1")
    a(f"s_add_u32 s{S_MEMOFF}, s{S_MEMOFF}, 7168"); a(f"s_add_u32 s{S_MST}, s{S_MST}, 7168")
    a(f"s_add_u32 s{S_PX}, s{S_PX}, 8192"); a(f"s_add_u32 s{S_PM}, s{S_PM}, 2048")
    a(f"s_add_u32 s{S_BF}, s{S_BF}, {28*16384}"); a(f"s_add_u32 s{S_MF}, s{S_MF}, {28*4096}")
    if FUSED:
        a(f"s_add_u32 s{S_PC}, s{S_PC}, 64"); a(f"s_add_u32 s{S_MC}, s{S_MC}, {MINC()}"); a(f"s_add_u32 s{S_MX}, s{S_MX}, 7168")
    if EXP.get('stA'):
        mf_store(-28*4096 & 0xffffffff)
        if FUSED:
            lx=a.newlabel("L_mx")
            a(f"s_cmp_lt_u32 s{S_WAVE}, 2"); a(f"s_cbranch_scc0 {lx}")
            a(f"s_sub_u32 s{S_T0}, s{S_MX}, 7168")
            a("s_mov_b32 exec_lo, 0x00ff00ff"); a("s_mov_b32 exec_hi, 0x00ff00ff")
            a(f"buffer_store_dwordx2 v[180:181], v11, {W}, s{S_T0} offen sc1"); a("s_mov_b64 exec, -1")
            a.label(lx)
            lm=a.newlabel("L_mc")
            a(f"s_cmp_ge_u32 s{S_STEP}, 2"); a(f"s_cbranch_scc0 {lm}")
            a(f"s_cmp_eq_u32 s{S_WAVE}, 3"); a(f"s_cbranch_scc0 {lm}")
            a(f"s_sub_u32 s{S_T0}, s{S_MC}, {2*MINC()}"); a("s_mov_b64 exec, 1")
            a(MSIG(W,S_T0)); a("s_mov_b64 exec, -1")
            a.label(lm)
    if not EXP.get('bin'): b_check(); b_prefetch()
    elif EXP.get('bsplit'):
        b_check()
        for a2 in range(4): a(f"buffer_load_dwordx4 {vr(BF+4*(a2*2),4)}, v6, {W}, s{S_BF} offen offset:{a2*1024}")
    stamp(a,8)
    a(f"s_cmp_eq_u32 s{S_FAIL}, 0"); a("s_cbranch_scc1 "+LB("L_vstep"))
    a("s_branch L_fin")

def prefetch_role(a, nsteps=64, ahead=3):
    W=f"s[{S_WS}:{S_WS+3}]"
    if PRESTART: PRESTART()
    a(f"s_sub_u32 s36, s{S_RANK}, 30"); a("s_lshl_b32 s44, s36, 2"); a(f"s_add_u32 s44, s44, s{S_WAVE}")
    a(f"s_mov_b32 s{S_STEP}, 0")
    a("v_mov_b32 v9, 0")
    if FUSED and CK.NONCE:
        a("s_cmp_eq_u32 s44, 4"); a("s_cbranch_scc0 L_pfw")
        a(f"s_mov_b32 s{S_PC}, {LY.PF}"); a(f"s_mov_b32 s46, {LY.BRF}")
        for r in range(28,32): a(f"v_mov_b32 v{r}, s{CK.S_N}")
        a.label("L_bf")
        CK.wait_flags(a, W, S_PC, 112, 20, 22, "v_mov_b32 v20, v1", S_CNT, sleep=2)
        lb=a.newlabel("L_br")
        a(f"s_cmp_eq_u32 s42, 0"); a("s_mov_b64 exec, 1"); a(f"s_cbranch_scc0 {lb}")
        a(f"buffer_store_dwordx4 v[28:31], v9, {W}, s46 offen"); a(f"s_branch {lb}_e")
        a.label(lb); a(f"buffer_store_dwordx4 v[28:31], v9, {W}, s46 offen sc1")
        a.label(lb+"_e"); a("s_mov_b64 exec, -1")
        a(f"s_add_u32 s{S_PC}, s{S_PC}, 512"); a("s_add_u32 s46, s46, 64")
        a(f"s_add_u32 s{S_STEP}, s{S_STEP}, 1"); a(f"s_cmp_lt_u32 s{S_STEP}, {nsteps}"); a("s_cbranch_scc1 L_bf")
        a("s_branch L_fin")
        a.label("L_pfw")
    a("s_cmp_gt_u32 s44, 4"); a("s_cselect_b32 s45, 1, 0"); a("s_sub_u32 s45, s44, s45")
    NI=EXP.get('pfn',0)
    for i in range(NI):
        a(f"s_mul_i32 s47, s45, {NI}"); a(f"s_add_u32 s47, s47, {i}"); a("s_lshl_b32 s47, s47, 6"); a("v_add_u32 v10, s47, v1")
        a("v_and_b32 v11, 7, v10"); a("v_lshrrev_b32 v12, 3, v10")
        a("v_mul_u32_u24 v13, 5462, v12"); a("v_lshrrev_b32 v13, 16, v13")
        a("v_mul_u32_u24 v14, 12, v13"); a("v_sub_u32 v14, v12, v14")
        a("v_mul_u32_u24 v15, 21846, v14"); a("v_lshrrev_b32 v15, 16, v15")
        a("v_add_u32 v14, v14, v15")
        a("v_lshlrev_b32 v13, 14, v13"); a("v_lshlrev_b32 v14, 10, v14"); a("v_lshlrev_b32 v11, 7, v11")
        a("v_add_u32 v13, v13, v14"); a(f"v_add_u32 v{32+i}, v13, v11")
    a("v_lshlrev_b32 v7, 7, v1")
    a(f"s_mov_b32 s{S_BF}, {LY.BFRAG}"); a(f"s_mov_b32 s{S_XS}, {LY.HFRAG}"); a(f"s_mov_b32 s{S_PX}, {LY.PX}"); a(f"s_mov_b32 s{S_PM}, {LY.PM}")
    a(f"s_mov_b32 s{S_MEMOFF}, {LY.MEM}"); a("v_mov_b32 v8, 7164")
    a(f"s_mov_b32 s46, {LY.BRF if CK.NONCE else LY.BRDY}")
    a.label("L_pf")
    a(f"s_cmp_lt_u32 s{S_STEP}, {ahead+1}"); a("s_cbranch_scc1 L_pf_go")
    a(f"s_add_u32 s{S_MEMOFF}, s{S_MEMOFF}, 7168")
    a(f"s_mov_b32 s{S_CNT}, 0")
    a.label("L_pf_w")
    a(f"buffer_load_dword v10, v8, {W}, s{S_MEMOFF} offen sc1"); a("s_waitcnt vmcnt(0)")
    a("v_cmp_eq_u32 vcc, -1, v10"); a("s_cbranch_vccz L_pf_go")
    a("s_sleep 2")
    a(f"s_add_u32 s{S_CNT}, s{S_CNT}, 1"); a(f"s_cmp_lt_u32 s{S_CNT}, {POLL_MAX}"); a("s_cbranch_scc1 L_pf_w")
    a("s_branch L_fin")
    a.label("L_pf_go")
    if FUSED and CK.NONCE:
        a(f"s_mov_b32 s{S_CNT}, 0")
        a.label("L_pf_b")
        a(f"buffer_load_dword v10, v9, {W}, s46 offen sc1"); a("s_waitcnt vmcnt(0)"); a(f"v_cmp_ne_u32 vcc, s{CK.S_N}, v10"); a("s_cbranch_vccz L_pf_bo")
        a("s_sleep 2"); a(f"s_add_u32 s{S_CNT}, s{S_CNT}, 1"); a(f"s_cmp_lt_u32 s{S_CNT}, {POLL_MAX}"); a("s_cbranch_scc1 L_pf_b")
        a("s_branch L_fin")
        a.label("L_pf_bo")
        a("s_add_u32 s46, s46, 64")
    if not (FUSED and not CK.NONCE):
        for i in range(NI): a(f"buffer_load_dword v{48+i}, v{32+i}, {W}, s{S_BF} offen")
    a(f"s_lshl_b32 s{S_T0}, s45, 13"); a(f"s_add_u32 s{S_T0}, s{S_T0}, s{S_XS}")
    a(f"s_mul_i32 s{S_T1}, s{S_STEP}, 7168"); a(f"s_add_u32 s{S_T1}, s{S_T1}, {LY.MEM+7168}")
    a("s_cmp_eq_u32 s45, 4"); a(f"s_cselect_b32 s{S_T0}, s{S_PX}, s{S_T0}"); a("s_cmp_eq_u32 s45, 5"); a(f"s_cselect_b32 s{S_T0}, s{S_PM}, s{S_T0}"); a("s_cmp_eq_u32 s45, 6"); a(f"s_cselect_b32 s{S_T0}, s{S_T1}, s{S_T0}")
    a(f"buffer_load_dword v18, v7, {W}, s{S_T0} offen")
    a("s_waitcnt vmcnt(0)")
    a(f"s_add_u32 s{S_BF}, s{S_BF}, {28*16384}"); a(f"s_add_u32 s{S_XS}, s{S_XS}, 28672"); a(f"s_add_u32 s{S_PX}, s{S_PX}, 8192"); a(f"s_add_u32 s{S_PM}, s{S_PM}, 2048")
    a(f"s_add_u32 s{S_STEP}, s{S_STEP}, 1"); a(f"s_cmp_lt_u32 s{S_STEP}, {nsteps}"); a("s_cbranch_scc1 L_pf")
    a("s_branch L_fin")

def gen_rec(timing=True, sleep=0, target_xcc=0):
    a=Asm()
    common_prologue(a, target_xcc, 32 if EXP.get('pf') else 30)
    a(f"s_cmp_ge_u32 s{S_RANK}, 30"); a("s_cbranch_scc1 L_pref")
    a(f"s_cmp_ge_u32 s{S_RANK}, 16"); a("s_cbranch_scc1 L_value")
    global LANEREG
    LANEREG={0:2,1:1,6:0}
    score_role(a, timing, sleep)
    a.label("L_value")
    LANEREG={4:12,7:13,0:14,3:15}
    value_role(a, timing, sleep)
    a.label("L_pref")
    a("s_memtime s[40:41]")
    prefetch_role(a, ahead=EXP.get('ahead',3))
    a.label("L_fin")
    stamp_out(a)
    if timing:
        a("s_memtime s[42:43]"); a("s_waitcnt lgkmcnt(0)")
        a("s_sub_u32 s42, s42, s40")
        a("v_mov_b32 v20, s42"); a(f"v_mov_b32 v21, s{S_FAIL}")
        a(f"s_lshl_b32 s44, s{S_RANK}, 3"); a("s_add_u32 s44, s44, 8"); a("v_mov_b32 v22, s44")
        a("v_cmp_eq_u32 vcc, 0, v4"); a(f"s_and_saveexec_b64 s[{S_EX}:{S_EX+1}], vcc")
        a(f"buffer_store_dwordx2 v[20:21], v22, s[{S_DBG}:{S_DBG+3}], 0 offen")
        a(f"s_mov_b64 exec, s[{S_EX}:{S_EX+1}]")
    a("s_waitcnt vmcnt(0)")
    a.label("L_exit")
    return a.text()
if __name__=="__main__":
    t=gen_rec()
    open("rec_body.s","w").write(t); print(len(t.splitlines()))
```

```python
from tutil import *
import common_k as CK
import re, k0, k0n, k0p, k1, rec, xf, tail, mainK, layout as LY
def uniq(body,tag): return re.sub(r"\bL_(\w+)", lambda m: f"L{tag}_{m.group(1)}", body)
def kernels():
    rec.STAMP=('lane' if os.environ.get('STAMP') else False); rec.EXP={'pf':1,'bin':1,'bpos':10,'bstep':4,'p2B':1,'gapB':3,'preB':4,'preA':14,'p2A':1,'gapA':2}
    if os.environ.get('EXP'): rec.EXP.update(eval(os.environ['EXP'])); rec.EXP={k:v for k,v in rec.EXP.items() if v}
    CK.NONCE=True; mainK.V5=True
    return [("main_kernel",uniq(mainK.gen_main(fk0=True),"m"),256,163840,512,256)]
HDR=open("adaLN_cond__memory_aug_recurrent_mem_tr__moe_arch_mod__prompt.s.ref").read().split("; Override launch")[0]
def make(): return HDR+mkfile(kernels())
if __name__=="__main__":
    asm=make()
    if not on_gpu():
        check_local(asm,[k[0] for k in kernels()]); open("full5.s","w").write(asm); print(len(asm))
```
